```python
import torch

def _softmax(x, axis=-1):
    return torch.softmax(x, dim=axis)
def _gelu(x):
    return torch.nn.functional.gelu(x, approximate="tanh")
def _silu(x):
    return torch.nn.functional.silu(x)
def _sigmoid(x):
    return torch.sigmoid(x)
def _layernorm(x, axis=-1, eps=1e-5):
    m = x.mean(dim=axis, keepdim=True)
    v = x.var(dim=axis, keepdim=True, unbiased=False)
    return (x - m) / torch.sqrt(v + eps)
def _scatter_add(tgt, idx, src, axis=0):
    return tgt.clone().index_add_(axis, idx, src)
def _segment_sum(src, seg, n):
    out = torch.zeros((n,) + src.shape[1:], dtype=src.dtype)
    return out.index_add_(0, seg, src)
def _pad(x, pw):
    flat = tuple(v for pair in reversed(pw) for v in pair)
    return torch.nn.functional.pad(x, flat)

kernel_name = 'sequential_preLN__spectral_gfnet__mixer_s_mlp__prompt'

def setup_inputs():

    _w = (lambda a: (lambda t: t.to(torch.bfloat16) if t.is_floating_point() else t)(torch.as_tensor(a)))
    def _A_setup():
        B, S, D = 1, 2048, 576
        Df = D // 2 + 1
        return {
            "x": _w((lambda *s: torch.randn(*s, dtype=torch.bfloat16) * 0.05)(B, S, D)),
            "w_r": _w((lambda *s: torch.randn(*s, dtype=torch.bfloat16) * 0.4)(S, Df) * 0.02),
            "w_i": _w((lambda *s: torch.randn(*s, dtype=torch.bfloat16) * 0.4)(S, Df) * 0.02),
        }
    _A_in = _A_setup()

    def _B_setup():
        B, S, D, F = 1, 2048, 576, 4608
        return {
            "x":  _w((lambda *s: torch.randn(*s, dtype=torch.bfloat16) * 0.05)(B, S, D)),
            "w1": _w((lambda *s: torch.randn(*s, dtype=torch.bfloat16) * 0.8)(D, D) * (D ** -0.5)),
            "w2": _w((lambda *s: torch.randn(*s, dtype=torch.bfloat16) * 0.8)(D, D) * (D ** -0.5)),
            "w3": _w((lambda *s: torch.randn(*s, dtype=torch.bfloat16) * 0.8)(D, F) * (D ** -0.5)),
            "w4": _w((lambda *s: torch.randn(*s, dtype=torch.bfloat16) * 0.8)(F, D) * (F ** -0.5)),
        }
    _B_in = _B_setup()

    return {
        "A_x": _A_in["x"],
        "A_w_r": _A_in["w_r"],
        "A_w_i": _A_in["w_i"],
        "B_x": _B_in["x"],
        "B_w1": _B_in["w1"],
        "B_w2": _B_in["w2"],
        "B_w3": _B_in["w3"],
        "B_w4": _B_in["w4"],
    }

def reference(A_x, A_w_r, A_w_i, B_x, B_w1, B_w2, B_w3, B_w4):
    def _A_ref(x, w_r, w_i):
        B, S, D = x.shape
        X = (lambda x, axes=(-2,-1): torch.fft.rfft2(x.float(), dim=axes))(x, axes=(-2, -1))
        W = w_r + 1j * w_i
        X = X * W
        y = (lambda x, s, axes=(-2,-1): torch.fft.irfft2(x, s=s, dim=axes).to(torch.bfloat16))(X, (S, D), axes=(-2, -1))
        return y

    def _B_ref(x, w1, w2, w3, w4):
        B, S, D = x.shape
        h = _gelu(_layernorm(x, axis=-1) @ w1)
        c = D // 4
        g0 = _pad(h[:, :, 0*c:1*c], ((0, 0), (1, 0), (0, 0)))[:, :S, :]
        g1 = _pad(h[:, :, 1*c:2*c], ((0, 0), (0, 1), (0, 0)))[:, 1:, :]
        g2 = _pad(h[:, :, 2*c:3*c], ((0, 0), (2, 0), (0, 0)))[:, :S, :]
        g3 = _pad(h[:, :, 3*c:   ], ((0, 0), (0, 2), (0, 0)))[:, 2:, :]
        hs = torch.concatenate([g0, g1, g2, g3], axis=-1) @ w2
        x1 = x + hs
        h2 = _gelu(_layernorm(x1, axis=-1) @ w3) @ w4
        return x1 + h2

    x = A_x
    h = x + _A_ref(_layernorm(x, axis=-1), A_w_r, A_w_i)
    h2 = h + _B_ref(_layernorm(h, axis=-1), B_w1, B_w2, B_w3, B_w4)
    return h2
```

```python
import math, struct
S, D, F = 2048, 576, 4608
A_ = 2359296
UT, VT, HC, H1S, X6, WT, PART = 0, A_, 2*A_, 3*A_, 4*A_, 5*A_, 6*A_
W3P = 15*A_
W4P = W3P + 5308416
W1P = W4P + 5308416
W2P = W1P + 663552
MX = W2P + 37*18432
SQH = MX + 8192
SQ1 = SQH + 131072
WS_END = SQ1 + 131072
WS_SIZE = 268435456
EPS = 1e-5

def f2u(x):
    return struct.unpack("<I", struct.pack("<f", x))[0]
def fhex(x):
    return "0x%08x" % f2u(x)
def bf16_bits(x):
    u = f2u(x)
    return ((u + 0x7FFF + ((u >> 16) & 1)) >> 16) & 0xFFFF

class Em:
    def __init__(self):
        self.L = []; self.vm = []; self.lg = []; self.uid = 0
        self.kds = []; self.launch = []
    def __call__(self, s):
        for l in s.strip("\n").split("\n"):
            self.L.append("    " + l.strip() if not l.strip().endswith(":") else l.strip())
    def label(self, b):
        self.uid += 1
        return f"L_{b}_{self.uid}"
    def vmop(self, s, tag):
        if len(self.vm) >= 62:
            self("s_waitcnt vmcnt(48)"); self.vm = self.vm[-48:]
        self(s); self.vm.append(tag)
    def lgop(self, s, tag):
        self(s); self.lg.append(tag)
    def _need(self, q, tags, mx):
        if not isinstance(tags, (list, tuple)) or (isinstance(tags, tuple)): tags = [tags]
        idx = -1
        for t in tags:
            for i in range(len(q) - 1, -1, -1):
                if q[i] == t:
                    idx = max(idx, i); break
        if idx < 0: return None
        n = len(q) - 1 - idx
        n = min(n, mx)
        del q[:len(q) - n]
        return n
    def wait(self, vm=None, lg=None):
        parts = []
        if vm is not None:
            n = 0 if vm == "all" else self._need(self.vm, vm, 63)
            if vm == "all":
                n = 0 if self.vm else None; self.vm = []
            if n is not None: parts.append(f"vmcnt({n})")
        if lg is not None:
            if lg == "all":
                n = 0 if self.lg else None; self.lg = []
            else:
                n = self._need(self.lg, lg, 15)
            if n is not None: parts.append(f"lgkmcnt({n})")
        if parts: self("s_waitcnt " + " ".join(parts))
        return bool(parts)
    def srd(self, d, base, nbytes):
        self(f"s_mov_b32 s{d}, s{base}\ns_and_b32 s{d+1}, s{base+1}, 0xffff\ns_mov_b32 s{d+2}, {nbytes}\ns_mov_b32 s{d+3}, 0x00020000")
    def begin(self, name):
        self.vm = []; self.lg = []
        self.L.append(f".globl {name}\n.p2align 8\n.type {name},@function\n{name}:")
    def end(self, name, vgpr, accum, sgpr=96):
        self("s_endpgm")
        self.kds.append(f""".amdhsa_kernel {name}
  .amdhsa_next_free_vgpr {vgpr}
  .amdhsa_next_free_sgpr {sgpr}
  .amdhsa_accum_offset {accum}
  .amdhsa_group_segment_fixed_size 0
  .amdhsa_kernarg_size 88
  .amdhsa_user_sgpr_count 2
  .amdhsa_user_sgpr_kernarg_segment_ptr 1
  .amdhsa_system_sgpr_workgroup_id_x 1
  .amdhsa_float_denorm_mode_32 3
.end_amdhsa_kernel""")
    def add_launch(self, name, grid, block=256, lds=0):
        self.launch.append(f"; @launch kernel={name} grid=({grid},1,1) block=({block},1,1) lds={lds}")

def vr(b, n=4, k="v"):
    return f"{k}[{b}:{b+n-1}]" if n > 1 else f"{k}{b}"

def castab():
    out = []
    for i in range(576):
        a = 2*math.pi*i/576
        out.append(f".set cs{i}, 0x{bf16_bits(math.cos(a)+math.sin(a)):04x}")
    out.append(""".altmacro
.macro E8 qz0, qz1, qz2, qz3, qz4, qz5, qz6, qz7
.long cs\\qz0 | (cs\\qz1 << 16), cs\\qz2 | (cs\\qz3 << 16), cs\\qz4 | (cs\\qz5 << 16), cs\\qz6 | (cs\\qz7 << 16)
.endm
.p2align 12
castab:
.set tj, 0
.rept 36
.set tk, 0
.rept 18
.set tl, 0
.rept 64
.set ta, 16*tj + (tl & 15)
.set tb, 32*tk + 8*(tl >> 4)
E8 %((ta*tb) % 576), %((ta*(tb+1)) % 576), %((ta*(tb+2)) % 576), %((ta*(tb+3)) % 576), %((ta*(tb+4)) % 576), %((ta*(tb+5)) % 576), %((ta*(tb+6)) % 576), %((ta*(tb+7)) % 576)
.set tl, tl+1
.endr
.set tk, tk+1
.endr
.set tj, tj+1
.endr
.noaltmacro""")
    return "\n".join(out)

HEADER = """; Kernarg layout for this problem (88 bytes, ptrs only, base s[0:1]):
;
; Algorithm (two launches, all matrix products on v_mfma_f32_16x16x32_bf16, fp32 accumulation):
;      written, and sc1 loads after the flag was seen."""

def finish(e):
    out = [HEADER] + e.launch + ['.amdgcn_target "amdgcn-amd-amdhsa--gfx950"', ".text"] + e.L
    out += ['.section .rodata,"a"']
    for k in e.kds:
        out += [".p2align 6", k]
    out += [castab()]
    return "\n".join(out) + "\n"
```

```python
import re
TRANS = ("v_exp_f32","v_log_f32","v_rcp_f32","v_rsq_f32","v_sqrt_f32","v_sin_f32","v_cos_f32")
def regs(tok):
    tok = tok.strip()
    neg = tok.startswith("-"); tok = tok.lstrip("-")
    if tok.startswith("abs(") : tok = tok[4:-1]
    if tok.startswith("|"): tok = tok.strip("|")
    m = re.fullmatch(r"([vas])(\d+)", tok)
    if m: return {(m.group(1), int(m.group(2)))}
    m = re.fullmatch(r"([vas])\[(\d+):(\d+)\]", tok)
    if m: return {(m.group(1), i) for i in range(int(m.group(2)), int(m.group(3))+1)}
    if tok == "vcc": return {("s","vcc")}
    if tok == "m0": return {("s","m0")}
    if tok == "exec": return {("s","exec")}
    return set()
class I: pass
def parse(line):
    line = line.split(";")[0].strip()
    if not line or line.endswith(":") or line.startswith("."): return None
    p = line.split(None, 1)
    op = p[0]; rest = p[1] if len(p) > 1 else ""
    ops = [o for o in re.split(r",\s*", rest)] if rest else []
    if ops:
        last = ops[-1].split()
        ops[-1] = last[0] if last else ""
        mods = last[1:]
    else: mods = []
    i = I(); i.op = op; i.line = line; i.mods = " ".join(mods); i.ops = ops
    i.w = set(); i.r = set(); i.kind = "other"; i.srcC=set(); i.srcAB=set(); i.sdata=set()
    base = op.replace("_e32","").replace("_e64","").replace("_dpp","").replace("_sdwa","")
    i.base = base
    if op.startswith("v_mfma"):
        i.kind = "mfma"; i.w = regs(ops[0]); i.srcAB = regs(ops[1]) | regs(ops[2]); i.srcC = regs(ops[3]); i.r = i.srcAB | i.srcC
        i.passes = 8 if "32x32" in op else 4
    elif op.startswith("v_cmp"):
        i.kind = "valu"; i.w = regs(ops[0]); i.r = set().union(*[regs(o) for o in ops[1:]])
    elif op.startswith("v_readfirstlane") or op.startswith("v_readlane"):
        i.kind = "valu"; i.w = regs(ops[0]); i.r = set().union(*[regs(o) for o in ops[1:]])
    elif op.startswith("v_permlane"):
        i.kind = "valu"; i.w = regs(ops[0]) | regs(ops[1]); i.r = set(i.w)
    elif op.startswith("v_"):
        i.kind = "valu"; i.w = regs(ops[0]); srcs = ops[1:]
        if base in ("v_add_co_u32","v_addc_co_u32","v_sub_co_u32"): i.w |= regs(ops[1]); srcs = ops[2:]
        i.r = set().union(*[regs(o) for o in srcs]) if srcs else set()
        if base in ("v_fmac_f32","v_dot2c_f32_bf16"): i.r |= i.w
        if base == "v_cndmask_b32" and len(ops) == 4: pass
    elif op.startswith("buffer_") or op.startswith("global_"):
        i.kind = "vmem"
        if op in ("buffer_inv","buffer_wbl2"): return i
        if "lds" in mods or op.startswith("global_load_lds"):
            i.r = set().union(*[regs(o) for o in ops]) | {("s","m0")}; i.dma = True
        elif "load" in op:
            i.w = regs(ops[0]); i.r = set().union(*[regs(o) for o in ops[1:]])
        else:
            i.r = set().union(*[regs(o) for o in ops])
            if op.startswith("buffer_store"): i.sdata = regs(ops[0])
            elif op.startswith("global_store"): i.sdata = regs(ops[1])
            i.wide = ("x4" in op or "x3" in op)
    elif op.startswith("ds_"):
        i.kind = "ds"
        if "read" in op or "permute" in op or "swizzle" in op:
            i.w = regs(ops[0]); i.r = set().union(*[regs(o) for o in ops[1:]])
        else:
            i.r = set().union(*[regs(o) for o in ops])
    elif op.startswith("s_"):
        i.kind = "salu"
        if op in ("s_nop","s_waitcnt","s_barrier","s_endpgm","s_sleep","s_setprio") or op.startswith("s_cbranch") or op.startswith("s_branch") or op.startswith("s_cmp"):
            i.r = set().union(*[regs(o) for o in ops]) if op.startswith("s_cmp") else set()
        else:
            i.w = regs(ops[0]); i.r = set().union(*[regs(o) for o in ops[1:]]) if len(ops) > 1 else set()
    return i
def states(i):
    if i.op == "s_nop": return int(i.ops[0], 0) + 1
    return 1
def check(lines, window=24):
    ins = [(n, parse(l)) for n, l in enumerate(lines)]
    ins = [(n, i) for n, i in ins if i is not None]
    errs = []
    for idx, (n, c) in enumerate(ins):
        d = 0
        for back in range(idx - 1, max(-1, idx - window - 1), -1):
            pn, p = ins[back]
            if p.op in ("s_endpgm", "s_branch"): break
            need = 0; why = ""
            vr = {x for x in c.r if x[0] in "va"}; vw = {x for x in c.w if x[0] in "va"}
            if p.kind == "valu":
                pw = p.w
                pv = {x for x in pw if x[0] in "va"}; ps = {x for x in pw if x[0] == "s"}
                if c.kind == "mfma" and pv & c.r: need, why = max(need, 2), "valu->mfma"
                if p.base in TRANS and c.kind == "valu" and c.base not in TRANS and pv & c.r: need, why = max(need,1), "trans->valu"
                if p.base in TRANS and c.kind in ("vmem","ds") and pv & c.r: need, why = max(need,1), "trans->mem"
                if c.kind == "valu" and (c.op.startswith("v_permlane") or "dpp" in c.op or "row_" in c.mods or "quad_perm" in c.mods) and pv & c.r: need, why = max(need,2), "valu->permlane/dpp"
                if c.kind == "valu" and (c.op.startswith("v_readfirstlane") or c.op.startswith("v_readlane")) and pv & c.r: need, why = max(need,1), "valu->readlane"
                if ps:
                    if c.kind == "vmem" and ps & c.r: need, why = max(need,5), "valu sgpr->vmem"
                    if c.kind == "valu" and ps & c.r: need, why = max(need,2), "valu sgpr->valu"
                    if c.kind == "valu" and c.base == "v_cndmask_b32" and ("s","vcc") in ps and len(c.ops)==4 and c.ops[3]=="vcc": need, why = max(need,2), "vcc->cndmask"
                    if c.kind == "salu" and ps & c.r: need, why = max(need,1), "valu sgpr->salu(pad)"
            if p.kind == "mfma":
                n1 = 12 if p.passes == 8 else 8
                n2 = 10 if p.passes == 8 else 6
                n3 = 7 if p.passes == 8 else 3
                if c.kind == "mfma":
                    if p.w & c.srcAB: need, why = max(need, n1), "mfmaD->mfmaAB"
                    if p.w & c.srcC and not (p.w == c.srcC and p.passes == c.passes): need, why = max(need, n2), "mfmaD->mfmaC partial"
                elif c.kind in ("valu","vmem","ds"):
                    if p.w & (vr | vw): need, why = max(need, n1), "mfmaD->valu/mem"
                    if c.kind == "valu" and p.srcC & vw: need2 = n3;
                    else: need2 = 0
                    if need2 > need: need, why = need2, "mfmaC WAR"
            if p.kind == "vmem" and getattr(p, "wide", False) and p.sdata & vw and c.kind in ("valu",): need, why = max(need,2), "store WAR"
            if p.kind == "vmem" and getattr(p, "wide", False) and p.sdata & vw and c.kind in ("vmem","ds","mfma"): need, why = max(need,1), "store WAR"
            if p.kind == "salu" and ("s","m0") in p.w and getattr(c, "dma", False): need, why = max(need,1), "m0->dma"
            if p.kind == "valu" and ("s","exec") in p.w and c.kind == "mfma": need, why = max(need,4), "exec->mfma"
            if need > d:
                errs.append(f"line {n+1}: [{c.line}] needs {need} after line {pn+1} [{p.line}] has {d} ({why})")
            d += states(p)
            if d >= 20: break
    return errs
if __name__ == "__main__":
    import sys
    e = check(open(sys.argv[1]).read().split("\n"))
    print("\n".join(e[:50])); print(len(e), "hazards")
```

```python
from common import *
STAMP = False
STAMP_OFF = 200 << 20
SC = ""

def pro(e, name, ngrid, x=False, T=False, extra=()):
    e.begin(name)
    Lend = e.label("end")
    e(f"s_cmp_ge_u32 s2, {ngrid}\ns_cbranch_scc1 {Lend}")
    if STAMP: e("s_memrealtime s[88:89]")
    e("s_load_dwordx2 s[4:5], s[0:1], 80")
    if x: e("s_load_dwordx2 s[6:7], s[0:1], 0")
    for (sreg, off) in extra: e(f"s_load_dwordx2 s[{sreg}:{sreg+1}], s[0:1], {off}")
    if T:
        e("s_getpc_b64 s[16:17]\ns_add_u32 s16, s16, castab@rel32@lo+4\ns_addc_u32 s17, s17, castab@rel32@hi+12")
        e("s_and_b32 s17, s17, 0xffff\ns_mov_b32 s18, 663552\ns_mov_b32 s19, 0x00020000")
    e("""v_lshrrev_b32 v5, 6, v0
v_and_b32 v1, 63, v0
v_readfirstlane_b32 s3, v5
v_lshrrev_b32 v2, 4, v1
v_and_b32 v3, 15, v1
v_lshlrev_b32 v4, 4, v1
s_waitcnt lgkmcnt(0)""")
    e.srd(8, 4, WS_SIZE)
    if x: e.srd(12, 6, A_)
    return Lend

def epi(e, name, Lend, slot, vgpr, accum):
    if STAMP:
        e(f"""s_waitcnt vmcnt(0) lgkmcnt(0)
s_mov_b64 exec, 1
s_memrealtime s[90:91]
s_lshl_b32 s92, s2, 2
s_add_u32 s92, s92, s3
s_lshl_b32 s92, s92, 4
s_add_u32 s92, s92, {STAMP_OFF + slot*131072}
s_waitcnt lgkmcnt(0)
v_mov_b32 v8, s88
v_mov_b32 v9, s89
v_mov_b32 v10, s90
v_mov_b32 v11, s91
v_mov_b32 v12, 0
buffer_store_dwordx4 v[8:11], v12, s[8:11], s92 offen""")
    e(f"{Lend}:")
    e.end(name, vgpr, accum)

def red_g(e, v, t):
    e(f"v_mov_b32 v{t}, v{v}\ns_nop 1\nv_permlane32_swap_b32 v{v}, v{t}\ns_nop 1\nv_add_f32 v{v}, v{v}, v{t}")
    e(f"v_mov_b32 v{t}, v{v}\ns_nop 1\nv_permlane16_swap_b32 v{v}, v{t}\ns_nop 1\nv_add_f32 v{v}, v{v}, v{t}")

def k_prep(e):
    name = "prep_kernel"
    NW = 2916 + 1152 + 72
    Lend = pro(e, name, NW // 4, extra=((20, 32), (22, 40), (24, 48), (26, 56), (28, 8), (30, 16)))
    e("s_lshl_b32 s32, s2, 2\ns_add_u32 s32, s32, s3")
    Lwt, Lrm, Lgo = e.label("wt"), e.label("rm"), e.label("go")
    L2, L3, L4 = e.label("w2"), e.label("w3"), e.label("w4")
    e(f"s_cmp_ge_u32 s32, {2916+1152}\ns_cbranch_scc1 {Lrm}")
    e(f"s_cmp_ge_u32 s32, 2916\ns_cbranch_scc1 {Lwt}")
    def div(d, q, r, x, tmp):
        m = (1 << 32) // d + 1
        e(f"s_mul_hi_u32 s{q}, s{x}, {m}\ns_mul_i32 s{tmp}, s{q}, {d}\ns_sub_u32 s{r}, s{x}, s{tmp}")
    e(f"s_cmp_ge_u32 s32, 1620\ns_cbranch_scc1 {L4}")
    e(f"s_cmp_ge_u32 s32, 324\ns_cbranch_scc1 {L3}")
    e(f"s_cmp_ge_u32 s32, 162\ns_cbranch_scc1 {L2}")
    e.srd(12, 20, 663552); div(9, 34, 35, 32, 40)
    e(f"s_mov_b32 s33, 1152\ns_lshl_b32 s36, s34, 10\ns_add_u32 s36, s36, {W1P}\ns_mov_b32 s37, 8\ns_mov_b32 s38, 4\ns_branch {Lgo}")
    e(f"{L2}:\ns_sub_u32 s32, s32, 162")
    e.srd(12, 22, 663552); div(9, 34, 35, 32, 40)
    e(f"s_mov_b32 s33, 1152\ns_lshl_b32 s36, s34, 10\ns_add_u32 s36, s36, {W2P}\ns_mov_b32 s37, 8\ns_mov_b32 s38, 4\ns_branch {Lgo}")
    e(f"{L3}:\ns_sub_u32 s32, s32, 324")
    e.srd(12, 24, 5308416); div(72, 34, 35, 32, 40)
    e(f"s_mov_b32 s33, 9216\ns_lshl_b32 s36, s34, 10\ns_add_u32 s36, s36, {W3P}\ns_mov_b32 s37, 8\ns_mov_b32 s38, 4\ns_branch {Lgo}")
    e(f"{L4}:\ns_sub_u32 s32, s32, 1620")
    e.srd(12, 26, 5308416); div(9, 34, 35, 32, 40); div(18, 41, 42, 34, 40)
    e(f"s_mov_b32 s33, 1152\ns_mul_i32 s36, s41, 663552\ns_lshl_b32 s42, s42, 10\ns_add_u32 s36, s36, s42\ns_add_u32 s36, s36, {W4P}\ns_mov_b32 s37, 4\ns_mov_b32 s38, 16")
    e(f"{Lgo}:")
    e("s_mul_i32 s40, s35, 73728\ns_add_u32 s36, s36, s40")
    e("s_mul_i32 s40, s34, s33\ns_lshl_b32 s40, s40, 5\ns_lshl_b32 s41, s35, 7\ns_add_u32 s40, s40, s41")
    e("s_mul_i32 s41, s37, s33\nv_mul_lo_u32 v6, v2, s41\nv_lshl_add_u32 v6, v3, 3, v6")
    e("s_mul_i32 s42, s38, s33\ns_add_u32 s42, s42, s40")
    for i in range(8):
        b = 40 if i < 4 else 42
        e.vmop(f"buffer_load_dwordx2 v[{16+2*i}:{17+2*i}], v6, s[12:15], s{b} offen", i)
        if i % 4 != 3: e(f"s_add_u32 s{b}, s{b}, s33")
    e("""v_lshrrev_b32 v7, 2, v3
v_mul_u32_u24 v7, 18432, v7
v_and_b32 v8, 3, v3
v_lshlrev_b32 v8, 6, v8
v_lshl_add_u32 v8, v2, 8, v8
v_add_u32 v7, v7, v8
s_mov_b32 s43, 0x05040100
s_mov_b32 s44, 0x07060302""")
    e.wait(vm="all")
    for c in range(4):
        for m in range(4):
            e(f"v_perm_b32 v{32+4*c+m}, v{16+2*(2*m+1)+(c>>1)}, v{16+2*(2*m)+(c>>1)}, s{43+(c&1)}")
        e.vmop(f"buffer_store_dwordx4 v[{32+4*c}:{35+4*c}], v7, s[8:11], s36 offen offset:{16*c} {SC}", "st")
    e(f"s_branch {Lend}x")
    e.vm = []
    e(f"{Lwt}:\ns_sub_u32 s32, s32, 2916")
    e.srd(12, 28, 1183744); e.srd(16, 30, 1183744)
    div(9, 33, 34, 32, 40)
    e("s_lshr_b32 s35, s33, 5\ns_and_b32 s33, s33, 31")
    e("""v_lshrrev_b32 v6, 5, v1
s_lshl_b32 s33, s33, 1
v_add_u32 v6, s33, v6
v_and_b32 v7, 31, v1
s_lshl_b32 s34, s34, 5
v_add_u32 v7, s34, v7
v_mul_u32_u24 v8, 578, v6
v_lshl_add_u32 v8, v7, 1, v8
v_add_u32 v8, 2, v8
s_mul_i32 s36, s35, 147968""")
    for tk in range(2):
        for r in range(4):
            i = tk*4 + r
            e(f"s_add_u32 s37, s36, {36992*(16*tk+r)}")
            e.vmop(f"buffer_load_ushort v{16+i}, v8, s[12:15], s37 offen", i)
            e.vmop(f"buffer_load_ushort v{24+i}, v8, s[16:19], s37 offen", i)
    e(f"""v_lshlrev_b32 v9, 13, v7
v_lshrrev_b32 v10, 4, v6
v_lshl_add_u32 v9, v10, 11, v9
v_and_b32 v10, 15, v6
v_lshl_add_u32 v9, v10, 5, v9
s_lshl_b32 s36, s35, 9
s_add_u32 s36, s36, {WT}""")
    e.wait(vm="all")
    for i in range(8): e(f"v_lshl_or_b32 v{16+i}, v{24+i}, 16, v{16+i}")
    e(f"buffer_store_dwordx4 v[16:19], v9, s[8:11], s36 offen {SC}\nbuffer_store_dwordx4 v[20:23], v9, s[8:11], s36 offen offset:16 {SC}")
    e(f"s_branch {Lend}x")
    e(f"{Lrm}:\ns_sub_u32 s32, s32, {2916+1152}")
    e.srd(12, 22, 663552)
    e("""v_lshrrev_b32 v6, 3, v1
v_mul_u32_u24 v7, 1152, v6
v_and_b32 v8, 7, v1
v_lshl_add_u32 v7, v8, 4, v7
s_mul_i32 s33, s32, 9216
s_mov_b32 s34, 0x3f803f80
v_mov_b32 v9, 0""")
    for m in range(9): e.vmop(f"buffer_load_dwordx4 v[{16+4*m}:{19+4*m}], v7, s[12:15], s33 offen offset:{128*m}", m)
    e.wait(vm="all")
    for j in range(36): e(f"v_dot2_f32_bf16 v9, v{16+j}, s34, v9")
    e(f"""s_nop 3
v_add_f32_dpp v9, v9, v9 quad_perm:[1,0,3,2] row_mask:0xf bank_mask:0xf
s_nop 1
v_add_f32_dpp v9, v9, v9 quad_perm:[2,3,0,1] row_mask:0xf bank_mask:0xf
s_nop 1
v_add_f32_dpp v9, v9, v9 row_half_mirror row_mask:0xf bank_mask:0xf
v_mul_f32 v9, {fhex(1/576)}, v9
v_cvt_pk_bf16_f32 v9, v9, v9
v_lshlrev_b32 v6, 1, v6
s_lshl_b32 s33, s32, 8
s_add_u32 s33, s33, {W2P + 36*18432}
v_cmp_eq_u32 vcc, 0, v8
s_nop 1
s_and_saveexec_b64 s[36:37], vcc
buffer_store_short v9, v6, s[8:11], s33 offen {SC}
{Lend}x:""")
    epi(e, name, Lend, 0, 64, 64)
    e.add_launch(name, NW // 4)

WB = 0
def wfrag(ks, u): return vr((ks*3+u)*4, 4, "a")
ACC = 32
def acc(u, t): return ACC + (u*2+t)*4
BF = 64
NB = 3

def load_weights(e, srd, sbase, rot=None):
    e("v_mov_b32 v10, v4\nv_add_u32 v11, 18432, v4\nv_add_u32 v12, 36864, v4")
    for ks in range(18):
        if rot is None:
            so = 40 + (ks >> 2)
            if ks % 4 == 0: e(f"s_add_u32 s{so}, s{sbase}, {ks*1024}")
            off = f" offset:{(ks&3)*1024}" if ks & 3 else ""
        else:
            so = 40 + (ks & 1); off = ""
            e(f"s_add_u32 s{so}, s{rot}, {ks}\ns_cmp_ge_u32 s{so}, 18\ns_cselect_b32 s46, 18, 0\ns_sub_u32 s{so}, s{so}, s46\ns_lshl_b32 s{so}, s{so}, 10\ns_add_u32 s{so}, s{so}, s{sbase}")
        for u in range(3):
            e.vmop(f"buffer_load_dwordx4 {wfrag(ks,u)}, v{10+u}, s[{srd}:{srd+3}], s{so} offen{off}", ("w", ks, u))

def gemm_loop(e, act_is_A, tr=False, rd_base=(13, 14)):
    def rd(ks):
        for t in range(2):
            b = BF + ((ks % NB)*2 + t)*4
            if tr:
                e.lgop(f"ds_read_b64_tr_b16 v[{b}:{b+1}], v{rd_base[t]} offset:{ks*2048}", ("b", ks))
                e.lgop(f"ds_read_b64_tr_b16 v[{b+2}:{b+3}], v{rd_base[t]} offset:{ks*2048+256}", ("b", ks))
            else:
                e.lgop(f"ds_read_b128 v[{b}:{b+3}], v4 offset:{(t*18+ks)*1024}", ("b", ks))
    for ks in range(NB-1): rd(ks)
    for ks in range(18):
        if ks + NB - 1 < 18: rd(ks + NB - 1)
        e.wait(vm=("w", ks, 2), lg=("b", ks))
        for u in range(3):
            for t in range(2):
                b = vr(BF + ((ks % NB)*2 + t)*4); w = wfrag(ks, u); d = vr(acc(u, t))
                c = d if ks else "0"
                A, B = (b, w) if act_is_A else (w, b)
                e(f"v_mfma_f32_16x16x32_bf16 {d}, {A}, {B}, {c}")

def dma_linear(e, sbase_expr_reg):
    e(f"s_mul_i32 s46, s3, 9216\ns_add_u32 s47, s{sbase_expr_reg}, s46")
    for grp in range(3):
        n = 4 if grp < 2 else 1
        e(f"s_add_u32 m0, s46, {grp*4096}")
        if grp: e("s_add_u32 s47, s47, 4096")
        else: e("s_nop 0")
        for i in range(n):
            e.vmop(f"buffer_load_dwordx4 v4, s[8:11], s47 offen offset:{i*1024} lds", "dma")

def k_p1(e):
    name = "p1_kernel"
    Lend = pro(e, name, 256, x=True, T=True)
    e("""s_and_b32 s24, s2, 3
s_lshr_b32 s25, s2, 2
s_lshr_b32 s26, s25, 5
s_bfe_u32 s27, s25, 0x20003
s_and_b32 s28, s25, 7
s_lshr_b32 s29, s2, 3
s_cmp_ge_u32 s29, 18
s_cselect_b32 s46, 18, 0
s_sub_u32 s29, s29, s46""")
    e("""s_lshl_b32 s30, s26, 5
s_lshr_b32 s31, s3, 1
s_lshl_b32 s31, s31, 4
s_add_u32 s30, s30, s31
s_lshl_b32 s31, s27, 2
s_add_u32 s30, s30, s31
s_lshl_b32 s30, s30, 5
s_lshl_b32 s31, s28, 2
s_add_u32 s30, s30, s31
v_and_b32 v6, 3, v3
v_lshlrev_b32 v6, 5, v6
v_lshrrev_b32 v7, 2, v3
v_add3_u32 v6, v6, v7, s30
v_mul_u32_u24 v7, 1152, v6
v_lshl_add_u32 v7, v2, 4, v7
s_and_b32 s31, s3, 1
s_mul_i32 s31, s31, 9
s_add_u32 s31, s31, s29
s_mul_i32 s32, s3, 9216""")
    for idx in range(9):
        e(f"s_add_u32 s33, s31, {idx}\ns_cmp_ge_u32 s33, 18\ns_cselect_b32 s46, 18, 0\ns_sub_u32 s33, s33, s46\ns_add_u32 m0, s32, {idx*1024}\ns_lshl_b32 s33, s33, 6")
        e.vmop("buffer_load_dwordx4 v7, s[12:15], s33 offen lds", "dma")
    Lst = e.label("stats"); Lep = e.label("ep")
    e(f"s_cmp_eq_u32 s3, 3\ns_cbranch_scc1 {Lst}")
    vm_save = list(e.vm)
    e("s_mul_i32 s34, s24, 9\ns_mul_i32 s35, s3, 3\ns_add_u32 s34, s34, s35\ns_mul_i32 s35, s34, 18432")
    load_weights(e, 16, 35, rot=29)
    e(f"""v_lshlrev_b32 v8, 12, v3
v_lshl_add_u32 v8, v2, 4, v8
s_lshl_b32 s36, s34, 16
s_lshr_b32 s37, s28, 2
s_lshl_b32 s37, s37, 1
s_add_u32 s37, s37, s26
s_lshl_b32 s37, s37, 10
s_add_u32 s36, s36, s37
s_lshl_b32 s37, s27, 8
s_add_u32 s36, s36, s37
s_and_b32 s37, s28, 3
s_lshl_b32 s37, s37, 6
s_add_u32 s36, s36, s37
s_add_u32 s36, s36, {UT}
v_lshlrev_b32 v9, 4, v2""")
    e.wait(vm="dma")
    e("s_barrier")
    gemm_loop(e, True)
    e("s_barrier")
    e.lgop("ds_read_b128 v[16:19], v9 offset:36864", "r"); e.lgop("ds_read_b128 v[20:23], v9 offset:36928", "r")
    e.wait(lg="all")
    e("s_nop 4")
    for u in range(3):
        for t in range(2):
            for r in range(4): e(f"v_mul_f32 v{acc(u,t)+r}, v{acc(u,t)+r}, v{16+4*t+r}")
        o = 64 + 4*u
        for t in range(2):
            e(f"v_cvt_pk_bf16_f32 v{o+2*t}, v{acc(u,t)}, v{acc(u,t)+1}\nv_cvt_pk_bf16_f32 v{o+2*t+1}, v{acc(u,t)+2}, v{acc(u,t)+3}")
        e.vmop(f"buffer_store_dwordx4 v[{o}:{o+3}], v8, s[8:11], s36 offen {SC}", "st")
        if u < 2: e("s_add_u32 s36, s36, 65536")
    e(f"s_branch {Lep}")
    e(f"{Lst}:")
    e.vm = vm_save; e.lg = []
    e("s_mov_b32 s34, 0x3f803f80")
    for i in range(8): e(f"v_mov_b32 v{16+i}, 0")
    e.wait(vm="all")
    e("s_barrier")
    NR = 6
    def rd(f): e.lgop(f"ds_read_b128 v[{64+4*(f%NR)}:{67+4*(f%NR)}], v4 offset:{f*1024}", f)
    for f in range(NR-1): rd(f)
    for f in range(36):
        if f + NR - 1 < 36: rd(f + NR - 1)
        e.wait(lg=f)
        t = f // 18
        for m in range(4):
            x = 64 + 4*(f % NR) + m
            e(f"v_dot2_f32_bf16 v{16+4*t+(m&1)}, v{x}, s34, v{16+4*t+(m&1)}")
            e(f"v_dot2_f32_bf16 v{18+4*t+(m&1)}, v{x}, v{x}, v{18+4*t+(m&1)}")
    e("s_nop 3")
    for t in range(2):
        b = 16 + 4*t
        e(f"v_add_f32 v{b}, v{b}, v{b+1}\nv_add_f32 v{b+2}, v{b+2}, v{b+3}")
        red_g(e, b, 24); red_g(e, b+2, 24)
        e(f"""v_mul_f32 v{b}, {fhex(1/576)}, v{b}
v_mul_f32 v{b+1}, v{b}, v{b}
v_mov_b32 v24, {fhex(1/576)}
v_fma_f32 v{b+2}, v{b+2}, v24, -v{b+1}
v_max_f32 v{b+2}, 0, v{b+2}
v_add_f32 v{b+2}, {fhex(EPS)}, v{b+2}
v_rsq_f32 v{b+2}, v{b+2}""")
    e(f"""v_lshlrev_b32 v25, 2, v3
v_lshlrev_b32 v26, 2, v6
s_mov_b32 s35, {MX - 2048}
s_mov_b64 exec, 0xffff
ds_write_b32 v25, v18 offset:36864
ds_write_b32 v25, v22 offset:36928
s_cmp_lg_u32 s24, 0""")
    Lns = e.label("nost")
    e(f"""s_cbranch_scc1 {Lns}
buffer_store_dword v16, v26, s[8:11], s35 offen {SC}
buffer_store_dword v20, v26, s[8:11], s35 offen offset:2048 {SC}
{Lns}:
s_waitcnt lgkmcnt(0)
s_barrier
{Lep}:""")
    epi(e, name, Lend, 1, 512, 256)
    e.add_launch(name, 256, lds=36864+128)

def k_p2(e):
    name = "p2_kernel"
    Lend = pro(e, name, 288)
    e(f"""s_add_u32 s24, s2, 1
s_lshl_b32 s25, s24, 12
s_sub_u32 s26, 576, s24
s_lshl_b32 s26, s26, 12
s_mov_b32 s12, s8
s_mov_b32 s13, s9
s_mov_b32 s15, 0x00020000
s_cmp_eq_u32 s24, 288
s_cselect_b32 s14, 0, {WS_SIZE}
s_cselect_b32 s27, 0, s26
s_cselect_b32 s28, 0, -1""")
    P, Q = 16, 32
    for ts in range(2):
        for js in range(2):
            f = ts*2 + js
            e.vmop(f"buffer_load_dwordx4 {vr(P+4*f)}, v4, s[8:11], s25 offen offset:{f*1024}", "d")
            e.vmop(f"buffer_load_dwordx4 {vr(Q+4*f)}, v4, s[12:15], s26 offen offset:{f*1024}", "d")
    WV = 48
    e(f"s_lshl_b32 s29, s2, 13\ns_lshl_b32 s30, s3, 11\ns_add_u32 s29, s29, s30\ns_add_u32 s29, s29, {WT}\nv_lshlrev_b32 v6, 5, v1")
    e.vmop(f"buffer_load_dwordx4 {vr(WV)}, v6, s[8:11], s29 offen", "w")
    e.vmop(f"buffer_load_dwordx4 {vr(WV+4)}, v6, s[8:11], s29 offen offset:16", "w")
    C64, S64, N64 = 56, 64, 72
    C32, S32, N32 = 80, 88, 96
    TC1, TS1, TC2, TS2 = 104, 112, 120, 128
    TMP = 136
    e("""s_lshl_b32 s30, s3, 4
v_add_u32 v7, s30, v3
v_cvt_f32_u32 v7, v7
v_lshlrev_b32 v8, 2, v2
v_cvt_f32_u32 v8, v8
v_cvt_f32_u32 v9, v3
s_mov_b32 s31, 0x80008000""")
    def matrix(fk, C, Sn, N, koff):
        e(f"v_mul_f32 v11, v8, v{fk}")
        for i in range(8):
            K = koff + 16*(i >> 2) + (i & 3)
            e(f"v_fmamk_f32 v{TMP+i}, v{fk}, {fhex(float(K))}, v11")
        for i in range(8): e(f"v_fract_f32 v{TMP+i}, v{TMP+i}")
        for i in range(8): e(f"v_sin_f32 v{TMP+8+i}, v{TMP+i}")
        for i in range(8): e(f"v_cos_f32 v{TMP+i}, v{TMP+i}")
        for m in range(4): e(f"v_cvt_pk_bf16_f32 v{Sn+m}, v{TMP+8+2*m}, v{TMP+9+2*m}")
        for m in range(4): e(f"v_cvt_pk_bf16_f32 v{C+m}, v{TMP+2*m}, v{TMP+1+2*m}")
        for m in range(4): e(f"v_xor_b32 v{N+m}, s31, v{Sn+m}")
    e(f"v_mul_f32 v10, {fhex(1/64)}, v7")
    for js in range(2): matrix(10, C64+4*js, S64+4*js, N64+4*js, 32*js)
    e(f"v_mul_f32 v10, {fhex(1/2048)}, v7\nv_mul_f32 v11, v8, v10")
    for i in range(8): e(f"v_fmamk_f32 v{TC1+i}, v10, {fhex(float(16*(i>>2)+(i&3)))}, v11")
    for i in range(8): e(f"v_sin_f32 v{TS1+i}, v{TC1+i}")
    for i in range(8): e(f"v_cos_f32 v{TC1+i}, v{TC1+i}")
    for tk in range(2):
        e(f"v_add_f32 v10, {fhex(16.0*tk)}, v9\nv_mul_f32 v10, {fhex(1/32)}, v10")
        matrix(10, C32+4*tk, S32+4*tk, N32+4*tk, 0)
    e("v_cvt_f32_u32 v12, s30\nv_add_f32 v12, v12, v8")
    for ts in range(2):
        e(f"v_add_f32 v10, {fhex(16.0*ts)}, v9\nv_mul_f32 v10, {fhex(1/2048)}, v10\nv_mul_f32 v11, v12, v10")
        for r in range(4): e(f"v_fmamk_f32 v{TC2+4*ts+r}, v10, {fhex(float(r))}, v11")
    for i in range(8): e(f"v_sin_f32 v{TS2+i}, v{TC2+i}")
    for i in range(8): e(f"v_cos_f32 v{TC2+i}, v{TC2+i}")
    sc = fhex(1.0/(2048*576))
    for i in range(8): e(f"v_mul_f32 v{TS2+i}, {sc}, v{TS2+i}")
    for i in range(8): e(f"v_mul_f32 v{TC2+i}, {sc}, v{TC2+i}")
    RE, IM = 152, 160
    PR, PI = 168, 172
    M = "v_mfma_f32_16x16x32_bf16"
    def steps(lst):
        n = len(lst[0][1])
        for k in range(n):
            for d, ch in lst:
                A, B = ch[k]
                e(f"{M} {vr(d)}, {vr(A)}, {vr(B)}, {vr(d) if k else 0}")
    def cmul(cre, sim, sign, dre, dim):
        for i in range(8): e(f"v_mul_f32 v{TMP+i}, v{RE+i}, v{cre+i}")
        for i in range(8): e(f"v_mul_f32 v{TMP+8+i}, v{IM+i}, v{cre+i}")
        for i in range(8): e(f"v_fma_f32 v{TMP+i}, {'-' if sign > 0 else ''}v{IM+i}, v{sim+i}, v{TMP+i}")
        for i in range(8): e(f"v_fma_f32 v{TMP+8+i}, {'' if sign > 0 else '-'}v{RE+i}, v{sim+i}, v{TMP+8+i}")
        for m in range(4): e(f"v_cvt_pk_bf16_f32 v{dre+m}, v{TMP+2*m}, v{TMP+2*m+1}")
        for m in range(4): e(f"v_cvt_pk_bf16_f32 v{dim+m}, v{TMP+8+2*m}, v{TMP+9+2*m}")
    e.wait(vm="d")
    steps([(RE+4*ts, [(P+8*ts, C64), (Q+8*ts, S64), (P+8*ts+4, C64+4), (Q+8*ts+4, S64+4)]) for ts in range(2)] +
          [(IM+4*ts, [(Q+8*ts, C64), (P+8*ts, N64), (Q+8*ts+4, C64+4), (P+8*ts+4, N64+4)]) for ts in range(2)])
    e("s_nop 7")
    cmul(TC1, TS1, -1, PR, PI)
    e("s_nop 1")
    steps([(RE+4*tk, [(C32+4*tk, PR), (S32+4*tk, PI)]) for tk in range(2)] +
          [(IM+4*tk, [(C32+4*tk, PI), (N32+4*tk, PR)]) for tk in range(2)])
    e.wait(vm="w")
    for i in range(8):
        e(f"v_lshlrev_b32 v{TC1+i}, 16, v{WV+i}\nv_and_b32 v{TS1+i}, 0xffff0000, v{WV+i}")
    cmul(TC1, TS1, +1, PR, PI)
    e("s_nop 1")
    steps([(RE+4*ts, [(PR, C32+4*ts), (PI, N32+4*ts)]) for ts in range(2)] +
          [(IM+4*ts, [(PI, C32+4*ts), (PR, S32+4*ts)]) for ts in range(2)])
    e("s_lshr_b32 s30, s3, 1\ns_lshl_b32 s30, s30, 10\ns_and_b32 s32, s3, 1\ns_lshl_b32 s32, s32, 3\ns_add_u32 s30, s30, s32\nv_add_u32 v13, s30, v4\ns_nop 1")
    cmul(TC2, TS2, +1, PR, PI)
    for ts in range(2):
        e.lgop(f"ds_write_b64 v13, {vr(PR+2*ts,2)} offset:{(ts*2+0)*2048}", "x")
        e.lgop(f"ds_write_b64 v13, {vr(PI+2*ts,2)} offset:{(ts*2+1)*2048}", "x")
    e.wait(lg="all")
    e("s_barrier")
    for ts in range(2):
        for js in range(2):
            e.lgop(f"ds_read_b128 {vr(P+8*ts+4*js)}, v4 offset:{((ts*2+0)*2+js)*1024}", "y")
            e.lgop(f"ds_read_b128 {vr(Q+8*ts+4*js)}, v4 offset:{((ts*2+1)*2+js)*1024}", "y")
    e(f"""s_lshl_b32 s30, s3, 10
v_lshlrev_b32 v14, 6, v3
v_lshl_add_u32 v14, v2, 4, v14
v_add_u32 v14, s30, v14
s_add_u32 s25, s25, {VT}
s_add_u32 s27, s27, {VT}""")
    e.wait(lg="all")
    steps([(RE+4*ts, [(P+8*ts, C64), (Q+8*ts, N64), (P+8*ts+4, C64+4), (Q+8*ts+4, N64+4)]) for ts in range(2)] +
          [(IM+4*ts, [(Q+8*ts, C64), (P+8*ts, S64), (Q+8*ts+4, C64+4), (P+8*ts+4, S64+4)]) for ts in range(2)])
    e("s_nop 7")
    for m in range(4): e(f"v_cvt_pk_bf16_f32 v{PR+m}, v{RE+2*m}, v{RE+2*m+1}")
    for m in range(4): e(f"v_cvt_pk_bf16_f32 v{PI+m}, v{IM+2*m}, v{IM+2*m+1}")
    for m in range(4): e(f"v_and_b32 v{PI+m}, s28, v{PI+m}")
    e(f"buffer_store_dwordx4 {vr(PR)}, v14, s[8:11], s25 offen {SC}\nbuffer_store_dwordx4 {vr(PI)}, v14, s[8:11], s27 offen {SC}")
    epi(e, name, Lend, 2, 176, 176)
    e.add_launch(name, 288, lds=8192)

def common_qrb(e):
    e("s_and_b32 s24, s2, 3\ns_lshr_b32 s25, s2, 2\ns_mul_i32 s34, s24, 9\ns_mul_i32 s35, s3, 3\ns_add_u32 s34, s34, s35")

def frag_soffs(e, dst, region):
    for u in range(3):
        e(f"s_add_u32 s46, s34, {u}\ns_lshl_b32 s{dst+u}, s46, 9\ns_add_u32 s{dst+u}, s{dst+u}, {region}")

def frag_voff(e, dst, rowreg, tmp):
    e(f"""v_lshrrev_b32 v{tmp}, 4, v{rowreg}
v_mul_u32_u24 v{dst}, 18432, v{tmp}
v_and_b32 v{tmp}, 15, v{rowreg}
v_lshl_add_u32 v{dst}, v{tmp}, 4, v{dst}
v_lshrrev_b32 v{tmp}, 1, v2
v_lshl_add_u32 v{dst}, v{tmp}, 8, v{dst}
v_and_b32 v{tmp}, 1, v2
v_lshl_add_u32 v{dst}, v{tmp}, 3, v{dst}""")

def sq_store(e, sqreg, rowregs, region):
    for t in range(2): red_g(e, sqreg+t, 31)
    e(f"s_lshl_b32 s46, s3, 2\ns_add_u32 s46, s46, s24\ns_lshl_b32 s46, s46, 2\ns_add_u32 s46, s46, {region}")
    for t in range(2): e(f"v_lshlrev_b32 v{rowregs[t]}, 6, v{rowregs[t]}")
    e("s_mov_b64 exec, 0xffff")
    for t in range(2): e(f"buffer_store_dword v{sqreg+t}, v{rowregs[t]}, s[8:11], s46 offen {SC}")

def sq_load(e, dst, rowreg, tmp, sreg, tag):
    e(f"v_lshlrev_b32 v{tmp}, 6, v{rowreg}\nv_lshl_add_u32 v{tmp}, v2, 4, v{tmp}")
    e.vmop(f"buffer_load_dwordx4 {vr(dst)}, v{tmp}, s[8:11], s{sreg} offen", tag)

def sq_finish(e, src, tmp):
    e(f"v_add_f32 v{src}, v{src}, v{src+1}\nv_add_f32 v{src+2}, v{src+2}, v{src+3}\nv_add_f32 v{src}, v{src}, v{src+2}\nv_cndmask_b32 v{src}, 0, v{src}, vcc")
    red_g(e, src, tmp)
    e(f"v_mul_f32 v{src}, {fhex(1/576)}, v{src}")

def k_p3(e):
    name = "p3_kernel"
    Lend = pro(e, name, 256, x=True, T=True)
    common_qrb(e)
    e(f"""v_lshrrev_b32 v6, 2, v1
v_lshlrev_b32 v6, 12, v6
v_lshrrev_b32 v7, 4, v1
v_and_b32 v7, 2, v7
v_and_b32 v8, 3, v1
v_xor_b32 v7, v7, v8
v_lshl_add_u32 v6, v7, 4, v6
s_mul_i32 s26, s3, 9216
s_mul_i32 s27, s3, {9*65536}
s_lshl_b32 s28, s25, 6
s_add_u32 s27, s27, s28
s_add_u32 s27, s27, {VT}""")
    for idx in range(9):
        e(f"s_add_u32 m0, s26, {idx*1024}")
        e("s_add_u32 s27, s27, 65536" if idx else "s_nop 0")
        e.vmop("buffer_load_dwordx4 v6, s[8:11], s27 offen lds", "dma")
    Lw3 = e.label("w3"); Lep = e.label("ep")
    e(f"s_cmp_eq_u32 s3, 3\ns_cbranch_scc1 {Lw3}")
    e("s_mul_i32 s35, s34, 18432")
    e("""v_bfe_u32 v6, v3, 2, 1
v_lshlrev_b32 v6, 4, v6
v_lshrrev_b32 v7, 3, v3
v_lshl_add_u32 v6, v7, 2, v6
v_and_b32 v7, 3, v3
s_lshl_b32 s28, s25, 5
v_add3_u32 v16, v6, v7, s28
v_add_u32 v17, 8, v16
v_mul_u32_u24 v18, 1152, v16
v_lshl_add_u32 v18, v2, 3, v18
v_add_u32 v19, 9216, v18
v_lshlrev_b32 v20, 2, v16""")
    load_weights(e, 16, 35)
    e.wait(vm="dma")
    e("s_barrier")
    e("""v_lshrrev_b32 v6, 2, v3
v_lshl_add_u32 v6, v2, 3, v6
v_lshlrev_b32 v6, 6, v6
v_and_b32 v7, 3, v3
v_lshl_add_u32 v6, v7, 3, v6
v_and_b32 v7, 1, v2
v_lshl_add_u32 v13, v7, 5, v6
v_xor_b32 v14, 32, v13""")
    XR = 96
    e(f"s_lshl_b32 s28, s34, 5\ns_mov_b32 s29, {MX}")
    def resid():
        for u in range(3):
            for t in range(2):
                e.vmop(f"buffer_load_dwordx2 {vr(XR+(u*2+t)*2,2)}, v{18+t}, s[12:15], s28 offen offset:{32*u}", "x")
        e.vmop(f"buffer_load_dword v22, v20, s[8:11], s29 offen", "x")
        e.vmop(f"buffer_load_dword v23, v20, s[8:11], s29 offen offset:32", "x")
    resid()
    gemm_loop(e, False, tr=True)
    frag_soffs(e, 36, HC)
    frag_voff(e, 24, 16, 31); frag_voff(e, 25, 17, 31)
    e("v_mov_b32 v26, 0\nv_mov_b32 v27, 0")
    e.wait(vm="x")
    for u in range(3):
        for t in range(2):
            a = acc(u, t); x = XR + (u*2+t)*2
            e(f"""v_lshlrev_b32 v28, 16, v{x}
v_and_b32 v29, 0xffff0000, v{x}
v_lshlrev_b32 v30, 16, v{x+1}
v_and_b32 v31, 0xffff0000, v{x+1}""")
            for r in range(4): e(f"v_sub_f32 v{28+r}, v{28+r}, v{22+t}")
            for r in range(4): e(f"v_add_f32 v{a+r}, v{a+r}, v{28+r}")
            for r in range(4): e(f"v_fmac_f32 v{26+t}, v{a+r}, v{a+r}")
            e(f"v_cvt_pk_bf16_f32 v{x}, v{a}, v{a+1}\nv_cvt_pk_bf16_f32 v{x+1}, v{a+2}, v{a+3}")
            e.vmop(f"buffer_store_dwordx2 {vr(x,2)}, v{24+t}, s[8:11], s{36+u} offen {SC}", "st")
    sq_store(e, 26, (16, 17), SQH)
    e(f"s_branch {Lep}\n{Lw3}:\ns_waitcnt vmcnt(0)\ns_barrier\n{Lep}:")
    epi(e, name, Lend, 3, 512, 256)
    e.add_launch(name, 256, lds=36864)

C0 = -2.0*math.sqrt(2.0/math.pi)*math.log2(math.e)
C1 = C0*0.044715
def gelu_consts(e, r, K0, K1, IR):
    e(f"v_rcp_f32 v{IR}, v{r}\nv_mul_f32 v{K0}, {fhex(C0)}, v{r}\nv_mul_f32 v{K1}, v{r}, v{r}\nv_mul_f32 v{K1}, v{K1}, v{r}\nv_mul_f32 v{K1}, {fhex(C1)}, v{K1}")
def gelu4(a, tmp, K0, K1, IR):
    L = []
    L += [f"v_mul_f32 v{tmp+r}, v{a+r}, v{a+r}" for r in range(4)]
    L += [f"v_fma_f32 v{tmp+r}, v{tmp+r}, v{K1}, v{K0}" for r in range(4)]
    L += [f"v_mul_f32 v{tmp+r}, v{tmp+r}, v{a+r}" for r in range(4)]
    L += [f"v_exp_f32 v{tmp+r}, v{tmp+r}" for r in range(4)]
    L += [f"v_fma_f32 v{tmp+r}, v{tmp+r}, v{IR}, v{IR}" for r in range(4)]
    L += [f"v_rcp_f32 v{tmp+r}, v{tmp+r}" for r in range(4)]
    L += [f"v_mul_f32 v{tmp+r}, v{tmp+r}, v{a+r}" for r in range(4)]
    return L

def k_p4(e):
    name = "p4_kernel"
    Lend = pro(e, name, 256)
    common_qrb(e)
    e(f"s_mul_i32 s26, s25, 36864\ns_add_u32 s26, s26, {HC}")
    dma_linear(e, 26)
    Lw3 = e.label("w3"); Lep = e.label("ep")
    e(f"s_cmp_eq_u32 s3, 3\ns_cbranch_scc1 {Lw3}")
    e(f"s_mul_i32 s35, s34, 18432\ns_add_u32 s35, s35, {W1P}")
    e(f"s_lshl_b32 s28, s25, 5\nv_add_u32 v16, s28, v3\nv_add_u32 v17, 16, v16\ns_mov_b32 s29, {SQH}")
    load_weights(e, 8, 35)
    e.wait(vm="dma")
    e("s_barrier")
    sq_load(e, 96, 16, 31, 29, "q"); sq_load(e, 100, 17, 30, 29, "q")
    gemm_loop(e, False)
    frag_soffs(e, 36, H1S)
    e("s_lshr_b32 s28, s24, 1\ns_add_u32 s28, s28, 1\ns_sub_u32 s29, 0, s28\ns_bitcmp1_b32 s24, 0\ns_cselect_b32 s28, s29, s28")
    e("v_cmp_gt_u32 vcc, 3, v2")
    e.wait(vm="q")
    for t in range(2):
        s = 96 + 4*t
        sq_finish(e, s, 31)
        e(f"""v_add_f32 v{s+1}, {fhex(EPS)}, v{s}
v_rsq_f32 v{s+1}, v{s+1}
s_nop 0
v_mul_f32 v{s+2}, v{s+1}, v{s+1}
v_mul_f32 v{s+2}, v{s+2}, v{s}
v_add_f32 v{s+2}, {fhex(EPS)}, v{s+2}
v_rsq_f32 v{s+2}, v{s+2}
s_nop 0
v_mul_f32 v{s}, v{s+1}, v{s+2}""")
        gelu_consts(e, s, s+1, s+2, s+3)
    for t in range(2):
        e(f"v_add_u32 v{16+t}, s28, v{16+t}\nv_cmp_gt_u32 s[{48+2*t}:{49+2*t}], s28, v{16+t}") if False else None
        e(f"v_add_u32 v{16+t}, s28, v{16+t}\nv_mov_b32 v31, 2048\nv_cmp_lt_u32 s[{48+2*t}:{49+2*t}], v{16+t}, v31\nv_and_b32 v{16+t}, 2047, v{16+t}")
        frag_voff(e, 24+t, 16+t, 31)
    for u in range(3):
        for t in range(2):
            a = acc(u, t); s = 96 + 4*t; o = 104 + (u*2+t)*2
            for l in gelu4(a, 28, s+1, s+2, s+3): e(l)
            e(f"v_cvt_pk_bf16_f32 v{o}, v28, v29\nv_cvt_pk_bf16_f32 v{o+1}, v30, v31")
            e(f"v_cndmask_b32 v{o}, 0, v{o}, s[{48+2*t}:{49+2*t}]\nv_cndmask_b32 v{o+1}, 0, v{o+1}, s[{48+2*t}:{49+2*t}]")
            e.vmop(f"buffer_store_dwordx2 {vr(o,2)}, v{24+t}, s[8:11], s{36+u} offen {SC}", "st")
    e(f"s_branch {Lep}\n{Lw3}:\ns_waitcnt vmcnt(0)\ns_barrier\n{Lep}:")
    epi(e, name, Lend, 4, 512, 256)
    e.add_launch(name, 256, lds=36864)

def k_p5(e):
    name = "p5_kernel"
    Lend = pro(e, name, 256)
    common_qrb(e)
    e(f"s_mul_i32 s26, s25, 36864\ns_add_u32 s26, s26, {H1S}")
    dma_linear(e, 26)
    Lw3 = e.label("w3"); Lep = e.label("ep")
    e(f"s_cmp_eq_u32 s3, 3\ns_cbranch_scc1 {Lw3}")
    vm_save = list(e.vm)
    e(f"s_mul_i32 s35, s34, 18432\ns_add_u32 s35, s35, {W2P}")
    e(f"s_lshl_b32 s28, s25, 5\nv_add_u32 v16, s28, v3\nv_add_u32 v17, 16, v16\ns_mov_b32 s29, {SQH}\ns_mov_b32 s30, {MX}")
    load_weights(e, 8, 35)
    frag_voff(e, 24, 16, 31); frag_voff(e, 25, 17, 31)
    frag_soffs(e, 36, HC)
    e("v_lshlrev_b32 v20, 2, v16")
    e.wait(vm="dma")
    e("s_barrier")
    HR = 104
    sq_load(e, 96, 16, 31, 29, "q"); sq_load(e, 100, 17, 30, 29, "q")
    e.vmop("buffer_load_dword v22, v20, s[8:11], s30 offen", "q")
    e.vmop("buffer_load_dword v23, v20, s[8:11], s30 offen offset:64", "q")
    class Hook: pass
    def hc_loads():
        for u in range(3):
            for t in range(2):
                e.vmop(f"buffer_load_dwordx2 {vr(HR+(u*2+t)*2,2)}, v{24+t}, s[8:11], s{36+u} offen", "q")
    e.wait(vm=("w", 0, 2))
    hc_loads()
    gemm_loop(e, False)
    e("s_barrier")
    e("v_lshlrev_b32 v21, 2, v3")
    e.lgop("ds_read_b32 v18, v21 offset:36864", "m"); e.lgop("ds_read_b32 v19, v21 offset:36928", "m")
    frag_soffs(e, 36, X6)
    e(f"""s_lshr_b32 s28, s25, 1
s_lshl_b32 s28, s28, 2
s_add_u32 s28, s28, s24
s_mul_i32 s28, s28, 9
s_mul_i32 s29, s3, 3
s_add_u32 s28, s28, s29
s_lshl_b32 s28, s28, 1
s_and_b32 s29, s25, 1
s_add_u32 s28, s28, s29
s_lshl_b32 s28, s28, 10
s_add_u32 s28, s28, {PART + 8*A_}
v_cmp_gt_u32 vcc, 3, v2
v_mov_b32 v26, 0
v_mov_b32 v27, 0""")
    e.wait(vm="q", lg="all")
    for t in range(2):
        s = 96 + 4*t
        sq_finish(e, s, 31)
        e(f"v_add_f32 v{s}, {fhex(EPS)}, v{s}\nv_rsq_f32 v{s}, v{s}")
    for u in range(3):
        o = 120 + 4*u
        for t in range(2):
            a = acc(u, t); x = HR + (u*2+t)*2
            e(f"""v_lshlrev_b32 v28, 16, v{x}
v_and_b32 v29, 0xffff0000, v{x}
v_lshlrev_b32 v30, 16, v{x+1}
v_and_b32 v31, 0xffff0000, v{x+1}""")
            for r in range(4): e(f"v_fmac_f32 v{a+r}, v{28+r}, v{96+4*t}")
            for r in range(4): e(f"v_add_f32 v{28+r}, v{28+r}, v{22+t}")
            for r in range(4): e(f"v_add_f32 v{28+r}, v{28+r}, v{a+r}")
            for r in range(4): e(f"v_sub_f32 v{a+r}, v{a+r}, v{18+t}")
            e(f"v_cvt_pk_bf16_f32 v{o+2*t}, v28, v29\nv_cvt_pk_bf16_f32 v{o+2*t+1}, v30, v31")
            for r in range(4): e(f"v_fmac_f32 v{26+t}, v{a+r}, v{a+r}")
            e(f"v_cvt_pk_bf16_f32 v{x}, v{a}, v{a+1}\nv_cvt_pk_bf16_f32 v{x+1}, v{a+2}, v{a+3}")
            e.vmop(f"buffer_store_dwordx2 {vr(x,2)}, v{24+t}, s[8:11], s{36+u} offen {SC}", "st")
        e.vmop(f"buffer_store_dwordx4 {vr(o)}, v4, s[8:11], s28 offen offset:{2048*(u&1)} {SC}", "st")
        if u == 1: e("s_add_u32 s28, s28, 4096")
    sq_store(e, 26, (16, 17), SQ1)
    e(f"s_branch {Lep}\n{Lw3}:")
    e.vm = vm_save; e.lg = []
    for ks in range(18):
        if ks % 4 == 0: e(f"s_mov_b32 s40, {W2P + 36*18432 + ks*1024}")
        e.vmop(f"buffer_load_dwordx4 {vr(4*ks,4,'a')}, v4, s[8:11], s40 offen offset:{(ks&3)*1024}", ("w", ks))
    e.wait(vm="dma")
    e("s_barrier")
    NR = 3
    def rd(ks):
        for t in range(2): e.lgop(f"ds_read_b128 {vr(64+((ks%NR)*2+t)*4)}, v4 offset:{(t*18+ks)*1024}", ks)
    for ks in range(NR-1): rd(ks)
    for ks in range(18):
        if ks + NR - 1 < 18: rd(ks + NR - 1)
        e.wait(vm=("w", ks), lg=ks)
        for t in range(2):
            e(f"v_mfma_f32_16x16x32_bf16 {vr(32+4*t)}, {vr(4*ks,4,'a')}, {vr(64+((ks%NR)*2+t)*4)}, {vr(32+4*t) if ks else 0}")
    e("v_lshlrev_b32 v21, 2, v3\ns_nop 7\ns_mov_b64 exec, 0xffff\nds_write_b32 v21, v32 offset:36864\nds_write_b32 v21, v36 offset:36928\ns_waitcnt lgkmcnt(0)\ns_barrier")
    e(f"{Lep}:")
    epi(e, name, Lend, 5, 512, 256)
    e.add_launch(name, 256, lds=36864+128)

NPF = 32
def k_p6(e):
    name = "p6_kernel"
    Lend = pro(e, name, 256)
    XV, AC, TT, KC, TMP, PK, RING = 16, 48, 64, 80, 92, 96, 104
    def X(t4, ks):
        i = ks*4 + t4
        return vr(4*i, 4, "a") if i < 64 else vr(XV + 4*(i-64))
    e(f"""s_and_b32 s24, s2, 7
s_lshr_b32 s25, s2, 3
s_lshl_b32 s28, s25, 6
v_add_u32 v6, s28, v3
v_lshlrev_b32 v6, 6, v6
v_lshl_add_u32 v6, v2, 4, v6
s_mov_b32 s29, {SQ1}""")
    for t4 in range(4):
        e.vmop(f"buffer_load_dwordx4 {vr(AC+4*t4)}, v6, s[8:11], s29 offen offset:{t4*1024}", "q")
    e(f"s_mul_i32 s26, s25, 73728\ns_mul_i32 s27, s3, 18432\ns_add_u32 s26, s26, s27\ns_add_u32 s26, s26, {X6}")
    for ks in range(18):
        if ks % 4 == 0:
            e(f"s_add_u32 m0, s27, {ks*1024}")
            e("s_add_u32 s26, s26, 4096" if ks else "s_nop 0")
        e.vmop(f"buffer_load_dwordx4 v4, s[8:11], s26 offen offset:{(ks&3)*1024} lds", "dma")
    e(f"""s_mul_i32 s30, s24, 36
s_mul_i32 s31, s3, 9
s_add_u32 s30, s30, s31
s_mul_i32 s30, s30, 18432
s_add_u32 s31, s30, {W4P}
s_add_u32 s30, s30, {W3P}""")
    NT = 2*162
    def wload(n):
        out = []
        m = n % 162; sreg = 30 if n < 162 else 31
        if m % 4 == 0 and m: out.append(("s", f"s_add_u32 s{sreg}, s{sreg}, 4096"))
        out.append(("v", f"buffer_load_dwordx4 {vr(RING+4*(n % NPF))}, v4, s[8:11], s{sreg} offen offset:{(m&3)*1024}", ("w", n)))
        return out
    def emit(x):
        if x[0] == "s": e(x[1])
        elif x[0] == "v": e.vmop(x[1], x[2])
        elif x[0] == "l": e.lgop(x[1], x[2])
    for n in range(NPF):
        for x in wload(n): emit(x)
    HB = 73728
    e(f"""s_mul_i32 s32, s3, 9
s_lshr_b32 s33, s32, 1
s_lshl_b32 s33, s33, 10
s_and_b32 s36, s32, 1
s_lshl_b32 s36, s36, 3
s_add_u32 s33, s33, s36
s_add_u32 s33, s33, {HB}
v_add_u32 v8, s33, v4
s_add_u32 s32, s32, 1
s_lshr_b32 s33, s32, 1
s_lshl_b32 s33, s33, 10
s_and_b32 s36, s32, 1
s_lshl_b32 s36, s36, 3
s_add_u32 s33, s33, s36
s_add_u32 s33, s33, {HB}
v_add_u32 v9, s33, v4
v_add_u32 v10, 36864, v4
v_add_u32 v11, {HB}, v4
v_add_u32 v12, {HB+36864}, v4
v_cmp_gt_u32 vcc, 3, v2""")
    e(f"s_lshl_b32 s34, s25, 2\ns_add_u32 s34, s34, s3\ns_mul_i32 s34, s34, 18432\ns_mul_i32 s35, s24, {A_}\ns_add_u32 s34, s34, s35\ns_add_u32 s34, s34, {PART}")
    e.wait(vm="q")
    for t4 in range(4):
        s = AC + 4*t4
        sq_finish(e, s, TMP)
        e(f"v_add_f32 v{s}, {fhex(EPS)}, v{s}\nv_rsq_f32 v{s}, v{s}\ns_nop 0")
        gelu_consts(e, s, KC+t4, KC+4+t4, KC+8+t4)
    e.wait(vm="dma")
    e("s_barrier")
    def bread(ks, hb):
        out = []
        for t4 in range(4):
            off = (t4*18 + ks)*1024
            base = (4, 10) if not hb else (11, 12)
            breg = base[0] if off < 36864 else base[1]
            out.append(("l", f"ds_read_b128 {X(t4,ks)}, v{breg} offset:{off % 36864}", ("b", ks)))
        return out
    def gelu_fill(ft):
        L = []
        for t4 in range(4):
            L += [("s", l) for l in gelu4(TT+4*t4, TMP, KC+t4, KC+4+t4, KC+8+t4)]
            L += [("s", f"v_cvt_pk_bf16_f32 v{PK+2*t4}, v{TMP}, v{TMP+1}"), ("s", f"v_cvt_pk_bf16_f32 v{PK+2*t4+1}, v{TMP+2}, v{TMP+3}")]
            L += [("l", f"ds_write_b64 v{8 + (ft&1)}, {vr(PK+2*t4,2)} offset:{(ft>>1)*1024 + t4*18432}", "h")]
        return L
    def out_fill(dt):
        L = []
        for tp in range(2):
            for h in range(2):
                a = TT + 4*(2*tp+h)
                L += [("s", f"v_cvt_pk_bf16_f32 v{PK+4*tp+2*h}, v{a}, v{a+1}"), ("s", f"v_cvt_pk_bf16_f32 v{PK+4*tp+2*h+1}, v{a+2}, v{a+3}")]
            L += [("v", f"buffer_store_dwordx4 {vr(PK+4*tp)}, v4, s[8:11], s34 offen offset:{(dt&1)*2048 + tp*1024} {P6SC}", "st")]
        if dt & 1: L += [("s", "s_add_u32 s34, s34, 4096")]
        return L
    def block(blk, fill, fillB):
        G0, G1 = 4, 66
        nf = len(fill); fi = 0
        AH = 3
        if fillB is not None:
            for ks in range(AH):
                for x in bread(ks, fillB): emit(x)
        for ks in range(18):
            n = blk*18 + ks
            if fillB is not None and ks + AH < 18:
                for x in bread(ks + AH, fillB): emit(x)
            e.wait(vm=("w", n), lg=("b", ks) if fillB is not None else None)
            for t4 in range(4):
                d = vr(TT+4*t4) if ks == 17 else vr(AC+4*t4)
                c = vr(AC+4*t4) if ks else "0"
                e(f"v_mfma_f32_16x16x32_bf16 {d}, {vr(RING+4*(n % NPF))}, {X(t4,ks)}, {c}")
                gap = ks*4 + t4
                if t4 == 3 and n + NPF < NT:
                    for x in wload(n + NPF): emit(x)
                if gap >= G0:
                    tgt = min(nf, -(-nf*(gap - G0 + 1) // (G1 - G0)))
                    while fi < tgt: emit(fill[fi]); fi += 1
        assert fi == nf
    for ft in range(9):
        block(ft, gelu_fill(ft-1) if ft else [], False if ft == 0 else None)
    e("s_nop 7")
    for x in gelu_fill(8): emit(x)
    e.wait(lg="all")
    e("s_barrier")
    for dt in range(9):
        block(9+dt, out_fill(dt-1) if dt else [], True if dt == 0 else None)
    e("s_nop 7")
    for x in out_fill(8): emit(x)
    epi(e, name, Lend, 6, 512, 256)
    e.add_launch(name, 256, lds=147456)
P6SC = "sc1"

def k_p7(e):
    name = "p7_kernel"
    Lend = pro(e, name, 576, extra=((6, 64),))
    e.srd(12, 6, A_)
    e(f"s_lshl_b32 s24, s2, 2\ns_add_u32 s24, s24, s3\ns_lshl_b32 s25, s24, 10\ns_add_u32 s25, s25, {PART}")
    for sl in range(9):
        e.vmop(f"buffer_load_dwordx4 {vr(16+4*sl)}, v4, s[8:11], s25 offen", sl)
        if sl < 8: e(f"s_add_u32 s25, s25, {A_}")
    m = (1 << 32)//36 + 1
    e(f"""s_and_b32 s26, s24, 1
s_lshr_b32 s27, s24, 1
s_mul_hi_u32 s28, s27, {m}
s_mul_i32 s29, s28, 36
s_sub_u32 s29, s27, s29
s_lshl_b32 s28, s28, 1
s_add_u32 s28, s28, s26
s_mul_i32 s28, s28, {32*1152}
s_lshl_b32 s29, s29, 5
s_add_u32 s28, s28, s29
v_mul_u32_u24 v6, 1152, v3
v_lshl_add_u32 v6, v2, 3, v6
v_add_u32 v7, {16*1152}, v6""")
    for sl in range(9):
        e.wait(vm=sl)
        for j in range(4):
            x = 16 + 4*sl + j
            if sl == 0:
                e(f"v_lshlrev_b32 v{56+2*j}, 16, v{x}\nv_and_b32 v{57+2*j}, 0xffff0000, v{x}")
            else:
                e(f"v_lshlrev_b32 v8, 16, v{x}\nv_and_b32 v9, 0xffff0000, v{x}\nv_add_f32 v{56+2*j}, v{56+2*j}, v8\nv_add_f32 v{57+2*j}, v{57+2*j}, v9")
    for j in range(4): e(f"v_cvt_pk_bf16_f32 v{12+j}, v{56+2*j}, v{57+2*j}")
    e("buffer_store_dwordx2 v[12:13], v6, s[12:15], s28 offen\nbuffer_store_dwordx2 v[14:15], v7, s[12:15], s28 offen")
    epi(e, name, Lend, 7, 64, 64)
    e.add_launch(name, 576)

def build(stamp=False):
    global STAMP
    STAMP = stamp
    e = Em()
    k_prep(e); k_p1(e); k_p2(e); k_p3(e); k_p4(e); k_p5(e); k_p6(e); k_p7(e)
    return finish(e)

if __name__ == "__main__":
    import sys, hazard
    out = "sequential_preLN__spectral_gfnet__mixer_s_mlp__prompt.s"
    txt = build(False)
    open(out, "w").write(txt)
    errs = hazard.check(txt.split("\n"))
    print("\n".join(errs[:40])); print(len(errs), "hazards;", len(txt), "bytes")
    open("stamp.s", "w").write(build(True))
```

```python
from common import *
import common
common.castab = lambda: ''
STAMP = False
STAMP_OFF = 200 << 20
OPT = {}
FLG = WS_END
FLG_SZ = 32768
NST = 0
M16 = "v_mfma_f32_16x16x32_bf16"

def stamp(e, first=False, lvl=0):
    global NST
    if not STAMP: return
    if lvl != OPT.get("lvl", 0) and lvl != -1 and not first: return
    assert NST < 15
    e(f"s_memrealtime s[{60+2*NST}:{61+2*NST}]")
    if not first: e("s_waitcnt lgkmcnt(0)"); e.lg = []
    NST += 1

def pro(e, name, ngrid, x=False, T=False, extra=()):
    global NST
    e.begin(name)
    Lend = e.label("end")
    e(f"s_cmp_ge_u32 s2, {ngrid}\ns_cbranch_scc1 {Lend}")
    NST = 0
    stamp(e, True)
    e("s_load_dwordx2 s[4:5], s[0:1], 80")
    if x: e("s_load_dwordx2 s[6:7], s[0:1], 0")
    for (sreg, off) in extra: e(f"s_load_dwordx2 s[{sreg}:{sreg+1}], s[0:1], {off}")
    if T:
        e("s_getpc_b64 s[16:17]\ns_add_u32 s16, s16, castab@rel32@lo+4\ns_addc_u32 s17, s17, castab@rel32@hi+12")
        e("s_and_b32 s17, s17, 0xffff\ns_mov_b32 s18, 663552\ns_mov_b32 s19, 0x00020000")
    e("""v_lshrrev_b32 v5, 6, v0
v_and_b32 v1, 63, v0
v_readfirstlane_b32 s3, v5
v_lshrrev_b32 v2, 4, v1
v_and_b32 v3, 15, v1
v_lshlrev_b32 v4, 4, v1""")
    return Lend
def pro2(e, x=False):
    e("s_waitcnt lgkmcnt(0)")
    e.srd(8, 4, WS_SIZE)
    if x: e.srd(12, 6, A_)

def dump(e, slot):
    if STAMP:
        e(f"""s_waitcnt vmcnt(0) lgkmcnt(0)
s_mov_b64 exec, 1
s_memrealtime s[90:91]
s_lshl_b32 s92, s2, 2
s_add_u32 s92, s92, s3
s_lshl_b32 s92, s92, 7
s_add_u32 s92, s92, {STAMP_OFF + slot*(1<<20)}
s_waitcnt lgkmcnt(0)
v_mov_b32 v100, 0""")
        for k in range(8):
            for j in range(4): e(f"v_mov_b32 v{96+j}, s{60+4*k+j}")
            e(f"buffer_store_dwordx4 v[96:99], v100, s[8:11], s92 offen offset:{16*k}\ns_nop 1")
        e("s_mov_b64 exec, -1")

def epi(e, name, Lend, slot, vgpr, accum):
    dump(e, slot)
    e(f"{Lend}:")
    e.end(name, vgpr, accum, 96)

def red_g(e, regs, tmps):
    for sw in ("v_permlane32_swap_b32", "v_permlane16_swap_b32"):
        for v, t in zip(regs, tmps): e(f"v_mov_b32 v{t}, v{v}")
        e("s_nop 1" if len(regs) < 3 else "s_nop 0")
        for v, t in zip(regs, tmps): e(f"{sw} v{v}, v{t}")
        if len(regs) < 2: e("s_nop 0")
        for v, t in zip(regs, tmps): e(f"v_add_f32 v{v}, v{v}, v{t}")

def sdiv(e, d, q, r, x, tmp):
    m = (1 << 32) // d + 1
    e(f"s_mul_hi_u32 s{q}, s{x}, {m}\ns_mul_i32 s{tmp}, s{q}, {d}\ns_sub_u32 s{r}, s{x}, s{tmp}")

C0 = -2.0*math.sqrt(2.0/math.pi)*math.log2(math.e)
C1 = C0*0.044715
def gelu_consts(e, r, K0, K1, IR):
    e(f"v_rcp_f32 v{IR}, v{r}\nv_mul_f32 v{K0}, {fhex(C0)}, v{r}\nv_mul_f32 v{K1}, v{r}, v{r}\nv_mul_f32 v{K1}, v{K1}, v{r}\nv_mul_f32 v{K1}, {fhex(C1)}, v{K1}")
def gelu4(a, tmp, K0, K1, IR):
    L = []
    L += [f"v_mul_f32 v{tmp+r}, v{a+r}, v{a+r}" for r in range(4)]
    L += [f"v_fma_f32 v{tmp+r}, v{tmp+r}, v{K1}, v{K0}" for r in range(4)]
    L += [f"v_mul_f32 v{tmp+r}, v{tmp+r}, v{a+r}" for r in range(4)]
    L += [f"v_exp_f32 v{tmp+r}, v{tmp+r}" for r in range(4)]
    L += [f"v_fma_f32 v{tmp+r}, v{tmp+r}, v{IR}, v{IR}" for r in range(4)]
    L += [f"v_rcp_f32 v{tmp+r}, v{tmp+r}" for r in range(4)]
    L += [f"v_mul_f32 v{tmp+r}, v{tmp+r}, v{a+r}" for r in range(4)]
    return L


def tgen(e, j0s, TB, ST, us=(0, 1, 2), hook=None):
    S0, S1, FA, C1r, C32r, P0, K8, Q = ST, ST+8, ST+16, ST+17, ST+18, ST+19, ST+20, ST+21
    if 0 in us: e(f"s_lshl_b32 s46, s{j0s}, 4\nv_add_u32 v{FA}, s46, v3\nv_cvt_f32_u32 v{FA}, v{FA}\nv_lshlrev_b32 v{Q+1}, 3, v2\nv_cvt_f32_u32 v{Q+1}, v{Q+1}\nv_mov_b32 v{K8}, 0x3e000000")
    for u in us:
        if u: e(f"v_add_f32 v{FA}, 0x41800000, v{FA}")
        e(f"""v_mul_f32 v{C1r}, {fhex(1/576)}, v{FA}
v_mul_f32 v{C32r}, {fhex(1/18)}, v{FA}
v_mul_f32 v{P0}, v{FA}, v{Q+1}
v_floor_f32 v{C32r}, v{C32r}
v_cos_f32 v{C1r}, v{C1r}
v_fmamk_f32 v{C32r}, v{C32r}, {fhex(-18.0)}, v{FA}
v_mul_f32 v{C32r}, {fhex(1/18)}, v{C32r}""")
        sd = [(S0, 0), (S0+1, 1), (S1, 32), (S1+1, 33)]
        for r, k in sd: e(f"v_fmamk_f32 v{r}, v{FA}, {fhex(float(k))}, v{P0}")
        e(f"v_cos_f32 v{C32r}, v{C32r}")
        for r, k in sd: e(f"v_mul_f32 v{r+2}, {fhex(1/576)}, v{r}")
        e(f"v_add_f32 v{C1r}, v{C1r}, v{C1r}")
        for r, k in sd: e(f"v_floor_f32 v{r+2}, v{r+2}")
        e(f"v_add_f32 v{C32r}, v{C32r}, v{C32r}")
        for r, k in sd: e(f"v_fmamk_f32 v{r}, v{r+2}, {fhex(-576.0)}, v{r}")
        for r, k in sd: e(f"v_fmamk_f32 v{r}, v{r}, {fhex(1/576)}, v{K8}")
        for r, k in sd: e(f"v_sin_f32 v{r}, v{r}")
        e("s_nop 0")
        for i in range(2, 8):
            for S in (S0, S1): e(f"v_fma_f32 v{S+i}, v{C1r}, v{S+i-1}, -v{S+i-2}")
        for ks in range(9):
            S = S0 if ks % 2 == 0 else S1; O = S1 if ks % 2 == 0 else S0
            if ks >= 2:
                for i in range(8): e(f"v_fma_f32 v{S+i}, v{C32r}, v{O+i}, -v{S+i}")
            for m in range(4): e(f"v_cvt_pk_bf16_f32 v{TB+(ks*3+u)*4+m}, v{S+2*m}, v{S+2*m+1}")
            if hook: hook(u, ks)

def pack_job(e, ldflag, stflag):
    e(f"s_mul_i32 s40, s35, {3*73728}\ns_add_u32 s36, s36, s40")
    e("s_mul_i32 s40, s34, s33\ns_lshl_b32 s40, s40, 5\ns_mul_i32 s41, s35, 384\ns_add_u32 s40, s40, s41")
    e("""v_lshrrev_b32 v6, 3, v1
v_mul_lo_u32 v6, v6, s33
v_and_b32 v7, 7, v1
v_lshl_add_u32 v6, v7, 4, v6
s_lshl_b32 s41, s33, 3
s_mul_i32 s42, s3, 12288""")
    for f in range(4):
        for it in range(3):
            e(f"s_add_u32 m0, s42, {it*4096 + f*1024 - it*128}")
            e("s_add_u32 s40, s40, s41" if (it == 0 and f) else "s_nop 0")
            e.vmop(f"buffer_load_dwordx4 v6, s[12:15], s40 offen offset:{128*it} {ldflag} lds", "d")
    e("""v_mul_lo_u32 v7, v2, s37
v_lshrrev_b32 v8, 2, v3
v_add_u32 v7, v7, v8
v_lshlrev_b32 v7, 7, v7
v_and_b32 v8, 3, v3
v_lshl_add_u32 v7, v8, 3, v7
v_add_u32 v7, s42, v7
s_lshl_b32 s43, s38, 7
v_add_u32 v8, s43, v7
v_add_u32 v9, 18432, v4
v_add_u32 v10, 36864, v4
v_add_u32 v11, 55296, v4""")
    nst_save = NST; globals()["NST"] = 1
    stamp(e, lvl=-1)
    e.wait(vm="all")
    stamp(e, lvl=-1)
    globals()["NST"] = nst_save
    for it in range(3):
        for tt in range(4):
            o = 16 + 16*it + 4*tt
            e.lgop(f"ds_read_b64_tr_b16 {vr(o,2)}, v7 offset:{it*4096 + 32*tt}", (it, tt))
            e.lgop(f"ds_read_b64_tr_b16 {vr(o+2,2)}, v8 offset:{it*4096 + 32*tt}", (it, tt))
        if it:
            for tt in range(4):
                e.wait(lg=(it-1, tt))
                e.vmop(f"buffer_store_dwordx4 {vr(16*it + 4*tt)}, v{(4,9,10,11)[tt]}, s[8:11], s36 offen {stflag}", "st")
            e("s_add_u32 s36, s36, 73728")
    for tt in range(4):
        e.wait(lg=(2, tt))
        e.vmop(f"buffer_store_dwordx4 {vr(48 + 4*tt)}, v{(4,9,10,11)[tt]}, s[8:11], s36 offen {stflag}", "st")
    e.vm = []; e.lg = []

def touch(e, srd, sreg, nbytes, vaddr, vd, stride=64):
    n = -(-nbytes // stride); i = 0
    while n > 0:
        if n < 64: e(f"s_mov_b32 exec_lo, {hex((1 << min(n,32)) - 1)}\ns_mov_b32 exec_hi, {hex((1 << max(n-32,0)) - 1)}")
        e(f"buffer_load_dword v{vd}, v{vaddr}, s[{srd}:{srd+3}], s{sreg} offen")
        n -= 64; i += 1
        if n > 0: e(f"s_add_u32 s{sreg}, s{sreg}, {64*stride}")
    e("s_mov_b64 exec, -1")

def k1(e):
    name = "k1_kernel"
    N3 = OPT.get("n3k1", 0)
    NSW = N3 + 54 + 54 + 72 + 576
    NS = NSW // 4
    Lend = pro(e, name, 256 + NS, x=True, extra=((20, 8), (22, 16), (24, 32), (26, 40), (28, 48), (30, 56)))
    Lside = e.label("side"); Lst = e.label("stats"); Lep = e.label("ep")
    ACC, BF, NB, TB = 16, 64, 3, 88
    def acc(h, u, t): return ACC + h*24 + (u*2+t)*4
    e(f"s_cmp_ge_u32 s2, 256\ns_cbranch_scc1 {Lside}")
    e("""s_bfe_u32 s34, s2, 0x20003
s_and_b32 s35, s2, 7
s_lshl_b32 s35, s35, 3
s_lshr_b32 s39, s2, 5
s_add_u32 s35, s35, s39
s_lshr_b32 s36, s35, 5
s_bfe_u32 s37, s35, 0x20003
s_and_b32 s38, s35, 7
s_lshl_b32 s40, s36, 5
s_lshr_b32 s41, s3, 1
s_lshl_b32 s41, s41, 4
s_add_u32 s40, s40, s41
s_lshl_b32 s41, s37, 2
s_add_u32 s40, s40, s41
s_lshl_b32 s40, s40, 5
s_lshl_b32 s41, s38, 2
s_add_u32 s40, s40, s41
v_and_b32 v6, 3, v3
v_lshlrev_b32 v6, 5, v6
v_lshrrev_b32 v7, 2, v3
v_add3_u32 v6, v6, v7, s40
v_mul_u32_u24 v7, 1152, v6
v_lshl_add_u32 v7, v2, 4, v7
s_and_b32 s41, s3, 1
s_mul_i32 s41, s41, 576
s_mul_i32 s42, s3, 9216
s_mul_i32 s44, s34, 9
s_mul_i32 s45, s3, 3
s_add_u32 s44, s44, s45""")
    if OPT.get("k1pre", 0): tgen(e, 44, TB, 16, (0,))
    pro2(e, x=True)
    for idx in range(9):
        e(f"s_add_u32 m0, s42, {idx*960}\ns_nop 0")
        e.vmop(f"buffer_load_dwordx4 v7, s[12:15], s41 offen offset:{64*idx} lds", "dma")
    e(f"s_cmp_eq_u32 s3, 3\ns_cbranch_scc1 {Lst}")
    vm_save = list(e.vm)
    tgen(e, 44, TB, 16, (1, 2) if OPT.get("k1pre", 0) else (0, 1, 2))
    e(f"""v_lshlrev_b32 v8, 12, v3
v_lshl_add_u32 v8, v2, 4, v8
s_lshl_b32 s50, s44, 16
s_lshr_b32 s51, s38, 2
s_lshl_b32 s51, s51, 1
s_add_u32 s51, s51, s36
s_lshl_b32 s51, s51, 10
s_add_u32 s50, s50, s51
s_lshl_b32 s51, s37, 8
s_add_u32 s50, s50, s51
s_and_b32 s51, s38, 3
s_lshl_b32 s51, s51, 6
s_add_u32 s50, s50, s51
s_add_u32 s50, s50, {UT}
v_lshlrev_b32 v9, 4, v2
v_lshlrev_b32 v10, 31, v3
v_or_b32 v10, 1.0, v10""")
    stamp(e)
    e.wait(vm="dma")
    e("s_barrier")
    stamp(e)
    def rd(ks):
        for t in range(2):
            e.lgop(f"ds_read_b128 {vr(BF + ((ks % NB)*2 + t)*4)}, v4 offset:{(t*18+ks)*1024}", ("b", ks))
    for ks in range(NB-1): rd(ks)
    for ks in range(18):
        if ks + NB - 1 < 18: rd(ks + NB - 1)
        e.wait(lg=("b", ks))
        for u in range(3):
            for t in range(2):
                d = vr(acc(ks // 9, u, t))
                e(f"{M16} {d}, {vr(BF + ((ks % NB)*2 + t)*4)}, {vr(TB + ((ks % 9)*3 + u)*4)}, {d if ks % 9 else 0}")
    stamp(e)
    e("s_barrier")
    e.lgop("ds_read_b128 v[76:79], v9 offset:36864", "r"); e.lgop("ds_read_b128 v[80:83], v9 offset:36928", "r")
    e("s_nop 3")
    for u in range(3):
        for t in range(2):
            for r in range(4): e(f"v_fmac_f32 v{acc(0,u,t)+r}, v{acc(1,u,t)+r}, v10")
        e.wait(lg="all")
        for t in range(2):
            for r in range(4): e(f"v_mul_f32 v{acc(0,u,t)+r}, v{acc(0,u,t)+r}, v{76+4*t+r}")
        o = BF + 4*u
        for t in range(2):
            e(f"v_cvt_pk_bf16_f32 v{o+2*t}, v{acc(0,u,t)}, v{acc(0,u,t)+1}\nv_cvt_pk_bf16_f32 v{o+2*t+1}, v{acc(0,u,t)+2}, v{acc(0,u,t)+3}")
        e.vmop(f"buffer_store_dwordx4 {vr(o)}, v8, s[8:11], s50 offen {OPT.get('sc_ut','')}", "st")
        if u < 2: e("s_add_u32 s50, s50, 65536")
    if OPT.get("touch34"):
        ts = OPT.get("tstride", 64)
        e.srd(48, 28, 5308416); e.srd(52, 30, 5308416)
        e(f"v_mul_u32_u24 v11, {ts}, v1\ns_mul_i32 s38, s2, 3\ns_add_u32 s38, s38, s3\ns_mul_i32 s38, s38, 6912\ns_mov_b32 s39, s38")
        dump(e, 1)
        touch(e, 48, 38, 6912, 11, 16, ts); touch(e, 52, 39, 6912, 11, 20, ts)
        e("s_endpgm")
    e(f"s_branch {Lep}")
    e(f"{Lst}:")
    e.vm = vm_save; e.lg = []
    e("s_mov_b32 s44, 0x3f803f80")
    for i in range(8): e(f"v_mov_b32 v{16+i}, 0")
    e.wait(vm="all")
    e("s_barrier")
    NR = 6
    def rds(f): e.lgop(f"ds_read_b128 {vr(64+4*(f%NR))}, v4 offset:{f*1024}", f)
    for f in range(NR-1): rds(f)
    for f in range(36):
        if f + NR - 1 < 36: rds(f + NR - 1)
        e.wait(lg=f)
        t = f // 18
        for m in range(4):
            x = 64 + 4*(f % NR) + m
            e(f"v_dot2_f32_bf16 v{16+4*t+(m&1)}, v{x}, s44, v{16+4*t+(m&1)}")
            e(f"v_dot2_f32_bf16 v{18+4*t+(m&1)}, v{x}, v{x}, v{18+4*t+(m&1)}")
    e("s_nop 3")
    for t in range(2):
        b = 16 + 4*t
        e(f"v_add_f32 v{b}, v{b}, v{b+1}\nv_add_f32 v{b+2}, v{b+2}, v{b+3}")
    red_g(e, (16, 18, 20, 22), (24, 25, 26, 27))
    e(f"v_mov_b32 v24, {fhex(1/576)}")
    for t in range(2):
        b = 16 + 4*t
        e(f"""v_mul_f32 v{b}, v24, v{b}
v_mul_f32 v{b+1}, v{b}, v{b}
v_fma_f32 v{b+2}, v{b+2}, v24, -v{b+1}
v_max_f32 v{b+2}, 0, v{b+2}
v_add_f32 v{b+2}, {fhex(EPS)}, v{b+2}
v_rsq_f32 v{b+2}, v{b+2}""")
    Lns = e.label("nost")
    e(f"""v_lshlrev_b32 v25, 2, v3
s_lshl_b32 s45, s35, 7
s_add_u32 s45, s45, {MX}
s_mov_b64 exec, 0xffff
ds_write_b32 v25, v18 offset:36864
ds_write_b32 v25, v22 offset:36928
s_cmp_lg_u32 s34, 0
s_cbranch_scc1 {Lns}
buffer_store_dword v16, v25, s[8:11], s45 offen
buffer_store_dword v20, v25, s[8:11], s45 offen offset:64
{Lns}:
s_waitcnt lgkmcnt(0)
s_barrier
s_branch {Lep}""")
    e(f"{Lside}:")
    e.vm = []; e.lg = []
    e("s_sub_u32 s32, s2, 256\ns_lshl_b32 s32, s32, 2\ns_add_u32 s32, s32, s3")
    Lwt, Lrm, L2, Lgo = [e.label(x) for x in ("wt", "rm", "w2", "go")]
    pro2(e)
    L3, Lgo2 = e.label("w3"), e.label("go2")
    if N3: e(f"s_cmp_lt_u32 s32, {N3}\ns_cbranch_scc1 {L3}\ns_sub_u32 s32, s32, {N3}")
    e(f"s_cmp_ge_u32 s32, 180\ns_cbranch_scc1 {Lwt}\ns_cmp_ge_u32 s32, 108\ns_cbranch_scc1 {Lrm}\ns_cmp_ge_u32 s32, 54\ns_cbranch_scc1 {L2}")
    e.srd(12, 24, 663552)
    e(f"s_mov_b32 s39, {W1P}\ns_branch {Lgo}\n{L2}:\ns_sub_u32 s32, s32, 54")
    e.srd(12, 26, 663552)
    e(f"s_mov_b32 s39, {W2P}\n{Lgo}:")
    sdiv(e, 3, 34, 35, 32, 40)
    e("s_mov_b32 s33, 1152\ns_lshl_b32 s36, s34, 10\ns_add_u32 s36, s36, s39\ns_mov_b32 s37, 8\ns_mov_b32 s38, 4")
    pack_job(e, "", "")
    e(f"s_branch {Lep}")
    if N3:
        e(f"{L3}:")
        e.srd(12, 28, 5308416); sdiv(e, 24, 34, 35, 32, 40)
        e(f"s_mov_b32 s33, 9216\ns_lshl_b32 s36, s34, 10\ns_add_u32 s36, s36, {W3P}\ns_mov_b32 s37, 8\ns_mov_b32 s38, 4")
        pack_job(e, OPT.get("ld_pk", "nt"), OPT.get("sc_pk", "sc1"))
        e(f"s_branch {Lep}")
    e(f"{Lrm}:\ns_sub_u32 s32, s32, 108")
    e.srd(12, 26, 663552)
    e("""v_lshrrev_b32 v6, 3, v1
v_mul_u32_u24 v7, 1152, v6
v_and_b32 v8, 7, v1
v_lshl_add_u32 v7, v8, 4, v7
s_mul_i32 s33, s32, 9216
s_mov_b32 s34, 0x3f803f80
v_mov_b32 v9, 0""")
    for m in range(9): e.vmop(f"buffer_load_dwordx4 {vr(16+4*m)}, v7, s[12:15], s33 offen offset:{128*m}", m)
    Lnz = e.label("nz")
    e(f"s_cmp_ge_u32 s32, 32\ns_cbranch_scc1 {Lnz}\nv_mov_b32 v56, 0\nv_mov_b32 v57, 0\nv_mov_b32 v58, 0\nv_mov_b32 v59, 0\ns_lshl_b32 s38, s32, 10\ns_add_u32 s38, s38, {FLG}")
    e(f"buffer_store_dwordx4 v[56:59], v4, s[8:11], s38 offen\n{Lnz}:")
    e.wait(vm="all")
    for j in range(36): e(f"v_dot2_f32_bf16 v9, v{16+j}, s34, v9")
    e(f"""s_nop 3
v_add_f32_dpp v9, v9, v9 quad_perm:[1,0,3,2] row_mask:0xf bank_mask:0xf
s_nop 1
v_add_f32_dpp v9, v9, v9 quad_perm:[2,3,0,1] row_mask:0xf bank_mask:0xf
s_nop 1
v_add_f32_dpp v9, v9, v9 row_half_mirror row_mask:0xf bank_mask:0xf
v_mul_f32 v9, {fhex(1/576)}, v9
v_cvt_pk_bf16_f32 v9, v9, v9
v_lshlrev_b32 v6, 1, v6
s_lshl_b32 s33, s32, 8
s_add_u32 s33, s33, {W2P + 36*18432}
v_cmp_eq_u32 vcc, 0, v8
s_nop 1
s_and_saveexec_b64 s[36:37], vcc
buffer_store_short v9, v6, s[8:11], s33 offen
s_branch {Lep}""")
    e(f"{Lwt}:\ns_sub_u32 s32, s32, 180")
    sdiv(e, 9, 33, 34, 32, 40)
    e("""s_lshr_b32 s35, s33, 4
s_and_b32 s33, s33, 15
v_lshrrev_b32 v6, 5, v1
s_lshl_b32 s33, s33, 2
v_add_u32 v6, s33, v6
v_and_b32 v7, 31, v1
s_lshl_b32 s34, s34, 5
v_add_u32 v7, s34, v7
v_mul_u32_u24 v8, 578, v6
v_lshl_add_u32 v8, v7, 1, v8
v_add_u32 v8, 2, v8
s_mul_i32 s36, s35, 147968""")
    e.srd(12, 20, 1183744); e.srd(16, 22, 1183744)
    for gg in range(2):
        for tk in range(2):
            for r in range(4):
                i = gg*16 + tk*4 + r
                e(f"s_add_u32 s37, s36, {36992*(16*tk+r) + 1156*gg}")
                e.vmop(f"buffer_load_ushort v{16+i}, v8, s[12:15], s37 offen", gg)
                e.vmop(f"buffer_load_ushort v{24+i}, v8, s[16:19], s37 offen", gg)
    e(f"""v_lshlrev_b32 v9, 13, v7
v_lshrrev_b32 v10, 4, v6
v_lshl_add_u32 v9, v10, 11, v9
v_and_b32 v10, 15, v6
v_lshl_add_u32 v9, v10, 5, v9
s_lshl_b32 s36, s35, 9
s_add_u32 s36, s36, {WT}""")
    for gg in range(2):
        e.wait(vm=gg)
        for i in range(8): e(f"v_lshl_or_b32 v{16+16*gg+i}, v{24+16*gg+i}, 16, v{16+16*gg+i}")
        e.vmop(f"buffer_store_dwordx4 {vr(16+16*gg)}, v9, s[8:11], s36 offen offset:{64*gg}", "st")
        e.vmop(f"buffer_store_dwordx4 {vr(20+16*gg)}, v9, s[8:11], s36 offen offset:{64*gg+16}", "st")
    e(f"{Lep}:")
    epi(e, name, Lend, 1, 200, 200)
    e.add_launch(name, 256 + NS, lds=49152)

def k2(e):
    name = "k2_kernel"
    N3 = OPT.get("n3k1", 0)
    NSW = 432 + 432 - N3
    NS = NSW // 4
    Lend = pro(e, name, 288 + NS, extra=((24, 48), (26, 56)))
    Lside = e.label("side"); Lep = e.label("ep")
    e(f"s_cmp_ge_u32 s2, 288\ns_cbranch_scc1 {Lside}")
    e(f"""s_add_u32 s34, s2, 1
s_lshl_b32 s35, s34, 12
s_sub_u32 s36, 576, s34
s_lshl_b32 s36, s36, 12
s_cmp_eq_u32 s34, 288
s_cselect_b32 s14, 0, {WS_SIZE}
s_cselect_b32 s37, 0, s36
s_cselect_b32 s38, 0, -1
s_lshl_b32 s39, s2, 13
s_lshl_b32 s40, s3, 11
s_add_u32 s39, s39, s40
s_add_u32 s39, s39, {WT}
v_lshlrev_b32 v6, 5, v1""")
    pro2(e)
    e("s_mov_b32 s12, s8\ns_mov_b32 s13, s9\ns_mov_b32 s15, 0x00020000")
    P, Q, WV = 16, 32, 48
    for js in range(2):
        for ts in range(2):
            f = ts*2 + js
            e.vmop(f"buffer_load_dwordx4 {vr(P+4*f)}, v4, s[8:11], s35 offen offset:{f*1024}", "d")
            e.vmop(f"buffer_load_dwordx4 {vr(Q+4*f)}, v4, s[12:15], s36 offen offset:{f*1024}", "d")
    e.vmop(f"buffer_load_dwordx4 {vr(WV)}, v6, s[8:11], s39 offen", "w")
    e.vmop(f"buffer_load_dwordx4 {vr(WV+4)}, v6, s[8:11], s39 offen offset:16", "w")
    if OPT.get("touchW"):
        ts = OPT.get("tstride", 64)
        e(f"s_lshr_b32 s40, s2, 3\ns_lshl_b32 s40, s40, 2\ns_add_u32 s40, s40, s3\ns_mul_i32 s40, s40, 9344\ns_add_u32 s40, s40, {W1P}\nv_mul_u32_u24 v7, {ts}, v1")
        touch(e, 8, 40, 9344, 7, 1, ts)
        e.vm += ["t"]*(3 if ts == 64 else 2)
    C64, S64, N64 = 56, 64, 72
    C32, S32, N32 = 80, 88, 96
    TC1, TS1, TC2, TS2 = 104, 112, 120, 128
    TMP = 136
    RE, IM = 152, 160
    PR, PI = 8, 12
    e("""s_lshl_b32 s40, s3, 4
v_add_u32 v7, s40, v3
v_cvt_f32_u32 v7, v7
v_lshlrev_b32 v5, 2, v2
v_cvt_f32_u32 v5, v5
v_cvt_f32_u32 v6, v3
s_mov_b32 s41, 0x80008000
s_brev_b32 s42, 1
v_and_b32 v0, 1, v3
v_mul_lo_u32 v0, v0, s41""")
    e(f"v_mul_f32 v8, {fhex(1/64)}, v7\nv_mul_f32 v9, v5, v8")
    for i in range(8): e(f"v_fmamk_f32 v{TMP+i}, v8, {fhex(float(16*(i>>2) + (i&3)))}, v9")
    for i in range(8): e(f"v_fract_f32 v{TMP+i}, v{TMP+i}")
    for i in range(8): e(f"v_sin_f32 v{TMP+8+i}, v{TMP+i}")
    for i in range(8): e(f"v_cos_f32 v{TMP+i}, v{TMP+i}")
    for m in range(4): e(f"v_cvt_pk_bf16_f32 v{S64+m}, v{TMP+8+2*m}, v{TMP+9+2*m}")
    for m in range(4): e(f"v_cvt_pk_bf16_f32 v{C64+m}, v{TMP+2*m}, v{TMP+1+2*m}")
    for m in range(4): e(f"v_xor_b32 v{N64+m}, s41, v{S64+m}")
    for b in (C64, S64, N64):
        for m in range(4): e(f"v_xor_b32 v{b+4+m}, v0, v{b+m}")
    tw1 = [f"v_mul_f32 v8, {fhex(1/2048)}, v7", "v_mul_f32 v9, v5, v8"]
    tw1 += [f"v_fmamk_f32 v{TC1+i}, v8, {fhex(float(16*(i>>2)+(i&3)))}, v9" for i in range(8)]
    tw1 += [f"v_sin_f32 v{TS1+i}, v{TC1+i}" for i in range(8)] + [f"v_cos_f32 v{TC1+i}, v{TC1+i}" for i in range(8)]
    for l in tw1: e(l)
    m32 = [f"v_mul_f32 v8, {fhex(1/32)}, v6", "v_mul_f32 v9, v5, v8"]
    m32 += [f"v_fmamk_f32 v{TC2+i}, v8, {fhex(float(i))}, v9" for i in range(4)]
    m32 += [f"v_fract_f32 v{TC2+i}, v{TC2+i}" for i in range(4)]
    m32 += [f"v_sin_f32 v{TC2+4+i}, v{TC2+i}" for i in range(4)] + [f"v_cos_f32 v{TC2+i}, v{TC2+i}" for i in range(4)]
    m32 += [f"v_cvt_pk_bf16_f32 v{S32+m}, v{TC2+4+2*m}, v{TC2+5+2*m}" for m in range(2)]
    m32 += [f"v_cvt_pk_bf16_f32 v{C32+m}, v{TC2+2*m}, v{TC2+1+2*m}" for m in range(2)]
    m32 += [f"v_xor_b32 v{b+2+m}, v0, v{b+m}" for b in (C32, S32) for m in range(2)]
    m32 += [f"v_xor_b32 v{b+4+m}, s42, v{b+m}" for b in (C32, S32) for m in range(4)]
    m32 += [f"v_xor_b32 v{N32+m}, s41, v{S32+m}" for m in range(8)]
    tw2 = ["v_cvt_f32_u32 v0, s40", "v_add_f32 v0, v0, v5", f"v_mul_f32 v7, {fhex(1/2048)}, v6", f"v_add_f32 v5, {fhex(16/2048)}, v7",
           "v_mul_f32 v6, v0, v7", "v_mul_f32 v0, v0, v5"]
    tw2 += [f"v_fmamk_f32 v{TC2+r}, v7, {fhex(float(r))}, v6" for r in range(4)]
    tw2 += [f"v_fmamk_f32 v{TC2+4+r}, v5, {fhex(float(r))}, v0" for r in range(4)]
    tw2 += [f"v_sin_f32 v{TS2+i}, v{TC2+i}" for i in range(8)] + [f"v_cos_f32 v{TC2+i}, v{TC2+i}" for i in range(8)]
    def steps(lst, fill=(), per=1):
        fill = list(fill)
        n = len(lst[0][1])
        for k in range(n):
            for d, ch in lst:
                A, B = ch[k]
                e(f"{M16} {vr(d)}, {vr(A)}, {vr(B)}, {vr(d) if k else 0}")
                for _ in range(per):
                    if fill: e(fill.pop(0))
        nleft = len(fill)
        for l in fill: e(l)
        if nleft < 8: e(f"s_nop {7 - nleft}")
    def cmul(cre, sim, sign):
        for i in range(8): e(f"v_mul_f32 v{TMP+i}, v{RE+i}, v{cre+i}")
        for i in range(8): e(f"v_mul_f32 v{TMP+8+i}, v{IM+i}, v{cre+i}")
        for i in range(8): e(f"v_fma_f32 v{TMP+i}, {'-' if sign > 0 else ''}v{IM+i}, v{sim+i}, v{TMP+i}")
        for i in range(8): e(f"v_fma_f32 v{TMP+8+i}, {'' if sign > 0 else '-'}v{RE+i}, v{sim+i}, v{TMP+8+i}")
        for m in range(4): e(f"v_cvt_pk_bf16_f32 v{PR+m}, v{TMP+2*m}, v{TMP+2*m+1}")
        for m in range(4): e(f"v_cvt_pk_bf16_f32 v{PI+m}, v{TMP+8+2*m}, v{TMP+9+2*m}")
    stamp(e)
    e.wait(vm="d")
    stamp(e)
    steps([(RE+4*ts, [(P+8*ts, C64), (Q+8*ts, S64), (P+8*ts+4, C64+4), (Q+8*ts+4, S64+4)]) for ts in range(2)] +
          [(IM+4*ts, [(Q+8*ts, C64), (P+8*ts, N64), (Q+8*ts+4, C64+4), (P+8*ts+4, N64+4)]) for ts in range(2)], m32, 2)
    cmul(TC1, TS1, -1)
    e.wait(vm="w")
    e("s_nop 0")
    wun = []
    for i in range(8): wun += [f"v_lshlrev_b32 v{TC1+i}, 16, v{WV+i}", f"v_and_b32 v{TS1+i}, 0xffff0000, v{WV+i}"]
    steps([(RE+4*tk, [(C32+4*tk, PR), (S32+4*tk, PI)]) for tk in range(2)] +
          [(IM+4*tk, [(C32+4*tk, PI), (N32+4*tk, PR)]) for tk in range(2)], wun, 1)
    stamp(e)
    cmul(TC1, TS1, +1)
    e("s_lshr_b32 s43, s3, 1\ns_lshl_b32 s43, s43, 10\ns_and_b32 s44, s3, 1\ns_lshl_b32 s44, s44, 3\ns_add_u32 s43, s43, s44")
    steps([(RE+4*ts, [(PR, C32+4*ts), (PI, N32+4*ts)]) for ts in range(2)] +
          [(IM+4*ts, [(PI, C32+4*ts), (PR, S32+4*ts)]) for ts in range(2)], tw2 + ["v_add_u32 v5, s43, v4"], 2)
    cmul(TC2, TS2, +1)
    for ts in range(2):
        e.lgop(f"ds_write_b64 v5, {vr(PR+2*ts,2)} offset:{(ts*2+0)*2048}", "x")
        e.lgop(f"ds_write_b64 v5, {vr(PI+2*ts,2)} offset:{(ts*2+1)*2048}", "x")
    e(f"""s_lshl_b32 s40, s3, 10
v_lshlrev_b32 v6, 6, v3
v_lshl_add_u32 v6, v2, 4, v6
v_add_u32 v6, s40, v6
s_add_u32 s35, s35, {VT}
s_add_u32 s37, s37, {VT}""")
    e.wait(lg="all")
    e("s_barrier")
    stamp(e)
    for js in range(2):
        for ts in range(2):
            e.lgop(f"ds_read_b128 {vr(P+8*ts+4*js)}, v4 offset:{((ts*2+0)*2+js)*1024}", ("y", js))
            e.lgop(f"ds_read_b128 {vr(Q+8*ts+4*js)}, v4 offset:{((ts*2+1)*2+js)*1024}", ("y", js))
    e.wait(lg="all")
    steps([(RE+4*ts, [(P+8*ts, C64), (Q+8*ts, N64), (P+8*ts+4, C64+4), (Q+8*ts+4, N64+4)]) for ts in range(2)] +
          [(IM+4*ts, [(Q+8*ts, C64), (P+8*ts, S64), (Q+8*ts+4, C64+4), (P+8*ts+4, S64+4)]) for ts in range(2)])
    for m in range(4): e(f"v_cvt_pk_bf16_f32 v{PR+m}, v{RE+2*m}, v{RE+2*m+1}")
    e(f"buffer_store_dwordx4 {vr(PR)}, v6, s[8:11], s35 offen {OPT.get('sc_vt','')}")
    for m in range(4): e(f"v_cvt_pk_bf16_f32 v{PI+m}, v{IM+2*m}, v{IM+2*m+1}")
    for m in range(4): e(f"v_and_b32 v{PI+m}, s38, v{PI+m}")
    e(f"buffer_store_dwordx4 {vr(PI)}, v6, s[8:11], s37 offen {OPT.get('sc_vt','')}")
    e(f"s_branch {Lep}")
    e(f"{Lside}:")
    e.vm = []; e.lg = []
    e(f"s_sub_u32 s32, s2, 288\ns_lshl_b32 s32, s32, 2\ns_add_u32 s32, s32, s3\ns_add_u32 s32, s32, {N3}")
    pro2(e)
    Lgo, L4 = e.label("go"), e.label("w4")
    e(f"s_cmp_ge_u32 s32, 432\ns_cbranch_scc1 {L4}")
    e.srd(12, 24, 5308416); sdiv(e, 24, 34, 35, 32, 40)
    e(f"s_mov_b32 s33, 9216\ns_lshl_b32 s36, s34, 10\ns_add_u32 s36, s36, {W3P}\ns_mov_b32 s37, 8\ns_mov_b32 s38, 4\ns_branch {Lgo}")
    e(f"{L4}:\ns_sub_u32 s32, s32, 432")
    e.srd(12, 26, 5308416); sdiv(e, 3, 34, 35, 32, 40); sdiv(e, 18, 41, 42, 34, 40)
    e(f"s_mov_b32 s33, 1152\ns_mul_i32 s36, s41, 663552\ns_lshl_b32 s42, s42, 10\ns_add_u32 s36, s36, s42\ns_add_u32 s36, s36, {W4P}\ns_mov_b32 s37, 4\ns_mov_b32 s38, 16")
    e(f"{Lgo}:")
    pack_job(e, OPT.get("ld_pk", "nt"), OPT.get("sc_pk", "sc1"))
    e(f"{Lep}:")
    epi(e, name, Lend, 2, 168, 168)
    e.add_launch(name, 288 + NS, lds=49152)

NPF = 32
def k3(e):
    name = "k3_kernel"
    Lend = pro(e, name, 256, x=True, extra=((22, 64),))
    ACC, BF, NB, HCR, TB, XR = 16, 64, 3, 40, 104, 212
    XV, AC, TT, KC, TMP, PK, RING = 16, 48, 64, 80, 92, 96, 104
    def acc(u, t): return ACC + (u*2+t)*4
    def wfrag(ph, ks, u):
        if ph == "T": return vr(TB + ((ks % 9)*3 + u)*4)
        f = ks*3 + u
        if ph == "W1": return vr(4*f, 4, "a")
        if f < 38: return vr(104 + 4*f)
        if f < 48: return vr(216 + 4*(f-38), 4, "a")
        return vr(4*(f-48), 4, "a")
    e("""s_lshr_b32 s30, s2, 3
s_and_b32 s31, s2, 7
s_lshl_b32 s26, s31, 2
s_lshr_b32 s32, s30, 3
s_add_u32 s26, s26, s32
s_and_b32 s24, s30, 3
s_bfe_u32 s32, s30, 0x10002
s_lshl_b32 s25, s26, 1
s_add_u32 s25, s25, s32
s_mul_i32 s27, s24, 9
s_mul_i32 s32, s3, 3
s_add_u32 s27, s27, s32""")
    if OPT.get("p6map", "grp") == "grp": e("s_and_b32 s28, s30, 7\ns_mov_b32 s29, s26")
    else: e("s_mov_b32 s28, s31\ns_mov_b32 s29, s30")
    NT = 2*162
    def wload6(n):
        out = []
        m = n % 162; sreg = 30 if n < 162 else 31
        if m % 4 == 0 and m: out.append(("s", f"s_add_u32 s{sreg}, s{sreg}, 4096"))
        out.append(("v", f"buffer_load_dwordx4 {vr(RING+4*(n % NPF))}, v4, s[8:11], s{sreg} offen offset:{(m&3)*1024} {OPT.get('ld6' if n < 162 else 'ld6b','')}", ("w", n)))
        return out
    def emit(x):
        if x[0] == "s": e(x[1])
        elif x[0] == "v": e.vmop(x[1], x[2])
        elif x[0] == "l": e.lgop(x[1], x[2])
        elif x[0] == "wv": e.wait(vm=x[1])
    e(f"""v_lshrrev_b32 v6, 2, v1
v_lshlrev_b32 v6, 12, v6
v_lshrrev_b32 v7, 4, v1
v_and_b32 v7, 2, v7
v_and_b32 v5, 3, v1
v_xor_b32 v7, v7, v5
v_lshl_add_u32 v6, v7, 4, v6
s_mul_i32 s32, s3, 9216
s_mul_i32 s33, s3, {9*65536}
s_lshl_b32 s34, s25, 6
s_add_u32 s33, s33, s34
s_add_u32 s33, s33, {VT}
v_bfe_u32 v5, v3, 2, 1
v_lshlrev_b32 v5, 4, v5
v_lshrrev_b32 v7, 3, v3
v_lshl_add_u32 v5, v7, 2, v5
v_and_b32 v7, 3, v3
v_add_u32 v5, v5, v7
s_lshl_b32 s34, s25, 5
v_add_u32 v12, s34, v5
v_add_u32 v13, 8, v12
v_mul_u32_u24 v96, 1152, v12
v_lshl_add_u32 v96, v2, 3, v96
v_add_u32 v97, 9216, v96
v_lshrrev_b32 v5, 2, v5
v_lshlrev_b32 v98, 7, v5
v_lshl_add_u32 v98, v7, 4, v98
s_lshr_b32 s38, s25, 5
s_lshl_b32 s38, s38, 12
s_bfe_u32 s34, s25, 0x20002
s_lshl_b32 s34, s34, 10
s_add_u32 s38, s38, s34
s_bfe_u32 s34, s25, 0x10004
s_lshl_b32 s34, s34, 6
s_add_u32 s38, s38, s34
s_and_b32 s34, s25, 3
s_lshl_b32 s34, s34, 2
s_add_u32 s38, s38, s34
s_add_u32 s38, s38, {MX}
s_lshl_b32 s37, s27, 5""")
    if STAMP and OPT.get("lvl") == 2:
        e(f"s_memrealtime s[{60+2*NST}:{61+2*NST}]"); globals()["NST"] += 1
    pro2(e, x=True)
    stamp(e, lvl=2)
    for idx in range(9):
        e(f"s_add_u32 m0, s32, {idx*1024}")
        e("s_add_u32 s33, s33, 65536" if idx else "s_nop 0")
        e.vmop("buffer_load_dwordx4 v6, s[8:11], s33 offen lds", "dma")
        if idx in (0, 4, 8): stamp(e, lvl=2)
    if STAMP and OPT.get("lvl") == 2:
        e("s_waitcnt vmcnt(8)"); stamp(e, lvl=2); e("s_waitcnt vmcnt(0)"); stamp(e, lvl=2)
    Lw3 = e.label("w3"); Lp6 = e.label("p6")
    e(f"""s_mul_i32 s30, s28, 36
s_mul_i32 s31, s3, 9
s_add_u32 s30, s30, s31
s_mul_i32 s30, s30, 18432
s_add_u32 s31, s30, {W4P}
s_add_u32 s30, s30, {W3P}
v_add_u32 v10, 18432, v4
v_add_u32 v11, 36864, v4""")
    e(f"s_cmp_eq_u32 s3, 3\ns_cbranch_scc1 {Lw3}")
    vm_save = list(e.vm)
    def xloads():
        for u in range(3):
            for t in range(2):
                e.vmop(f"buffer_load_dwordx2 {vr(XR+(u*2+t)*2,2)}, v{96+t}, s[12:15], s37 offen offset:{32*u}", "x")
        e.vmop("buffer_load_dword v14, v98, s[8:11], s38 offen", "x")
        e.vmop("buffer_load_dword v15, v98, s[8:11], s38 offen offset:256", "x")
    ws_ = {"n": 0}
    def wnext(cnt, lim=108):
        for _ in range(cnt):
            n = ws_["n"]
            if n >= lim: return
            ph = "W1" if n < 54 else "W2"; f = n % 54; ks, u = divmod(f, 3)
            if f == 0: e(f"s_add_u32 s52, s36, {W1P if n == 0 else W2P}")
            elif u == 0 and ks % 4 == 0: e("s_add_u32 s52, s52, 4096")
            e.vmop(f"buffer_load_dwordx4 {wfrag(ph,ks,u)}, v{(4,10,11)[u]}, s[8:11], s52 offen offset:{(ks&3)*1024}", (ph, ks, u))
            ws_["n"] += 1
    stamp(e, lvl=1)
    e("s_mul_i32 s36, s27, 18432")
    TL = OPT.get("tl", 0)
    XP = OPT.get("xp", 13)
    def thook(u, ks):
        if u*9 + ks == XP: xloads()
        if u*9 + ks >= 27 - TL: wnext(1)
    tgen(e, 27, TB, 16, hook=thook)
    stamp(e, lvl=1)
    e(f"""v_lshrrev_b32 v5, 1, v2
v_lshlrev_b32 v8, 8, v5
v_lshl_add_u32 v8, v3, 4, v8
v_and_b32 v5, 1, v2
v_mul_u32_u24 v9, 18432, v5
v_add_u32 v8, v8, v9
v_lshrrev_b32 v6, 2, v3
v_lshl_add_u32 v6, v2, 3, v6
v_lshlrev_b32 v6, 6, v6
v_and_b32 v7, 3, v3
v_lshl_add_u32 v6, v7, 3, v6
v_lshl_add_u32 v6, v5, 5, v6
v_xor_b32 v7, 32, v6
s_mul_i32 s39, s25, 36864
s_lshl_b32 s40, s27, 9
s_add_u32 s39, s39, s40
s_lshl_b32 s42, s25, 11
s_lshl_b32 s40, s3, 2
s_add_u32 s40, s40, s24
s_lshl_b32 s40, s40, 7
s_add_u32 s41, s42, s40
s_mov_b32 s43, {fhex(2.0/(2048*576))}
v_lshlrev_b32 v99, 3, v3
v_mul_u32_u24 v100, 384, v2
v_add_u32 v100, v100, v99""")
    e.wait(vm="dma")
    stamp(e, lvl=1)
    e("s_barrier")
    stamp(e, lvl=-1)
    def gemm(ph, tr, hook):
        def rd(ks):
            for t in range(2):
                b = BF + ((ks % NB)*2 + t)*4
                if tr:
                    e.lgop(f"ds_read_b64_tr_b16 {vr(b,2)}, v{6+t} offset:{ks*2048}", ("b", ks))
                    e.lgop(f"ds_read_b64_tr_b16 {vr(b+2,2)}, v{6+t} offset:{ks*2048+256}", ("b", ks))
                else:
                    e.lgop(f"ds_read_b128 {vr(b)}, v4 offset:{(t*18+ks)*1024}", ("b", ks))
        for ks in range(NB-1): rd(ks)
        for ks in range(18):
            if ks + NB - 1 < 18: rd(ks + NB - 1)
            e.wait(vm=(ph, ks, 2), lg=("b", ks))
            for u in range(3):
                for t in range(2):
                    d = vr(acc(u, t) + (24 if (ph == "T" and ks >= 9) else 0))
                    first = ks == 0 or (ph == "T" and ks == 9)
                    e(f"{M16} {d}, {wfrag(ph,ks,u)}, {vr(BF + ((ks % NB)*2 + t)*4)}, {0 if first else d}")
            hook(ks)
            if ph == "T" and ks in (5, 11): stamp(e, lvl=1)
    def sq_store(region):
        red_g(e, (90, 91), (92, 93))
        e(f"s_add_u32 s46, s41, {region}\ns_mov_b64 exec, 0xffff")
        e.vmop(f"buffer_store_dwordx2 v[90:91], v99, s[8:11], s46 offen sc1", "st")
        e("s_mov_b64 exec, -1")
    def st16(o, vaddr, sreg, off):
        e(f"s_nop 0\nv_permlane16_swap_b32 v{o}, v{o+2}\nv_permlane16_swap_b32 v{o+1}, v{o+3}")
        e.vmop(f"buffer_store_dwordx4 {vr(o)}, v{vaddr}, s[8:11], s{sreg} offen offset:{off} sc1", "st")
    NLOOP, NEPI = OPT.get("nloop", 9), OPT.get("nepi", 1)
    GL, EL, AL = OPT.get("gl", 36), OPT.get("el", 0), OPT.get("al", 18)
    def hookw(ks):
        wnext(GL*(ks+1)//18 - GL*ks//18, lim_[0])
    lim_ = [54]
    gemm("T", True, hookw)
    stamp(e, lvl=-1)
    lim_[0] = 54 + 27
    e(f"s_add_u32 s44, s39, {HC}\nv_mov_b32 v90, 0\nv_mov_b32 v91, 0")
    e.wait(vm="x")
    stamp(e, lvl=1)
    for u in range(3):
        o = BF + 4*u
        wnext(EL, lim_[0])
        for t in range(2):
            a = acc(u, t); x = XR + (u*2+t)*2; h = HCR + (u*2+t)*4
            e(f"""v_lshlrev_b32 v92, 16, v{x}
v_and_b32 v93, 0xffff0000, v{x}
v_lshlrev_b32 v94, 16, v{x+1}
v_and_b32 v95, 0xffff0000, v{x+1}""")
            for r in range(4): e(f"v_{'sub' if r & 1 else 'add'}_f32 v{a+r}, v{a+r}, v{h+r}")
            for r in range(4): e(f"v_sub_f32 v{92+r}, v{92+r}, v{14+t}")
            for r in range(4): e(f"v_fma_f32 v{h+r}, v{a+r}, s43, v{92+r}")
            e(f"v_cvt_pk_bf16_f32 v{o+2*t}, v{h}, v{h+1}\nv_cvt_pk_bf16_f32 v{o+2*t+1}, v{h+2}, v{h+3}")
            for r in range(4): e(f"v_fmac_f32 v{90+t}, v{h+r}, v{h+r}")
        st16(o, 8, 44, 512*u)
    sq_store(SQH)
    e("s_lshr_b32 s46, s24, 1\ns_add_u32 s46, s46, 1\ns_sub_u32 s47, 0, s46\ns_bitcmp1_b32 s24, 0\ns_cselect_b32 s46, s47, s46\nv_mov_b32 v95, 2048")
    e(f"""v_add_u32 v12, s46, v12
v_add_u32 v13, s46, v13
v_cmp_lt_u32 s[48:49], v12, v95
v_cmp_lt_u32 s[50:51], v13, v95
v_and_b32 v92, 1, v2
v_lshl_add_u32 v12, v92, 3, v12
v_bfe_u32 v92, v12, 5, 6
v_mul_u32_u24 v92, 36864, v92
v_bfe_u32 v93, v12, 3, 1
v_mul_u32_u24 v93, 18432, v93
v_bfe_u32 v94, v12, 2, 1
v_lshl_add_u32 v92, v94, 7, v92
v_bfe_u32 v94, v12, 4, 1
v_lshl_add_u32 v92, v94, 6, v92
v_and_b32 v94, 3, v12
v_lshl_add_u32 v92, v94, 4, v92
v_lshrrev_b32 v94, 1, v2
v_lshlrev_b32 v94, 8, v94
v_add3_u32 v12, v92, v93, v94""")
    e(f"s_lshl_b32 s45, s27, 9\ns_add_u32 s45, s45, {H1S}\ns_add_u32 s47, s42, {SQH}")
    stamp(e, lvl=1)
    e.wait(vm="st")
    stamp(e, lvl=-1)
    e("s_barrier")
    stamp(e, lvl=1)
    lim_[0] = 54 + 48
    wnext(AL, lim_[0])
    assert ws_["n"] >= 54
    e("s_barrier")
    stamp(e, lvl=-1)
    for c in range(3): e.vmop(f"buffer_load_dwordx2 {vr(96+2*c,2)}, v100, s[8:11], s47 offen offset:{128*c} sc1", "q")
    def hook4(ks):
        if ks == 2: lim_[0] = 108
        hookw(ks)
    gemm("W1", False, hook4)
    stamp(e, lvl=-1)
    e.wait(vm="q")
    e("v_add_f32 v97, v97, v99\nv_add_f32 v96, v96, v98\nv_add_f32 v96, v96, v100\nv_add_f32 v100, v97, v101")
    red_g(e, (96, 100), (92, 93))
    for t in range(2): e(f"v_mul_f32 v{96+4*t}, {fhex(1/576)}, v{96+4*t}")
    for t in range(2): e(f"v_add_f32 v{88+t}, {fhex(EPS)}, v{96+4*t}")
    for t in range(2): e(f"v_rsq_f32 v{88+t}, v{88+t}")
    e("s_nop 0")
    for t in range(2): e(f"v_mul_f32 v{98+4*t}, v{88+t}, v{88+t}")
    for t in range(2): e(f"v_mul_f32 v{98+4*t}, v{98+4*t}, v{96+4*t}")
    for t in range(2): e(f"v_add_f32 v{98+4*t}, {fhex(EPS)}, v{98+4*t}")
    for t in range(2): e(f"v_rsq_f32 v{98+4*t}, v{98+4*t}")
    e("s_nop 0")
    for t in range(2): e(f"v_mul_f32 v{96+4*t}, v{88+t}, v{98+4*t}")
    for t in range(2): gelu_consts(e, 96+4*t, 97+4*t, 98+4*t, 99+4*t)
    for u in range(3):
        o = BF + 4*u
        wnext(EL)
        for t in range(2):
            a = acc(u, t); s = 96 + 4*t
            for l in gelu4(a, 92, s+1, s+2, s+3): e(l)
            e(f"v_cvt_pk_bf16_f32 v{o+2*t}, v92, v93\nv_cvt_pk_bf16_f32 v{o+2*t+1}, v94, v95")
            e(f"v_cndmask_b32 v{o+2*t}, 0, v{o+2*t}, s[{48+2*t}:{49+2*t}]\nv_cndmask_b32 v{o+2*t+1}, 0, v{o+2*t+1}, s[{48+2*t}:{49+2*t}]")
        e("s_nop 0")
        st16(o, 12, 45, 512*u)
    e(f"""s_lshl_b32 s45, s26, 2
s_add_u32 s45, s45, s24
s_mul_i32 s45, s45, 9
s_mul_i32 s46, s3, 3
s_add_u32 s45, s45, s46
s_lshl_b32 s45, s45, 1
s_and_b32 s46, s25, 1
s_add_u32 s45, s45, s46
s_lshl_b32 s45, s45, 10
s_add_u32 s45, s45, {PART + 8*A_}
s_add_u32 s44, s39, {X6}
v_lshlrev_b32 v99, 3, v3
v_lshlrev_b32 v98, 2, v3
v_mov_b32 v90, 0
v_mov_b32 v91, 0""")
    stamp(e, lvl=1)
    e.wait(vm="st")
    stamp(e)
    e("s_barrier")
    wnext(108)
    e("s_barrier")
    stamp(e)
    N5 = OPT.get("n5", 20)
    st5 = {"n": 0}
    def hook5(ks):
        while st5["n"] < min(N5, 3*ks + 3, (3*(ks+1))//2):
            for x in wload6(st5["n"]): emit(x)
            st5["n"] += 1
    gemm("W2", False, hook5)
    stamp(e)
    e("s_barrier")
    e.lgop("ds_read_b32 v96, v98 offset:36864", "m"); e.lgop("ds_read_b32 v97, v98 offset:36928", "m")
    for u in range(3):
        o = BF + 12 + 4*u; x = BF + 4*u
        for t in range(2):
            a = acc(u, t); h = HCR + (u*2+t)*4
            for r in range(4): e(f"v_fmac_f32 v{a+r}, v{h+r}, v{88+t}")
            for r in range(4): e(f"v_add_f32 v{h+r}, v{h+r}, v{14+t}")
            for r in range(4): e(f"v_add_f32 v{h+r}, v{h+r}, v{a+r}")
            e.wait(lg="all")
            for r in range(4): e(f"v_sub_f32 v{a+r}, v{a+r}, v{96+t}")
            e(f"v_cvt_pk_bf16_f32 v{o+2*t}, v{h}, v{h+1}\nv_cvt_pk_bf16_f32 v{o+2*t+1}, v{h+2}, v{h+3}")
            e(f"v_cvt_pk_bf16_f32 v{x+2*t}, v{a}, v{a+1}\nv_cvt_pk_bf16_f32 v{x+2*t+1}, v{a+2}, v{a+3}")
            for r in range(4): e(f"v_fmac_f32 v{90+t}, v{a+r}, v{a+r}")
        st16(x, 8, 44, 512*u)
        e.vmop(f"buffer_store_dwordx4 {vr(o)}, v4, s[8:11], s45 offen offset:{2048*(u&1)} sc1", "st")
        if u == 1: e("s_add_u32 s45, s45, 4096")
    sq_store(SQ1)
    assert st5["n"] == N5
    e.wait(vm="st")
    vm_p6 = list(e.vm)
    stamp(e)
    nst_main = NST
    e(f"s_barrier\ns_barrier\ns_branch {Lp6}")
    def signal(phase, idx, word):
        e(f"s_lshl_b32 s46, s{idx}, 7\ns_lshl_b32 s47, s{word}, 2\ns_add_u32 s46, s46, s47\ns_add_u32 s46, s46, {FLG + phase*8192}\ns_mov_b64 exec, 1")
        e("buffer_store_dword v20, v21, s[8:11], s46 offen sc1")
    def poll(phase, areg, nl):
        Lp = e.label("poll"); Ld = e.label("pd")
        e(f"""s_mov_b64 exec, {(1 << nl) - 1}
s_mov_b32 s46, {FLG + phase*8192}
s_mov_b32 s47, 0x40000
{Lp}:
buffer_load_dword v22, v{areg}, s[8:11], s46 offen sc1
s_waitcnt vmcnt(0)
v_cmp_ne_u32 vcc, 1, v22
s_cbranch_vccz {Ld}
s_sub_u32 s47, s47, 1
s_cbranch_scc0 {Lp}
{Ld}:
s_mov_b64 exec, -1""")
        e.vm = []
    def dma_lin(region_sreg, n, lds0=0):
        for i in range(n):
            if i % 4 == 0:
                e(f"s_mov_b32 m0, {lds0 + i*1024}")
                e(f"s_add_u32 s{region_sreg}, s{region_sreg}, 4096" if i else "s_nop 0")
            e.vmop(f"buffer_load_dwordx4 v4, s[8:11], s{region_sreg} offen offset:{(i&3)*1024} sc1 lds", "dma")
            if len(e.vm) == 63: e.wait(vm=e.vm[0]) if False else None
    e(f"{Lw3}:")
    e.vm = vm_save; e.lg = []
    e(f"""v_mov_b32 v20, 1
v_mov_b32 v21, 0
s_lshl_b32 s46, s25, 7
v_lshlrev_b32 v16, 2, v1
v_add_u32 v16, s46, v16
s_add_u32 s47, s25, 63
s_and_b32 s47, s47, 63
s_lshl_b32 s47, s47, 7
v_mov_b32 v17, v16
v_writelane_b32 v17, s47, 4
s_add_u32 s47, s47, 8
v_writelane_b32 v17, s47, 5
s_add_u32 s47, s25, 1
s_and_b32 s47, s47, 63
s_lshl_b32 s47, s47, 7
s_add_u32 s47, s47, 4
v_writelane_b32 v17, s47, 6
s_add_u32 s47, s47, 8
v_writelane_b32 v17, s47, 7
v_lshrrev_b32 v18, 2, v1
v_lshlrev_b32 v18, 7, v18
v_and_b32 v19, 3, v1
v_lshl_add_u32 v18, v19, 2, v18
s_lshl_b32 s46, s29, 8
v_add_u32 v18, s46, v18
s_mul_i32 s39, s25, 36864""")
    e.wait(vm="dma")
    e("s_barrier")
    for ks in range(18):
        if ks % 4 == 0: e(f"s_mov_b32 s40, {W2P + 36*18432 + ks*1024}")
        e.vmop(f"buffer_load_dwordx4 {vr(4*ks,4,'a')}, v4, s[8:11], s40 offen offset:{(ks&3)*1024}", "mw")
    e("s_barrier")
    signal(0, 25, 24); poll(0, 16, 4)
    e(f"s_add_u32 s40, s39, {HC}")
    dma_lin(40, 36); e.wait(vm="all")
    e("s_barrier")
    M1 = OPT.get("p6map", "grp") != "grp"
    if M1:
        e(f"s_lshr_b32 s46, s2, 3\ns_mul_i32 s46, s46, 20736\nv_lshlrev_b32 v23, 6, v1\ns_mul_i32 s42, s28, 663552\ns_add_u32 s42, s42, s46\ns_add_u32 s43, s42, {W4P}\ns_add_u32 s42, s42, {W3P}")
        touch(e, 8, 42, 20736, 23, 24)
    e("s_barrier")
    signal(1, 25, 24); poll(1, 17, 8)
    e(f"s_add_u32 s40, s39, {H1S}")
    dma_lin(40, 36); e.wait(vm="all")
    e("s_barrier")
    if M1: touch(e, 8, 43, 20736, 23, 24)
    NR = 3
    def rdm(ks):
        for t in range(2): e.lgop(f"ds_read_b128 {vr(40+((ks%NR)*2+t)*4)}, v4 offset:{(t*18+ks)*1024}", ks)
    for ks in range(NR-1): rdm(ks)
    for ks in range(18):
        if ks + NR - 1 < 18: rdm(ks + NR - 1)
        e.wait(lg=ks)
        for t in range(2):
            e(f"{M16} {vr(32+4*t)}, {vr(4*ks,4,'a')}, {vr(40+((ks%NR)*2+t)*4)}, {vr(32+4*t) if ks else 0}")
    e("v_lshlrev_b32 v23, 2, v3\ns_nop 7\ns_mov_b64 exec, 0xffff\nds_write_b32 v23, v32 offset:36864\nds_write_b32 v23, v36 offset:36928\ns_mov_b64 exec, -1")
    for n in range(N5):
        for x in wload6(n): emit(x)
    e("s_waitcnt lgkmcnt(0)\ns_barrier")
    e("s_barrier")
    signal(2, 25, 24); poll(2, 18, 8)
    e(f"s_mul_i32 s40, s29, 73728\ns_add_u32 s40, s40, {X6}")
    for i in range(72):
        if i % 4 == 0:
            e(f"s_mov_b32 m0, {i*1024}")
            e("s_add_u32 s40, s40, 4096" if i else "s_nop 0")
        if len(e.vm) >= 60: e("s_waitcnt vmcnt(40)"); e.vm = e.vm[-40:]
        e.vmop(f"buffer_load_dwordx4 v4, s[8:11], s40 offen offset:{(i&3)*1024} sc1 lds", "dma")
    e.wait(vm="all")
    e("s_barrier")
    e(f"{Lp6}:")
    globals()["NST"] = nst_main
    e.vm = vm_p6; e.lg = []
    stamp(e)
    def X(t4, ks):
        i = ks*4 + t4
        return vr(4*i, 4, "a") if i < 64 else vr(XV + 4*(i-64))
    HB = 73728
    e(f"""v_lshlrev_b32 v6, 3, v3
v_mul_u32_u24 v7, 384, v2
v_add_u32 v6, v6, v7
s_lshl_b32 s36, s29, 12
s_add_u32 s36, s36, {SQ1}""")
    for tp in range(2):
        for c in range(3):
            e.vmop(f"buffer_load_dwordx2 {vr(TT+6*tp+2*c,2)}, v6, s[8:11], s36 offen offset:{2048*tp + 128*c} sc1", "q")
    e(f"""s_mul_i32 s32, s3, 9
s_lshr_b32 s33, s32, 1
s_lshl_b32 s33, s33, 10
s_and_b32 s36, s32, 1
s_lshl_b32 s36, s36, 3
s_add_u32 s33, s33, s36
s_add_u32 s33, s33, {HB}
v_add_u32 v8, s33, v4
s_add_u32 s32, s32, 1
s_lshr_b32 s33, s32, 1
s_lshl_b32 s33, s33, 10
s_and_b32 s36, s32, 1
s_lshl_b32 s36, s36, 3
s_add_u32 s33, s33, s36
s_add_u32 s33, s33, {HB}
v_add_u32 v9, s33, v4
v_add_u32 v12, {HB}, v4
v_add_u32 v13, {HB+36864}, v4
s_lshl_b32 s34, s29, 2
s_add_u32 s34, s34, s3
s_mul_i32 s34, s34, 18432
s_mul_i32 s35, s28, {A_}
s_add_u32 s34, s34, s35
s_add_u32 s34, s34, {PART}""")
    def bread(ks, hb):
        out = []
        for t4 in range(4):
            off = (t4*18 + ks)*1024
            base = (4, 11) if not hb else (12, 13)
            breg = base[0] if off < 36864 else base[1]
            out.append(("l", f"ds_read_b128 {X(t4,ks)}, v{breg} offset:{off % 36864}", ("b", ks)))
        return out
    def const_fill():
        e2 = Em()
        R = [TT+12+t for t in range(4)]
        for t4 in range(4):
            b = TT + 6*(t4 >> 1) + (t4 & 1)
            e2(f"v_add_f32 v{R[t4]}, v{b}, v{b+2}\nv_add_f32 v{R[t4]}, v{R[t4]}, v{b+4}")
        red_g(e2, R, [TMP+t for t in range(4)])
        for r in R: e2(f"v_mul_f32 v{r}, {fhex(1/576)}, v{r}")
        for r in R: e2(f"v_add_f32 v{r}, {fhex(EPS)}, v{r}")
        for r in R: e2(f"v_rsq_f32 v{r}, v{r}")
        e2("s_nop 0")
        for t4 in range(4): gelu_consts(e2, R[t4], KC+t4, KC+4+t4, KC+8+t4)
        return [("wv", "q")] + [("s", l.strip()) for l in e2.L]
    def gelu_fill(ft):
        L = []
        for t4 in range(4):
            L += [("s", l) for l in gelu4(TT+4*t4, TMP, KC+t4, KC+4+t4, KC+8+t4)]
            L += [("s", f"v_cvt_pk_bf16_f32 v{PK+2*t4}, v{TMP}, v{TMP+1}"), ("s", f"v_cvt_pk_bf16_f32 v{PK+2*t4+1}, v{TMP+2}, v{TMP+3}")]
            L += [("l", f"ds_write_b64 v{8 + (ft&1)}, {vr(PK+2*t4,2)} offset:{(ft>>1)*1024 + t4*18432}", "h")]
        return L
    def out_fill(dt):
        L = []
        for tp in range(2):
            for h in range(2):
                a = TT + 4*(2*tp+h)
                L += [("s", f"v_cvt_pk_bf16_f32 v{PK+4*tp+2*h}, v{a}, v{a+1}"), ("s", f"v_cvt_pk_bf16_f32 v{PK+4*tp+2*h+1}, v{a+2}, v{a+3}")]
            L += [("v", f"buffer_store_dwordx4 {vr(PK+4*tp)}, v4, s[8:11], s34 offen offset:{(dt&1)*2048 + tp*1024} {OPT.get('sc_part','sc1')}", "st")]
        if dt & 1: L += [("s", "s_add_u32 s34, s34, 4096")]
        return L
    def block(blk, fill, fillB, G0=4, G1=66):
        nf = len(fill); fi = 0
        AH = 3
        if fillB is not None:
            for ks in range(AH):
                for x in bread(ks, fillB): emit(x)
        for ks in range(18):
            n = blk*18 + ks
            if fillB is not None and ks + AH < 18:
                for x in bread(ks + AH, fillB): emit(x)
            e.wait(vm=[("w", n), ("w", n+1)] if ks % 2 == 0 else None, lg=("b", ks) if fillB is not None else None)
            for t4 in range(4):
                d = vr(TT+4*t4) if ks == 17 else vr(AC+4*t4)
                c = vr(AC+4*t4) if ks else "0"
                e(f"{M16} {d}, {vr(RING+4*(n % NPF))}, {X(t4,ks)}, {c}")
                gap = ks*4 + t4
                if t4 in (1, 3):
                    if st5["n"] < NT and (st5["n"] < n + NPF if t4 == 1 else st5["n"] <= n + NPF):
                        if t4 == 3 or st5["n"] < n + NPF:
                            for x in wload6(st5["n"]): emit(x)
                            st5["n"] += 1
                if gap >= G0:
                    tgt = min(nf, -(-nf*(gap - G0 + 1) // (G1 - G0)))
                    while fi < tgt: emit(fill[fi]); fi += 1
        assert fi == nf
    for ft in range(9):
        if ft == 0: block(0, const_fill(), False, 30, 66)
        else: block(ft, gelu_fill(ft-1), None)
        if ft in (0, 8): stamp(e)
    e("s_nop 7")
    for x in gelu_fill(8): emit(x)
    e.wait(lg="all")
    e("s_barrier")
    for dt in range(9):
        block(9+dt, out_fill(dt-1) if dt else [], True if dt == 0 else None)
    stamp(e)
    e("s_nop 7")
    for x in out_fill(8): emit(x)
    e.srd(12, 22, A_)
    e(f"""s_lshr_b32 s36, s28, 1
s_and_b32 s37, s28, 1
s_lshl_b32 s38, s29, 2
s_add_u32 s38, s38, s36
s_mul_i32 s38, s38, 9
s_mul_i32 s39, s3, 3
s_add_u32 s38, s38, s39
s_lshl_b32 s38, s38, 1
s_add_u32 s38, s38, s37
s_lshl_b32 s38, s38, 10
s_add_u32 s38, s38, {PART}
s_lshl_b32 s40, s29, 1
s_add_u32 s40, s40, s37
s_mul_i32 s40, s40, {32*1152}
s_mul_i32 s36, s36, 9
s_add_u32 s36, s36, s39
s_lshl_b32 s36, s36, 5
s_add_u32 s40, s40, s36
v_bfe_u32 v5, v3, 2, 1
v_lshlrev_b32 v5, 4, v5
v_lshrrev_b32 v7, 3, v3
v_lshl_add_u32 v5, v7, 2, v5
v_and_b32 v7, 3, v3
v_add_u32 v5, v5, v7
v_mul_u32_u24 v6, 1152, v5
v_lshl_add_u32 v6, v2, 3, v6
v_add_u32 v7, 9216, v6
v_add_u32 v10, 4096, v4""")
    e.wait(vm="all")
    L7 = e.label("p7"); Lep = e.label("ep")
    e(f"s_barrier\ns_cmp_lg_u32 s3, 3\ns_cbranch_scc1 {L7}")
    e("v_mov_b32 v20, 1\nv_mov_b32 v21, 0\nv_lshlrev_b32 v16, 2, v1\ns_lshl_b32 s46, s29, 7\nv_add_u32 v16, s46, v16")
    signal(3, 29, 28); poll(3, 16, 8)
    e(f"s_barrier\ns_branch {Lep}\n{L7}:\ns_barrier")
    stamp(e)
    LD = 104
    for sl in range(9):
        for k in range(3):
            e.vmop(f"buffer_load_dwordx4 {vr(LD+4*(sl*3+k))}, v{10 if k == 2 else 4}, s[8:11], s38 offen offset:{2048*(k&1)} sc1", sl)
        if sl < 8: e(f"s_add_u32 s38, s38, {A_}")
    for sl in range(9):
        e.wait(vm=sl)
        for k in range(3):
            for j in range(4):
                x = LD + 4*(sl*3+k) + j; a = 16 + 8*k + 2*j
                if sl == 0:
                    e(f"v_lshlrev_b32 v{a}, 16, v{x}\nv_and_b32 v{a+1}, 0xffff0000, v{x}")
                else:
                    e(f"v_lshlrev_b32 v8, 16, v{x}\nv_and_b32 v9, 0xffff0000, v{x}\nv_add_f32 v{a}, v{a}, v8\nv_add_f32 v{a+1}, v{a+1}, v9")
    for k in range(3):
        for j in range(4): e(f"v_cvt_pk_bf16_f32 v{48+4*k+j}, v{16+8*k+2*j}, v{17+8*k+2*j}")
        e(f"buffer_store_dwordx2 {vr(48+4*k,2)}, v6, s[12:15], s40 offen offset:{32*k}\nbuffer_store_dwordx2 {vr(50+4*k,2)}, v7, s[12:15], s40 offen offset:{32*k}")
    e(f"{Lep}:")
    epi(e, name, Lend, 3, 512, 256)
    e.add_launch(name, 256, lds=147456)

def build(stamp=False, only=None, **opt):
    global STAMP, OPT
    STAMP = stamp; OPT = opt
    e = Em()
    for k in (only or ["k1", "k2", "k3"]): globals()[k](e)
    return finish(e)

if __name__ == "__main__":
    import sys, hazard
    out = "sequential_preLN__spectral_gfnet__mixer_s_mlp__prompt.s"
    txt = build(False)
    open(out, "w").write(txt); open("cur.s", "w").write(txt)
    errs = hazard.check(txt.split("\n"))
    print("\n".join(errs[:40])); print(len(errs), "hazards;", len(txt), "bytes")
    open("stamp.s", "w").write(build(True))
```

```python
from common import *
import common
common.castab = lambda: ''
STAMP = False
STAMP_OFF = 200 << 20
OPT = {}
FLG = WS_END
FLG_SZ = 49152
NST = 0
M16 = "v_mfma_f32_16x16x32_bf16"

def stamp(e, first=False, lvl=0):
    global NST
    if not STAMP: return
    if (lvl != OPT.get("lvl", 0) and not (lvl == -1 and OPT.get("lvl", 0) < 2)) and not first: return
    assert NST < 15
    e(f"{'s_memtime' if (lvl == 3) else 's_memrealtime'} s[{60+2*NST}:{61+2*NST}]")
    if not first: e("s_waitcnt lgkmcnt(0)"); e.lg = []
    NST += 1

def pro(e, name, ngrid, x=False, T=False, extra=()):
    global NST
    e.begin(name)
    Lend = e.label("end")
    e(f"s_cmp_ge_u32 s2, {ngrid}\ns_cbranch_scc1 {Lend}")
    NST = 0
    stamp(e, True)
    e("s_load_dwordx2 s[4:5], s[0:1], 80")
    if x: e("s_load_dwordx2 s[6:7], s[0:1], 0")
    for (sreg, off) in extra: e(f"s_load_dwordx2 s[{sreg}:{sreg+1}], s[0:1], {off}")
    if T:
        e("s_getpc_b64 s[16:17]\ns_add_u32 s16, s16, castab@rel32@lo+4\ns_addc_u32 s17, s17, castab@rel32@hi+12")
        e("s_and_b32 s17, s17, 0xffff\ns_mov_b32 s18, 663552\ns_mov_b32 s19, 0x00020000")
    e("""v_lshrrev_b32 v5, 6, v0
v_and_b32 v1, 63, v0
v_readfirstlane_b32 s3, v5
v_lshrrev_b32 v2, 4, v1
v_and_b32 v3, 15, v1
v_lshlrev_b32 v4, 4, v1""")
    return Lend
def pro2(e, x=False):
    e("s_waitcnt lgkmcnt(0)")
    e.srd(8, 4, WS_SIZE)
    if x: e.srd(12, 6, A_)

def dump(e, slot):
    if STAMP:
        e(f"""s_waitcnt vmcnt(0) lgkmcnt(0)
s_mov_b64 exec, 1
s_memrealtime s[90:91]
s_lshl_b32 s92, s2, 2
s_add_u32 s92, s92, s3
s_lshl_b32 s92, s92, 7
s_add_u32 s92, s92, {STAMP_OFF + slot*(1<<20)}
s_waitcnt lgkmcnt(0)
v_mov_b32 v100, 0""")
        for k in range(8):
            for j in range(4): e(f"v_mov_b32 v{96+j}, s{60+4*k+j}")
            e(f"buffer_store_dwordx4 v[96:99], v100, s[8:11], s92 offen offset:{16*k}\ns_nop 1")
        e("s_mov_b64 exec, -1")

def epi(e, name, Lend, slot, vgpr, accum):
    dump(e, slot)
    e(f"{Lend}:")
    e.end(name, vgpr, accum, 96)

def red_g(e, regs, tmps):
    for sw in ("v_permlane32_swap_b32", "v_permlane16_swap_b32"):
        for v, t in zip(regs, tmps): e(f"v_mov_b32 v{t}, v{v}")
        e("s_nop 1" if len(regs) < 3 else "s_nop 0")
        for v, t in zip(regs, tmps): e(f"{sw} v{v}, v{t}")
        if len(regs) < 2: e("s_nop 0")
        for v, t in zip(regs, tmps): e(f"v_add_f32 v{v}, v{v}, v{t}")

def sdiv(e, d, q, r, x, tmp):
    m = (1 << 32) // d + 1
    e(f"s_mul_hi_u32 s{q}, s{x}, {m}\ns_mul_i32 s{tmp}, s{q}, {d}\ns_sub_u32 s{r}, s{x}, s{tmp}")

C0 = -2.0*math.sqrt(2.0/math.pi)*math.log2(math.e)
C1 = C0*0.044715
def gelu_consts(e, r, K0, K1, IR):
    e(f"v_rcp_f32 v{IR}, v{r}\nv_mul_f32 v{K0}, {fhex(C0)}, v{r}\nv_mul_f32 v{K1}, v{r}, v{r}\nv_mul_f32 v{K1}, v{K1}, v{r}\nv_mul_f32 v{K1}, {fhex(C1)}, v{K1}")
def gelu4(a, tmp, K0, K1, IR):
    L = []
    L += [f"v_mul_f32 v{tmp+r}, v{a+r}, v{a+r}" for r in range(4)]
    L += [f"v_fma_f32 v{tmp+r}, v{tmp+r}, v{K1}, v{K0}" for r in range(4)]
    L += [f"v_mul_f32 v{tmp+r}, v{tmp+r}, v{a+r}" for r in range(4)]
    L += [f"v_exp_f32 v{tmp+r}, v{tmp+r}" for r in range(4)]
    L += [f"v_fma_f32 v{tmp+r}, v{tmp+r}, v{IR}, v{IR}" for r in range(4)]
    L += [f"v_rcp_f32 v{tmp+r}, v{tmp+r}" for r in range(4)]
    L += [f"v_mul_f32 v{tmp+r}, v{tmp+r}, v{a+r}" for r in range(4)]
    return L


def tgen(e, j0s, TB, ST, us=(0, 1, 2), hook=None):
    S0, S1, FA, C1r, C32r, P0, K8, Q = ST, ST+8, ST+16, ST+17, ST+18, ST+19, ST+20, ST+21
    if 0 in us: e(f"s_lshl_b32 s46, s{j0s}, 4\nv_add_u32 v{FA}, s46, v3\nv_cvt_f32_u32 v{FA}, v{FA}\nv_lshlrev_b32 v{Q+1}, 3, v2\nv_cvt_f32_u32 v{Q+1}, v{Q+1}\nv_mov_b32 v{K8}, 0x3e000000")
    for u in us:
        if u: e(f"v_add_f32 v{FA}, 0x41800000, v{FA}")
        e(f"""v_mul_f32 v{C1r}, {fhex(1/576)}, v{FA}
v_mul_f32 v{C32r}, {fhex(1/18)}, v{FA}
v_mul_f32 v{P0}, v{FA}, v{Q+1}
v_floor_f32 v{C32r}, v{C32r}
v_cos_f32 v{C1r}, v{C1r}
v_fmamk_f32 v{C32r}, v{C32r}, {fhex(-18.0)}, v{FA}
v_mul_f32 v{C32r}, {fhex(1/18)}, v{C32r}""")
        sd = [(S0, 0), (S0+1, 1), (S1, 32), (S1+1, 33)]
        for r, k in sd: e(f"v_fmamk_f32 v{r}, v{FA}, {fhex(float(k))}, v{P0}")
        e(f"v_cos_f32 v{C32r}, v{C32r}")
        for r, k in sd: e(f"v_mul_f32 v{r+2}, {fhex(1/576)}, v{r}")
        e(f"v_add_f32 v{C1r}, v{C1r}, v{C1r}")
        for r, k in sd: e(f"v_floor_f32 v{r+2}, v{r+2}")
        e(f"v_add_f32 v{C32r}, v{C32r}, v{C32r}")
        for r, k in sd: e(f"v_fmamk_f32 v{r}, v{r+2}, {fhex(-576.0)}, v{r}")
        for r, k in sd: e(f"v_fmamk_f32 v{r}, v{r}, {fhex(1/576)}, v{K8}")
        for r, k in sd: e(f"v_sin_f32 v{r}, v{r}")
        e("s_nop 0")
        for i in range(2, 8):
            for S in (S0, S1): e(f"v_fma_f32 v{S+i}, v{C1r}, v{S+i-1}, -v{S+i-2}")
        for ks in range(9):
            S = S0 if ks % 2 == 0 else S1; O = S1 if ks % 2 == 0 else S0
            if ks >= 2:
                for i in range(8): e(f"v_fma_f32 v{S+i}, v{C32r}, v{O+i}, -v{S+i}")
            for m in range(4): e(f"v_cvt_pk_bf16_f32 v{TB+(ks*3+u)*4+m}, v{S+2*m}, v{S+2*m+1}")
            if hook: hook(u, ks)

def pack_job(e, ldflag, stflag):
    e(f"s_mul_i32 s40, s35, {3*73728}\ns_add_u32 s36, s36, s40")
    e("s_mul_i32 s40, s34, s33\ns_mul_i32 s41, s35, 384\ns_add_u32 s40, s40, s41")
    e("""v_lshrrev_b32 v6, 3, v1
v_mul_lo_u32 v6, v6, s33
v_and_b32 v7, 7, v1
v_lshl_add_u32 v6, v7, 4, v6
s_lshl_b32 s41, s33, 3
s_mul_i32 s39, s39, s33
s_mul_i32 s42, s3, 12288""")
    for f in range(4):
        for it in range(3):
            e(f"s_add_u32 m0, s42, {it*4096 + f*1024 - it*128}")
            e(f"s_add_u32 s40, s40, s{39 if f == 2 else 41}" if (it == 0 and f) else "s_nop 0")
            e.vmop(f"buffer_load_dwordx4 v6, s[12:15], s40 offen offset:{128*it} {ldflag} lds", "d")
    e("""v_mul_lo_u32 v7, v2, s37
v_lshrrev_b32 v8, 2, v3
v_add_u32 v7, v7, v8
v_lshlrev_b32 v7, 7, v7
v_and_b32 v8, 3, v3
v_lshl_add_u32 v7, v8, 3, v7
v_add_u32 v7, s42, v7
s_lshl_b32 s43, s38, 7
v_add_u32 v8, s43, v7
v_add_u32 v9, 18432, v4
v_add_u32 v10, 36864, v4
v_add_u32 v11, 55296, v4""")
    nst_save = NST; globals()["NST"] = 1
    stamp(e, lvl=-1)
    e.wait(vm="all")
    stamp(e, lvl=-1)
    globals()["NST"] = nst_save
    for it in range(3):
        for tt in range(4):
            o = 16 + 16*it + 4*tt
            e.lgop(f"ds_read_b64_tr_b16 {vr(o,2)}, v7 offset:{it*4096 + 32*tt}", (it, tt))
            e.lgop(f"ds_read_b64_tr_b16 {vr(o+2,2)}, v8 offset:{it*4096 + 32*tt}", (it, tt))
        if it:
            for tt in range(4):
                e.wait(lg=(it-1, tt))
                e.vmop(f"buffer_store_dwordx4 {vr(16*it + 4*tt)}, v{(4,9,10,11)[tt]}, s[8:11], s36 offen {stflag}", "st")
            e("s_add_u32 s36, s36, 73728")
    for tt in range(4):
        e.wait(lg=(2, tt))
        e.vmop(f"buffer_store_dwordx4 {vr(48 + 4*tt)}, v{(4,9,10,11)[tt]}, s[8:11], s36 offen {stflag}", "st")
    e.vm = []; e.lg = []

def code_srd(e, d, label, nbytes):
    e(f"s_getpc_b64 s[{d}:{d+1}]\ns_add_u32 s{d}, s{d}, {label}@rel32@lo+4\ns_addc_u32 s{d+1}, s{d+1}, {label}@rel32@hi+12")
    e(f"s_and_b32 s{d+1}, s{d+1}, 0xffff\ns_mov_b32 s{d+2}, {nbytes}\ns_mov_b32 s{d+3}, 0x00020000")

def touch(e, srd, sreg, nbytes, vaddr, vd, stride=64):
    n = -(-nbytes // stride); i = 0
    while n > 0:
        if n < 64: e(f"s_mov_b32 exec_lo, {hex((1 << min(n,32)) - 1)}\ns_mov_b32 exec_hi, {hex((1 << max(n-32,0)) - 1)}")
        e(f"buffer_load_dword v{vd}, v{vaddr}, s[{srd}:{srd+3}], s{sreg} offen")
        n -= 64; i += 1
        if n > 0: e(f"s_add_u32 s{sreg}, s{sreg}, {64*stride}")
    e("s_mov_b64 exec, -1")

def k1(e):
    name = "k1_kernel"
    N3 = OPT.get("n3k1", 0)
    NSW = N3 + 54 + 54 + 72 + 576
    NS = NSW // 4
    Lend = pro(e, name, 256 + NS, x=True, extra=((20, 8), (22, 16), (24, 32), (26, 40), (28, 48), (30, 56)))
    if OPT.get("cpf0", 1):
        code_srd(e, 52, "code_begin", "k2_kernel-code_begin")
        e("s_lshr_b32 s44, s2, 3\ns_lshl_b32 s44, s44, 2\ns_add_u32 s44, s44, s3\ns_and_b32 s44, s44, 15\ns_lshl_b32 s44, s44, 10")
        e.vmop("buffer_load_dwordx4 v[196:199], v4, s[52:55], s44 offen", "c")
    Lside = e.label("side"); Lst = e.label("stats"); Lep = e.label("ep")
    ACC, BF, NB, TB = 16, 64, 3, 88
    def acc(h, u, t): return ACC + h*24 + (u*2+t)*4
    e(f"s_cmp_ge_u32 s2, 256\ns_cbranch_scc1 {Lside}")
    e("""s_bfe_u32 s34, s2, 0x20003
s_and_b32 s35, s2, 7
s_lshl_b32 s35, s35, 3
s_lshr_b32 s39, s2, 5
s_add_u32 s35, s35, s39
s_lshr_b32 s36, s35, 5
s_bfe_u32 s37, s35, 0x20003
s_and_b32 s38, s35, 7
s_lshl_b32 s40, s36, 5
s_lshr_b32 s41, s3, 1
s_lshl_b32 s41, s41, 4
s_add_u32 s40, s40, s41
s_lshl_b32 s41, s37, 2
s_add_u32 s40, s40, s41
s_lshl_b32 s40, s40, 5
s_lshl_b32 s41, s38, 2
s_add_u32 s40, s40, s41
v_and_b32 v6, 3, v3
v_lshlrev_b32 v6, 5, v6
v_lshrrev_b32 v7, 2, v3
v_add3_u32 v6, v6, v7, s40
v_mul_u32_u24 v7, 1152, v6
v_lshl_add_u32 v7, v2, 4, v7
s_and_b32 s41, s3, 1
s_mul_i32 s41, s41, 576
s_mul_i32 s42, s3, 9216
s_mul_i32 s44, s34, 9
s_mul_i32 s45, s3, 3
s_add_u32 s44, s44, s45""")
    if OPT.get("k1pre", 0): tgen(e, 44, TB, 16, (0,))
    pro2(e, x=True)
    for idx in range(9):
        e(f"s_add_u32 m0, s42, {idx*960}\ns_nop 0")
        e.vmop(f"buffer_load_dwordx4 v7, s[12:15], s41 offen offset:{64*idx} lds", "dma")
    e(f"s_cmp_eq_u32 s3, 3\ns_cbranch_scc1 {Lst}")
    vm_save = list(e.vm)
    tgen(e, 44, TB, 16, (1, 2) if OPT.get("k1pre", 0) else (0, 1, 2))
    e(f"""v_lshlrev_b32 v8, 12, v3
v_lshl_add_u32 v8, v2, 4, v8
s_lshl_b32 s50, s44, 16
s_lshr_b32 s51, s38, 2
s_lshl_b32 s51, s51, 1
s_add_u32 s51, s51, s36
s_lshl_b32 s51, s51, 10
s_add_u32 s50, s50, s51
s_lshl_b32 s51, s37, 8
s_add_u32 s50, s50, s51
s_and_b32 s51, s38, 3
s_lshl_b32 s51, s51, 6
s_add_u32 s50, s50, s51
s_add_u32 s50, s50, {UT}
v_lshlrev_b32 v9, 4, v2
v_lshlrev_b32 v10, 31, v3
v_or_b32 v10, 1.0, v10""")
    stamp(e)
    e.wait(vm="dma")
    e("s_barrier")
    stamp(e)
    def rd(ks):
        for t in range(2):
            e.lgop(f"ds_read_b128 {vr(BF + ((ks % NB)*2 + t)*4)}, v4 offset:{(t*18+ks)*1024}", ("b", ks))
    for ks in range(NB-1): rd(ks)
    for ks in range(18):
        if ks + NB - 1 < 18: rd(ks + NB - 1)
        e.wait(lg=("b", ks))
        for u in range(3):
            for t in range(2):
                d = vr(acc(ks // 9, u, t))
                e(f"{M16} {d}, {vr(BF + ((ks % NB)*2 + t)*4)}, {vr(TB + ((ks % 9)*3 + u)*4)}, {d if ks % 9 else 0}")
    stamp(e)
    e("s_barrier")
    e.lgop("ds_read_b128 v[76:79], v9 offset:36864", "r"); e.lgop("ds_read_b128 v[80:83], v9 offset:36928", "r")
    e("s_nop 3")
    for u in range(3):
        for t in range(2):
            for r in range(4): e(f"v_fmac_f32 v{acc(0,u,t)+r}, v{acc(1,u,t)+r}, v10")
        e.wait(lg="all")
        for t in range(2):
            for r in range(4): e(f"v_mul_f32 v{acc(0,u,t)+r}, v{acc(0,u,t)+r}, v{76+4*t+r}")
        o = BF + 4*u
        for t in range(2):
            e(f"v_cvt_pk_bf16_f32 v{o+2*t}, v{acc(0,u,t)}, v{acc(0,u,t)+1}\nv_cvt_pk_bf16_f32 v{o+2*t+1}, v{acc(0,u,t)+2}, v{acc(0,u,t)+3}")
        e.vmop(f"buffer_store_dwordx4 {vr(o)}, v8, s[8:11], s50 offen {OPT.get('sc_ut','')}", "st")
        if u < 2: e("s_add_u32 s50, s50, 65536")
    if OPT.get("touch34"):
        ts = OPT.get("tstride", 64)
        e.srd(48, 28, 5308416); e.srd(52, 30, 5308416)
        e(f"v_mul_u32_u24 v11, {ts}, v1\ns_mul_i32 s38, s2, 3\ns_add_u32 s38, s38, s3\ns_mul_i32 s38, s38, 6912\ns_mov_b32 s39, s38")
        dump(e, 1)
        touch(e, 48, 38, 6912, 11, 16, ts); touch(e, 52, 39, 6912, 11, 20, ts)
        e("s_endpgm")
    e(f"s_branch {Lep}")
    e(f"{Lst}:")
    e.vm = vm_save; e.lg = []
    if OPT.get("cpf", 1):
        code_srd(e, 52, "code_begin", "code_end-code_begin")
        e("s_lshr_b32 s44, s2, 3\ns_mul_i32 s44, s44, 3072")
        for i in range(3): e.vmop(f"buffer_load_dwordx4 v[{32+4*i}:{35+4*i}], v4, s[52:55], s44 offen offset:{1024*i}", "c")
    e("s_mov_b32 s44, 0x3f803f80")
    for i in range(8): e(f"v_mov_b32 v{16+i}, 0")
    e.wait(vm="dma")
    e("s_barrier")
    NR = 6
    def rds(f): e.lgop(f"ds_read_b128 {vr(64+4*(f%NR))}, v4 offset:{f*1024}", f)
    for f in range(NR-1): rds(f)
    for f in range(36):
        if f + NR - 1 < 36: rds(f + NR - 1)
        e.wait(lg=f)
        t = f // 18
        for m in range(4):
            x = 64 + 4*(f % NR) + m
            e(f"v_dot2_f32_bf16 v{16+4*t+(m&1)}, v{x}, s44, v{16+4*t+(m&1)}")
            e(f"v_dot2_f32_bf16 v{18+4*t+(m&1)}, v{x}, v{x}, v{18+4*t+(m&1)}")
    e("s_nop 3")
    for t in range(2):
        b = 16 + 4*t
        e(f"v_add_f32 v{b}, v{b}, v{b+1}\nv_add_f32 v{b+2}, v{b+2}, v{b+3}")
    red_g(e, (16, 18, 20, 22), (24, 25, 26, 27))
    e(f"v_mov_b32 v24, {fhex(1/576)}")
    for t in range(2):
        b = 16 + 4*t
        e(f"""v_mul_f32 v{b}, v24, v{b}
v_mul_f32 v{b+1}, v{b}, v{b}
v_fma_f32 v{b+2}, v{b+2}, v24, -v{b+1}
v_max_f32 v{b+2}, 0, v{b+2}
v_add_f32 v{b+2}, {fhex(EPS)}, v{b+2}
v_rsq_f32 v{b+2}, v{b+2}""")
    Lns = e.label("nost")
    e(f"""v_lshlrev_b32 v25, 2, v3
s_lshl_b32 s45, s35, 7
s_add_u32 s45, s45, {MX}
s_mov_b64 exec, 0xffff
ds_write_b32 v25, v18 offset:36864
ds_write_b32 v25, v22 offset:36928
s_cmp_lg_u32 s34, 0
s_cbranch_scc1 {Lns}
buffer_store_dword v16, v25, s[8:11], s45 offen
buffer_store_dword v20, v25, s[8:11], s45 offen offset:64
{Lns}:
s_waitcnt lgkmcnt(0)
s_barrier
s_branch {Lep}""")
    e(f"{Lside}:")
    e.vm = []; e.lg = []
    e("s_sub_u32 s32, s2, 256\ns_lshl_b32 s32, s32, 2\ns_add_u32 s32, s32, s3")
    Lwt, Lrm, L2, Lgo = [e.label(x) for x in ("wt", "rm", "w2", "go")]
    pro2(e)
    L3, Lgo2 = e.label("w3"), e.label("go2")
    if N3: e(f"s_cmp_lt_u32 s32, {N3}\ns_cbranch_scc1 {L3}\ns_sub_u32 s32, s32, {N3}")
    e(f"s_cmp_ge_u32 s32, 180\ns_cbranch_scc1 {Lwt}\ns_cmp_ge_u32 s32, 108\ns_cbranch_scc1 {Lrm}\ns_cmp_ge_u32 s32, 54\ns_cbranch_scc1 {L2}")
    e.srd(12, 24, 663552)
    e(f"s_mov_b32 s39, {W1P}\ns_branch {Lgo}\n{L2}:\ns_sub_u32 s32, s32, 54")
    e.srd(12, 26, 663552)
    e(f"s_mov_b32 s39, {W2P}\n{Lgo}:")
    sdiv(e, 3, 34, 35, 32, 40)
    e("s_mov_b32 s33, 1152\ns_lshl_b32 s36, s34, 10\ns_add_u32 s36, s36, s39\ns_mov_b32 s37, 8\ns_mov_b32 s38, 4\ns_mov_b32 s39, 8\ns_lshl_b32 s34, s34, 5")
    pack_job(e, OPT.get("ld_p12", ""), OPT.get("sc_p12", ""))
    e(f"s_branch {Lep}")
    if N3:
        e(f"{L3}:")
        e.srd(12, 28, 5308416); sdiv(e, 24, 34, 35, 32, 40)
        e(f"s_mov_b32 s33, 9216\ns_lshl_b32 s36, s34, 10\ns_add_u32 s36, s36, {W3P}\ns_mov_b32 s37, 8\ns_mov_b32 s38, 4\ns_mov_b32 s39, 8\ns_lshl_b32 s34, s34, 5")
        pack_job(e, OPT.get("ld_pk", "nt"), OPT.get("sc_pk", "sc1"))
        e(f"s_branch {Lep}")
    e(f"{Lrm}:\ns_sub_u32 s32, s32, 108")
    e.srd(12, 26, 663552)
    e("""v_lshrrev_b32 v6, 3, v1
v_mul_u32_u24 v7, 1152, v6
v_and_b32 v8, 7, v1
v_lshl_add_u32 v7, v8, 4, v7
s_mul_i32 s33, s32, 9216
s_mov_b32 s34, 0x3f803f80
v_mov_b32 v9, 0""")
    for m in range(9): e.vmop(f"buffer_load_dwordx4 {vr(16+4*m)}, v7, s[12:15], s33 offen offset:{128*m}", m)
    Lnz = e.label("nz")
    e(f"s_cmp_ge_u32 s32, 48\ns_cbranch_scc1 {Lnz}\nv_mov_b32 v56, 0\nv_mov_b32 v57, 0\nv_mov_b32 v58, 0\nv_mov_b32 v59, 0\ns_lshl_b32 s38, s32, 10\ns_add_u32 s38, s38, {FLG}")
    e(f"buffer_store_dwordx4 v[56:59], v4, s[8:11], s38 offen\n{Lnz}:")
    e.wait(vm="all")
    for j in range(36): e(f"v_dot2_f32_bf16 v9, v{16+j}, s34, v9")
    e(f"""s_nop 3
v_add_f32_dpp v9, v9, v9 quad_perm:[1,0,3,2] row_mask:0xf bank_mask:0xf
s_nop 1
v_add_f32_dpp v9, v9, v9 quad_perm:[2,3,0,1] row_mask:0xf bank_mask:0xf
s_nop 1
v_add_f32_dpp v9, v9, v9 row_half_mirror row_mask:0xf bank_mask:0xf
v_mul_f32 v9, {fhex(1/576)}, v9
v_cvt_pk_bf16_f32 v9, v9, v9
v_lshlrev_b32 v6, 1, v6
s_lshl_b32 s33, s32, 8
s_add_u32 s33, s33, {W2P + 36*18432}
v_cmp_eq_u32 vcc, 0, v8
s_nop 1
s_and_saveexec_b64 s[36:37], vcc
buffer_store_short v9, v6, s[8:11], s33 offen
s_branch {Lep}""")
    e(f"{Lwt}:\ns_sub_u32 s32, s32, 180")
    sdiv(e, 9, 33, 34, 32, 40)
    e("""s_lshr_b32 s35, s33, 4
s_and_b32 s33, s33, 15
v_lshrrev_b32 v6, 5, v1
s_lshl_b32 s33, s33, 2
v_add_u32 v6, s33, v6
v_and_b32 v7, 31, v1
s_lshl_b32 s34, s34, 5
v_add_u32 v7, s34, v7
v_mul_u32_u24 v8, 578, v6
v_lshl_add_u32 v8, v7, 1, v8
v_add_u32 v8, 2, v8
s_mul_i32 s36, s35, 147968""")
    e.srd(12, 20, 1183744); e.srd(16, 22, 1183744)
    for gg in range(2):
        for tk in range(2):
            for r in range(4):
                i = gg*16 + tk*4 + r
                e(f"s_add_u32 s37, s36, {36992*(16*tk+r) + 1156*gg}")
                e.vmop(f"buffer_load_ushort v{16+i}, v8, s[12:15], s37 offen", gg)
                e.vmop(f"buffer_load_ushort v{24+i}, v8, s[16:19], s37 offen", gg)
    e(f"""v_lshlrev_b32 v9, 13, v7
v_lshrrev_b32 v10, 4, v6
v_lshl_add_u32 v9, v10, 11, v9
v_and_b32 v10, 15, v6
v_lshl_add_u32 v9, v10, 5, v9
s_lshl_b32 s36, s35, 9
s_add_u32 s36, s36, {WT}""")
    for gg in range(2):
        e.wait(vm=gg)
        for i in range(8): e(f"v_lshl_or_b32 v{16+16*gg+i}, v{24+16*gg+i}, 16, v{16+16*gg+i}")
        e.vmop(f"buffer_store_dwordx4 {vr(16+16*gg)}, v9, s[8:11], s36 offen offset:{64*gg} {OPT.get('sc_wt','')}", "st")
        e.vmop(f"buffer_store_dwordx4 {vr(20+16*gg)}, v9, s[8:11], s36 offen offset:{64*gg+16} {OPT.get('sc_wt','')}", "st")
    e(f"{Lep}:")
    epi(e, name, Lend, 1, 200, 200)
    e.add_launch(name, 256 + NS, lds=49152)

def k2(e):
    name = "k2_kernel"
    N3 = OPT.get("n3k1", 0)
    W4K3 = OPT.get('w4k3', 0)
    NSW = 432 + (0 if W4K3 else 432) - N3
    NS = NSW // 4
    Lend = pro(e, name, 288 + NS, extra=((24, 48), (26, 56)))
    Lside = e.label("side"); Lep = e.label("ep")
    e(f"s_cmp_ge_u32 s2, 288\ns_cbranch_scc1 {Lside}")
    e(f"""s_add_u32 s34, s2, 1
s_lshl_b32 s35, s34, 12
s_sub_u32 s36, 576, s34
s_lshl_b32 s36, s36, 12
s_cmp_eq_u32 s34, 288
s_cselect_b32 s14, 0, {WS_SIZE}
s_cselect_b32 s37, 0, s36
s_cselect_b32 s38, 0, -1
s_lshl_b32 s39, s2, 13
s_lshl_b32 s40, s3, 11
s_add_u32 s39, s39, s40
s_add_u32 s39, s39, {WT}
v_lshlrev_b32 v6, 5, v1""")
    pro2(e)
    e("s_mov_b32 s12, s8\ns_mov_b32 s13, s9\ns_mov_b32 s15, 0x00020000")
    P, Q, WV = 16, 32, 48
    for js in range(2):
        for ts in range(2):
            f = ts*2 + js
            e.vmop(f"buffer_load_dwordx4 {vr(P+4*f)}, v4, s[8:11], s35 offen offset:{f*1024}", "d")
            e.vmop(f"buffer_load_dwordx4 {vr(Q+4*f)}, v4, s[12:15], s36 offen offset:{f*1024}", "d")
    e.vmop(f"buffer_load_dwordx4 {vr(WV)}, v6, s[8:11], s39 offen", "w")
    e.vmop(f"buffer_load_dwordx4 {vr(WV+4)}, v6, s[8:11], s39 offen offset:16", "w")
    if OPT.get("touchW"):
        ts = OPT.get("tstride", 64)
        e(f"s_lshr_b32 s40, s2, 3\ns_lshl_b32 s40, s40, 2\ns_add_u32 s40, s40, s3\ns_mul_i32 s40, s40, 9344\ns_add_u32 s40, s40, {W1P}\nv_mul_u32_u24 v7, {ts}, v1")
        touch(e, 8, 40, 9344, 7, 1, ts)
        e.vm += ["t"]*(3 if ts == 64 else 2)
    C64, S64, N64 = 56, 64, 72
    C32, S32, N32 = 80, 88, 96
    TC1, TS1, TC2, TS2 = 104, 112, 120, 128
    TMP = 136
    RE, IM = 152, 160
    PR, PI = 8, 12
    e("""s_lshl_b32 s40, s3, 4
v_add_u32 v7, s40, v3
v_cvt_f32_u32 v7, v7
v_lshlrev_b32 v5, 2, v2
v_cvt_f32_u32 v5, v5
v_cvt_f32_u32 v6, v3
s_mov_b32 s41, 0x80008000
s_brev_b32 s42, 1
v_and_b32 v0, 1, v3
v_mul_lo_u32 v0, v0, s41""")
    e(f"v_mul_f32 v8, {fhex(1/64)}, v7\nv_mul_f32 v9, v5, v8")
    for i in range(8): e(f"v_fmamk_f32 v{TMP+i}, v8, {fhex(float(16*(i>>2) + (i&3)))}, v9")
    for i in range(8): e(f"v_fract_f32 v{TMP+i}, v{TMP+i}")
    for i in range(8): e(f"v_sin_f32 v{TMP+8+i}, v{TMP+i}")
    for i in range(8): e(f"v_cos_f32 v{TMP+i}, v{TMP+i}")
    for m in range(4): e(f"v_cvt_pk_bf16_f32 v{S64+m}, v{TMP+8+2*m}, v{TMP+9+2*m}")
    for m in range(4): e(f"v_cvt_pk_bf16_f32 v{C64+m}, v{TMP+2*m}, v{TMP+1+2*m}")
    for m in range(4): e(f"v_xor_b32 v{N64+m}, s41, v{S64+m}")
    for b in (C64, S64, N64):
        for m in range(4): e(f"v_xor_b32 v{b+4+m}, v0, v{b+m}")
    tw1 = [f"v_mul_f32 v8, {fhex(1/2048)}, v7", "v_mul_f32 v9, v5, v8"]
    tw1 += [f"v_fmamk_f32 v{TC1+i}, v8, {fhex(float(16*(i>>2)+(i&3)))}, v9" for i in range(8)]
    tw1 += [f"v_sin_f32 v{TS1+i}, v{TC1+i}" for i in range(8)] + [f"v_cos_f32 v{TC1+i}, v{TC1+i}" for i in range(8)]
    for l in tw1: e(l)
    m32 = [f"v_mul_f32 v8, {fhex(1/32)}, v6", "v_mul_f32 v9, v5, v8"]
    m32 += [f"v_fmamk_f32 v{TC2+i}, v8, {fhex(float(i))}, v9" for i in range(4)]
    m32 += [f"v_fract_f32 v{TC2+i}, v{TC2+i}" for i in range(4)]
    m32 += [f"v_sin_f32 v{TC2+4+i}, v{TC2+i}" for i in range(4)] + [f"v_cos_f32 v{TC2+i}, v{TC2+i}" for i in range(4)]
    m32 += [f"v_cvt_pk_bf16_f32 v{S32+m}, v{TC2+4+2*m}, v{TC2+5+2*m}" for m in range(2)]
    m32 += [f"v_cvt_pk_bf16_f32 v{C32+m}, v{TC2+2*m}, v{TC2+1+2*m}" for m in range(2)]
    m32 += [f"v_xor_b32 v{b+2+m}, v0, v{b+m}" for b in (C32, S32) for m in range(2)]
    m32 += [f"v_xor_b32 v{b+4+m}, s42, v{b+m}" for b in (C32, S32) for m in range(4)]
    m32 += [f"v_xor_b32 v{N32+m}, s41, v{S32+m}" for m in range(8)]
    tw2 = ["v_cvt_f32_u32 v0, s40", "v_add_f32 v0, v0, v5", f"v_mul_f32 v7, {fhex(1/2048)}, v6", f"v_add_f32 v5, {fhex(16/2048)}, v7",
           "v_mul_f32 v6, v0, v7", "v_mul_f32 v0, v0, v5"]
    tw2 += [f"v_fmamk_f32 v{TC2+r}, v7, {fhex(float(r))}, v6" for r in range(4)]
    tw2 += [f"v_fmamk_f32 v{TC2+4+r}, v5, {fhex(float(r))}, v0" for r in range(4)]
    tw2 += [f"v_sin_f32 v{TS2+i}, v{TC2+i}" for i in range(8)] + [f"v_cos_f32 v{TC2+i}, v{TC2+i}" for i in range(8)]
    def steps(lst, fill=(), per=1):
        fill = list(fill)
        n = len(lst[0][1])
        for k in range(n):
            for d, ch in lst:
                A, B = ch[k]
                e(f"{M16} {vr(d)}, {vr(A)}, {vr(B)}, {vr(d) if k else 0}")
                for _ in range(per):
                    if fill: e(fill.pop(0))
        nleft = len(fill)
        for l in fill: e(l)
        if nleft < 8: e(f"s_nop {7 - nleft}")
    def cmul(cre, sim, sign):
        for i in range(8): e(f"v_mul_f32 v{TMP+i}, v{RE+i}, v{cre+i}")
        for i in range(8): e(f"v_mul_f32 v{TMP+8+i}, v{IM+i}, v{cre+i}")
        for i in range(8): e(f"v_fma_f32 v{TMP+i}, {'-' if sign > 0 else ''}v{IM+i}, v{sim+i}, v{TMP+i}")
        for i in range(8): e(f"v_fma_f32 v{TMP+8+i}, {'' if sign > 0 else '-'}v{RE+i}, v{sim+i}, v{TMP+8+i}")
        for m in range(4): e(f"v_cvt_pk_bf16_f32 v{PR+m}, v{TMP+2*m}, v{TMP+2*m+1}")
        for m in range(4): e(f"v_cvt_pk_bf16_f32 v{PI+m}, v{TMP+8+2*m}, v{TMP+9+2*m}")
    stamp(e)
    e.wait(vm="d")
    stamp(e)
    steps([(RE+4*ts, [(P+8*ts, C64), (Q+8*ts, S64), (P+8*ts+4, C64+4), (Q+8*ts+4, S64+4)]) for ts in range(2)] +
          [(IM+4*ts, [(Q+8*ts, C64), (P+8*ts, N64), (Q+8*ts+4, C64+4), (P+8*ts+4, N64+4)]) for ts in range(2)], m32, 2)
    cmul(TC1, TS1, -1)
    e.wait(vm="w")
    e("s_nop 0")
    wun = []
    for i in range(8): wun += [f"v_lshlrev_b32 v{TC1+i}, 16, v{WV+i}", f"v_and_b32 v{TS1+i}, 0xffff0000, v{WV+i}"]
    steps([(RE+4*tk, [(C32+4*tk, PR), (S32+4*tk, PI)]) for tk in range(2)] +
          [(IM+4*tk, [(C32+4*tk, PI), (N32+4*tk, PR)]) for tk in range(2)], wun, 1)
    stamp(e)
    cmul(TC1, TS1, +1)
    e("s_lshr_b32 s43, s3, 1\ns_lshl_b32 s43, s43, 10\ns_and_b32 s44, s3, 1\ns_lshl_b32 s44, s44, 3\ns_add_u32 s43, s43, s44")
    steps([(RE+4*ts, [(PR, C32+4*ts), (PI, N32+4*ts)]) for ts in range(2)] +
          [(IM+4*ts, [(PI, C32+4*ts), (PR, S32+4*ts)]) for ts in range(2)], tw2 + ["v_add_u32 v5, s43, v4"], 2)
    cmul(TC2, TS2, +1)
    for ts in range(2):
        e.lgop(f"ds_write_b64 v5, {vr(PR+2*ts,2)} offset:{(ts*2+0)*2048}", "x")
        e.lgop(f"ds_write_b64 v5, {vr(PI+2*ts,2)} offset:{(ts*2+1)*2048}", "x")
    e(f"""s_lshl_b32 s40, s3, 10
v_lshlrev_b32 v6, 6, v3
v_lshl_add_u32 v6, v2, 4, v6
v_add_u32 v6, s40, v6
s_add_u32 s35, s35, {VT}
s_add_u32 s37, s37, {VT}""")
    e.wait(lg="all")
    e("s_barrier")
    stamp(e)
    for js in range(2):
        for ts in range(2):
            e.lgop(f"ds_read_b128 {vr(P+8*ts+4*js)}, v4 offset:{((ts*2+0)*2+js)*1024}", ("y", js))
            e.lgop(f"ds_read_b128 {vr(Q+8*ts+4*js)}, v4 offset:{((ts*2+1)*2+js)*1024}", ("y", js))
    e.wait(lg="all")
    steps([(RE+4*ts, [(P+8*ts, C64), (Q+8*ts, N64), (P+8*ts+4, C64+4), (Q+8*ts+4, N64+4)]) for ts in range(2)] +
          [(IM+4*ts, [(Q+8*ts, C64), (P+8*ts, S64), (Q+8*ts+4, C64+4), (P+8*ts+4, S64+4)]) for ts in range(2)])
    for m in range(4): e(f"v_cvt_pk_bf16_f32 v{PR+m}, v{RE+2*m}, v{RE+2*m+1}")
    e(f"buffer_store_dwordx4 {vr(PR)}, v6, s[8:11], s35 offen {OPT.get('sc_vt','')}")
    for m in range(4): e(f"v_cvt_pk_bf16_f32 v{PI+m}, v{IM+2*m}, v{IM+2*m+1}")
    for m in range(4): e(f"v_and_b32 v{PI+m}, s38, v{PI+m}")
    e(f"buffer_store_dwordx4 {vr(PI)}, v6, s[8:11], s37 offen {OPT.get('sc_vt','')}")
    e(f"s_branch {Lep}")
    e(f"{Lside}:")
    e.vm = []; e.lg = []
    e(f"s_sub_u32 s32, s2, 288\ns_lshl_b32 s32, s32, 2\ns_add_u32 s32, s32, s3\ns_add_u32 s32, s32, {N3}")
    pro2(e)
    Lgo, L4 = e.label("go"), e.label("w4")
    e(f"s_cmp_ge_u32 s32, 432\ns_cbranch_scc1 {L4}")
    e.srd(12, 24, 5308416); sdiv(e, 24, 34, 35, 32, 40)
    e(f"s_mov_b32 s33, 9216\ns_lshl_b32 s36, s34, 10\ns_add_u32 s36, s36, {W3P}\ns_mov_b32 s37, 8\ns_mov_b32 s38, 4\ns_mov_b32 s39, 8\ns_lshl_b32 s34, s34, 5\ns_branch {Lgo}")
    e(f"{L4}:\ns_sub_u32 s32, s32, 432")
    e.srd(12, 26, 5308416); sdiv(e, 3, 34, 35, 32, 40); sdiv(e, 18, 41, 42, 34, 40)
    e(f"""s_mov_b32 s33, 1152
s_mul_i32 s36, s41, 663552
s_lshl_b32 s43, s42, 10
s_add_u32 s36, s36, s43
s_add_u32 s36, s36, {W4P}
s_mov_b32 s37, 4
s_mov_b32 s38, 16
s_mov_b32 s39, 136
s_mul_i32 s34, s41, 576
s_and_b32 s43, s42, 1
s_mul_i32 s43, s43, 288
s_add_u32 s34, s34, s43
s_lshr_b32 s43, s42, 1
s_lshl_b32 s43, s43, 4
s_add_u32 s34, s34, s43""")
    e(f"{Lgo}:")
    pack_job(e, OPT.get("ld_pk", "nt"), OPT.get("sc_pk", "sc1"))
    e(f"{Lep}:")
    epi(e, name, Lend, 2, 168, 168)
    e.add_launch(name, 288 + NS, lds=49152)

NPF = 32
def k3(e):
    name = "k3_kernel"
    Lend = pro(e, name, 256, x=True, extra=((22, 64), (20, 56)))
    W4K3 = OPT.get("w4k3", 0)
    ACC, BF, NB, HCR, TB, XR = 16, 64, 3, 40, 104, 212
    XV, AC, TT, KC, TMP, PK, RING, BASE = 16, 48, 64, 80, 92, 96, 104, 232
    DA = 244
    def acc(u, t): return ACC + (u*2+t)*4
    def wfrag(ph, ks, u):
        if ph == "T": return vr(TB + ((ks % 9)*3 + u)*4)
        f = ks*3 + u
        if ph == "W1": return vr(4*f, 4, "a")
        if f < 32: return vr(104 + 4*f)
        if f < 42: return vr(216 + 4*(f-32), 4, "a")
        return vr(4*(f-42), 4, "a")
    mp = OPT.get("map", 3)
    e("s_lshr_b32 s30, s2, 3\ns_and_b32 s31, s2, 7")
    if mp == 2:
        e("s_lshl_b32 s26, s31, 2\ns_lshr_b32 s32, s30, 3\ns_add_u32 s26, s26, s32\ns_and_b32 s24, s30, 3\ns_bfe_u32 s29, s30, 0x10002")
    elif mp == 3:
        e("s_lshr_b32 s26, s31, 1\ns_lshl_b32 s26, s26, 3\ns_lshr_b32 s32, s30, 2\ns_add_u32 s26, s26, s32\ns_and_b32 s24, s30, 3\ns_and_b32 s29, s31, 1")
    elif mp == 4:
        e("s_lshr_b32 s26, s31, 2\ns_lshl_b32 s26, s26, 4\ns_lshr_b32 s32, s30, 1\ns_add_u32 s26, s26, s32\ns_and_b32 s24, s31, 2\ns_and_b32 s32, s30, 1\ns_add_u32 s24, s24, s32\ns_and_b32 s29, s31, 1")
    elif mp == 1:
        e("s_mov_b32 s26, s30\ns_lshr_b32 s24, s31, 1\ns_and_b32 s29, s31, 1")
    e("""s_lshl_b32 s25, s26, 1
s_add_u32 s25, s25, s29
s_mul_i32 s27, s24, 9
s_mul_i32 s32, s3, 3
s_add_u32 s27, s27, s32
s_lshl_b32 s28, s29, 2
s_add_u32 s28, s28, s24""")
    NT = 2*162
    ORD = [0, 3, 6, 1, 4, 7, 2, 5, 8]
    def wload6(n):
        out = []
        if n < 162:
            if n % 4 == 0 and n: out.append(("s", "s_add_u32 s30, s30, 4096"))
            out.append(("v", f"buffer_load_dwordx4 {vr(RING+4*(n % NPF))}, v4, s[8:11], s30 offen offset:{(n&3)*1024}", ("w", n)))
        else:
            b, ks = divmod(n - 162, 18)
            if ks % 4 == 0: out.append(("s", f"s_add_u32 s30, s31, {ORD[b]*18432 + ks*1024}"))
            out.append(("v", f"buffer_load_dwordx4 {vr(RING+4*(n % NPF))}, v4, s[8:11], s30 offen offset:{(ks&3)*1024} {OPT.get('ld4', 'sc1') if W4K3 else ''}", ("w", n)))
        return out
    def emit(x):
        if x[0] == "s": e(x[1])
        elif x[0] == "v": e.vmop(x[1], x[2])
        elif x[0] == "l": e.lgop(x[1], x[2])
        elif x[0] == "wv": e.wait(vm=x[1])
        elif x[0] == "wl": e.wait(lg=x[1])
    e(f"""v_lshrrev_b32 v6, 2, v1
v_lshlrev_b32 v6, 12, v6
v_lshrrev_b32 v7, 4, v1
v_and_b32 v7, 2, v7
v_and_b32 v5, 3, v1
v_xor_b32 v7, v7, v5
v_lshl_add_u32 v6, v7, 4, v6
s_mul_i32 s32, s3, 9216
s_mul_i32 s33, s3, {9*65536}
s_lshl_b32 s34, s25, 6
s_add_u32 s33, s33, s34
s_add_u32 s33, s33, {VT}
v_bfe_u32 v5, v3, 2, 1
v_lshlrev_b32 v5, 4, v5
v_lshrrev_b32 v7, 3, v3
v_lshl_add_u32 v5, v7, 2, v5
v_and_b32 v7, 3, v3
v_add_u32 v5, v5, v7
s_lshl_b32 s34, s25, 5
v_add_u32 v12, s34, v5
v_mul_u32_u24 v96, 1152, v12
v_lshl_add_u32 v96, v2, 3, v96
v_add_u32 v97, 9216, v96
v_lshrrev_b32 v5, 2, v5
v_lshlrev_b32 v98, 7, v5
v_lshl_add_u32 v98, v7, 4, v98
s_lshr_b32 s38, s25, 5
s_lshl_b32 s38, s38, 12
s_bfe_u32 s34, s25, 0x20002
s_lshl_b32 s34, s34, 10
s_add_u32 s38, s38, s34
s_bfe_u32 s34, s25, 0x10004
s_lshl_b32 s34, s34, 6
s_add_u32 s38, s38, s34
s_and_b32 s34, s25, 3
s_lshl_b32 s34, s34, 2
s_add_u32 s38, s38, s34
s_add_u32 s38, s38, {MX}
s_lshl_b32 s37, s27, 5""")
    pro2(e, x=True)
    for idx in range(9):
        e(f"s_add_u32 m0, s32, {idx*1024}")
        e("s_add_u32 s33, s33, 65536" if idx else "s_nop 0")
        e.vmop("buffer_load_dwordx4 v6, s[8:11], s33 offen lds", "dma")
    Lw3 = e.label("w3"); Lp6 = e.label("p6")
    e(f"""s_mul_i32 s30, s28, 36
s_mul_i32 s31, s3, 9
s_add_u32 s30, s30, s31
s_mul_i32 s30, s30, 18432
s_add_u32 s31, s30, {W4P}
s_add_u32 s30, s30, {W3P}
v_add_u32 v10, 18432, v4
v_add_u32 v11, 36864, v4
s_mul_i32 s53, s25, 36864
s_add_u32 s53, s53, s32""")
    e(f"s_lshr_b32 s46, s3, 1\ns_lshl_b32 s46, s46, 3\ns_and_b32 s47, s3, 1\ns_add_u32 s47, s47, 1\ns_sub_u32 s48, s46, s47\ns_add_u32 s49, s46, s47\nv_mov_b32 v95, 2048\nv_lshlrev_b32 v91, 8, v2")
    for k, sr in ((0, 48), (2, 49)):
        e(f"""v_add_u32 v90, s{sr}, v12
v_cmp_lt_u32 vcc, v90, v95
v_bfe_u32 v92, v90, 5, 6
v_mul_u32_u24 v92, 36864, v92
v_bfe_u32 v93, v90, 3, 1
v_mul_u32_u24 v93, 18432, v93
v_bfe_u32 v94, v90, 2, 1
v_lshl_add_u32 v92, v94, 7, v92
v_bfe_u32 v94, v90, 4, 1
v_lshl_add_u32 v92, v94, 6, v92
v_and_b32 v94, 3, v90
v_lshl_add_u32 v92, v94, 4, v92
v_add3_u32 v92, v92, v93, v91
v_bfrev_b32 v93, 2
v_cndmask_b32 v{DA+k}, v93, v92, vcc""")
    e(f"v_cmp_gt_u32 vcc, 2, v2\ns_and_b32 s54, s3, 1\ns_mul_i32 s54, s54, 9216\ns_add_u32 s54, s54, {H1S}\nv_cndmask_b32 v{DA+1}, v{DA+2}, v{DA}, vcc")
    def dma_act(ph):
        if ph == 4:
            e(f"s_add_u32 s46, s53, {HC}")
            for i in range(9):
                if i % 4 == 0:
                    e(f"s_add_u32 m0, s32, {i*1024}")
                    e("s_add_u32 s46, s46, 4096" if i else "s_nop 0")
                e.vmop(f"buffer_load_dwordx4 v4, s[8:11], s46 offen offset:{(i&3)*1024} sc1 lds", "dma")
        else:
            for i in range(9):
                if i % 4 == 0:
                    e(f"s_add_u32 m0, s32, {i*1024}")
                    e("s_add_u32 s54, s54, 4096" if i else "s_nop 0")
                a = DA + (0 if i < 4 else 1 if i == 4 else 2)
                e.vmop(f"buffer_load_dwordx4 v{a}, s[8:11], s54 offen offset:{(i&3)*1024} sc1 lds", "dma")
    e(f"s_cmp_eq_u32 s3, 3\ns_cbranch_scc1 {Lw3}")
    vm_save = list(e.vm)
    def xloads():
        for u in range(3):
            for t in range(2):
                e.vmop(f"buffer_load_dwordx2 {vr(XR+(u*2+t)*2,2)}, v{96+t}, s[12:15], s37 offen offset:{32*u}", "x")
        e.vmop("buffer_load_dword v14, v98, s[8:11], s38 offen", "x")
        e.vmop("buffer_load_dword v15, v98, s[8:11], s38 offen offset:256", "x")
    ws_ = {"n": 0}
    def wnext(cnt, lim=108):
        for _ in range(cnt):
            n = ws_["n"]
            if n >= lim: return
            ph = "W1" if n < 54 else "W2"; f = n % 54; ks, u = divmod(f, 3)
            if f == 0: e(f"s_add_u32 s52, s36, {W1P if n == 0 else W2P}")
            elif u == 0 and ks % 4 == 0: e("s_add_u32 s52, s52, 4096")
            e.vmop(f"buffer_load_dwordx4 {wfrag(ph,ks,u)}, v{(4,10,11)[u]}, s[8:11], s52 offen offset:{(ks&3)*1024}", (ph, ks, u))
            ws_["n"] += 1
    e("s_mul_i32 s36, s27, 18432")
    XP = OPT.get("xp", 13)
    tgen(e, 27, TB, 16, hook=lambda u, ks: xloads() if u*9 + ks == XP else None)
    e(f"""v_lshrrev_b32 v5, 1, v2
v_lshlrev_b32 v8, 8, v5
v_lshl_add_u32 v8, v3, 4, v8
v_and_b32 v5, 1, v2
v_mul_u32_u24 v9, 18432, v5
v_add_u32 v8, v8, v9
v_lshrrev_b32 v6, 2, v3
v_lshl_add_u32 v6, v2, 3, v6
v_lshlrev_b32 v6, 6, v6
v_and_b32 v7, 3, v3
v_lshl_add_u32 v6, v7, 3, v6
v_lshl_add_u32 v6, v5, 5, v6
v_xor_b32 v7, 32, v6
s_mul_i32 s39, s25, 36864
s_lshl_b32 s40, s27, 9
s_add_u32 s39, s39, s40
s_lshl_b32 s42, s25, 11
s_lshl_b32 s40, s3, 2
s_add_u32 s40, s40, s24
s_lshl_b32 s40, s40, 7
s_add_u32 s41, s42, s40
s_mov_b32 s43, {fhex(2.0/(2048*576))}
v_lshlrev_b32 v13, 3, v3
v_mul_u32_u24 v12, 384, v2
v_add_u32 v12, v12, v13""")
    e.wait(vm="dma")
    e("s_barrier")
    stamp(e)
    def gemm(ph, tr, hook):
        def rd(ks):
            for t in range(2):
                b = BF + ((ks % NB)*2 + t)*4
                if tr:
                    e.lgop(f"ds_read_b64_tr_b16 {vr(b,2)}, v{6+t} offset:{ks*2048}", ("b", ks))
                    e.lgop(f"ds_read_b64_tr_b16 {vr(b+2,2)}, v{6+t} offset:{ks*2048+256}", ("b", ks))
                else:
                    e.lgop(f"ds_read_b128 {vr(b)}, v4 offset:{(t*18+ks)*1024}", ("b", ks))
        for ks in range(NB-1): rd(ks)
        for ks in range(18):
            if ks + NB - 1 < 18: rd(ks + NB - 1)
            e.wait(vm=(ph, ks, 2), lg=("b", ks))
            for u in range(3):
                for t in range(2):
                    d = vr(acc(u, t) + (24 if (ph == "T" and ks >= 9) else 0))
                    first = ks == 0 or (ph == "T" and ks == 9)
                    e(f"{M16} {d}, {wfrag(ph,ks,u)}, {vr(BF + ((ks % NB)*2 + t)*4)}, {0 if first else d}")
            hook(ks)
    def sq_store(region):
        red_g(e, (90, 91), (92, 93))
        e(f"s_add_u32 s46, s41, {region}\ns_mov_b64 exec, 0xffff")
        e.vmop(f"buffer_store_dwordx2 v[90:91], v13, s[8:11], s46 offen sc1", "st")
        e("s_mov_b64 exec, -1")
    def st16(o, sreg, off):
        e(f"s_nop 0\nv_permlane16_swap_b32 v{o}, v{o+2}\nv_permlane16_swap_b32 v{o+1}, v{o+3}")
        e.vmop(f"buffer_store_dwordx4 {vr(o)}, v8, s[8:11], s{sreg} offen offset:{off} sc1", "st")
    GL, AL = OPT.get("gl", 36), OPT.get("al", 18)
    lim_ = [54]
    def hookw(ks): wnext(GL*(ks+1)//18 - GL*ks//18, lim_[0])
    def hook3(ks):
        if XP == 27 + ks: xloads()
        hookw(ks)
    gemm("T", True, hook3)
    stamp(e)
    e(f"s_add_u32 s44, s39, {HC}\nv_mov_b32 v90, 0\nv_mov_b32 v91, 0")
    e.wait(vm="x")
    for u in range(3):
        o = BF + 4*u
        for t in range(2):
            a = acc(u, t); x = XR + (u*2+t)*2; h = HCR + (u*2+t)*4
            e(f"""v_lshlrev_b32 v92, 16, v{x}
v_and_b32 v93, 0xffff0000, v{x}
v_lshlrev_b32 v94, 16, v{x+1}
v_and_b32 v95, 0xffff0000, v{x+1}""")
            for r in range(4): e(f"v_{'sub' if r & 1 else 'add'}_f32 v{a+r}, v{a+r}, v{h+r}")
            for r in range(4): e(f"v_sub_f32 v{92+r}, v{92+r}, v{14+t}")
            for r in range(4): e(f"v_fma_f32 v{h+r}, v{a+r}, s43, v{92+r}")
            e(f"v_cvt_pk_bf16_f32 v{o+2*t}, v{h}, v{h+1}\nv_cvt_pk_bf16_f32 v{o+2*t+1}, v{h+2}, v{h+3}")
            for r in range(4): e(f"v_fmac_f32 v{90+t}, v{h+r}, v{h+r}")
        st16(o, 44, 512*u)
    sq_store(SQH)
    e(f"s_add_u32 s44, s39, {H1S}\ns_add_u32 s47, s42, {SQH}")
    e.wait(vm="st")
    stamp(e, lvl=-1)
    e("s_barrier")
    stamp(e, lvl=1)
    lim_[0] = 54 + 42
    wnext(AL, lim_[0])
    assert ws_["n"] >= 54
    stamp(e, lvl=1)
    e("s_barrier")
    stamp(e, lvl=1)
    dma_act(4)
    for c in range(3): e.vmop(f"buffer_load_dwordx2 {vr(96+2*c,2)}, v12, s[8:11], s47 offen offset:{128*c} sc1", "q")
    stamp(e, lvl=1)
    e.wait(vm="dma")
    stamp(e, lvl=1)
    e("s_barrier")
    stamp(e, lvl=-1)
    def hook4(ks):
        if ks == 4: lim_[0] = 108
        hookw(ks)
    gemm("W1", False, hook4)
    stamp(e)
    e.wait(vm="q")
    e("v_add_f32 v97, v97, v99\nv_add_f32 v96, v96, v98\nv_add_f32 v96, v96, v100\nv_add_f32 v100, v97, v101")
    red_g(e, (96, 100), (92, 93))
    for t in range(2): e(f"v_mul_f32 v{96+4*t}, {fhex(1/576)}, v{96+4*t}")
    for t in range(2): e(f"v_add_f32 v{88+t}, {fhex(EPS)}, v{96+4*t}")
    for t in range(2): e(f"v_rsq_f32 v{88+t}, v{88+t}")
    e("s_nop 0")
    for t in range(2): e(f"v_mul_f32 v{98+4*t}, v{88+t}, v{88+t}")
    for t in range(2): e(f"v_mul_f32 v{98+4*t}, v{98+4*t}, v{96+4*t}")
    for t in range(2): e(f"v_add_f32 v{98+4*t}, {fhex(EPS)}, v{98+4*t}")
    for t in range(2): e(f"v_rsq_f32 v{98+4*t}, v{98+4*t}")
    e("s_nop 0")
    for t in range(2): e(f"v_mul_f32 v{96+4*t}, v{88+t}, v{98+4*t}")
    for t in range(2): gelu_consts(e, 96+4*t, 97+4*t, 98+4*t, 99+4*t)
    for u in range(3):
        o = BF + 4*u
        for t in range(2):
            a = acc(u, t); s = 96 + 4*t
            for l in gelu4(a, 92, s+1, s+2, s+3): e(l)
            e(f"v_cvt_pk_bf16_f32 v{o+2*t}, v92, v93\nv_cvt_pk_bf16_f32 v{o+2*t+1}, v94, v95")
        e("s_nop 0")
        st16(o, 44, 512*u)
    e(f"s_add_u32 s44, s39, {X6}\nv_lshlrev_b32 v98, 2, v3\nv_mov_b32 v90, 0\nv_mov_b32 v91, 0")
    e.wait(vm="st")
    stamp(e, lvl=-1)
    e("s_barrier")
    wnext(108)
    stamp(e, lvl=1)
    e("s_barrier")
    stamp(e, lvl=1)
    dma_act(5)
    stamp(e, lvl=1)
    e.wait(vm="dma")
    stamp(e, lvl=1)
    e("s_barrier")
    stamp(e, lvl=-1)
    N5 = OPT.get("n5", 20)
    st5 = {"n": 0}
    def hook5(ks):
        while st5["n"] < min(N5, 3*ks + 3, (3*(ks+1))//2):
            for x in wload6(st5["n"]): emit(x)
            st5["n"] += 1
    gemm("W2", False, hook5)
    assert st5["n"] == N5
    stamp(e)
    e("s_barrier")
    e.lgop("ds_read_b32 v96, v98 offset:36864", "m"); e.lgop("ds_read_b32 v97, v98 offset:36928", "m")
    for u in range(3):
        x = BF + 4*u
        for t in range(2):
            a = acc(u, t); h = HCR + (u*2+t)*4
            for r in range(4): e(f"v_fmac_f32 v{a+r}, v{h+r}, v{88+t}")
            for r in range(4): e(f"v_add_f32 v{h+r}, v{h+r}, v{14+t}")
            for r in range(4): e(f"v_add_f32 v{h+r}, v{h+r}, v{a+r}")
            e.wait(lg="all")
            for r in range(4): e(f"v_sub_f32 v{a+r}, v{a+r}, v{96+t}")
            e(f"v_cvt_pk_bf16_f32 v{x+2*t}, v{a}, v{a+1}\nv_cvt_pk_bf16_f32 v{x+2*t+1}, v{a+2}, v{a+3}")
            for r in range(4): e(f"v_fmac_f32 v{90+t}, v{a+r}, v{a+r}")
        st16(x, 44, 512*u)
    sq_store(SQ1)
    for u in range(3):
        for t in range(2):
            h = HCR + (u*2+t)*4; o = BASE + 4*u + 2*t
            e(f"v_cvt_pk_bf16_f32 v{o}, v{h}, v{h+1}\nv_cvt_pk_bf16_f32 v{o+1}, v{h+2}, v{h+3}")
    e.wait(vm="st")
    vm_p6 = list(e.vm)
    stamp(e)
    nst_main = NST
    e(f"s_barrier\ns_barrier\ns_branch {Lp6}")
    def signal(phase, idx, word):
        e(f"s_lshl_b32 s46, s{idx}, 7\ns_lshl_b32 s47, s{word}, 2\ns_add_u32 s46, s46, s47\ns_add_u32 s46, s46, {FLG + phase*8192}\ns_mov_b64 exec, 1")
        e("buffer_store_dword v250, v251, s[8:11], s46 offen sc1")
    def poll(phase, areg, nl):
        Lp = e.label("poll"); Ld = e.label("pd")
        e(f"""s_mov_b32 exec_lo, {hex((1 << min(nl,32)) - 1)}
s_mov_b32 exec_hi, {hex((1 << max(nl-32,0)) - 1)}
s_mov_b32 s46, {FLG + phase*8192}
s_mov_b32 s47, 0x40000
{Lp}:
buffer_load_dword v252, v{areg}, s[8:11], s46 offen sc1
s_waitcnt vmcnt(0)
v_cmp_ne_u32 vcc, 1, v252
s_cbranch_vccz {Ld}
s_sub_u32 s47, s47, 1
s_cbranch_scc0 {Lp}
{Ld}:
s_mov_b64 exec, -1""")
        e.vm = []
    e(f"{Lw3}:")
    e.vm = vm_save; e.lg = []
    PKL = 40960
    if W4K3:
        e.srd(16, 20, 5308416)
        e("s_cmp_lt_u32 s2, 216\ns_cselect_b32 s18, 5308416, 0")
        e("v_lshrrev_b32 v16, 3, v1\nv_mul_u32_u24 v16, 1152, v16\nv_and_b32 v17, 7, v1\nv_lshl_add_u32 v16, v17, 4, v16")
        for k in range(2):
            e(f"s_lshl_b32 s40, s2, 1\ns_add_u32 s40, s40, {k}")
            sdiv(e, 3, 41, 42, 40, 46); sdiv(e, 18, 43, 44, 41, 46)
            e(f"""s_mul_i32 s{36+k}, s43, 663552
s_lshl_b32 s45, s44, 10
s_add_u32 s{36+k}, s{36+k}, s45
s_mul_i32 s45, s42, {3*73728}
s_add_u32 s{36+k}, s{36+k}, s45
s_add_u32 s{36+k}, s{36+k}, {W4P}
s_mul_i32 s40, s43, 576
s_and_b32 s45, s44, 1
s_mul_i32 s45, s45, 288
s_add_u32 s40, s40, s45
s_lshr_b32 s45, s44, 1
s_lshl_b32 s45, s45, 4
s_add_u32 s40, s40, s45
s_mul_i32 s40, s40, 1152
s_mul_i32 s45, s42, 384
s_add_u32 s40, s40, s45""")
            for f in range(4):
                for it in range(3):
                    e(f"s_mov_b32 m0, {PKL + k*12288 + it*4096 + f*1024 - it*128}")
                    e(f"s_add_u32 s40, s40, {1152*(136 if f == 2 else 8)}" if (it == 0 and f) else "s_nop 0")
                    e.vmop(f"buffer_load_dwordx4 v16, s[16:19], s40 offen offset:{128*it} {OPT.get('ld_pk','nt')} lds", ("pk", k))
    e(f"""v_mov_b32 v250, 1
v_mov_b32 v251, 0
s_lshl_b32 s46, s25, 7
v_lshlrev_b32 v247, 2, v1
v_add_u32 v247, s46, v247
s_add_u32 s47, s25, 63
s_and_b32 s47, s47, 63
s_lshl_b32 s47, s47, 7
v_mov_b32 v248, v247
v_writelane_b32 v248, s47, 4
s_add_u32 s47, s47, 8
v_writelane_b32 v248, s47, 5
s_add_u32 s47, s25, 1
s_and_b32 s47, s47, 63
s_lshl_b32 s47, s47, 7
s_add_u32 s47, s47, 4
v_writelane_b32 v248, s47, 6
s_add_u32 s47, s47, 8
v_writelane_b32 v248, s47, 7
v_lshrrev_b32 v249, 2, v1
v_lshlrev_b32 v249, 7, v249
v_and_b32 v19, 3, v1
v_lshl_add_u32 v249, v19, 2, v249
s_lshl_b32 s46, s26, 8
v_add_u32 v249, s46, v249
s_mul_i32 s46, s28, 108
s_add_u32 s46, s46, {3*8192 - 32}
v_lshlrev_b32 v19, 2, v1
v_add_u32 v19, s46, v19
v_cmp_lt_u32 vcc, 7, v1
s_nop 1
v_cndmask_b32 v249, v249, v19, vcc""")
    e.wait(vm="dma")
    e("s_barrier")
    if W4K3:
        Lnp = e.label("nopack")
        e(f"""s_cmp_ge_u32 s2, 216
s_cbranch_scc1 {Lnp}
v_lshlrev_b32 v16, 2, v2
v_lshrrev_b32 v17, 2, v3
v_add_u32 v16, v16, v17
v_lshlrev_b32 v16, 7, v16
v_and_b32 v17, 3, v3
v_lshl_add_u32 v16, v17, 3, v16
v_add_u32 v18, 55296, v4""")
        for k in range(2):
            e.wait(vm=("pk", k))
            for it in range(3):
                for tt in range(4):
                    o = 104 + 48*k + 16*it + 4*tt; off = PKL + k*12288 + it*4096 + 32*tt
                    e.lgop(f"ds_read_b64_tr_b16 {vr(o,2)}, v16 offset:{off}", (k, it, tt))
                    e.lgop(f"ds_read_b64_tr_b16 {vr(o+2,2)}, v16 offset:{off + 2048}", (k, it, tt))
            for it in range(3):
                for tt in range(4):
                    e.wait(lg=(k, it, tt))
                    e.vmop(f"buffer_store_dwordx4 {vr(104 + 48*k + 16*it + 4*tt)}, v{(4,10,11,18)[tt]}, s[8:11], s{36+k} offen sc1", "st")
                if it < 2: e(f"s_add_u32 s{36+k}, s{36+k}, 73728")
        e(f"{Lnp}:")
    for ks in range(18):
        if ks % 4 == 0: e(f"s_mov_b32 s40, {W2P + 36*18432 + ks*1024}")
        e.vmop(f"buffer_load_dwordx4 {vr(4*ks,4,'a')}, v4, s[8:11], s40 offen offset:{(ks&3)*1024}", "mw")
    e("s_barrier")
    signal(0, 25, 24); poll(0, 247, 4)
    if W4K3:
        e(f"s_lshl_b32 s46, s2, 2\ns_add_u32 s46, s46, {FLG + 5*8192}\ns_mov_b64 exec, 1\nbuffer_store_dword v250, v251, s[8:11], s46 offen sc1\ns_mov_b64 exec, -1")
        e.vm.append("f")
    e("s_barrier")
    dma_act(4); e.wait(vm="all")
    e("s_barrier")
    e("s_barrier")
    signal(1, 25, 24); poll(1, 248, 8)
    e("s_barrier")
    dma_act(5); e.wait(vm="all")
    e("s_barrier")
    NR = 3
    def rdm(ks):
        for t in range(2): e.lgop(f"ds_read_b128 {vr(40+((ks%NR)*2+t)*4)}, v4 offset:{(t*18+ks)*1024}", ks)
    for ks in range(NR-1): rdm(ks)
    for ks in range(18):
        if ks + NR - 1 < 18: rdm(ks + NR - 1)
        e.wait(lg=ks)
        for t in range(2):
            e(f"{M16} {vr(32+4*t)}, {vr(4*ks,4,'a')}, {vr(40+((ks%NR)*2+t)*4)}, {vr(32+4*t) if ks else 0}")
    e("v_lshlrev_b32 v23, 2, v3\ns_nop 7\ns_mov_b64 exec, 0xffff\nds_write_b32 v23, v32 offset:36864\nds_write_b32 v23, v36 offset:36928\ns_mov_b64 exec, -1")
    for n in range(N5):
        for x in wload6(n): emit(x)
    e("s_waitcnt lgkmcnt(0)\ns_barrier")
    e("s_barrier")
    signal(2, 25, 24); poll(2, 249, 35 if W4K3 else 8)
    e("s_barrier")
    e(f"{Lp6}:")
    globals()["NST"] = nst_main
    e.vm = vm_p6; e.lg = []
    stamp(e)
    def X(t4, ks):
        i = ks*4 + t4
        return vr(4*i, 4, "a") if i < 64 else vr(XV + 4*(i-64))
    HB = 73728
    e(f"s_mul_i32 s40, s26, 73728\ns_mul_i32 s33, s3, 18432\ns_add_u32 s40, s40, s33\ns_add_u32 s40, s40, {X6}")
    for i in range(18):
        if i % 4 == 0:
            e(f"s_add_u32 m0, s33, {i*1024}")
            e("s_add_u32 s40, s40, 4096" if i else "s_nop 0")
        e.vmop(f"buffer_load_dwordx4 v4, s[8:11], s40 offen offset:{(i&3)*1024} sc1 lds", ("xd", i // 6))
    e(f"""v_lshlrev_b32 v6, 3, v3
v_mul_u32_u24 v7, 384, v2
v_add_u32 v6, v6, v7
s_lshl_b32 s36, s26, 12
s_add_u32 s36, s36, {SQ1}""")
    for tp in range(2):
        for c in range(3):
            e.vmop(f"buffer_load_dwordx2 {vr(TT+6*tp+2*c,2)}, v6, s[8:11], s36 offen offset:{2048*tp + 128*c} sc1", "q")
    e(f"""s_lshr_b32 s33, s3, 1
s_lshl_b32 s33, s33, 10
s_and_b32 s36, s3, 1
s_lshl_b32 s36, s36, 3
s_add_u32 s33, s33, s36
s_add_u32 s33, s33, {HB}
v_add_u32 v8, s33, v4
v_add_u32 v9, 36864, v8
v_add_u32 v12, {HB}, v4
v_add_u32 v13, {HB+36864}, v4
s_mul_i32 s33, s3, 18432
v_add_u32 v14, s33, v4
s_lshl_b32 s34, s26, 2
s_add_u32 s34, s34, s3
s_mul_i32 s34, s34, 18432
s_mul_i32 s35, s28, {A_}
s_add_u32 s34, s34, s35
s_add_u32 s34, s34, {PART}""")
    def bread(ks, hb):
        out = []
        for t4 in range(4):
            off = (t4*18 + ks)*1024
            base = (4, 11) if not hb else (12, 13)
            breg = base[0] if off < 36864 else base[1]
            out.append(("l", f"ds_read_b128 {X(t4,ks)}, v{breg} offset:{off % 36864}", ("b", hb, ks)))
        return out
    def const_fill():
        e2 = Em()
        R = [TT+12+t for t in range(4)]
        for t4 in range(4):
            b = TT + 6*(t4 >> 1) + (t4 & 1)
            e2(f"v_add_f32 v{R[t4]}, v{b}, v{b+2}\nv_add_f32 v{R[t4]}, v{R[t4]}, v{b+4}")
        red_g(e2, R, [TMP+t for t in range(4)])
        for r in R: e2(f"v_mul_f32 v{r}, {fhex(1/576)}, v{r}")
        for r in R: e2(f"v_add_f32 v{r}, {fhex(EPS)}, v{r}")
        for r in R: e2(f"v_rsq_f32 v{r}, v{r}")
        e2("s_nop 0")
        for t4 in range(4): gelu_consts(e2, R[t4], KC+t4, KC+4+t4, KC+8+t4)
        return [("wv", "q")] + [("s", l.strip()) for l in e2.L]
    def gelu_fill(ft):
        L = []
        for t4 in range(4):
            L += [("s", l) for l in gelu4(TT+4*t4, TMP, KC+t4, KC+4+t4, KC+8+t4)]
            L += [("s", f"v_cvt_pk_bf16_f32 v{PK+2*t4}, v{TMP}, v{TMP+1}"), ("s", f"v_cvt_pk_bf16_f32 v{PK+2*t4+1}, v{TMP+2}, v{TMP+3}")]
            L += [("l", f"ds_write_b64 v{8 + (t4>>1)}, {vr(PK+2*t4,2)} offset:{ft*2048 + (t4&1)*18432}", ("h", ft))]
        return L
    def out_fill(b):
        dt = ORD[b]
        L = [("s", f"s_add_u32 s35, s34, {dt*2048}")]
        for tp in range(2):
            for h in range(2):
                a = TT + 4*(2*tp+h)
                L += [("s", f"v_cvt_pk_bf16_f32 v{PK+4*tp+2*h}, v{a}, v{a+1}"), ("s", f"v_cvt_pk_bf16_f32 v{PK+4*tp+2*h+1}, v{a+2}, v{a+3}")]
            L += [("v", f"buffer_store_dwordx4 {vr(PK+4*tp)}, v4, s[8:11], s35 offen offset:{tp*1024} {OPT.get('sc_part','sc1')}", "st")]
            L += [("l", f"ds_write_b128 v14, {vr(PK+4*tp)} offset:{(dt*2+tp)*1024}", "o")]
        return L
    def block(blk, fill, G0=4, G1=66, pre=None, post=None):
        nf = len(fill); fi = 0
        for ks in range(18):
            n = blk*18 + ks
            lgw = None
            if pre:
                for x in pre(ks): emit(x)
                lgw = [("b", False, ks), ("b", True, ks)]
            e.wait(vm=[("w", n), ("w", n+1)] if ks % 2 == 0 else None, lg=lgw)
            for t4 in range(4):
                d = vr(TT+4*t4) if ks == 17 else vr(AC+4*t4)
                c = vr(AC+4*t4) if ks else "0"
                e(f"{M16} {d}, {vr(RING+4*(n % NPF))}, {X(t4,ks)}, {c}")
                gap = ks*4 + t4
                if t4 in (1, 3) and st5["n"] < NT and st5["n"] < n + NPF + (t4 == 3):
                    for x in wload6(st5["n"]): emit(x)
                    st5["n"] += 1
                if t4 == 3 and post:
                    for x in post(ks): emit(x)
                if gap >= G0:
                    tgt = min(nf, -(-nf*(gap - G0 + 1) // (G1 - G0)))
                    while fi < tgt: emit(fill[fi]); fi += 1
        assert fi == nf
    AH = 2
    def pre0(ks):
        L = []
        tgt = [ks + AH] if ks else list(range(AH + 1))
        for k in tgt:
            if k < 18:
                if k % 6 == 0: L += [("wv", ("xd", k // 6)), ("s", "s_barrier")]
                L += bread(k, False)
        return L
    block(0, const_fill(), 30, 66, pre=pre0)
    stamp(e)
    stamp(e, lvl=3)
    for ft in range(1, 8):
        block(ft, gelu_fill(ft-1))
        if ft in (1, 3, 5, 7): stamp(e, lvl=3)
    e.wait(lg="all")
    e("s_barrier")
    block(8, gelu_fill(7), post=lambda ks: bread(ks, True) if ks < 14 else [])
    stamp(e)
    def pre9(ks):
        L = []
        if ks == 12: L += [("wl", ("h", 8)), ("s", "s_barrier")] + bread(14, True) + bread(15, True)
        if ks == 13: L += bread(16, True) + bread(17, True)
        return L
    stamp(e, lvl=3)
    block(9, gelu_fill(8), 3, 46, pre=pre9)
    stamp(e, lvl=3)
    e2 = Em()
    e2.srd(12, 22, A_)
    e2(f"""s_lshl_b32 s38, s26, 2
s_add_u32 s38, s38, s24
s_mul_i32 s38, s38, 9
s_mul_i32 s39, s3, 3
s_add_u32 s38, s38, s39
s_lshl_b32 s38, s38, 1
s_add_u32 s38, s38, s29
s_lshl_b32 s38, s38, 10
s_add_u32 s38, s38, {PART}
s_mul_i32 s40, s25, {32*1152}
s_lshl_b32 s36, s27, 5
s_add_u32 s40, s40, s36
v_bfe_u32 v5, v3, 2, 1
v_lshlrev_b32 v5, 4, v5
v_lshrrev_b32 v7, 3, v3
v_lshl_add_u32 v5, v7, 2, v5
v_and_b32 v7, 3, v3
v_add_u32 v5, v5, v7
v_mul_u32_u24 v6, 1152, v5
v_lshl_add_u32 v6, v2, 3, v6
v_add_u32 v7, 9216, v6
v_add_u32 v11, 4096, v4
s_mul_i32 s41, s24, 18432
s_mul_i32 s42, s3, 6144
s_add_u32 s41, s41, s42
s_lshl_b32 s42, s29, 10
s_add_u32 s41, s41, s42
v_add_u32 v9, s41, v4
v_mov_b32 v250, 1
v_mov_b32 v251, 0
s_lshl_b32 s44, s26, 9
s_lshl_b32 s45, s24, 5
s_add_u32 s45, s45, s44
v_and_b32 v247, 7, v1
v_lshlrev_b32 v247, 2, v247
v_add_u32 v247, s45, v247
s_lshl_b32 s45, s3, 5
s_add_u32 s44, s44, s45
s_lshl_b32 s45, s28, 2
s_add_u32 s44, s44, s45
s_add_u32 s44, s44, {FLG + 3*8192}
s_mov_b32 s45, {FLG + 3*8192}""")
    e2(f"s_mov_b32 s48, s8\ns_mov_b32 s49, s9\ns_mov_b32 s51, 0x00020000")
    for i in range(7):
        e2(f"s_add_u32 s42, s28, {i+1}\ns_and_b32 s42, s42, 7\ns_mul_i32 s42, s42, {A_}\ns_add_u32 s{52+i}, s42, s38")
    setup7 = [("s", l.strip()) for l in e2.L] + [("s", f"s_cmp_eq_u32 s3, 3\ns_cselect_b32 s50, 0, {WS_SIZE}")]
    def flag_store(off):
        return [("s", "s_mov_b64 exec, 1"), ("v", f"buffer_store_dword v250, v251, s[8:11], s44 offen offset:{off} sc1", "f"), ("s", "s_mov_b64 exec, -1")]
    def poll7(off, first_tag=None):
        Lp = e.label("poll"); Ld = e.label("pd")
        if first_tag:
            e.wait(vm=first_tag)
            e(f"v_cmp_ne_u32 vcc, 1, v252\ns_cbranch_vccz {Ld}")
        e(f"""s_mov_b32 s47, 0x40000
{Lp}:
buffer_load_dword v252, v247, s[8:11], s45 offen offset:{off} sc1
s_waitcnt vmcnt(0)
v_cmp_ne_u32 vcc, 1, v252
s_cbranch_vccz {Ld}
s_sub_u32 s47, s47, 1
s_cbranch_scc0 {Lp}
{Ld}:""")
        if not first_tag: e.vm = []
    FK, PKS, G2 = OPT.get("fk", 1), OPT.get("pks", 14), OPT.get("g2", 28)
    def slot(i): return RING + 4*((292 + i) % NPF)
    def rload(i):
        return [("v", f"buffer_load_dwordx4 {vr(slot(i))}, v4, s[48:51], s{52 + i % 7} offen offset:{2048*(i//7)} sc1", ("r", i))]
    def check(off):
        e.wait(vm="pa")
        poll7(off, "pa")
    for dt in range(1, 9):
        fill = out_fill(dt-1)
        if dt == 1: fill = fill + setup7
        if dt in (3, 6): fill = [(x[0], x[1], ("stf", dt)) if x[0] == "v" else x for x in fill]
        pre = post = None
        if dt == 4: pre = lambda ks: ([("wv", ("stf", 3))] + flag_store(0)) if ks == FK else []
        if dt == 6: pre = lambda ks: [("v", "buffer_load_dword v252, v247, s[8:11], s45 offen sc1", "pa")] if ks == 10 else []
        if dt == 7:
            check(0)
            def pre(ks):
                if ks == FK: return [("wv", ("stf", 6))] + flag_store(128)
                if ks == PKS: return [("v", "buffer_load_dword v252, v247, s[8:11], s45 offen offset:128 sc1", "pa")]
                return []
            post = lambda ks: rload(ks - 4) if 4 <= ks < 11 else []
        if dt == 8:
            check(128)
            post = lambda ks: rload(7 + ks//2) if (ks % 2 == 0 and ks < 14) else []
        block(9+dt, fill, 4, 66 if dt == 1 else G2, pre=pre, post=post)
        if dt in (1, 2, 4, 6, 8): stamp(e, lvl=3)
    stamp(e)
    e("s_nop 7")
    for x in out_fill(8): emit(x)
    def accum(x, a): e(f"v_lshlrev_b32 v8, 16, v{x}\nv_and_b32 v5, 0xffff0000, v{x}\nv_add_f32 v{a}, v{a}, v8\nv_add_f32 v{a+1}, v{a+1}, v5")
    for k in range(3):
        for j in range(4):
            x = BASE + 4*k + j; a = 16 + 8*k + 2*j
            e(f"v_lshlrev_b32 v{a}, 16, v{x}\nv_and_b32 v{a+1}, 0xffff0000, v{x}")
    e.wait(vm="st", lg="all")
    for x in flag_store(256): emit(x)
    Lep = e.label("ep")
    e(f"s_barrier\ns_cmp_eq_u32 s3, 3\ns_cbranch_scc1 {Lep}")
    for k in range(3): e.lgop(f"ds_read_b128 {vr(48+4*k)}, v9 offset:{2048*k}", "p")
    for i in range(14):
        for j in range(4): accum(slot(i) + j, 16 + 8*(i // 7) + 2*j)
    e.wait(lg="all")
    for k in range(3):
        for j in range(4): accum(48 + 4*k + j, 16 + 8*k + 2*j)
    def fin(k):
        for j in range(4): e(f"v_cvt_pk_bf16_f32 v{48+4*k+j}, v{16+8*k+2*j}, v{17+8*k+2*j}")
        e(f"buffer_store_dwordx2 {vr(48+4*k,2)}, v6, s[12:15], s40 offen offset:{32*k}\nbuffer_store_dwordx2 {vr(50+4*k,2)}, v7, s[12:15], s40 offen offset:{32*k}")
    stamp(e, lvl=2)
    poll7(256)
    stamp(e)
    for sl in range(7):
        e.vmop(f"buffer_load_dwordx4 {vr(64+4*sl)}, v11, s[8:11], s{52+sl} offen sc1", sl)
    fin(0); fin(1)
    e.vm += ["o"]*4
    for sl in range(7):
        e.wait(vm=sl)
        for j in range(4): accum(64 + 4*sl + j, 32 + 2*j)
    fin(2)
    e(f"{Lep}:")
    epi(e, name, Lend, 3, 512, 256)
    e.add_launch(name, 256, lds=147456)

def build(stamp=False, only=None, **opt):
    global STAMP, OPT
    STAMP = stamp; OPT = opt
    e = Em()
    e.L.append(".p2align 8\ncode_begin:\ns_nop 0")
    for k in (only or ["k1", "k2", "k3"]): globals()[k](e)
    e.L.append("code_end:\ns_nop 0")
    return finish(e)

if __name__ == "__main__":
    import sys, hazard
    out = "sequential_preLN__spectral_gfnet__mixer_s_mlp__prompt.s"
    txt = build(False)
    open(out, "w").write(txt); open("cur.s", "w").write(txt)
    errs = hazard.check(txt.split("\n"))
    print("\n".join(errs[:40])); print(len(errs), "hazards;", len(txt), "bytes")
    open("stamp.s", "w").write(build(True))
```

```python
import re
TRANS = ("v_exp_f32","v_log_f32","v_rcp_f32","v_rsq_f32","v_sqrt_f32","v_sin_f32","v_cos_f32")
def regs(tok):
    tok = tok.strip()
    neg = tok.startswith("-"); tok = tok.lstrip("-")
    if tok.startswith("abs(") : tok = tok[4:-1]
    if tok.startswith("|"): tok = tok.strip("|")
    m = re.fullmatch(r"([vas])(\d+)", tok)
    if m: return {(m.group(1), int(m.group(2)))}
    m = re.fullmatch(r"([vas])\[(\d+):(\d+)\]", tok)
    if m: return {(m.group(1), i) for i in range(int(m.group(2)), int(m.group(3))+1)}
    if tok == "vcc": return {("s","vcc")}
    if tok == "m0": return {("s","m0")}
    if tok == "exec": return {("s","exec")}
    return set()
class I: pass
def parse(line):
    line = line.split(";")[0].strip()
    if not line or line.endswith(":") or line.startswith("."): return None
    p = line.split(None, 1)
    op = p[0]; rest = p[1] if len(p) > 1 else ""
    ops = [o for o in re.split(r",\s*", rest)] if rest else []
    if ops:
        last = ops[-1].split()
        ops[-1] = last[0] if last else ""
        mods = last[1:]
    else: mods = []
    i = I(); i.op = op; i.line = line; i.mods = " ".join(mods); i.ops = ops
    i.w = set(); i.r = set(); i.kind = "other"; i.srcC=set(); i.srcAB=set(); i.sdata=set()
    base = op.replace("_e32","").replace("_e64","").replace("_dpp","").replace("_sdwa","")
    i.base = base
    if op.startswith("v_mfma"):
        i.kind = "mfma"; i.w = regs(ops[0]); i.srcAB = regs(ops[1]) | regs(ops[2]); i.srcC = regs(ops[3]); i.r = i.srcAB | i.srcC
        i.passes = 8 if "32x32" in op else 4
    elif op.startswith("v_cmp"):
        i.kind = "valu"; i.w = regs(ops[0]); i.r = set().union(*[regs(o) for o in ops[1:]])
    elif op.startswith("v_readfirstlane") or op.startswith("v_readlane"):
        i.kind = "valu"; i.w = regs(ops[0]); i.r = set().union(*[regs(o) for o in ops[1:]])
    elif op.startswith("v_permlane"):
        i.kind = "valu"; i.w = regs(ops[0]) | regs(ops[1]); i.r = set(i.w)
    elif op.startswith("v_"):
        i.kind = "valu"; i.w = regs(ops[0]); srcs = ops[1:]
        if base in ("v_add_co_u32","v_addc_co_u32","v_sub_co_u32"): i.w |= regs(ops[1]); srcs = ops[2:]
        i.r = set().union(*[regs(o) for o in srcs]) if srcs else set()
        if base in ("v_fmac_f32","v_dot2c_f32_bf16"): i.r |= i.w
        if base == "v_cndmask_b32" and len(ops) == 4: pass
    elif op.startswith("buffer_") or op.startswith("global_"):
        i.kind = "vmem"
        if op in ("buffer_inv","buffer_wbl2"): return i
        if "lds" in mods or op.startswith("global_load_lds"):
            i.r = set().union(*[regs(o) for o in ops]) | {("s","m0")}; i.dma = True
        elif "load" in op:
            i.w = regs(ops[0]); i.r = set().union(*[regs(o) for o in ops[1:]])
        else:
            i.r = set().union(*[regs(o) for o in ops])
            if op.startswith("buffer_store"): i.sdata = regs(ops[0])
            elif op.startswith("global_store"): i.sdata = regs(ops[1])
            i.wide = ("x4" in op or "x3" in op)
    elif op.startswith("ds_"):
        i.kind = "ds"
        if "read" in op or "permute" in op or "swizzle" in op:
            i.w = regs(ops[0]); i.r = set().union(*[regs(o) for o in ops[1:]])
        else:
            i.r = set().union(*[regs(o) for o in ops])
    elif op.startswith("s_"):
        i.kind = "salu"
        if op in ("s_nop","s_waitcnt","s_barrier","s_endpgm","s_sleep","s_setprio") or op.startswith("s_cbranch") or op.startswith("s_branch") or op.startswith("s_cmp"):
            i.r = set().union(*[regs(o) for o in ops]) if op.startswith("s_cmp") else set()
        else:
            i.w = regs(ops[0]); i.r = set().union(*[regs(o) for o in ops[1:]]) if len(ops) > 1 else set()
    return i
def states(i):
    if i.op == "s_nop": return int(i.ops[0], 0) + 1
    return 1
def check(lines, window=24):
    ins = [(n, parse(l)) for n, l in enumerate(lines)]
    ins = [(n, i) for n, i in ins if i is not None]
    errs = []
    for idx, (n, c) in enumerate(ins):
        d = 0
        for back in range(idx - 1, max(-1, idx - window - 1), -1):
            pn, p = ins[back]
            if p.op in ("s_endpgm", "s_branch"): break
            need = 0; why = ""
            vr = {x for x in c.r if x[0] in "va"}; vw = {x for x in c.w if x[0] in "va"}
            if p.kind == "valu":
                pw = p.w
                pv = {x for x in pw if x[0] in "va"}; ps = {x for x in pw if x[0] == "s"}
                if c.kind == "mfma" and pv & c.r: need, why = max(need, 2), "valu->mfma"
                if p.base in TRANS and c.kind == "valu" and c.base not in TRANS and pv & c.r: need, why = max(need,1), "trans->valu"
                if p.base in TRANS and c.kind in ("vmem","ds") and pv & c.r: need, why = max(need,1), "trans->mem"
                if c.kind == "valu" and (c.op.startswith("v_permlane") or "dpp" in c.op or "row_" in c.mods or "quad_perm" in c.mods) and pv & c.r: need, why = max(need,2), "valu->permlane/dpp"
                if c.kind == "valu" and (c.op.startswith("v_readfirstlane") or c.op.startswith("v_readlane")) and pv & c.r: need, why = max(need,1), "valu->readlane"
                if ps:
                    if c.kind == "vmem" and ps & c.r: need, why = max(need,5), "valu sgpr->vmem"
                    if c.kind == "valu" and ps & c.r: need, why = max(need,2), "valu sgpr->valu"
                    if c.kind == "valu" and c.base == "v_cndmask_b32" and ("s","vcc") in ps and len(c.ops)==4 and c.ops[3]=="vcc": need, why = max(need,2), "vcc->cndmask"
                    if c.kind == "salu" and ps & c.r: need, why = max(need,1), "valu sgpr->salu(pad)"
            if p.kind == "mfma":
                n1 = 12 if p.passes == 8 else 8
                n2 = 10 if p.passes == 8 else 6
                n3 = 7 if p.passes == 8 else 3
                if c.kind == "mfma":
                    if p.w & c.srcAB: need, why = max(need, n1), "mfmaD->mfmaAB"
                    if p.w & c.srcC and not (p.w == c.srcC and p.passes == c.passes): need, why = max(need, n2), "mfmaD->mfmaC partial"
                elif c.kind in ("valu","vmem","ds"):
                    if p.w & (vr | vw): need, why = max(need, n1), "mfmaD->valu/mem"
                    if c.kind == "valu" and p.srcC & vw: need2 = n3;
                    else: need2 = 0
                    if need2 > need: need, why = need2, "mfmaC WAR"
            if p.kind == "vmem" and getattr(p, "wide", False) and p.sdata & vw and c.kind in ("valu",): need, why = max(need,2), "store WAR"
            if p.kind == "vmem" and getattr(p, "wide", False) and p.sdata & vw and c.kind in ("vmem","ds","mfma"): need, why = max(need,1), "store WAR"
            if p.kind == "salu" and ("s","m0") in p.w and getattr(c, "dma", False): need, why = max(need,1), "m0->dma"
            if p.kind == "valu" and ("s","exec") in p.w and c.kind == "mfma": need, why = max(need,4), "exec->mfma"
            if need > d:
                errs.append(f"line {n+1}: [{c.line}] needs {need} after line {pn+1} [{p.line}] has {d} ({why})")
            d += states(p)
            if d >= 20: break
    return errs
if __name__ == "__main__":
    import sys
    e = check(open(sys.argv[1]).read().split("\n"))
    print("\n".join(e[:50])); print(len(e), "hazards")

def check_async(lines):
    errs = []
    vm = []; lg = []; saved = {}
    dead = False
    for n, l in enumerate(lines):
        t = l.split(";")[0].strip()
        if t.endswith(":"):
            lab = t[:-1]
            if lab in saved:
                sv, sl = saved[lab]
                if dead: vm, lg = list(sv), list(sl)
                else:
                    if len(sv) > len(vm): vm = list(sv)
                    if len(sl) > len(lg): lg = list(sl)
            elif dead: vm, lg = [], []
            dead = False
            continue
        i = parse(l)
        if i is None: continue
        if i.op == "s_waitcnt":
            m = re.search(r"vmcnt\((\d+)\)", t)
            if m: vm = vm[len(vm) - min(len(vm), int(m.group(1))):]
            m = re.search(r"lgkmcnt\((\d+)\)", t)
            if m:
                k = int(m.group(1))
                if k == 0: lg = []
                elif not any(x[1] == "smem" for x in lg): lg = lg[len(lg) - min(len(lg), k):]
            continue
        if i.op.startswith("s_cbranch") or i.op == "s_branch":
            saved[i.ops[0]] = (list(vm), list(lg))
            if i.op == "s_branch": dead = True
            continue
        if i.op == "s_endpgm":
            dead = True; vm, lg = [], []; continue
        touched = (i.r | i.w)
        for q in (vm, lg):
            for (ln, kind, regs_) in q:
                hit = touched & regs_
                if hit and not (i.kind in ("vmem",) and kind == "vm" and hit <= i.w and not (hit & i.r)):
                    errs.append(f"line {n+1}: [{t}] touches {sorted(hit)[:3]} pending from line {ln+1}")
        if i.kind == "vmem" and i.op not in ("buffer_inv", "buffer_wbl2"): vm.append((n, "vm", set(i.w)))
        elif i.kind == "ds": lg.append((n, "ds", set(i.w)))
        elif i.op.startswith("s_load") or i.op.startswith("s_mem"): lg.append((n, "smem", set(i.w)))
    return errs
```

```python
from common import *
import common
common.castab = lambda: ''
STAMP = False
STAMP_OFF = 200 << 20
OPT = {}
FLG = WS_END
FLG_SZ = 72*1024
FLG2 = FLG + 49152 + 1024
NST = 0
M16 = "v_mfma_f32_16x16x32_bf16"

def stamp(e, first=False, lvl=0):
    global NST
    if not STAMP: return
    if (lvl != OPT.get("lvl", 0) and not (lvl == -1 and OPT.get("lvl", 0) < 2)) and not first: return
    assert NST < 15
    e(f"{'s_memtime' if (lvl == 3) else 's_memrealtime'} s[{60+2*NST}:{61+2*NST}]")
    if not first: e("s_waitcnt lgkmcnt(0)"); e.lg = []
    NST += 1

def pro(e, name, ngrid, x=False, T=False, extra=()):
    global NST
    e.begin(name)
    Lend = e.label("end")
    e(f"s_cmp_ge_u32 s2, {ngrid}\ns_cbranch_scc1 {Lend}")
    NST = 0
    stamp(e, True)
    e("s_load_dwordx2 s[4:5], s[0:1], 80")
    if x: e("s_load_dwordx2 s[6:7], s[0:1], 0")
    for (sreg, off) in extra: e(f"s_load_dwordx2 s[{sreg}:{sreg+1}], s[0:1], {off}")
    if T:
        e("s_getpc_b64 s[16:17]\ns_add_u32 s16, s16, castab@rel32@lo+4\ns_addc_u32 s17, s17, castab@rel32@hi+12")
        e("s_and_b32 s17, s17, 0xffff\ns_mov_b32 s18, 663552\ns_mov_b32 s19, 0x00020000")
    e("""v_lshrrev_b32 v5, 6, v0
v_and_b32 v1, 63, v0
v_readfirstlane_b32 s3, v5
v_lshrrev_b32 v2, 4, v1
v_and_b32 v3, 15, v1
v_lshlrev_b32 v4, 4, v1""")
    return Lend
def burn(e, n):
    L = e.label("burn")
    e(f"s_mov_b32 s58, {n}\n{L}:")
    for i in range(32): e(f"v_fma_f32 v{40+i%8}, v{40+i%8}, v{40+i%8}, v{40+i%8}")
    e(f"s_sub_u32 s58, s58, 1\ns_cmp_lg_u32 s58, 0\ns_cbranch_scc1 {L}")

def pro2(e, x=False):
    e("s_waitcnt lgkmcnt(0)")
    e.srd(8, 4, WS_SIZE)
    if x: e.srd(12, 6, A_)

def dump(e, slot):
    if STAMP:
        e(f"""s_waitcnt vmcnt(0) lgkmcnt(0)
s_mov_b64 exec, 1
s_memrealtime s[90:91]
s_lshl_b32 s92, s2, 2
s_add_u32 s92, s92, s3
s_lshl_b32 s92, s92, 7
s_add_u32 s92, s92, {STAMP_OFF + slot*(1<<20)}
s_waitcnt lgkmcnt(0)
v_mov_b32 v100, 0""")
        for k in range(8):
            for j in range(4): e(f"v_mov_b32 v{96+j}, s{60+4*k+j}")
            e(f"buffer_store_dwordx4 v[96:99], v100, s[8:11], s92 offen offset:{16*k}\ns_nop 1")
        e("s_mov_b64 exec, -1")

def epi(e, name, Lend, slot, vgpr, accum):
    dump(e, slot)
    e(f"{Lend}:")
    e.end(name, vgpr, accum, 96)

def red_g(e, regs, tmps):
    for sw in ("v_permlane32_swap_b32", "v_permlane16_swap_b32"):
        for v, t in zip(regs, tmps): e(f"v_mov_b32 v{t}, v{v}")
        e("s_nop 1" if len(regs) < 3 else "s_nop 0")
        for v, t in zip(regs, tmps): e(f"{sw} v{v}, v{t}")
        if len(regs) < 2: e("s_nop 0")
        for v, t in zip(regs, tmps): e(f"v_add_f32 v{v}, v{v}, v{t}")

def sdiv(e, d, q, r, x, tmp):
    m = (1 << 32) // d + 1
    e(f"s_mul_hi_u32 s{q}, s{x}, {m}\ns_mul_i32 s{tmp}, s{q}, {d}\ns_sub_u32 s{r}, s{x}, s{tmp}")

C0 = -2.0*math.sqrt(2.0/math.pi)*math.log2(math.e)
C1 = C0*0.044715
def gelu_consts(e, r, K0, K1, IR):
    e(f"v_rcp_f32 v{IR}, v{r}\nv_mul_f32 v{K0}, {fhex(C0)}, v{r}\nv_mul_f32 v{K1}, v{r}, v{r}\nv_mul_f32 v{K1}, v{K1}, v{r}\nv_mul_f32 v{K1}, {fhex(C1)}, v{K1}")
def gelu4(a, tmp, K0, K1, IR):
    L = []
    L += [f"v_mul_f32 v{tmp+r}, v{a+r}, v{a+r}" for r in range(4)]
    L += [f"v_fma_f32 v{tmp+r}, v{tmp+r}, v{K1}, v{K0}" for r in range(4)]
    L += [f"v_mul_f32 v{tmp+r}, v{tmp+r}, v{a+r}" for r in range(4)]
    L += [f"v_exp_f32 v{tmp+r}, v{tmp+r}" for r in range(4)]
    L += [f"v_fma_f32 v{tmp+r}, v{tmp+r}, v{IR}, v{IR}" for r in range(4)]
    L += [f"v_rcp_f32 v{tmp+r}, v{tmp+r}" for r in range(4)]
    L += [f"v_mul_f32 v{tmp+r}, v{tmp+r}, v{a+r}" for r in range(4)]
    return L


def tgen(e, j0s, TB, ST, us=(0, 1, 2), hook=None):
    S0, S1, FA, C1r, C32r, P0, K8, Q = ST, ST+8, ST+16, ST+17, ST+18, ST+19, ST+20, ST+21
    if 0 in us: e(f"s_lshl_b32 s46, s{j0s}, 4\nv_add_u32 v{FA}, s46, v3\nv_cvt_f32_u32 v{FA}, v{FA}\nv_lshlrev_b32 v{Q+1}, 3, v2\nv_cvt_f32_u32 v{Q+1}, v{Q+1}\nv_mov_b32 v{K8}, 0x3e000000")
    for u in us:
        if u: e(f"v_add_f32 v{FA}, 0x41800000, v{FA}")
        e(f"""v_mul_f32 v{C1r}, {fhex(1/576)}, v{FA}
v_mul_f32 v{C32r}, {fhex(1/18)}, v{FA}
v_mul_f32 v{P0}, v{FA}, v{Q+1}
v_floor_f32 v{C32r}, v{C32r}
v_cos_f32 v{C1r}, v{C1r}
v_fmamk_f32 v{C32r}, v{C32r}, {fhex(-18.0)}, v{FA}
v_mul_f32 v{C32r}, {fhex(1/18)}, v{C32r}""")
        sd = [(S0, 0), (S0+1, 1), (S1, 32), (S1+1, 33)]
        for r, k in sd: e(f"v_fmamk_f32 v{r}, v{FA}, {fhex(float(k))}, v{P0}")
        e(f"v_cos_f32 v{C32r}, v{C32r}")
        for r, k in sd: e(f"v_mul_f32 v{r+2}, {fhex(1/576)}, v{r}")
        e(f"v_add_f32 v{C1r}, v{C1r}, v{C1r}")
        for r, k in sd: e(f"v_floor_f32 v{r+2}, v{r+2}")
        e(f"v_add_f32 v{C32r}, v{C32r}, v{C32r}")
        for r, k in sd: e(f"v_fmamk_f32 v{r}, v{r+2}, {fhex(-576.0)}, v{r}")
        for r, k in sd: e(f"v_fmamk_f32 v{r}, v{r}, {fhex(1/576)}, v{K8}")
        for r, k in sd: e(f"v_sin_f32 v{r}, v{r}")
        e("s_nop 0")
        for i in range(2, 8):
            for S in (S0, S1): e(f"v_fma_f32 v{S+i}, v{C1r}, v{S+i-1}, -v{S+i-2}")
        for ks in range(9):
            S = S0 if ks % 2 == 0 else S1; O = S1 if ks % 2 == 0 else S0
            if ks >= 2:
                for i in range(8): e(f"v_fma_f32 v{S+i}, v{C32r}, v{O+i}, -v{S+i}")
            for m in range(4): e(f"v_cvt_pk_bf16_f32 v{TB+(ks*3+u)*4+m}, v{S+2*m}, v{S+2*m+1}")
            if hook: hook(u, ks)

def pack_job(e, ldflag, stflag):
    e(f"s_mul_i32 s40, s35, {3*73728}\ns_add_u32 s36, s36, s40")
    e("s_mul_i32 s40, s34, s33\ns_mul_i32 s41, s35, 384\ns_add_u32 s40, s40, s41")
    e("""v_lshrrev_b32 v6, 3, v1
v_mul_lo_u32 v6, v6, s33
v_and_b32 v7, 7, v1
v_lshl_add_u32 v6, v7, 4, v6
s_lshl_b32 s41, s33, 3
s_mul_i32 s39, s39, s33
s_mul_i32 s42, s3, 12288""")
    for f in range(4):
        for it in range(3):
            e(f"s_add_u32 m0, s42, {it*4096 + f*1024 - it*128}")
            e(f"s_add_u32 s40, s40, s{39 if f == 2 else 41}" if (it == 0 and f) else "s_nop 0")
            e.vmop(f"buffer_load_dwordx4 v6, s[12:15], s40 offen offset:{128*it} {ldflag} lds", ("d", 0))
    e("""v_mul_lo_u32 v7, v2, s37
v_lshrrev_b32 v8, 2, v3
v_add_u32 v7, v7, v8
v_lshlrev_b32 v7, 7, v7
v_and_b32 v8, 3, v3
v_lshl_add_u32 v7, v8, 3, v7
v_add_u32 v7, s42, v7
s_lshl_b32 s43, s38, 7
v_add_u32 v8, s43, v7
v_add_u32 v9, 18432, v4
v_add_u32 v10, 36864, v4
v_add_u32 v11, 55296, v4""")
    nst_save = NST; globals()["NST"] = 1
    stamp(e, lvl=-1)
    for it in range(3):
        e.wait(vm=("d", it))
        if it == 0: stamp(e, lvl=-1)
        for tt in range(4):
            o = 16 + 16*it + 4*tt
            e.lgop(f"ds_read_b64_tr_b16 {vr(o,2)}, v7 offset:{it*4096 + 32*tt}", (it, tt))
            e.lgop(f"ds_read_b64_tr_b16 {vr(o+2,2)}, v8 offset:{it*4096 + 32*tt}", (it, tt))
        for tt in range(4):
            e.wait(lg=(it, tt))
            e.vmop(f"buffer_store_dwordx4 {vr(16 + 16*it + 4*tt)}, v{(4,9,10,11)[tt]}, s[8:11], s36 offen {stflag}", "st")
        if it < 2: e("s_add_u32 s36, s36, 73728")
    globals()["NST"] = nst_save
    e.vm = []; e.lg = []

def code_srd(e, d, label, nbytes):
    e(f"s_getpc_b64 s[{d}:{d+1}]\ns_add_u32 s{d}, s{d}, {label}@rel32@lo+4\ns_addc_u32 s{d+1}, s{d+1}, {label}@rel32@hi+12")
    e(f"s_and_b32 s{d+1}, s{d+1}, 0xffff\ns_mov_b32 s{d+2}, {nbytes}\ns_mov_b32 s{d+3}, 0x00020000")

def touch(e, srd, sreg, nbytes, vaddr, vd, stride=64):
    n = -(-nbytes // stride); i = 0
    while n > 0:
        if n < 64: e(f"s_mov_b32 exec_lo, {hex((1 << min(n,32)) - 1)}\ns_mov_b32 exec_hi, {hex((1 << max(n-32,0)) - 1)}")
        e(f"buffer_load_dword v{vd}, v{vaddr}, s[{srd}:{srd+3}], s{sreg} offen")
        n -= 64; i += 1
        if n > 0: e(f"s_add_u32 s{sreg}, s{sreg}, {64*stride}")
    e("s_mov_b64 exec, -1")

def k1(e):
    name = "k1_kernel"
    N3 = 216
    NS = 243
    Lend = pro(e, name, 256 + NS, x=True, extra=((20, 8), (22, 16), (24, 32), (26, 40), (28, 48), (30, 56), (18, 64)))
    if OPT.get("cpf0", 1):
        code_srd(e, 52, "code_begin", "k3_kernel-code_begin")
        e("s_lshr_b32 s44, s2, 3\ns_lshl_b32 s44, s44, 2\ns_add_u32 s44, s44, s3\ns_and_b32 s44, s44, 15\ns_lshl_b32 s44, s44, 10")
        e.vmop("buffer_load_dwordx4 v[196:199], v4, s[52:55], s44 offen", "c")
    if OPT.get("burn1"): burn(e, OPT["burn1"])
    Lside = e.label("side"); Lst = e.label("stats"); Lep = e.label("ep")
    ACC, BF, NB, TB = 16, 64, 3, 88
    def acc(h, u, t): return ACC + h*24 + (u*2+t)*4
    e(f"s_cmp_ge_u32 s2, 256\ns_cbranch_scc1 {Lside}")
    e("""s_bfe_u32 s34, s2, 0x20003
s_and_b32 s35, s2, 7
s_lshl_b32 s35, s35, 3
s_lshr_b32 s39, s2, 5
s_add_u32 s35, s35, s39
s_lshr_b32 s36, s35, 5
s_bfe_u32 s37, s35, 0x20003
s_and_b32 s38, s35, 7
s_lshl_b32 s40, s36, 5
s_lshr_b32 s41, s3, 1
s_lshl_b32 s41, s41, 4
s_add_u32 s40, s40, s41
s_lshl_b32 s41, s37, 2
s_add_u32 s40, s40, s41
s_lshl_b32 s40, s40, 5
s_lshl_b32 s41, s38, 2
s_add_u32 s40, s40, s41
v_and_b32 v6, 3, v3
v_lshlrev_b32 v6, 5, v6
v_lshrrev_b32 v7, 2, v3
v_add3_u32 v6, v6, v7, s40
v_mul_u32_u24 v7, 1152, v6
v_lshl_add_u32 v7, v2, 4, v7
s_and_b32 s41, s3, 1
s_mul_i32 s41, s41, 576
s_mul_i32 s42, s3, 9216
s_mul_i32 s44, s34, 9
s_mul_i32 s45, s3, 3
s_add_u32 s44, s44, s45""")
    if OPT.get("k1pre", 0): tgen(e, 44, TB, 16, (0,))
    pro2(e, x=True)
    for idx in range(9):
        e(f"s_add_u32 m0, s42, {idx*960}\ns_nop 0")
        e.vmop(f"buffer_load_dwordx4 v7, s[12:15], s41 offen offset:{64*idx} lds", "dma")
    e(f"s_cmp_eq_u32 s3, 3\ns_cbranch_scc1 {Lst}")
    vm_save = list(e.vm)
    tgen(e, 44, TB, 16, (1, 2) if OPT.get("k1pre", 0) else (0, 1, 2))
    e(f"""v_lshlrev_b32 v8, 12, v3
v_lshl_add_u32 v8, v2, 4, v8
s_lshl_b32 s50, s44, 16
s_lshr_b32 s51, s38, 2
s_lshl_b32 s51, s51, 1
s_add_u32 s51, s51, s36
s_lshl_b32 s51, s51, 10
s_add_u32 s50, s50, s51
s_lshl_b32 s51, s37, 8
s_add_u32 s50, s50, s51
s_and_b32 s51, s38, 3
s_lshl_b32 s51, s51, 6
s_add_u32 s50, s50, s51
s_add_u32 s50, s50, {UT}
v_lshlrev_b32 v9, 4, v2
v_lshlrev_b32 v10, 31, v3
v_or_b32 v10, 1.0, v10""")
    stamp(e)
    e.wait(vm="dma")
    e("s_barrier")
    stamp(e)
    def rd(ks):
        for t in range(2):
            e.lgop(f"ds_read_b128 {vr(BF + ((ks % NB)*2 + t)*4)}, v4 offset:{(t*18+ks)*1024}", ("b", ks))
    for ks in range(NB-1): rd(ks)
    for ks in range(18):
        if ks + NB - 1 < 18: rd(ks + NB - 1)
        e.wait(lg=("b", ks))
        for u in range(3):
            for t in range(2):
                d = vr(acc(ks // 9, u, t))
                e(f"{M16} {d}, {vr(BF + ((ks % NB)*2 + t)*4)}, {vr(TB + ((ks % 9)*3 + u)*4)}, {d if ks % 9 else 0}")
    stamp(e)
    e("s_barrier")
    stamp(e)
    e.lgop("ds_read_b128 v[76:79], v9 offset:36864", "r"); e.lgop("ds_read_b128 v[80:83], v9 offset:36928", "r")
    e("s_nop 3")
    for u in range(3):
        for t in range(2):
            for r in range(4): e(f"v_fmac_f32 v{acc(0,u,t)+r}, v{acc(1,u,t)+r}, v10")
        e.wait(lg="all")
        for t in range(2):
            for r in range(4): e(f"v_mul_f32 v{acc(0,u,t)+r}, v{acc(0,u,t)+r}, v{76+4*t+r}")
        o = BF + 4*u
        for t in range(2):
            e(f"v_cvt_pk_bf16_f32 v{o+2*t}, v{acc(0,u,t)}, v{acc(0,u,t)+1}\nv_cvt_pk_bf16_f32 v{o+2*t+1}, v{acc(0,u,t)+2}, v{acc(0,u,t)+3}")
        e.vmop(f"buffer_store_dwordx4 {vr(o)}, v8, s[8:11], s50 offen {OPT.get('sc_ut','')}", "st")
        if u < 2: e("s_add_u32 s50, s50, 65536")
    stamp(e)
    if OPT.get("touch34"):
        ts = OPT.get("tstride", 64)
        e.srd(48, 28, 5308416); e.srd(52, 30, 5308416)
        e(f"v_mul_u32_u24 v11, {ts}, v1\ns_mul_i32 s38, s2, 3\ns_add_u32 s38, s38, s3\ns_mul_i32 s38, s38, 6912\ns_mov_b32 s39, s38")
        dump(e, 1)
        touch(e, 48, 38, 6912, 11, 16, ts); touch(e, 52, 39, 6912, 11, 20, ts)
        e("s_endpgm")
    e(f"s_branch {Lep}")
    e(f"{Lst}:")
    e.vm = vm_save; e.lg = []
    if OPT.get("cpf", 1):
        code_srd(e, 52, "code_begin", "code_end-code_begin")
        e("s_lshr_b32 s44, s2, 3\ns_mul_i32 s44, s44, 3072")
        for i in range(3): e.vmop(f"buffer_load_dwordx4 v[{100+4*i}:{103+4*i}], v4, s[52:55], s44 offen offset:{1024*i}", "c")
    if OPT.get("tlb"):
        st_ = OPT["tlb"]
        e.srd(48, 28, 5308416); e.srd(52, 30, 5308416); e.srd(56, 18, A_)
        e(f"v_lshlrev_b32 v11, {st_}, v1")
        n = -(-(FLG + FLG_SZ) >> st_)
        for i in range(-(-n // 64)):
            e(f"s_mov_b32 s44, {i << (st_ + 6)}")
            e.vmop("buffer_load_dword v44, v11, s[8:11], s44 offen", "t")
        for sr in (48, 52, 56): e.vmop(f"buffer_load_dword v44, v11, s[{sr}:{sr+3}], 0 offen", "t")
    for i in range(4): e(f"v_mov_b32 v{12+i}, 0x3f803f80")
    e("v_lshrrev_b32 v8, 2, v3\nv_and_b32 v9, 3, v3")
    e.wait(vm="dma")
    e("s_barrier")
    NR = 6
    def rds(f): e.lgop(f"ds_read_b128 {vr(64+4*(f%NR))}, v4 offset:{f*1024}", f)
    for f in range(NR-1): rds(f)
    for f in range(36):
        if f + NR - 1 < 36: rds(f + NR - 1)
        e.wait(lg=f)
        t = f // 18; x = vr(64 + 4*(f % NR))
        e(f"{M16} {vr(16+8*t)}, {x}, v[12:15], {vr(16+8*t) if f % 18 else 0}")
        e(f"{M16} {vr(20+8*t)}, {x}, {x}, {vr(20+8*t) if f % 18 else 0}")
    e("v_cmp_eq_u32 s[40:41], 1, v9\nv_cmp_eq_u32 s[42:43], 2, v9\nv_cmp_eq_u32 s[46:47], 3, v9\nv_cmp_eq_u32 s[48:49], v8, v2\ns_nop 4")
    for b in (16, 20, 24, 28):
        e(f"v_cndmask_b32 v{b}, v{b}, v{b+1}, s[40:41]\nv_cndmask_b32 v{b}, v{b}, v{b+2}, s[42:43]\nv_cndmask_b32 v{b}, v{b}, v{b+3}, s[46:47]")
    e(f"v_mov_b32 v32, {fhex(1/576)}")
    for t in range(2):
        b = 16 + 8*t
        e(f"""v_mul_f32 v{b}, v32, v{b}
v_mul_f32 v{b+1}, v{b}, v{b}
v_fma_f32 v{b+4}, v{b+4}, v32, -v{b+1}
v_max_f32 v{b+4}, 0, v{b+4}
v_add_f32 v{b+4}, {fhex(EPS)}, v{b+4}
v_rsq_f32 v{b+4}, v{b+4}""")
    Lns = e.label("nost")
    e(f"""v_lshlrev_b32 v33, 2, v3
s_lshl_b32 s45, s35, 7
s_add_u32 s45, s45, {MX}
s_mov_b64 exec, s[48:49]
ds_write_b32 v33, v20 offset:36864
ds_write_b32 v33, v28 offset:36928
s_cmp_lg_u32 s34, 0
s_cbranch_scc1 {Lns}
buffer_store_dword v16, v33, s[8:11], s45 offen
buffer_store_dword v24, v33, s[8:11], s45 offen offset:64
{Lns}:
s_waitcnt lgkmcnt(0)
s_barrier
s_branch {Lep}""")
    e(f"{Lside}:")
    e.vm = []; e.lg = []
    Lwt, Lrm, L2, Lgo = [e.label(x) for x in ("wt", "rm", "w2", "go")]
    L3, Lgo2, Lpk, Lw1 = e.label("w3"), e.label("go2"), e.label("pk"), e.label("wv1")
    e(f"""s_sub_u32 s32, s2, 256
s_cmp_eq_u32 s3, 0
s_cbranch_scc1 {Lpk}
s_cmp_eq_u32 s3, 1
s_cbranch_scc1 {Lw1}
s_mul_i32 s33, s3, 243
s_add_u32 s32, s33, s32
s_sub_u32 s32, s32, 486
s_waitcnt lgkmcnt(0)
s_branch {Lwt}
{Lw1}:
s_add_u32 s32, s32, 243
s_cmp_lt_u32 s32, 324
s_cbranch_scc1 {Lpk}
s_waitcnt lgkmcnt(0)
s_sub_u32 s32, s32, 324
s_cmp_lt_u32 s32, 72
s_cbranch_scc1 {Lrm}
s_add_u32 s32, s32, {486 - 72}
s_branch {Lwt}
{Lpk}:""")
    pro2(e)
    e(f"s_cmp_lt_u32 s32, 216\ns_cbranch_scc1 {L3}\ns_sub_u32 s32, s32, 216\ns_cmp_ge_u32 s32, 54\ns_cbranch_scc1 {L2}")
    e.srd(12, 24, 663552)
    e(f"s_mov_b32 s39, {W1P}\ns_branch {Lgo}\n{L2}:\ns_sub_u32 s32, s32, 54")
    e.srd(12, 26, 663552)
    e(f"s_mov_b32 s39, {W2P}\n{Lgo}:")
    sdiv(e, 3, 34, 35, 32, 40)
    e("s_mov_b32 s33, 1152\ns_lshl_b32 s36, s34, 10\ns_add_u32 s36, s36, s39\ns_mov_b32 s37, 8\ns_mov_b32 s38, 4\ns_mov_b32 s39, 8\ns_lshl_b32 s34, s34, 5")
    pack_job(e, OPT.get("ld_p12", ""), OPT.get("sc_p12", ""))
    e(f"s_branch {Lep}")
    if N3:
        e(f"{L3}:")
        e.srd(12, 28, 5308416); sdiv(e, 24, 34, 35, 32, 40)
        e(f"s_mov_b32 s33, 9216\ns_lshl_b32 s36, s34, 10\ns_add_u32 s36, s36, {W3P}\ns_mov_b32 s37, 8\ns_mov_b32 s38, 4\ns_mov_b32 s39, 8\ns_lshl_b32 s34, s34, 5")
        pack_job(e, OPT.get("ld_pk", "nt"), OPT.get("sc_pk", "sc1"))
        e(f"s_branch {Lep}")
    e(f"{Lrm}:")
    e.srd(8, 4, WS_SIZE)
    e.srd(12, 26, 663552)
    e("""v_lshrrev_b32 v6, 3, v1
v_mul_u32_u24 v7, 1152, v6
v_and_b32 v8, 7, v1
v_lshl_add_u32 v7, v8, 4, v7
s_mul_i32 s33, s32, 9216
s_mov_b32 s34, 0x3f803f80
v_mov_b32 v9, 0""")
    for m in range(9): e.vmop(f"buffer_load_dwordx4 {vr(16+4*m)}, v7, s[12:15], s33 offen offset:{128*m}", m)
    Lnz = e.label("nz")
    e(f"s_cmp_ge_u32 s32, 72\ns_cbranch_scc1 {Lnz}\nv_mov_b32 v56, 0\nv_mov_b32 v57, 0\nv_mov_b32 v58, 0\nv_mov_b32 v59, 0\ns_lshl_b32 s38, s32, 10\ns_add_u32 s38, s38, {FLG}")
    e(f"buffer_store_dwordx4 v[56:59], v4, s[8:11], s38 offen\n{Lnz}:")
    e.wait(vm="all")
    for j in range(36): e(f"v_dot2_f32_bf16 v9, v{16+j}, s34, v9")
    e(f"""s_nop 3
v_add_f32_dpp v9, v9, v9 quad_perm:[1,0,3,2] row_mask:0xf bank_mask:0xf
s_nop 1
v_add_f32_dpp v9, v9, v9 quad_perm:[2,3,0,1] row_mask:0xf bank_mask:0xf
s_nop 1
v_add_f32_dpp v9, v9, v9 row_half_mirror row_mask:0xf bank_mask:0xf
v_mul_f32 v9, {fhex(1/576)}, v9
v_cvt_pk_bf16_f32 v9, v9, v9
v_lshlrev_b32 v6, 1, v6
s_lshl_b32 s33, s32, 8
s_add_u32 s33, s33, {W2P + 36*18432}
v_cmp_eq_u32 vcc, 0, v8
s_nop 1
s_and_saveexec_b64 s[36:37], vcc
buffer_store_short v9, v6, s[8:11], s33 offen
s_branch {Lep}""")
    e(f"{Lwt}:")
    e.srd(8, 4, WS_SIZE)
    sdiv(e, 9, 33, 34, 32, 40)
    e("""s_lshr_b32 s35, s33, 4
s_and_b32 s33, s33, 15
v_lshrrev_b32 v6, 5, v1
s_lshl_b32 s33, s33, 2
v_add_u32 v6, s33, v6
v_and_b32 v7, 31, v1
s_lshl_b32 s34, s34, 5
v_add_u32 v7, s34, v7
v_mul_u32_u24 v8, 578, v6
v_lshl_add_u32 v8, v7, 1, v8
v_add_u32 v8, 2, v8
s_mul_i32 s36, s35, 147968""")
    e.srd(12, 20, 1183744); e.srd(16, 22, 1183744)
    for gg in range(2):
        for tk in range(2):
            for r in range(4):
                i = gg*16 + tk*4 + r
                e(f"s_add_u32 s37, s36, {36992*(16*tk+r) + 1156*gg}")
                e.vmop(f"buffer_load_ushort v{16+i}, v8, s[12:15], s37 offen", gg)
                e.vmop(f"buffer_load_ushort v{24+i}, v8, s[16:19], s37 offen", gg)
    e(f"""v_lshlrev_b32 v9, 13, v7
v_lshrrev_b32 v10, 4, v6
v_lshl_add_u32 v9, v10, 11, v9
v_and_b32 v10, 15, v6
v_lshl_add_u32 v9, v10, 5, v9
s_lshl_b32 s36, s35, 9
s_add_u32 s36, s36, {WT}""")
    for gg in range(2):
        e.wait(vm=gg)
        for i in range(8): e(f"v_lshl_or_b32 v{16+16*gg+i}, v{24+16*gg+i}, 16, v{16+16*gg+i}")
        e.vmop(f"buffer_store_dwordx4 {vr(16+16*gg)}, v9, s[8:11], s36 offen offset:{64*gg} {OPT.get('sc_wt','')}", "st")
        e.vmop(f"buffer_store_dwordx4 {vr(20+16*gg)}, v9, s[8:11], s36 offen offset:{64*gg+16} {OPT.get('sc_wt','')}", "st")
    NC = OPT.get("chain", 0)
    if NC:
        e(f"s_cmp_ge_u32 s32, {NC}\ns_cbranch_scc1 {Lep}")
        e.srd(12, 28, 5308416); sdiv(e, 24, 34, 35, 32, 40)
        e(f"s_mov_b32 s33, 9216\ns_lshl_b32 s36, s34, 10\ns_add_u32 s36, s36, {W3P}\ns_mov_b32 s37, 8\ns_mov_b32 s38, 4\ns_mov_b32 s39, 8\ns_lshl_b32 s34, s34, 5")
        pack_job(e, OPT.get("ld_pk", "nt"), OPT.get("sc_pk", "sc1"))
    e(f"{Lep}:")
    epi(e, name, Lend, 1, 200, 200)
    e.add_launch(name, 256 + NS, lds=49152)

def p2x2(e):
    e(f"""s_lshl_b32 s35, s34, 13
s_add_u32 s35, s35, 4096
s_sub_u32 s36, {575*4096}, s35
s_add_u32 s36, s36, 4096
s_cmp_eq_u32 s34, 143
s_cselect_b32 s14, 0, {WS_SIZE}
s_cselect_b32 s38, 0, -1
s_sub_u32 s37, s36, 4096
s_and_b32 s45, s37, s38
s_lshl_b32 s39, s34, 14
s_lshl_b32 s40, s3, 11
s_add_u32 s39, s39, s40
s_add_u32 s39, s39, {WT}
s_add_u32 s46, s35, 4096
s_add_u32 s47, s39, 8192
v_lshlrev_b32 v6, 5, v1
s_cmp_eq_u32 s3, 1
s_cselect_b32 s48, s36, s35
s_cmp_eq_u32 s3, 2
s_cselect_b32 s48, s46, s48
s_cmp_eq_u32 s3, 3
s_cselect_b32 s48, s37, s48
s_cselect_b32 s14, s14, {WS_SIZE}
s_lshl_b32 s49, s3, 12
s_add_u32 m0, s49, 16384""")
    pro2(e)
    e("s_mov_b32 s12, s8\ns_mov_b32 s13, s9\ns_mov_b32 s15, 0x00020000")
    P, Q, WV, RE, IM, PR, PI = (16, 168), (32, 184), (48, 200), (152, 208), (160, 216), (8, 224), (12, 228)
    for f in range(4): e.vmop(f"buffer_load_dwordx4 v4, s[12:15], s48 offen offset:{f*1024} lds", "d")
    for c in range(2):
        e.vmop(f"buffer_load_dwordx4 {vr(WV[c])}, v6, s[8:11], s{(39,47)[c]} offen", ("w", c))
        e.vmop(f"buffer_load_dwordx4 {vr(WV[c]+4)}, v6, s[8:11], s{(39,47)[c]} offen offset:16", ("w", c))
    C64, S64, N64 = 56, 64, 72
    C32, S32, N32 = 80, 88, 96
    TC1, TS1, TC2, TS2 = 104, 112, 120, 128
    TMP = 136
    e("""s_lshl_b32 s40, s3, 4
v_add_u32 v7, s40, v3
v_cvt_f32_u32 v7, v7
v_lshlrev_b32 v5, 2, v2
v_cvt_f32_u32 v5, v5
v_cvt_f32_u32 v6, v3
s_mov_b32 s41, 0x80008000
s_brev_b32 s42, 1
v_and_b32 v0, 1, v3
v_mul_lo_u32 v0, v0, s41""")
    e(f"v_mul_f32 v8, {fhex(1/64)}, v7\nv_mul_f32 v9, v5, v8")
    for i in range(8): e(f"v_fmamk_f32 v{TMP+i}, v8, {fhex(float(16*(i>>2) + (i&3)))}, v9")
    for i in range(8): e(f"v_fract_f32 v{TMP+i}, v{TMP+i}")
    for i in range(8): e(f"v_sin_f32 v{TMP+8+i}, v{TMP+i}")
    for i in range(8): e(f"v_cos_f32 v{TMP+i}, v{TMP+i}")
    for m in range(4): e(f"v_cvt_pk_bf16_f32 v{S64+m}, v{TMP+8+2*m}, v{TMP+9+2*m}")
    for m in range(4): e(f"v_cvt_pk_bf16_f32 v{C64+m}, v{TMP+2*m}, v{TMP+1+2*m}")
    for m in range(4): e(f"v_xor_b32 v{N64+m}, s41, v{S64+m}")
    for b in (C64, S64, N64):
        for m in range(4): e(f"v_xor_b32 v{b+4+m}, v0, v{b+m}")
    tw1 = [f"v_mul_f32 v8, {fhex(1/2048)}, v7", "v_mul_f32 v9, v5, v8"]
    tw1 += [f"v_fmamk_f32 v{TC1+i}, v8, {fhex(float(16*(i>>2)+(i&3)))}, v9" for i in range(8)]
    tw1 += [f"v_sin_f32 v{TS1+i}, v{TC1+i}" for i in range(8)] + [f"v_cos_f32 v{TC1+i}, v{TC1+i}" for i in range(8)]
    for l in tw1: e(l)
    m32 = [f"v_mul_f32 v8, {fhex(1/32)}, v6", "v_mul_f32 v9, v5, v8"]
    m32 += [f"v_fmamk_f32 v{TC2+i}, v8, {fhex(float(i))}, v9" for i in range(4)]
    m32 += [f"v_fract_f32 v{TC2+i}, v{TC2+i}" for i in range(4)]
    m32 += [f"v_sin_f32 v{TC2+4+i}, v{TC2+i}" for i in range(4)] + [f"v_cos_f32 v{TC2+i}, v{TC2+i}" for i in range(4)]
    m32 += [f"v_cvt_pk_bf16_f32 v{S32+m}, v{TC2+4+2*m}, v{TC2+5+2*m}" for m in range(2)]
    m32 += [f"v_cvt_pk_bf16_f32 v{C32+m}, v{TC2+2*m}, v{TC2+1+2*m}" for m in range(2)]
    m32 += [f"v_xor_b32 v{b+2+m}, v0, v{b+m}" for b in (C32, S32) for m in range(2)]
    m32 += [f"v_xor_b32 v{b+4+m}, s42, v{b+m}" for b in (C32, S32) for m in range(4)]
    m32 += [f"v_xor_b32 v{N32+m}, s41, v{S32+m}" for m in range(8)]
    tw2 = ["v_cvt_f32_u32 v0, s40", "v_add_f32 v0, v0, v5", f"v_mul_f32 v7, {fhex(1/2048)}, v6", f"v_add_f32 v5, {fhex(16/2048)}, v7",
           "v_mul_f32 v6, v0, v7", "v_mul_f32 v0, v0, v5"]
    tw2 += [f"v_fmamk_f32 v{TC2+r}, v7, {fhex(float(r))}, v6" for r in range(4)]
    tw2 += [f"v_fmamk_f32 v{TC2+4+r}, v5, {fhex(float(r))}, v0" for r in range(4)]
    tw2 += [f"v_sin_f32 v{TS2+i}, v{TC2+i}" for i in range(8)] + [f"v_cos_f32 v{TC2+i}, v{TC2+i}" for i in range(8)]
    def steps(lst, fill=(), per=2, tail=0):
        fill = list(fill)
        n = len(lst[0][1])
        for k in range(n):
            for d, ch in lst:
                A, B = ch[k]
                e(f"{M16} {vr(d)}, {vr(A)}, {vr(B)}, {vr(d) if k else 0}")
                for _ in range(per):
                    if fill: e(fill.pop(0))
        nleft = len(fill)
        for l in fill: e(l)
        if nleft < tail: e(f"s_nop {tail - nleft - 1}")
    def cmul(c, cre, sim, sign):
        L = [f"v_mul_f32 v{TMP+i}, v{RE[c]+i}, v{cre+i}" for i in range(8)]
        L += [f"v_mul_f32 v{TMP+8+i}, v{IM[c]+i}, v{cre+i}" for i in range(8)]
        L += [f"v_fma_f32 v{TMP+i}, {'-' if sign > 0 else ''}v{IM[c]+i}, v{sim+i}, v{TMP+i}" for i in range(8)]
        L += [f"v_fma_f32 v{TMP+8+i}, {'' if sign > 0 else '-'}v{RE[c]+i}, v{sim+i}, v{TMP+8+i}" for i in range(8)]
        L += [f"v_cvt_pk_bf16_f32 v{PR[c]+m}, v{TMP+2*m}, v{TMP+2*m+1}" for m in range(4)]
        L += [f"v_cvt_pk_bf16_f32 v{PI[c]+m}, v{TMP+8+2*m}, v{TMP+9+2*m}" for m in range(4)]
        return L
    def MA(c, s1, s2): return ([(RE[c]+4*ts, [(P[c]+8*ts, C64), (Q[c]+8*ts, s1), (P[c]+8*ts+4, C64+4), (Q[c]+8*ts+4, s1+4)]) for ts in range(2)] +
                               [(IM[c]+4*ts, [(Q[c]+8*ts, C64), (P[c]+8*ts, s2), (Q[c]+8*ts+4, C64+4), (P[c]+8*ts+4, s2+4)]) for ts in range(2)])
    def MB(c): return ([(RE[c]+4*tk, [(C32+4*tk, PR[c]), (S32+4*tk, PI[c])]) for tk in range(2)] + [(IM[c]+4*tk, [(C32+4*tk, PI[c]), (N32+4*tk, PR[c])]) for tk in range(2)])
    def MC(c): return ([(RE[c]+4*ts, [(PR[c], C32+4*ts), (PI[c], N32+4*ts)]) for ts in range(2)] + [(IM[c]+4*ts, [(PI[c], C32+4*ts), (PR[c], S32+4*ts)]) for ts in range(2)])
    def wun(c):
        L = []
        for i in range(8): L += [f"v_lshlrev_b32 v{TC1+i}, 16, v{WV[c]+i}", f"v_and_b32 v{TS1+i}, 0xffff0000, v{WV[c]+i}"]
        return L
    stamp(e, lvl=6)
    for l in m32: e(l)
    stamp(e, lvl=7)
    e.wait(vm="d")
    e("s_barrier")
    for c in range(2):
        for js in range(2):
            for ts in range(2):
                f = ts*2 + js
                e.lgop(f"ds_read_b128 {vr(P[c]+4*f)}, v4 offset:{16384 + c*8192 + f*1024}", ("u", c))
                e.lgop(f"ds_read_b128 {vr(Q[c]+4*f)}, v4 offset:{16384 + c*8192 + 4096 + f*1024}", ("u", c))
    stamp(e, lvl=7)
    e.wait(lg=("u", 0))
    steps(MA(0, S64, N64), tw2, 2, 8)
    stamp(e, lvl=7)
    e.wait(lg=("u", 1))
    stamp(e, lvl=7)
    steps(MA(1, S64, N64), cmul(0, TC1, TS1, -1), 2, 8)
    e("s_nop 0")
    steps(MB(0), cmul(1, TC1, TS1, -1), 2, 8)
    stamp(e, lvl=7)
    e.wait(vm=("w", 1))
    stamp(e, lvl=7)
    steps(MB(1), wun(0) + cmul(0, TC1, TS1, +1), 2, 8)
    e("s_lshr_b32 s43, s3, 1\ns_lshl_b32 s43, s43, 10")
    steps(MC(0), wun(1) + cmul(1, TC1, TS1, +1), 2, 8)
    e("s_and_b32 s44, s3, 1\ns_lshl_b32 s44, s44, 3\ns_add_u32 s43, s43, s44")
    e("v_add_u32 v5, s43, v4")
    steps(MC(1), cmul(0, TC2, TS2, +1), 2, 8)
    stamp(e, lvl=7)
    for c in range(2):
        for l in (cmul(c, TC2, TS2, +1) if c else []): e(l)
        for ts in range(2):
            e.lgop(f"ds_write_b64 v5, {vr(PR[c]+2*ts,2)} offset:{c*8192 + (ts*2+0)*2048}", "x")
            e.lgop(f"ds_write_b64 v5, {vr(PI[c]+2*ts,2)} offset:{c*8192 + (ts*2+1)*2048}", "x")
    e(f"""s_lshl_b32 s40, s3, 9
v_lshrrev_b32 v6, 1, v3
v_lshlrev_b32 v6, 6, v6
v_and_b32 v7, 1, v3
v_lshl_add_u32 v6, v7, 11, v6
v_lshl_add_u32 v6, v2, 4, v6
v_add_u32 v6, s40, v6
s_add_u32 s35, s35, {VT}
s_add_u32 s36, s36, {VT}
s_add_u32 s46, s46, {VT}
s_add_u32 s45, s45, {VT}""")
    e.wait(lg="all")
    stamp(e, lvl=7)
    e("s_barrier")
    stamp(e, lvl=6); stamp(e, lvl=7)
    for c in range(2):
        for js in range(2):
            for ts in range(2):
                e.lgop(f"ds_read_b128 {vr(P[c]+8*ts+4*js)}, v4 offset:{c*8192 + ((ts*2+0)*2+js)*1024}", ("y", c))
                e.lgop(f"ds_read_b128 {vr(Q[c]+8*ts+4*js)}, v4 offset:{c*8192 + ((ts*2+1)*2+js)*1024}", ("y", c))
    def fin(c):
        L = [f"v_cvt_pk_bf16_f32 v{PR[c]+m}, v{RE[c]+2*m}, v{RE[c]+2*m+1}" for m in range(4)]
        L += [f"buffer_store_dwordx4 {vr(PR[c])}, v6, s[8:11], s{(35,46)[c]} offen sc1"]
        L += [f"v_cvt_pk_bf16_f32 v{PI[c]+m}, v{IM[c]+2*m}, v{IM[c]+2*m+1}" for m in range(4)]
        if c: L += [f"v_and_b32 v{PI[c]+m}, s38, v{PI[c]+m}" for m in range(4)]
        L += [f"buffer_store_dwordx4 {vr(PI[c])}, v6, s[8:11], s{(36,45)[c]} offen sc1"]
        return L
    e.wait(lg=("y", 0))
    steps(MA(0, N64, S64))
    e.wait(lg=("y", 1))
    steps(MA(1, N64, S64), ["s_nop 0"]*4 + fin(0), 1, 8)
    for l in fin(1): e(l)
    stamp(e, lvl=7)
    e.vm = []; e.lg = []

NPF = 32
def k3(e):
    name = "k3_kernel"
    Lend = pro(e, name, 256, x=True, extra=((22, 64), (20, 56), (18, 48)))
    W4K3 = 0
    ACC, BF, NB, HCR, TB, XR = 16, 64, 3, 40, 104, 212
    XV, AC, TT, KC, TMP, PK, RING, BASE = 16, 48, 64, 80, 92, 96, 104, 232
    DA = 244
    def acc(u, t): return ACC + (u*2+t)*4
    def wfrag(ph, ks, u):
        if ph == "T": return vr(TB + ((ks % 9)*3 + u)*4)
        f = ks*3 + u
        if ph == "W1": return vr(4*f, 4, "a")
        if f < 32: return vr(104 + 4*f)
        if f < 42: return vr(216 + 4*(f-32), 4, "a")
        return vr(4*(f-42), 4, "a")
    if OPT.get("burn3"): burn(e, OPT["burn3"])
    mp = OPT.get("map", 3)
    e("s_lshr_b32 s30, s2, 3\ns_and_b32 s31, s2, 7")
    if mp == 2:
        e("s_lshl_b32 s26, s31, 2\ns_lshr_b32 s32, s30, 3\ns_add_u32 s26, s26, s32\ns_and_b32 s24, s30, 3\ns_bfe_u32 s29, s30, 0x10002")
    elif mp == 3:
        e("s_lshr_b32 s26, s31, 1\ns_lshl_b32 s26, s26, 3\ns_lshr_b32 s32, s30, 2\ns_add_u32 s26, s26, s32\ns_and_b32 s24, s30, 3\ns_and_b32 s29, s31, 1")
    elif mp == 4:
        e("s_lshr_b32 s26, s31, 2\ns_lshl_b32 s26, s26, 4\ns_lshr_b32 s32, s30, 1\ns_add_u32 s26, s26, s32\ns_and_b32 s24, s31, 2\ns_and_b32 s32, s30, 1\ns_add_u32 s24, s24, s32\ns_and_b32 s29, s31, 1")
    elif mp == 1:
        e("s_mov_b32 s26, s30\ns_lshr_b32 s24, s31, 1\ns_and_b32 s29, s31, 1")
    e("""s_lshl_b32 s25, s26, 1
s_add_u32 s25, s25, s29
s_mul_i32 s27, s24, 9
s_mul_i32 s32, s3, 3
s_add_u32 s27, s27, s32
s_lshl_b32 s28, s29, 2
s_add_u32 s28, s28, s24""")
    HB = 73728
    def setup6():
        e(f"""s_mul_i32 s40, s26, 73728
s_mul_i32 s32, s3, 18432
s_add_u32 s40, s40, s32
s_add_u32 s40, s40, {X6}
v_lshlrev_b32 v6, 3, v3
v_mul_u32_u24 v7, 384, v2
v_add_u32 v6, v6, v7
s_lshl_b32 s37, s26, 12
s_add_u32 s37, s37, {SQ1}
s_lshr_b32 s33, s3, 1
s_lshl_b32 s33, s33, 10
s_and_b32 s36, s3, 1
s_lshl_b32 s36, s36, 3
s_add_u32 s33, s33, s36
s_add_u32 s33, s33, {HB}
v_add_u32 v8, s33, v4
v_add_u32 v9, 36864, v8
v_add_u32 v12, {HB}, v4
v_add_u32 v13, {HB+36864}, v4
v_add_u32 v14, s32, v4
s_lshl_b32 s34, s26, 2
s_add_u32 s34, s34, s3
s_mul_i32 s34, s34, 18432
s_mul_i32 s35, s28, {A_}
s_add_u32 s34, s34, s35
s_add_u32 s34, s34, {PART}""")
    NT = 2*162
    ORD = [0, 3, 6, 1, 4, 7, 2, 5, 8]
    def wload6(n):
        out = []
        if n < 162:
            if n % 4 == 0 and n: out.append(("s", "s_add_u32 s30, s30, 4096"))
            out.append(("v", f"buffer_load_dwordx4 {vr(RING+4*(n % NPF))}, v4, s[8:11], s30 offen offset:{(n&3)*1024} {OPT.get('ld6', 'sc1')}", ("w", n)))
        else:
            b, ks = divmod(n - 162, 18)
            if ks % 4 == 0: out.append(("s", f"s_add_u32 s30, s31, {ORD[b]*18432 + ks*1024}"))
            out.append(("v", f"buffer_load_dwordx4 {vr(RING+4*(n % NPF))}, v4, s[8:11], s30 offen offset:{(ks&3)*1024} {OPT.get('ld6', 'sc1')}", ("w", n)))
        return out
    def emit(x):
        if x[0] == "s": e(x[1])
        elif x[0] == "v": e.vmop(x[1], x[2])
        elif x[0] == "l": e.lgop(x[1], x[2])
        elif x[0] == "wv": e.wait(vm=x[1])
        elif x[0] == "wl": e.wait(lg=x[1])
        elif x[0] == "st": stamp(e, lvl=x[1])
    Lpack, Ljoin = e.label("pack"), e.label("join")
    e(f"s_cmp_ge_u32 s30, 18\ns_cbranch_scc1 {Lpack}\ns_lshl_b32 s34, s30, 3\ns_add_u32 s34, s34, s31\ns_mov_b32 s58, s34\ns_mov_b32 s56, 255\ns_mov_b32 s57, 0")
    p2x2(e)
    e(f"""s_branch {Ljoin}
{Lpack}:
s_sub_u32 s56, s30, 18
s_lshl_b32 s56, s56, 3
s_add_u32 s56, s56, s31""")
    e("""s_cmp_lt_u32 s3, 3
s_cselect_b32 s57, 1, 0
s_cmp_ge_u32 s56, 108
s_cselect_b32 s57, 0, s57
v_lshrrev_b32 v236, 3, v1
v_and_b32 v237, 7, v1
v_lshrrev_b32 v238, 2, v3""")
    pro2(e)
    e(f"s_cmp_eq_u32 s57, 0\ns_cbranch_scc1 {Ljoin}\ns_mul_i32 s42, s3, 24576\ns_add_u32 s42, s42, 36864\ns_mov_b32 s14, 5308416\ns_mov_b32 s15, 0x00020000")
    for k in range(2):
        e(f"""s_lshl_b32 s34, s3, 1
s_add_u32 s34, s34, {k}
s_cmp_ge_u32 s34, 3
s_cselect_b32 s35, 1, 0
s_cselect_b32 s36, 3, 0
s_sub_u32 s44, s34, s36
s_lshl_b32 s34, s56, 1
s_add_u32 s34, s34, s35""")
        sdiv(e, 27, 59, 43, 34, 40)
        e(f"""s_cmp_ge_u32 s43, 9
s_cselect_b32 s12, s20, s18
s_cselect_b32 s13, s21, s19
s_mov_b32 s33, 9216
s_cselect_b32 s33, 1152, s33
s_cselect_b32 s37, 4, 8
s_cselect_b32 s38, 16, 4
s_cselect_b32 s39, 136, 8
s_cselect_b32 s36, -9, 9
s_mov_b32 s{50+k}, {W3P}
s_cselect_b32 s{50+k}, {W4P}, s{50+k}
s_cselect_b32 s47, 1, 0
s_and_b32 s13, s13, 0xffff
s_add_u32 s43, s43, s36
s_mul_i32 s40, s59, 663552
s_add_u32 s{50+k}, s{50+k}, s40
s_lshl_b32 s40, s43, 10
s_add_u32 s{50+k}, s{50+k}, s40
s_mul_i32 s40, s44, {3*73728}
s_add_u32 s{50+k}, s{50+k}, s40
s_and_b32 s40, s43, 1
s_mul_i32 s40, s40, 288
s_lshr_b32 s46, s43, 1
s_lshl_b32 s46, s46, 4
s_add_u32 s40, s40, s46
s_mul_i32 s46, s59, 576
s_add_u32 s40, s40, s46
s_mul_i32 s40, s40, 1152
s_mul_i32 s46, s43, {32*9216}
s_mul_i32 s48, s59, 1152
s_add_u32 s46, s46, s48
s_cmp_eq_u32 s47, 1
s_cselect_b32 s40, s40, s46
s_mul_i32 s46, s44, 384
s_add_u32 s40, s40, s46
v_mul_lo_u32 v235, v236, s33
v_lshl_add_u32 v235, v237, 4, v235
s_lshl_b32 s41, s33, 3
s_mul_i32 s39, s39, s33
v_mul_lo_u32 v{240+2*k}, v2, s37
v_add_u32 v{240+2*k}, v{240+2*k}, v238
v_lshlrev_b32 v{240+2*k}, 7, v{240+2*k}
v_and_b32 v{241+2*k}, 3, v3
v_lshl_add_u32 v{240+2*k}, v{241+2*k}, 3, v{240+2*k}
v_add_u32 v{240+2*k}, s42, v{240+2*k}
s_lshl_b32 s43, s38, 7
v_add_u32 v{241+2*k}, s43, v{240+2*k}""")
        for f in range(4):
            for it in range(3):
                e(f"s_add_u32 m0, s42, {k*12288 + it*4096 + f*1024 - it*128}")
                e(f"s_add_u32 s40, s40, s{39 if f == 2 else 41}" if (it == 0 and f) else "s_nop 0")
                e(f"buffer_load_dwordx4 v235, s[12:15], s40 offen offset:{128*it} {OPT.get('ld_pk','nt')} lds")
    e(f"{Ljoin}:")
    e.vm = ["pk"]*24; e.lg = []
    def p2_signal():
        Ld = e.label("sigdone")
        e(f"""s_cmp_lg_u32 s56, 255
s_cbranch_scc1 {Ld}
s_waitcnt vmcnt(0)
s_barrier
s_cmp_lg_u32 s3, 3
s_cbranch_scc1 {Ld}
s_lshl_b32 s46, s58, 2
s_add_u32 s46, s46, {FLG2}
v_mov_b32 v250, 1
v_mul_u32_u24 v251, 640, v1
s_mov_b32 exec_hi, 0
buffer_store_dword v250, v251, s[8:11], s46 offen sc1
s_mov_b64 exec, -1
{Ld}:""")
        stamp(e, lvl=6)
    def pack_finish():
        Ld = e.label("pkdone")
        e(f"s_cmp_eq_u32 s56, 255\ns_cbranch_scc1 {Ld}\nv_add_u32 v239, 55296, v4")
        e.wait(vm="pk")
        if OPT.get("lbar", 1): e("s_barrier")
        e(f"s_cmp_eq_u32 s57, 0\ns_cbranch_scc1 {Ld}")
        def rd(i):
            k, it = divmod(i, 3)
            for tt in range(4):
                o = 16*i + 4*tt; off = k*12288 + it*4096 + 32*tt
                e.lgop(f"ds_read_b64_tr_b16 {vr(o,2,'a')}, v{240+2*k} offset:{off}", (i, tt))
                e.lgop(f"ds_read_b64_tr_b16 {vr(o+2,2,'a')}, v{241+2*k} offset:{off}", (i, tt))
        rd(0)
        for i in range(6):
            if i < 5: rd(i + 1)
            for tt in range(4):
                e.wait(lg=(i, tt))
                e.vmop(f"buffer_store_dwordx4 {vr(16*i + 4*tt, 4, 'a')}, v{(4,10,11,239)[tt]}, s[8:11], s{50 + i//3} offen sc1", "pst")
            if i % 3 < 2: e(f"s_add_u32 s{50 + i//3}, s{50 + i//3}, 73728")
        e(f"{Ld}:")
    e.srd(12, 6, A_)
    e(f"""v_lshrrev_b32 v6, 2, v1
v_lshlrev_b32 v6, 12, v6
v_lshrrev_b32 v7, 4, v1
v_and_b32 v7, 2, v7
v_and_b32 v5, 3, v1
v_xor_b32 v7, v7, v5
v_lshl_add_u32 v6, v7, 4, v6
s_mul_i32 s32, s3, 9216
s_mul_i32 s33, s3, {9*65536}
s_lshl_b32 s34, s26, 6
s_add_u32 s33, s33, s34
s_lshl_b32 s34, s29, 11
s_add_u32 s33, s33, s34
s_add_u32 s33, s33, {VT}
v_bfe_u32 v5, v3, 2, 1
v_lshlrev_b32 v5, 4, v5
v_lshrrev_b32 v7, 3, v3
v_lshl_add_u32 v5, v7, 2, v5
v_and_b32 v7, 3, v3
v_add_u32 v5, v5, v7
s_lshl_b32 s34, s25, 5
v_add_u32 v12, s34, v5
v_mul_u32_u24 v96, 1152, v12
v_lshl_add_u32 v96, v2, 3, v96
v_add_u32 v97, 9216, v96
v_lshrrev_b32 v5, 2, v5
v_lshlrev_b32 v98, 7, v5
v_lshl_add_u32 v98, v7, 4, v98
s_lshr_b32 s38, s25, 5
s_lshl_b32 s38, s38, 12
s_bfe_u32 s34, s25, 0x20002
s_lshl_b32 s34, s34, 10
s_add_u32 s38, s38, s34
s_bfe_u32 s34, s25, 0x10004
s_lshl_b32 s34, s34, 6
s_add_u32 s38, s38, s34
s_and_b32 s34, s25, 3
s_lshl_b32 s34, s34, 2
s_add_u32 s38, s38, s34
s_add_u32 s38, s38, {MX}
s_lshl_b32 s37, s27, 5""")
    e("v_mov_b32 v253, v6")
    def vdma():
        for idx in range(9):
            e(f"s_add_u32 m0, s32, {idx*1024}")
            e("s_add_u32 s33, s33, 65536" if idx else "s_nop 0")
            e.vmop("buffer_load_dwordx4 v253, s[8:11], s33 offen sc1 lds", "dma")
    Lw3 = e.label("w3"); Lp6 = e.label("p6")
    e(f"""s_mul_i32 s30, s28, 36
s_mul_i32 s31, s3, 9
s_add_u32 s30, s30, s31
s_mul_i32 s30, s30, 18432
s_add_u32 s31, s30, {W4P}
s_add_u32 s30, s30, {W3P}
v_add_u32 v10, 18432, v4
v_add_u32 v11, 36864, v4
s_mul_i32 s53, s25, 36864
s_add_u32 s53, s53, s32""")
    e(f"s_lshr_b32 s46, s3, 1\ns_lshl_b32 s46, s46, 3\ns_and_b32 s47, s3, 1\ns_add_u32 s47, s47, 1\ns_sub_u32 s48, s46, s47\ns_add_u32 s49, s46, s47\nv_mov_b32 v95, 2048\nv_lshlrev_b32 v91, 8, v2")
    for k, sr in ((0, 48), (2, 49)):
        e(f"""v_add_u32 v90, s{sr}, v12
v_cmp_lt_u32 vcc, v90, v95
v_bfe_u32 v92, v90, 5, 6
v_mul_u32_u24 v92, 36864, v92
v_bfe_u32 v93, v90, 3, 1
v_mul_u32_u24 v93, 18432, v93
v_bfe_u32 v94, v90, 2, 1
v_lshl_add_u32 v92, v94, 7, v92
v_bfe_u32 v94, v90, 4, 1
v_lshl_add_u32 v92, v94, 6, v92
v_and_b32 v94, 3, v90
v_lshl_add_u32 v92, v94, 4, v92
v_add3_u32 v92, v92, v93, v91
v_bfrev_b32 v93, 2
v_cndmask_b32 v{DA+k}, v93, v92, vcc""")
    e(f"v_cmp_gt_u32 vcc, 2, v2\ns_and_b32 s54, s3, 1\ns_mul_i32 s54, s54, 9216\ns_add_u32 s54, s54, {H1S}\nv_cndmask_b32 v{DA+1}, v{DA+2}, v{DA}, vcc")
    def dma_act(ph):
        if ph == 4:
            e(f"s_add_u32 s46, s53, {HC}")
            for i in range(9):
                if i % 4 == 0:
                    e(f"s_add_u32 m0, s32, {i*1024}")
                    e("s_add_u32 s46, s46, 4096" if i else "s_nop 0")
                e.vmop(f"buffer_load_dwordx4 v4, s[8:11], s46 offen offset:{(i&3)*1024} sc1 lds", "dma")
        else:
            for i in range(9):
                if i % 4 == 0:
                    e(f"s_add_u32 m0, s32, {i*1024}")
                    e("s_add_u32 s54, s54, 4096" if i else "s_nop 0")
                a = DA + (0 if i < 4 else 1 if i == 4 else 2)
                e.vmop(f"buffer_load_dwordx4 v{a}, s[8:11], s54 offen offset:{(i&3)*1024} sc1 lds", "dma")
    p2_signal()
    e(f"s_cmp_eq_u32 s3, 3\ns_cbranch_scc1 {Lw3}")
    vm_save = list(e.vm)
    def xloads():
        for u in range(3):
            for t in range(2):
                e.vmop(f"buffer_load_dwordx2 {vr(XR+(u*2+t)*2,2)}, v{96+t}, s[12:15], s37 offen offset:{32*u}", "x")
        e.vmop("buffer_load_dword v14, v98, s[8:11], s38 offen", "x")
        e.vmop("buffer_load_dword v15, v98, s[8:11], s38 offen offset:256", "x")
    ws_ = {"n": 0}
    def wnext(cnt, lim=108):
        for _ in range(cnt):
            n = ws_["n"]
            if n >= lim: return
            ph = "W1" if n < 54 else "W2"; f = n % 54; ks, u = divmod(f, 3)
            if f == 0: e(f"s_add_u32 s52, s36, {W1P if n == 0 else W2P}")
            elif u == 0 and ks % 4 == 0: e("s_add_u32 s52, s52, 4096")
            e.vmop(f"buffer_load_dwordx4 {wfrag(ph,ks,u)}, v{(4,10,11)[u]}, s[8:11], s52 offen offset:{(ks&3)*1024}", (ph, ks, u))
            ws_["n"] += 1
    e("s_mul_i32 s36, s27, 18432")
    XP = OPT.get("xp", 13)
    tgen(e, 27, TB, 16, hook=lambda u, ks: xloads() if u*9 + ks == XP else None)
    e(f"""v_lshrrev_b32 v5, 1, v2
v_lshlrev_b32 v8, 8, v5
v_lshl_add_u32 v8, v3, 4, v8
v_and_b32 v5, 1, v2
v_mul_u32_u24 v9, 18432, v5
v_add_u32 v8, v8, v9
v_lshrrev_b32 v6, 2, v3
v_lshl_add_u32 v6, v2, 3, v6
v_lshlrev_b32 v6, 6, v6
v_and_b32 v7, 3, v3
v_lshl_add_u32 v6, v7, 3, v6
v_lshl_add_u32 v6, v5, 5, v6
v_xor_b32 v7, 32, v6
s_mul_i32 s39, s25, 36864
s_lshl_b32 s40, s27, 9
s_add_u32 s39, s39, s40
s_lshl_b32 s42, s25, 11
s_lshl_b32 s40, s3, 2
s_add_u32 s40, s40, s24
s_lshl_b32 s40, s40, 7
s_add_u32 s41, s42, s40
s_mov_b32 s43, {fhex(2.0/(2048*576))}
v_lshlrev_b32 v13, 3, v3
v_mul_u32_u24 v12, 384, v2
v_add_u32 v12, v12, v13
s_lshl_b32 s55, s24, 2
s_add_u32 s55, s55, s3
s_lshl_b32 s55, s55, 2
s_lshl_b32 s40, s25, 7
s_add_u32 s55, s55, s40
v_mov_b32 v250, 1
v_mov_b32 v251, 0""")
    stamp(e, lvl=6)
    pack_finish()
    wnext(OPT.get("wr", 12), 54)
    stamp(e, lvl=6)
    e("s_barrier")
    stamp(e, lvl=6)
    vdma()
    e.wait(vm="dma")
    e("s_barrier")
    stamp(e); stamp(e, lvl=6)
    def gemm(ph, tr, hook, fill=(), f0=0, f1=18, cinit=False):
        fill = list(fill); nf = len(fill); fi = 0
        def rd(ks):
            for t in range(2):
                b = BF + ((ks % NB)*2 + t)*4
                if tr:
                    e.lgop(f"ds_read_b64_tr_b16 {vr(b,2)}, v{6+t} offset:{ks*2048}", ("b", ks))
                    e.lgop(f"ds_read_b64_tr_b16 {vr(b+2,2)}, v{6+t} offset:{ks*2048+256}", ("b", ks))
                else:
                    e.lgop(f"ds_read_b128 {vr(b)}, v4 offset:{(t*18+ks)*1024}", ("b", ks))
        for ks in range(NB-1): rd(ks)
        for ks in range(18):
            if ks + NB - 1 < 18: rd(ks + NB - 1)
            e.wait(vm=(ph, ks, 2), lg=("b", ks))
            for u in range(3):
                for t in range(2):
                    d = vr(acc(u, t) + (24 if (ph == "T" and ks >= 9) else 0))
                    first = (ks == 0 and not cinit) or (ph == "T" and ks == 9)
                    e(f"{M16} {d}, {wfrag(ph,ks,u)}, {vr(BF + ((ks % NB)*2 + t)*4)}, {0 if first else d}")
                    g = (ks - f0)*6 + u*2 + t
                    if g >= 0:
                        while fi < min(nf, -(-nf*(g+1) // ((f1 - f0)*6))): emit(fill[fi]); fi += 1
            hook(ks)
        assert fi == nf
    def wsig(phase):
        if OPT.get("wgflag", 0): return
        e(f"s_add_u32 s46, s55, {FLG + phase*8192}\ns_mov_b64 exec, 1")
        e.vmop("buffer_store_dword v250, v251, s[8:11], s46 offen sc1", "f")
        e("s_mov_b64 exec, -1")
    def sq_store(region):
        red_g(e, (90, 91), (92, 93))
        e(f"s_add_u32 s46, s41, {region}\ns_mov_b64 exec, 0xffff")
        e.vmop(f"buffer_store_dwordx2 v[90:91], v13, s[8:11], s46 offen sc1", "st")
        e("s_mov_b64 exec, -1")
    def st16(o, sreg, off):
        e(f"s_nop 0\nv_permlane16_swap_b32 v{o}, v{o+2}\nv_permlane16_swap_b32 v{o+1}, v{o+3}")
        e.vmop(f"buffer_store_dwordx4 {vr(o)}, v8, s[8:11], s{sreg} offen offset:{off} sc1", "st")
    GL, AL = OPT.get("gl", 30), OPT.get("al", 24)
    lim_ = [54]
    def hookw(ks): wnext(GL*(ks+1)//18 - GL*ks//18, lim_[0])
    def hook3(ks):
        if XP == 27 + ks: xloads()
        hookw(ks)
    XM = 232
    XF = [224 + i for i in range(20)] + [100, 101, 102, 103]
    xfill = [("wv", "x")]
    for u in range(3):
        for t in range(2):
            x = XR + (u*2+t)*2; f = XF[(u*2+t)*4:(u*2+t)*4+4]
            xfill += [("s", f"v_lshlrev_b32 v{f[0]}, 16, v{x}"), ("s", f"v_and_b32 v{f[1]}, 0xffff0000, v{x}"),
                      ("s", f"v_lshlrev_b32 v{f[2]}, 16, v{x+1}"), ("s", f"v_and_b32 v{f[3]}, 0xffff0000, v{x+1}")]
            xfill += [("s", f"v_sub_f32 v{f[r]}, v{f[r]}, v{14+t}") for r in range(4)]
    xfill += [("s", f"s_add_u32 s44, s39, {HC}"), ("s", "v_mov_b32 v90, 0"), ("s", "v_mov_b32 v91, 0")]
    gemm("T", True, hook3, xfill, 9, 18)
    stamp(e)
    EARLY = OPT.get("early", 0)
    e("s_barrier" if EARLY else "s_nop 0")
    e("s_nop 4")
    for u in range(3):
        o = BF + 4*u
        for t in range(2):
            a = acc(u, t); h = HCR + (u*2+t)*4; f = XF[(u*2+t)*4:(u*2+t)*4+4]
            for r in range(4): e(f"v_{'sub' if r & 1 else 'add'}_f32 v{a+r}, v{a+r}, v{h+r}")
            for r in range(4): e(f"v_fma_f32 v{h+r}, v{a+r}, s43, v{f[r]}")
            e(f"v_cvt_pk_bf16_f32 v{o+2*t}, v{h}, v{h+1}\nv_cvt_pk_bf16_f32 v{o+2*t+1}, v{h+2}, v{h+3}")
            for r in range(4): e(f"v_fmac_f32 v{90+t}, v{h+r}, v{h+r}")
        st16(o, 44, 512*u)
    sq_store(SQH)
    e(f"s_add_u32 s44, s39, {H1S}\ns_add_u32 s47, s42, {SQH}")
    e.wait(vm="st")
    wsig(0)
    if not EARLY: e("s_barrier")
    stamp(e, lvl=-1)
    lim_[0] = 54 + 42
    wnext(AL, lim_[0])
    assert ws_["n"] >= 54
    stamp(e, lvl=1)
    e("s_barrier")
    stamp(e, lvl=1)
    dma_act(4)
    for c in range(3): e.vmop(f"buffer_load_dwordx2 {vr(96+2*c,2)}, v12, s[8:11], s47 offen offset:{128*c} sc1", "q")
    stamp(e, lvl=1)
    e.wait(vm="dma")
    stamp(e, lvl=1)
    e("s_barrier")
    stamp(e, lvl=-1)
    e3 = Em()
    e3("v_add_f32 v97, v97, v99\nv_add_f32 v96, v96, v98\nv_add_f32 v96, v96, v100\nv_add_f32 v100, v97, v101")
    red_g(e3, (96, 100), (92, 93))
    for t in range(2): e3(f"v_mul_f32 v{96+4*t}, {fhex(1/576)}, v{96+4*t}")
    for t in range(2): e3(f"v_add_f32 v{88+t}, {fhex(EPS)}, v{96+4*t}")
    for t in range(2): e3(f"v_rsq_f32 v{88+t}, v{88+t}")
    e3("s_nop 0")
    for t in range(2): e3(f"v_mul_f32 v{98+4*t}, v{88+t}, v{88+t}")
    for t in range(2): e3(f"v_mul_f32 v{98+4*t}, v{98+4*t}, v{96+4*t}")
    for t in range(2): e3(f"v_add_f32 v{98+4*t}, {fhex(EPS)}, v{98+4*t}")
    for t in range(2): e3(f"v_rsq_f32 v{98+4*t}, v{98+4*t}")
    e3("s_nop 0")
    for t in range(2): e3(f"v_mul_f32 v{96+4*t}, v{88+t}, v{98+4*t}")
    for t in range(2): gelu_consts(e3, 96+4*t, 97+4*t, 98+4*t, 99+4*t)
    def hook4(ks):
        if ks == 4: lim_[0] = 108
        hookw(ks)
    gemm("W1", False, hook4, [("wv", "q")] + [("s", l.strip()) for l in e3.L], 2, 17)
    stamp(e)
    e("s_barrier" if EARLY else "s_nop 0")
    e("s_nop 4")
    for u in range(3):
        o = BF + 4*u
        for t in range(2):
            a = acc(u, t); s = 96 + 4*t
            for l in gelu4(a, 92, s+1, s+2, s+3): e(l)
            e(f"v_cvt_pk_bf16_f32 v{o+2*t}, v92, v93\nv_cvt_pk_bf16_f32 v{o+2*t+1}, v94, v95")
        e("s_nop 0")
        st16(o, 44, 512*u)
    e(f"s_add_u32 s44, s39, {X6}\nv_lshlrev_b32 v98, 2, v3\nv_mov_b32 v90, 0\nv_mov_b32 v91, 0")
    e.wait(vm="st")
    wsig(1)
    if not EARLY: e("s_barrier")
    stamp(e, lvl=-1)
    wnext(108)
    for u in range(3):
        for t in range(2):
            a = acc(u, t); h = HCR + (u*2+t)*4
            for r in range(4): e(f"v_mul_f32 v{a+r}, v{h+r}, v{88+t}")
            for r in range(4): e(f"v_add_f32 v{h+r}, v{h+r}, v{14+t}")
    stamp(e, lvl=1)
    e("s_barrier")
    stamp(e, lvl=1)
    dma_act(5)
    stamp(e, lvl=1)
    e.wait(vm="dma")
    stamp(e, lvl=1)
    e("s_barrier")
    stamp(e, lvl=-1)
    N5 = OPT.get("n5", 27)
    st5 = {"n": 0}
    def hook5(ks):
        while st5["n"] < min(N5, 3*ks + 3, (3*(ks+1))//2):
            for x in wload6(st5["n"]): emit(x)
            st5["n"] += 1
    gemm("W2", False, hook5, cinit=True)
    assert st5["n"] == N5
    stamp(e)
    e("s_barrier")
    e.lgop("ds_read_b32 v96, v98 offset:36864", "m"); e.lgop("ds_read_b32 v97, v98 offset:36928", "m")
    e("s_nop 3")
    for u in range(3):
        for t in range(2):
            a = acc(u, t); h = HCR + (u*2+t)*4
            for r in range(4): e(f"v_add_f32 v{h+r}, v{h+r}, v{a+r}")
    e.wait(lg="all")
    for u in range(3):
        x = BF + 4*u
        for t in range(2):
            a = acc(u, t)
            for r in range(4): e(f"v_sub_f32 v{a+r}, v{a+r}, v{96+t}")
            e(f"v_cvt_pk_bf16_f32 v{x+2*t}, v{a}, v{a+1}\nv_cvt_pk_bf16_f32 v{x+2*t+1}, v{a+2}, v{a+3}")
            for r in range(4): e(f"v_fmac_f32 v{90+t}, v{a+r}, v{a+r}")
        st16(x, 44, 512*u)
    sq_store(SQ1)
    for u in range(3):
        for t in range(2):
            h = HCR + (u*2+t)*4; o = BASE + 4*u + 2*t
            e(f"v_cvt_pk_bf16_f32 v{o}, v{h}, v{h+1}\nv_cvt_pk_bf16_f32 v{o+1}, v{h+2}, v{h+3}")
    e.wait(vm="st")
    wsig(2)
    if not EARLY: e("s_barrier")
    vm_p6 = list(e.vm)
    stamp(e)
    nst_main = NST
    setup6()
    e(f"s_barrier\ns_branch {Lp6}")
    def poll(phase, areg, nl=0):
        Lp = e.label("poll"); Ld = e.label("pd")
        if OPT.get("wgflag", 0):
            e(f"s_lshl_b32 s46, s25, 7\ns_lshl_b32 s47, s24, 4\ns_add_u32 s46, s46, s47\ns_add_u32 s46, s46, {FLG + phase*8192}\ns_mov_b64 exec, 1\nbuffer_store_dword v250, v251, s[8:11], s46 offen sc1\ns_mov_b64 exec, -1")
        ld = lambda r: f"buffer_load_dword v{r}, v{areg}, s[8:11], s46 offen sc1"
        if OPT.get("pipe", 0):
            e(f"""s_mov_b32 s46, {FLG + phase*8192}
s_mov_b32 s47, 0x20000
{ld(252)}
s_sleep {OPT.get('psl', 3)}
{Lp}:
{ld(253)}
s_waitcnt vmcnt(1)
v_cmp_ne_u32 vcc, 1, v252
s_cbranch_vccz {Ld}
{ld(252)}
s_waitcnt vmcnt(1)
v_cmp_ne_u32 vcc, 1, v253
s_cbranch_vccz {Ld}
s_sub_u32 s47, s47, 1
s_cbranch_scc0 {Lp}
{Ld}:""")
        else:
            e(f"""s_mov_b32 s46, {FLG + phase*8192}
s_mov_b32 s47, 0x40000
{Lp}:
{ld(252)}
s_waitcnt vmcnt(0)
v_cmp_ne_u32 vcc, 1, v252
s_cbranch_vccz {Ld}
s_sub_u32 s47, s47, 1
s_cbranch_scc0 {Lp}
{Ld}:""")
        e.vm = ["p"]
    e(f"{Lw3}:")
    e.vm = vm_save; e.lg = []
    PKL = 40960
    if W4K3:
        e.srd(16, 20, 5308416)
        e("s_cmp_lt_u32 s2, 216\ns_cselect_b32 s18, 5308416, 0")
        e("v_lshrrev_b32 v16, 3, v1\nv_mul_u32_u24 v16, 1152, v16\nv_and_b32 v17, 7, v1\nv_lshl_add_u32 v16, v17, 4, v16")
        for k in range(2):
            e(f"s_lshl_b32 s40, s2, 1\ns_add_u32 s40, s40, {k}")
            sdiv(e, 3, 41, 42, 40, 46); sdiv(e, 18, 43, 44, 41, 46)
            e(f"""s_mul_i32 s{36+k}, s43, 663552
s_lshl_b32 s45, s44, 10
s_add_u32 s{36+k}, s{36+k}, s45
s_mul_i32 s45, s42, {3*73728}
s_add_u32 s{36+k}, s{36+k}, s45
s_add_u32 s{36+k}, s{36+k}, {W4P}
s_mul_i32 s40, s43, 576
s_and_b32 s45, s44, 1
s_mul_i32 s45, s45, 288
s_add_u32 s40, s40, s45
s_lshr_b32 s45, s44, 1
s_lshl_b32 s45, s45, 4
s_add_u32 s40, s40, s45
s_mul_i32 s40, s40, 1152
s_mul_i32 s45, s42, 384
s_add_u32 s40, s40, s45""")
            for f in range(4):
                for it in range(3):
                    e(f"s_mov_b32 m0, {PKL + k*12288 + it*4096 + f*1024 - it*128}")
                    e(f"s_add_u32 s40, s40, {1152*(136 if f == 2 else 8)}" if (it == 0 and f) else "s_nop 0")
                    e.vmop(f"buffer_load_dwordx4 v16, s[16:19], s40 offen offset:{128*it} {OPT.get('ld_pk','nt')} lds", ("pk", k))
    e(f"""v_mov_b32 v250, 1
v_mov_b32 v251, 0
v_and_b32 v19, 3, v1
v_min_u32 v19, {0 if OPT.get('wgflag', 0) else 2}, v19
v_lshlrev_b32 v19, 2, v19
v_bfe_u32 v20, v1, 2, 2
v_lshl_add_u32 v19, v20, 4, v19
s_lshl_b32 s46, s25, 7
v_add_u32 v247, s46, v19
v_bfe_u32 v21, v1, 4, 1
v_and_b32 v22, 1, v20
v_lshlrev_b32 v22, 1, v22
v_add_u32 v22, -1, v22
v_mul_lo_u32 v22, v22, v21
v_add_u32 v22, s25, v22
v_and_b32 v22, 63, v22
v_lshl_add_u32 v248, v22, 7, v19
s_lshl_b32 s46, s26, 8
v_lshl_add_u32 v249, v21, 7, v19
v_add_u32 v249, s46, v249""")
    if W4K3:
        e(f"""s_mul_i32 s46, s28, 108
s_add_u32 s46, s46, {3*8192}
v_subrev_u32 v19, 32, v1
v_min_u32 v19, 26, v19
v_lshlrev_b32 v19, 2, v19
v_add_u32 v19, s46, v19
v_cmp_lt_u32 vcc, 31, v1
s_nop 1
v_cndmask_b32 v249, v249, v19, vcc""")
    e(f"""s_mul_i32 s46, s28, 27
s_lshr_b32 s46, s46, 1
v_min_u32 v18, 14, v1
v_add_u32 v18, s46, v18
v_min_u32 v18, 107, v18
v_lshlrev_b32 v18, 2, v18""")
    Lq, Lqd = e.label("gp"), e.label("gpd")
    e(f"""v_min_u32 v19, 35, v1
v_lshlrev_b32 v19, 4, v19
s_lshr_b32 s46, s2, 3
s_mul_i32 s46, s46, 640
s_add_u32 s46, s46, {FLG2}
s_mov_b32 s47, 0x40000
s_cmp_eq_u32 s56, 255
s_cbranch_scc1 {Lq}s
{"s_barrier" if OPT.get("lbar", 1) else "s_sleep 100"}
{Lq}s:
s_sleep {OPT.get('gs1', 24)}
{Lq}:
buffer_load_dwordx4 v[20:23], v19, s[8:11], s46 offen sc1
s_waitcnt vmcnt(0)
v_and_b32 v20, v20, v21
v_and_b32 v22, v22, v23
v_and_b32 v20, v20, v22
v_cmp_ne_u32 vcc, 1, v20
s_cbranch_vccz {Lqd}
s_sleep {OPT.get('gsl', 8)}
s_sub_u32 s47, s47, 1
s_cbranch_scc0 {Lq}
{Lqd}:
s_barrier""")
    e.vm = []
    vdma()
    e.wait(vm="dma")
    e("s_barrier")
    for ks in range(18):
        if ks % 4 == 0: e(f"s_mov_b32 s40, {W2P + 36*18432 + ks*1024}")
        e.vmop(f"buffer_load_dwordx4 {vr(4*ks,4,'a')}, v4, s[8:11], s40 offen offset:{(ks&3)*1024}", "mw")
    e("s_barrier")
    e.wait(vm="all")
    Lnf = e.label("nopf")
    e(f"s_cmp_ge_u32 s56, 108\ns_cbranch_scc1 {Lnf}\ns_lshl_b32 s46, s56, 2\ns_add_u32 s46, s46, {FLG + 6*8192}\ns_mov_b64 exec, 1\nbuffer_store_dword v250, v251, s[8:11], s46 offen sc1\ns_mov_b64 exec, -1\n{Lnf}:")
    poll(0, 247)
    if W4K3:
        e(f"s_lshl_b32 s46, s2, 2\ns_add_u32 s46, s46, {FLG + 5*8192}\ns_mov_b64 exec, 1\nbuffer_store_dword v250, v251, s[8:11], s46 offen sc1\ns_mov_b64 exec, -1")
        e.vm.append("f")
    e("s_barrier")
    dma_act(4); e.wait(vm="all")
    e("s_barrier")
    poll(6, 18)
    e("s_barrier")
    poll(1, 248)
    e("s_barrier")
    dma_act(5); e.wait(vm="all")
    e("s_barrier")
    NR = 3
    def rdm(ks):
        for t in range(2): e.lgop(f"ds_read_b128 {vr(40+((ks%NR)*2+t)*4)}, v4 offset:{(t*18+ks)*1024}", ks)
    for ks in range(NR-1): rdm(ks)
    for ks in range(18):
        if ks + NR - 1 < 18: rdm(ks + NR - 1)
        e.wait(lg=ks)
        for t in range(2):
            e(f"{M16} {vr(32+4*t)}, {vr(4*ks,4,'a')}, {vr(40+((ks%NR)*2+t)*4)}, {vr(32+4*t) if ks else 0}")
    e("v_lshlrev_b32 v23, 2, v3\ns_nop 7\ns_mov_b64 exec, 0xffff\nds_write_b32 v23, v32 offset:36864\nds_write_b32 v23, v36 offset:36928\ns_mov_b64 exec, -1")
    for n in range(N5):
        for x in wload6(n): emit(x)
    e("s_waitcnt lgkmcnt(0)\ns_barrier")
    setup6()
    e.wait(vm="all")
    if not EARLY: e("s_barrier")
    poll(2, 249)
    e("s_barrier")
    e(f"{Lp6}:")
    globals()["NST"] = nst_main
    e.vm = vm_p6; e.lg = []
    stamp(e)
    def X(t4, ks):
        i = ks*4 + t4
        return vr(4*i, 4, "a") if i < 64 else vr(XV + 4*(i-64))
    XS = OPT.get("xs", (0, 6, 12))
    stamp(e, lvl=4)
    def xdma(i):
        L = []
        if i % 4 == 0: L.append(("s", f"s_add_u32 m0, s32, {i*1024}\n" + ("s_add_u32 s40, s40, 4096" if i else "s_nop 0")))
        L.append(("v", f"buffer_load_dwordx4 v4, s[8:11], s40 offen offset:{(i&3)*1024} sc1 lds", ("xd", sum(1 for b in XS if b <= i) - 1)))
        return L
    X0 = OPT.get("x0", 18)
    for i in range(X0):
        for x in xdma(i): emit(x)
    sqld = [("v", f"buffer_load_dwordx2 {vr(TT+6*tp+2*c,2)}, v6, s[8:11], s37 offen offset:{2048*tp + 128*c} sc1", "q") for tp in range(2) for c in range(3)]
    late = [xdma(i) for i in range(X0, 18)] + [[x] for x in sqld]
    def bread(ks, hb):
        out = []
        for t4 in range(4):
            off = (t4*18 + ks)*1024
            base = (4, 11) if not hb else (12, 13)
            breg = base[0] if off < 36864 else base[1]
            out.append(("l", f"ds_read_b128 {X(t4,ks)}, v{breg} offset:{off % 36864}", ("b", hb, ks)))
        return out
    def const_fill():
        e2 = Em()
        R = [TT+12+t for t in range(4)]
        for t4 in range(4):
            b = TT + 6*(t4 >> 1) + (t4 & 1)
            e2(f"v_add_f32 v{R[t4]}, v{b}, v{b+2}\nv_add_f32 v{R[t4]}, v{R[t4]}, v{b+4}")
        red_g(e2, R, [TMP+t for t in range(4)])
        for r in R: e2(f"v_mul_f32 v{r}, {fhex(1/576)}, v{r}")
        for r in R: e2(f"v_add_f32 v{r}, {fhex(EPS)}, v{r}")
        for r in R: e2(f"v_rsq_f32 v{r}, v{r}")
        e2("s_nop 0")
        for t4 in range(4): gelu_consts(e2, R[t4], KC+t4, KC+4+t4, KC+8+t4)
        return [("wv", "q")] + [("s", l.strip()) for l in e2.L]
    def gelu_fill(ft):
        L = []
        for t4 in range(4):
            L += [("s", l) for l in gelu4(TT+4*t4, TMP, KC+t4, KC+4+t4, KC+8+t4)]
            L += [("s", f"v_cvt_pk_bf16_f32 v{PK+2*t4}, v{TMP}, v{TMP+1}"), ("s", f"v_cvt_pk_bf16_f32 v{PK+2*t4+1}, v{TMP+2}, v{TMP+3}")]
            L += [("l", f"ds_write_b64 v{8 + (t4>>1)}, {vr(PK+2*t4,2)} offset:{ft*2048 + (t4&1)*18432}", ("h", ft))]
        return L
    def out_fill(b):
        dt = ORD[b]
        L = [("s", f"s_add_u32 s35, s34, {dt*2048}")]
        for tp in range(2):
            for h in range(2):
                a = TT + 4*(2*tp+h)
                L += [("s", f"v_cvt_pk_bf16_f32 v{PK+4*tp+2*h}, v{a}, v{a+1}"), ("s", f"v_cvt_pk_bf16_f32 v{PK+4*tp+2*h+1}, v{a+2}, v{a+3}")]
            L += [("v", f"buffer_store_dwordx4 {vr(PK+4*tp)}, v4, s[8:11], s35 offen offset:{tp*1024} {OPT.get('sc_part','sc1')}", "st")]
            L += [("l", f"ds_write_b128 v14, {vr(PK+4*tp)} offset:{(dt*2+tp)*1024}", "o")]
        return L
    def block(blk, fill, G0=4, G1=66, pre=None, post=None, ramp0=0):
        nf = len(fill); fi = 0
        for ks in range(18):
            n = blk*18 + ks
            lgw = None
            if (blk, ks) in OPT.get("pts", ()): stamp(e, lvl=3)
            if pre:
                for x in pre(ks): emit(x)
                lgw = [("b", False, ks), ("b", True, ks)]
            e.wait(vm=[("w", n), ("w", n+1)] if ks % 2 == 0 else None, lg=lgw)
            for t4 in range(4):
                d = vr(TT+4*t4) if ks == 17 else vr(AC+4*t4)
                c = vr(AC+4*t4) if ks else "0"
                e(f"{M16} {d}, {vr(RING+4*(n % NPF))}, {X(t4,ks)}, {c}")
                gap = ks*4 + t4
                if ks >= ramp0 and t4 in (1, 3) and st5["n"] < NT and st5["n"] < n + NPF + (t4 == 3):
                    for x in wload6(st5["n"]): emit(x)
                    st5["n"] += 1
                if t4 == 3 and post:
                    for x in post(ks): emit(x)
                if gap >= G0:
                    tgt = min(nf, -(-nf*(gap - G0 + 1) // (G1 - G0)))
                    while fi < tgt: emit(fill[fi]); fi += 1
        assert fi == nf
    AH = 2
    def pre0(ks):
        L = []
        tgt = [ks + AH] if ks else list(range(AH + 1))
        for k in tgt:
            if k < 18:
                if k in XS: L += [("wv", ("xd", XS.index(k))), ("s", "s_barrier"), ("st", 4)]
                L += bread(k, False)
        return L
    stamp(e, lvl=4)
    def post0(ks):
        L = []
        for _ in range(3):
            if late: L += late.pop(0)
        return L
    block(0, const_fill(), 36, 66, pre=pre0, post=post0, ramp0=OPT.get("ramp0", 0))
    assert not late
    stamp(e, lvl=4)
    stamp(e)
    if not OPT.get('pts'): stamp(e, lvl=3)
    for ft in range(1, 8):
        block(ft, gelu_fill(ft-1))
        if ft in (1, 3, 5, 7) and not OPT.get('pts'): stamp(e, lvl=3)
        if ft in (1, 2): stamp(e, lvl=4)
    e.wait(lg="all")
    e("s_barrier")
    block(8, gelu_fill(7), post=lambda ks: bread(ks, True) if ks < 14 else [])
    stamp(e)
    def pre9(ks):
        L = []
        if ks == 12: L += [("wl", ("h", 8)), ("s", "s_barrier")] + bread(14, True) + bread(15, True)
        if ks == 13: L += bread(16, True) + bread(17, True)
        return L
    if not OPT.get('pts'): stamp(e, lvl=3)
    block(9, gelu_fill(8), 3, 46, pre=pre9)
    if not OPT.get('pts'): stamp(e, lvl=3)
    e2 = Em()
    e2.srd(12, 22, A_)
    e2(f"""s_lshl_b32 s38, s26, 2
s_add_u32 s38, s38, s24
s_mul_i32 s38, s38, 9
s_mul_i32 s39, s3, 3
s_add_u32 s38, s38, s39
s_lshl_b32 s38, s38, 1
s_add_u32 s38, s38, s29
s_lshl_b32 s38, s38, 10
s_add_u32 s38, s38, {PART}
s_mul_i32 s40, s25, {32*1152}
s_lshl_b32 s36, s27, 5
s_add_u32 s40, s40, s36
v_bfe_u32 v5, v3, 2, 1
v_lshlrev_b32 v5, 4, v5
v_lshrrev_b32 v7, 3, v3
v_lshl_add_u32 v5, v7, 2, v5
v_and_b32 v7, 3, v3
v_add_u32 v5, v5, v7
v_mul_u32_u24 v6, 1152, v5
v_lshl_add_u32 v6, v2, 3, v6
v_add_u32 v7, 9216, v6
v_add_u32 v11, 4096, v4
s_mul_i32 s41, s24, 18432
s_mul_i32 s42, s3, 6144
s_add_u32 s41, s41, s42
s_lshl_b32 s42, s29, 10
s_add_u32 s41, s41, s42
v_add_u32 v9, s41, v4
v_mov_b32 v250, 1
v_mov_b32 v251, 0
s_lshl_b32 s44, s26, 9
s_lshl_b32 s45, s24, 5
s_add_u32 s45, s45, s44
v_and_b32 v247, 7, v1
v_lshlrev_b32 v247, 2, v247
v_add_u32 v247, s45, v247
s_lshl_b32 s45, s3, 5
s_add_u32 s44, s44, s45
s_lshl_b32 s45, s28, 2
s_add_u32 s44, s44, s45
s_add_u32 s44, s44, {FLG + 3*8192}
s_mov_b32 s45, {FLG + 3*8192}""")
    e2(f"s_mov_b32 s48, s8\ns_mov_b32 s49, s9\ns_mov_b32 s51, 0x00020000")
    for i in range(7):
        e2(f"s_add_u32 s42, s28, {i+1}\ns_and_b32 s42, s42, 7\ns_mul_i32 s42, s42, {A_}\ns_add_u32 s{52+i}, s42, s38")
    setup7 = [("s", l.strip()) for l in e2.L] + [("s", f"s_cmp_eq_u32 s3, 3\ns_cselect_b32 s50, 0, {WS_SIZE}")]
    def flag_store(off):
        return [("s", "s_mov_b64 exec, 1"), ("v", f"buffer_store_dword v250, v251, s[8:11], s44 offen offset:{off} sc1", "f"), ("s", "s_mov_b64 exec, -1")]
    def poll7(off, first_tag=None):
        Lp = e.label("poll"); Ld = e.label("pd")
        if first_tag:
            e.wait(vm=first_tag)
            e(f"v_cmp_ne_u32 vcc, 1, v252\ns_cbranch_vccz {Ld}")
        e(f"""s_mov_b32 s47, 0x40000
{Lp}:
buffer_load_dword v252, v247, s[8:11], s45 offen offset:{off} sc1
s_waitcnt vmcnt(0)
v_cmp_ne_u32 vcc, 1, v252
s_cbranch_vccz {Ld}
s_sub_u32 s47, s47, 1
s_cbranch_scc0 {Lp}
{Ld}:""")
        if not first_tag: e.vm = []
    FK, PKS, G2 = OPT.get("fk", 1), OPT.get("pks", 14), OPT.get("g2", 28)
    def slot(i): return RING + 4*((292 + i) % NPF)
    def rload(i):
        return [("v", f"buffer_load_dwordx4 {vr(slot(i))}, v4, s[48:51], s{52 + i % 7} offen offset:{2048*(i//7)} sc1", ("r", i))]
    def chk(off):
        Lp = e.label("poll"); Ld = e.label("pd")
        return [("wv", "pa"), ("s", f"""v_cmp_ne_u32 vcc, 1, v252
s_cbranch_vccz {Ld}
s_mov_b32 s47, 0x40000
{Lp}:
buffer_load_dword v252, v247, s[8:11], s45 offen offset:{off} sc1
s_waitcnt vmcnt(0)
v_cmp_ne_u32 vcc, 1, v252
s_cbranch_vccz {Ld}
s_sub_u32 s47, s47, 1
s_cbranch_scc0 {Lp}
{Ld}:""")]
    def pa(off): return [("v", f"buffer_load_dword v252, v247, s[8:11], s45 offen offset:{off} sc1", "pa")]
    S = dict(sigA=13*18+1, paA=15*18+10, chkA=16*18, sigB=16*18+1, paB=16*18+14, chkB=17*18, stepB=2)
    S.update(OPT.get("sched", {}))
    ev_pre = {}
    def add(pos, L): ev_pre.setdefault(pos, []).extend(L)
    add(S["sigA"], [("wv", ("stf", 3))] + flag_store(0))
    add(S["paA"], pa(0)); add(S["chkA"], None or [("chk", 0)])
    add(S["sigB"], [("wv", ("stf", 6))] + flag_store(128))
    add(S["paB"], pa(128)); add(S["chkB"], [("chk", 128)])
    ev_post = {}
    for i in range(7): ev_post.setdefault(max(S["chkA"], 292) + i, []).extend(rload(i))
    for i in range(7): ev_post.setdefault(min(S["chkB"] + S["stepB"]*i, 323), []).extend(rload(7 + i))
    for dt in range(1, 9):
        fill = out_fill(dt-1)
        if dt == 1: fill = fill + setup7
        if dt in (3, 6): fill = [(x[0], x[1], ("stf", dt)) if x[0] == "v" else x for x in fill]
        def pre(ks, b=9+dt):
            L = []
            for x in ev_pre.get(b*18 + ks, []): L += chk(x[1]) if x[0] == "chk" else [x]
            return L
        post = lambda ks, b=9+dt: ev_post.get(b*18 + ks, [])
        block(9+dt, fill, 4, 66 if dt == 1 else G2, pre=pre, post=post)
        if dt in (1, 2, 4, 6, 8) and not OPT.get('pts'): stamp(e, lvl=3)
    stamp(e)
    e("s_nop 7")
    for x in out_fill(8): emit(x)
    def accum(x, a): e(f"v_lshlrev_b32 v8, 16, v{x}\nv_and_b32 v5, 0xffff0000, v{x}\nv_add_f32 v{a}, v{a}, v8\nv_add_f32 v{a+1}, v{a+1}, v5")
    for k in range(3):
        for j in range(4):
            x = BASE + 4*k + j; a = 16 + 8*k + 2*j
            e(f"v_lshlrev_b32 v{a}, 16, v{x}\nv_and_b32 v{a+1}, 0xffff0000, v{x}")
    e.wait(vm="st", lg="all")
    for x in flag_store(256): emit(x)
    Lep = e.label("ep")
    e(f"s_barrier\ns_cmp_eq_u32 s3, 3\ns_cbranch_scc1 {Lep}")
    for k in range(3): e.lgop(f"ds_read_b128 {vr(48+4*k)}, v9 offset:{2048*k}", "p")
    for i in range(14):
        for j in range(4): accum(slot(i) + j, 16 + 8*(i // 7) + 2*j)
    e.wait(lg="all")
    for k in range(3):
        for j in range(4): accum(48 + 4*k + j, 16 + 8*k + 2*j)
    def fin(k):
        for j in range(4): e(f"v_cvt_pk_bf16_f32 v{48+4*k+j}, v{16+8*k+2*j}, v{17+8*k+2*j}")
        e(f"buffer_store_dwordx2 {vr(48+4*k,2)}, v6, s[12:15], s40 offen offset:{32*k}\nbuffer_store_dwordx2 {vr(50+4*k,2)}, v7, s[12:15], s40 offen offset:{32*k}")
    stamp(e, lvl=2)
    poll7(256)
    stamp(e)
    for sl in range(7):
        e.vmop(f"buffer_load_dwordx4 {vr(64+4*sl)}, v11, s[8:11], s{52+sl} offen sc1", sl)
    fin(0); fin(1)
    e.vm += ["o"]*4
    for sl in range(7):
        e.wait(vm=sl)
        for j in range(4): accum(64 + 4*sl + j, 32 + 2*j)
    fin(2)
    e(f"{Lep}:")
    epi(e, name, Lend, 3, 512, 256)
    e.add_launch(name, 256, lds=147456)

def build(stamp=False, only=None, **opt):
    global STAMP, OPT
    STAMP = stamp; OPT = opt
    e = Em()
    e.L.append(".p2align 8\ncode_begin:\ns_nop 0")
    for k in (only or ["k1", "k3"]): globals()[k](e)
    e.L.append("code_end:\ns_nop 0")
    return finish(e)

if __name__ == "__main__":
    import sys, hazard
    out = "sequential_preLN__spectral_gfnet__mixer_s_mlp__prompt.s"
    txt = build(False)
    open(out, "w").write(txt); open("cur.s", "w").write(txt)
    errs = hazard.check(txt.split("\n")) + hazard.check_async(txt.split("\n"))
    print("\n".join(errs[:40])); print(len(errs), "hazards;", len(txt), "bytes")
    open("stamp.s", "w").write(build(True))
```

```python
from common import *
import common
common.castab = lambda: ''
STAMP = False
STAMP_OFF = 200 << 20
OPT = {}
FLG = WS_END
FLG_SZ = 72*1024
FLG2 = FLG + 49152 + 1024
NST = 0
M16 = "v_mfma_f32_16x16x32_bf16"

def stamp(e, first=False, lvl=0):
    global NST
    if not STAMP: return
    if (lvl != OPT.get("lvl", 0) and not (lvl == -1 and OPT.get("lvl", 0) < 2)) and not first: return
    assert NST < 15
    e(f"{'s_memtime' if (lvl == 3) else 's_memrealtime'} s[{60+2*NST}:{61+2*NST}]")
    if not first: e("s_waitcnt lgkmcnt(0)"); e.lg = []
    NST += 1

def pro(e, name, ngrid, x=False, T=False, extra=()):
    global NST
    e.begin(name)
    Lend = e.label("end")
    e(f"s_cmp_ge_u32 s2, {ngrid}\ns_cbranch_scc1 {Lend}")
    NST = 0
    stamp(e, True)
    e("s_load_dwordx2 s[4:5], s[0:1], 80")
    if x: e("s_load_dwordx2 s[6:7], s[0:1], 0")
    for (sreg, off) in extra: e(f"s_load_dwordx2 s[{sreg}:{sreg+1}], s[0:1], {off}")
    if T:
        e("s_getpc_b64 s[16:17]\ns_add_u32 s16, s16, castab@rel32@lo+4\ns_addc_u32 s17, s17, castab@rel32@hi+12")
        e("s_and_b32 s17, s17, 0xffff\ns_mov_b32 s18, 663552\ns_mov_b32 s19, 0x00020000")
    e("""v_lshrrev_b32 v5, 6, v0
v_and_b32 v1, 63, v0
v_readfirstlane_b32 s3, v5
v_lshrrev_b32 v2, 4, v1
v_and_b32 v3, 15, v1
v_lshlrev_b32 v4, 4, v1""")
    return Lend
def burn(e, n):
    L = e.label("burn")
    e(f"s_mov_b32 s58, {n}\n{L}:")
    for i in range(32): e(f"v_fma_f32 v{40+i%8}, v{40+i%8}, v{40+i%8}, v{40+i%8}")
    e(f"s_sub_u32 s58, s58, 1\ns_cmp_lg_u32 s58, 0\ns_cbranch_scc1 {L}")

def pro2(e, x=False):
    e("s_waitcnt lgkmcnt(0)")
    e.srd(8, 4, WS_SIZE)
    if x: e.srd(12, 6, A_)

def dump(e, slot):
    if STAMP:
        e(f"""s_waitcnt vmcnt(0) lgkmcnt(0)
s_mov_b64 exec, 1
s_memrealtime s[90:91]
s_lshl_b32 s92, s2, 2
s_add_u32 s92, s92, s3
s_lshl_b32 s92, s92, 7
s_add_u32 s92, s92, {STAMP_OFF + slot*(1<<20)}
s_waitcnt lgkmcnt(0)
v_mov_b32 v100, 0""")
        for k in range(8):
            for j in range(4): e(f"v_mov_b32 v{96+j}, s{60+4*k+j}")
            e(f"buffer_store_dwordx4 v[96:99], v100, s[8:11], s92 offen offset:{16*k}\ns_nop 1")
        e("s_mov_b64 exec, -1")

def epi(e, name, Lend, slot, vgpr, accum):
    dump(e, slot)
    e(f"{Lend}:")
    e.end(name, vgpr, accum, 96)

def red_g(e, regs, tmps):
    for sw in ("v_permlane32_swap_b32", "v_permlane16_swap_b32"):
        for v, t in zip(regs, tmps): e(f"v_mov_b32 v{t}, v{v}")
        e("s_nop 1" if len(regs) < 3 else "s_nop 0")
        for v, t in zip(regs, tmps): e(f"{sw} v{v}, v{t}")
        if len(regs) < 2: e("s_nop 0")
        for v, t in zip(regs, tmps): e(f"v_add_f32 v{v}, v{v}, v{t}")

def sdiv(e, d, q, r, x, tmp):
    m = (1 << 32) // d + 1
    e(f"s_mul_hi_u32 s{q}, s{x}, {m}\ns_mul_i32 s{tmp}, s{q}, {d}\ns_sub_u32 s{r}, s{x}, s{tmp}")

C0 = -2.0*math.sqrt(2.0/math.pi)*math.log2(math.e)
C1 = C0*0.044715
def gelu_consts(e, r, K0, K1, IR):
    e(f"v_rcp_f32 v{IR}, v{r}\nv_mul_f32 v{K0}, {fhex(C0)}, v{r}\nv_mul_f32 v{K1}, v{r}, v{r}\nv_mul_f32 v{K1}, v{K1}, v{r}\nv_mul_f32 v{K1}, {fhex(C1)}, v{K1}")
def gelu4(a, tmp, K0, K1, IR):
    L = []
    L += [f"v_mul_f32 v{tmp+r}, v{a+r}, v{a+r}" for r in range(4)]
    L += [f"v_fma_f32 v{tmp+r}, v{tmp+r}, v{K1}, v{K0}" for r in range(4)]
    L += [f"v_mul_f32 v{tmp+r}, v{tmp+r}, v{a+r}" for r in range(4)]
    L += [f"v_exp_f32 v{tmp+r}, v{tmp+r}" for r in range(4)]
    L += [f"v_fma_f32 v{tmp+r}, v{tmp+r}, v{IR}, v{IR}" for r in range(4)]
    L += [f"v_rcp_f32 v{tmp+r}, v{tmp+r}" for r in range(4)]
    L += [f"v_mul_f32 v{tmp+r}, v{tmp+r}, v{a+r}" for r in range(4)]
    return L


def tgen(e, j0s, TB, ST, us=(0, 1, 2), hook=None):
    S0, S1, FA, C1r, C32r, P0, K8, Q = ST, ST+8, ST+16, ST+17, ST+18, ST+19, ST+20, ST+21
    if 0 in us: e(f"s_lshl_b32 s46, s{j0s}, 4\nv_add_u32 v{FA}, s46, v3\nv_cvt_f32_u32 v{FA}, v{FA}\nv_lshlrev_b32 v{Q+1}, 3, v2\nv_cvt_f32_u32 v{Q+1}, v{Q+1}\nv_mov_b32 v{K8}, 0x3e000000")
    for u in us:
        if u: e(f"v_add_f32 v{FA}, 0x41800000, v{FA}")
        e(f"""v_mul_f32 v{C1r}, {fhex(1/576)}, v{FA}
v_mul_f32 v{C32r}, {fhex(1/18)}, v{FA}
v_mul_f32 v{P0}, v{FA}, v{Q+1}
v_floor_f32 v{C32r}, v{C32r}
v_cos_f32 v{C1r}, v{C1r}
v_fmamk_f32 v{C32r}, v{C32r}, {fhex(-18.0)}, v{FA}
v_mul_f32 v{C32r}, {fhex(1/18)}, v{C32r}""")
        sd = [(S0, 0), (S0+1, 1), (S1, 32), (S1+1, 33)]
        for r, k in sd: e(f"v_fmamk_f32 v{r}, v{FA}, {fhex(float(k))}, v{P0}")
        e(f"v_cos_f32 v{C32r}, v{C32r}")
        for r, k in sd: e(f"v_mul_f32 v{r+2}, {fhex(1/576)}, v{r}")
        e(f"v_add_f32 v{C1r}, v{C1r}, v{C1r}")
        for r, k in sd: e(f"v_floor_f32 v{r+2}, v{r+2}")
        e(f"v_add_f32 v{C32r}, v{C32r}, v{C32r}")
        for r, k in sd: e(f"v_fmamk_f32 v{r}, v{r+2}, {fhex(-576.0)}, v{r}")
        for r, k in sd: e(f"v_fmamk_f32 v{r}, v{r}, {fhex(1/576)}, v{K8}")
        for r, k in sd: e(f"v_sin_f32 v{r}, v{r}")
        e("s_nop 0")
        for i in range(2, 8):
            for S in (S0, S1): e(f"v_fma_f32 v{S+i}, v{C1r}, v{S+i-1}, -v{S+i-2}")
        for ks in range(9):
            S = S0 if ks % 2 == 0 else S1; O = S1 if ks % 2 == 0 else S0
            if ks >= 2:
                for i in range(8): e(f"v_fma_f32 v{S+i}, v{C32r}, v{O+i}, -v{S+i}")
            for m in range(4): e(f"v_cvt_pk_bf16_f32 v{TB+(ks*3+u)*4+m}, v{S+2*m}, v{S+2*m+1}")
            if hook: hook(u, ks)

def pack_job(e, ldflag, stflag):
    e(f"s_mul_i32 s40, s35, {3*73728}\ns_add_u32 s36, s36, s40")
    e("s_mul_i32 s40, s34, s33\ns_mul_i32 s41, s35, 384\ns_add_u32 s40, s40, s41")
    e("""v_lshrrev_b32 v6, 3, v1
v_mul_lo_u32 v6, v6, s33
v_and_b32 v7, 7, v1
v_lshl_add_u32 v6, v7, 4, v6
s_lshl_b32 s41, s33, 3
s_mul_i32 s39, s39, s33
s_mul_i32 s42, s3, 12288""")
    for f in range(4):
        for it in range(3):
            e(f"s_add_u32 m0, s42, {it*4096 + f*1024 - it*128}")
            e(f"s_add_u32 s40, s40, s{39 if f == 2 else 41}" if (it == 0 and f) else "s_nop 0")
            e.vmop(f"buffer_load_dwordx4 v6, s[12:15], s40 offen offset:{128*it} {ldflag} lds", ("d", 0))
    e("""v_mul_lo_u32 v7, v2, s37
v_lshrrev_b32 v8, 2, v3
v_add_u32 v7, v7, v8
v_lshlrev_b32 v7, 7, v7
v_and_b32 v8, 3, v3
v_lshl_add_u32 v7, v8, 3, v7
v_add_u32 v7, s42, v7
s_lshl_b32 s43, s38, 7
v_add_u32 v8, s43, v7
v_add_u32 v9, 18432, v4
v_add_u32 v10, 36864, v4
v_add_u32 v11, 55296, v4""")
    nst_save = NST; globals()["NST"] = 1
    stamp(e, lvl=-1)
    for it in range(3):
        e.wait(vm=("d", it))
        if it == 0: stamp(e, lvl=-1)
        for tt in range(4):
            o = 16 + 16*it + 4*tt
            e.lgop(f"ds_read_b64_tr_b16 {vr(o,2)}, v7 offset:{it*4096 + 32*tt}", (it, tt))
            e.lgop(f"ds_read_b64_tr_b16 {vr(o+2,2)}, v8 offset:{it*4096 + 32*tt}", (it, tt))
        for tt in range(4):
            e.wait(lg=(it, tt))
            e.vmop(f"buffer_store_dwordx4 {vr(16 + 16*it + 4*tt)}, v{(4,9,10,11)[tt]}, s[8:11], s36 offen {stflag}", "st")
        if it < 2: e("s_add_u32 s36, s36, 73728")
    globals()["NST"] = nst_save
    e.vm = []; e.lg = []

def code_srd(e, d, label, nbytes):
    e(f"s_getpc_b64 s[{d}:{d+1}]\ns_add_u32 s{d}, s{d}, {label}@rel32@lo+4\ns_addc_u32 s{d+1}, s{d+1}, {label}@rel32@hi+12")
    e(f"s_and_b32 s{d+1}, s{d+1}, 0xffff\ns_mov_b32 s{d+2}, {nbytes}\ns_mov_b32 s{d+3}, 0x00020000")

def touch(e, srd, sreg, nbytes, vaddr, vd, stride=64):
    n = -(-nbytes // stride); i = 0
    while n > 0:
        if n < 64: e(f"s_mov_b32 exec_lo, {hex((1 << min(n,32)) - 1)}\ns_mov_b32 exec_hi, {hex((1 << max(n-32,0)) - 1)}")
        e(f"buffer_load_dword v{vd}, v{vaddr}, s[{srd}:{srd+3}], s{sreg} offen")
        n -= 64; i += 1
        if n > 0: e(f"s_add_u32 s{sreg}, s{sreg}, {64*stride}")
    e("s_mov_b64 exec, -1")

def k1(e):
    name = "k1_kernel"
    N3 = 216
    NS = 243
    Lend = pro(e, name, 256 + NS, x=True, extra=((20, 8), (22, 16), (24, 32), (26, 40), (28, 48), (30, 56), (18, 64)))
    if OPT.get("cpf0", 1):
        code_srd(e, 52, "code_begin", "k3_kernel-code_begin")
        e("s_lshr_b32 s44, s2, 3\ns_lshl_b32 s44, s44, 2\ns_add_u32 s44, s44, s3\ns_and_b32 s44, s44, 15\ns_lshl_b32 s44, s44, 10")
        e.vmop("buffer_load_dwordx4 v[196:199], v4, s[52:55], s44 offen", "c")
    if OPT.get("burn1"): burn(e, OPT["burn1"])
    Lside = e.label("side"); Lst = e.label("stats"); Lep = e.label("ep")
    ACC, BF, NB, TB = 16, 64, 3, 88
    def acc(h, u, t): return ACC + h*24 + (u*2+t)*4
    e(f"s_cmp_ge_u32 s2, 256\ns_cbranch_scc1 {Lside}")
    e("""s_bfe_u32 s34, s2, 0x20003
s_and_b32 s35, s2, 7
s_lshl_b32 s35, s35, 3
s_lshr_b32 s39, s2, 5
s_add_u32 s35, s35, s39
s_lshr_b32 s36, s35, 5
s_bfe_u32 s37, s35, 0x20003
s_and_b32 s38, s35, 7
s_lshl_b32 s40, s36, 5
s_lshr_b32 s41, s3, 1
s_lshl_b32 s41, s41, 4
s_add_u32 s40, s40, s41
s_lshl_b32 s41, s37, 2
s_add_u32 s40, s40, s41
s_lshl_b32 s40, s40, 5
s_lshl_b32 s41, s38, 2
s_add_u32 s40, s40, s41
v_and_b32 v6, 3, v3
v_lshlrev_b32 v6, 5, v6
v_lshrrev_b32 v7, 2, v3
v_add3_u32 v6, v6, v7, s40
v_mul_u32_u24 v7, 1152, v6
v_lshl_add_u32 v7, v2, 4, v7
s_and_b32 s41, s3, 1
s_mul_i32 s41, s41, 576
s_mul_i32 s42, s3, 9216
s_mul_i32 s44, s34, 9
s_mul_i32 s45, s3, 3
s_add_u32 s44, s44, s45""")
    if OPT.get("k1pre", 0): tgen(e, 44, TB, 16, (0,))
    pro2(e, x=True)
    for idx in range(9):
        e(f"s_add_u32 m0, s42, {idx*960}\ns_nop 0")
        e.vmop(f"buffer_load_dwordx4 v7, s[12:15], s41 offen offset:{64*idx} {OPT.get('ld_x','')} lds", "dma")
    e(f"s_cmp_eq_u32 s3, 3\ns_cbranch_scc1 {Lst}")
    vm_save = list(e.vm)
    tgen(e, 44, TB, 16, (1, 2) if OPT.get("k1pre", 0) else (0, 1, 2))
    e(f"""v_lshlrev_b32 v8, 12, v3
v_lshl_add_u32 v8, v2, 4, v8
s_lshl_b32 s50, s44, 16
s_lshr_b32 s51, s38, 2
s_lshl_b32 s51, s51, 1
s_add_u32 s51, s51, s36
s_lshl_b32 s51, s51, 10
s_add_u32 s50, s50, s51
s_lshl_b32 s51, s37, 8
s_add_u32 s50, s50, s51
s_and_b32 s51, s38, 3
s_lshl_b32 s51, s51, 6
s_add_u32 s50, s50, s51
s_add_u32 s50, s50, {UT}
v_lshlrev_b32 v9, 4, v2
v_lshlrev_b32 v10, 31, v3
v_or_b32 v10, 1.0, v10""")
    stamp(e)
    e.wait(vm="dma")
    e("s_barrier")
    stamp(e)
    def rd(ks):
        for t in range(2):
            e.lgop(f"ds_read_b128 {vr(BF + ((ks % NB)*2 + t)*4)}, v4 offset:{(t*18+ks)*1024}", ("b", ks))
    for ks in range(NB-1): rd(ks)
    for ks in range(18):
        if ks + NB - 1 < 18: rd(ks + NB - 1)
        e.wait(lg=("b", ks))
        for u in range(3):
            for t in range(2):
                d = vr(acc(ks // 9, u, t))
                e(f"{M16} {d}, {vr(BF + ((ks % NB)*2 + t)*4)}, {vr(TB + ((ks % 9)*3 + u)*4)}, {d if ks % 9 else 0}")
    stamp(e)
    e("s_barrier")
    stamp(e)
    e.lgop("ds_read_b128 v[76:79], v9 offset:36864", "r"); e.lgop("ds_read_b128 v[80:83], v9 offset:36928", "r")
    e("s_nop 3")
    for u in range(3):
        for t in range(2):
            for r in range(4): e(f"v_fmac_f32 v{acc(0,u,t)+r}, v{acc(1,u,t)+r}, v10")
        e.wait(lg="all")
        for t in range(2):
            for r in range(4): e(f"v_mul_f32 v{acc(0,u,t)+r}, v{acc(0,u,t)+r}, v{76+4*t+r}")
        o = BF + 4*u
        for t in range(2):
            e(f"v_cvt_pk_bf16_f32 v{o+2*t}, v{acc(0,u,t)}, v{acc(0,u,t)+1}\nv_cvt_pk_bf16_f32 v{o+2*t+1}, v{acc(0,u,t)+2}, v{acc(0,u,t)+3}")
        e.vmop(f"buffer_store_dwordx4 {vr(o)}, v8, s[8:11], s50 offen {OPT.get('sc_ut','')}", "st")
        if u < 2: e("s_add_u32 s50, s50, 65536")
    stamp(e)
    if OPT.get("touch34"):
        ts = OPT.get("tstride", 64)
        e.srd(48, 28, 5308416); e.srd(52, 30, 5308416)
        e(f"v_mul_u32_u24 v11, {ts}, v1\ns_mul_i32 s38, s2, 3\ns_add_u32 s38, s38, s3\ns_mul_i32 s38, s38, 6912\ns_mov_b32 s39, s38")
        dump(e, 1)
        touch(e, 48, 38, 6912, 11, 16, ts); touch(e, 52, 39, 6912, 11, 20, ts)
        e("s_endpgm")
    e(f"s_branch {Lep}")
    e(f"{Lst}:")
    e.vm = vm_save; e.lg = []
    if OPT.get("cpf", 1):
        code_srd(e, 52, "code_begin", "code_end-code_begin")
        e("s_lshr_b32 s44, s2, 3\ns_mul_i32 s44, s44, 3072")
        for i in range(3): e.vmop(f"buffer_load_dwordx4 v[{100+4*i}:{103+4*i}], v4, s[52:55], s44 offen offset:{1024*i}", "c")
    if OPT.get("tlb"):
        st_ = OPT["tlb"]
        e.srd(48, 28, 5308416); e.srd(52, 30, 5308416); e.srd(56, 18, A_)
        e(f"v_lshlrev_b32 v11, {st_}, v1")
        n = -(-(FLG + FLG_SZ) >> st_)
        for i in range(-(-n // 64)):
            e(f"s_mov_b32 s44, {i << (st_ + 6)}")
            e.vmop("buffer_load_dword v44, v11, s[8:11], s44 offen", "t")
        for sr in (48, 52, 56): e.vmop(f"buffer_load_dword v44, v11, s[{sr}:{sr+3}], 0 offen", "t")
    for i in range(4): e(f"v_mov_b32 v{12+i}, 0x3f803f80")
    e("v_lshrrev_b32 v8, 2, v3\nv_and_b32 v9, 3, v3")
    e.wait(vm="dma")
    e("s_barrier")
    NR = 6
    def rds(f): e.lgop(f"ds_read_b128 {vr(64+4*(f%NR))}, v4 offset:{f*1024}", f)
    for f in range(NR-1): rds(f)
    for f in range(36):
        if f + NR - 1 < 36: rds(f + NR - 1)
        e.wait(lg=f)
        t = f // 18; x = vr(64 + 4*(f % NR))
        e(f"{M16} {vr(16+8*t)}, {x}, v[12:15], {vr(16+8*t) if f % 18 else 0}")
        e(f"{M16} {vr(20+8*t)}, {x}, {x}, {vr(20+8*t) if f % 18 else 0}")
    e("v_cmp_eq_u32 s[40:41], 1, v9\nv_cmp_eq_u32 s[42:43], 2, v9\nv_cmp_eq_u32 s[46:47], 3, v9\nv_cmp_eq_u32 s[48:49], v8, v2\ns_nop 4")
    for b in (16, 20, 24, 28):
        e(f"v_cndmask_b32 v{b}, v{b}, v{b+1}, s[40:41]\nv_cndmask_b32 v{b}, v{b}, v{b+2}, s[42:43]\nv_cndmask_b32 v{b}, v{b}, v{b+3}, s[46:47]")
    e(f"v_mov_b32 v32, {fhex(1/576)}")
    for t in range(2):
        b = 16 + 8*t
        e(f"""v_mul_f32 v{b}, v32, v{b}
v_mul_f32 v{b+1}, v{b}, v{b}
v_fma_f32 v{b+4}, v{b+4}, v32, -v{b+1}
v_max_f32 v{b+4}, 0, v{b+4}
v_add_f32 v{b+4}, {fhex(EPS)}, v{b+4}
v_rsq_f32 v{b+4}, v{b+4}""")
    Lns = e.label("nost")
    e(f"""v_lshlrev_b32 v33, 2, v3
s_lshl_b32 s45, s35, 7
s_add_u32 s45, s45, {MX}
s_mov_b64 exec, s[48:49]
ds_write_b32 v33, v20 offset:36864
ds_write_b32 v33, v28 offset:36928
s_cmp_lg_u32 s34, 0
s_cbranch_scc1 {Lns}
buffer_store_dword v16, v33, s[8:11], s45 offen
buffer_store_dword v24, v33, s[8:11], s45 offen offset:64
{Lns}:
s_waitcnt lgkmcnt(0)
s_barrier
s_branch {Lep}""")
    e(f"{Lside}:")
    e.vm = []; e.lg = []
    Lwt, Lrm, L2, Lgo = [e.label(x) for x in ("wt", "rm", "w2", "go")]
    L3, Lgo2, Lpk, Lw1 = e.label("w3"), e.label("go2"), e.label("pk"), e.label("wv1")
    e(f"""s_sub_u32 s32, s2, 256
s_cmp_eq_u32 s3, 0
s_cbranch_scc1 {Lpk}
s_cmp_eq_u32 s3, 1
s_cbranch_scc1 {Lw1}
s_mul_i32 s33, s3, 243
s_add_u32 s32, s33, s32
s_sub_u32 s32, s32, 486
s_waitcnt lgkmcnt(0)
s_branch {Lwt}
{Lw1}:
s_add_u32 s32, s32, 243
s_cmp_lt_u32 s32, 324
s_cbranch_scc1 {Lpk}
s_waitcnt lgkmcnt(0)
s_sub_u32 s32, s32, 324
s_cmp_lt_u32 s32, 72
s_cbranch_scc1 {Lrm}
s_add_u32 s32, s32, {486 - 72}
s_branch {Lwt}
{Lpk}:""")
    pro2(e)
    e(f"s_cmp_lt_u32 s32, 216\ns_cbranch_scc1 {L3}\ns_sub_u32 s32, s32, 216\ns_cmp_ge_u32 s32, 54\ns_cbranch_scc1 {L2}")
    e.srd(12, 24, 663552)
    e(f"s_mov_b32 s39, {W1P}\ns_branch {Lgo}\n{L2}:\ns_sub_u32 s32, s32, 54")
    e.srd(12, 26, 663552)
    e(f"s_mov_b32 s39, {W2P}\n{Lgo}:")
    sdiv(e, 3, 34, 35, 32, 40)
    e("s_mov_b32 s33, 1152\ns_lshl_b32 s36, s34, 10\ns_add_u32 s36, s36, s39\ns_mov_b32 s37, 8\ns_mov_b32 s38, 4\ns_mov_b32 s39, 8\ns_lshl_b32 s34, s34, 5")
    pack_job(e, OPT.get("ld_p12", "nt"), OPT.get("sc_p12", "sc1"))
    e(f"s_branch {Lep}")
    if N3:
        e(f"{L3}:")
        e.srd(12, 28, 5308416); sdiv(e, 24, 34, 35, 32, 40)
        e(f"s_mov_b32 s33, 9216\ns_lshl_b32 s36, s34, 10\ns_add_u32 s36, s36, {W3P}\ns_mov_b32 s37, 8\ns_mov_b32 s38, 4\ns_mov_b32 s39, 8\ns_lshl_b32 s34, s34, 5")
        pack_job(e, OPT.get("ld_pk", "nt"), OPT.get("sc_pk", "sc1"))
        e(f"s_branch {Lep}")
    e(f"{Lrm}:")
    e.srd(8, 4, WS_SIZE)
    e.srd(12, 26, 663552)
    e("""v_lshrrev_b32 v6, 3, v1
v_mul_u32_u24 v7, 1152, v6
v_and_b32 v8, 7, v1
v_lshl_add_u32 v7, v8, 4, v7
s_mul_i32 s33, s32, 9216
s_mov_b32 s34, 0x3f803f80
v_mov_b32 v9, 0""")
    for m in range(9): e.vmop(f"buffer_load_dwordx4 {vr(16+4*m)}, v7, s[12:15], s33 offen offset:{128*m}", m)
    Lnz = e.label("nz")
    e(f"s_cmp_ge_u32 s32, 72\ns_cbranch_scc1 {Lnz}\nv_mov_b32 v56, 0\nv_mov_b32 v57, 0\nv_mov_b32 v58, 0\nv_mov_b32 v59, 0\ns_lshl_b32 s38, s32, 10\ns_add_u32 s38, s38, {FLG}")
    e(f"buffer_store_dwordx4 v[56:59], v4, s[8:11], s38 offen\n{Lnz}:")
    e.wait(vm="all")
    for j in range(36): e(f"v_dot2_f32_bf16 v9, v{16+j}, s34, v9")
    e(f"""s_nop 3
v_add_f32_dpp v9, v9, v9 quad_perm:[1,0,3,2] row_mask:0xf bank_mask:0xf
s_nop 1
v_add_f32_dpp v9, v9, v9 quad_perm:[2,3,0,1] row_mask:0xf bank_mask:0xf
s_nop 1
v_add_f32_dpp v9, v9, v9 row_half_mirror row_mask:0xf bank_mask:0xf
v_mul_f32 v9, {fhex(1/576)}, v9
v_cvt_pk_bf16_f32 v9, v9, v9
v_lshlrev_b32 v6, 1, v6
s_lshl_b32 s33, s32, 8
s_add_u32 s33, s33, {W2P + 36*18432}
v_cmp_eq_u32 vcc, 0, v8
s_nop 1
s_and_saveexec_b64 s[36:37], vcc
buffer_store_short v9, v6, s[8:11], s33 offen
s_branch {Lep}""")
    e(f"{Lwt}:")
    e.srd(8, 4, WS_SIZE)
    sdiv(e, 9, 33, 34, 32, 40)
    e("""s_lshr_b32 s35, s33, 4
s_and_b32 s33, s33, 15
v_lshrrev_b32 v6, 5, v1
s_lshl_b32 s33, s33, 2
v_add_u32 v6, s33, v6
v_and_b32 v7, 31, v1
s_lshl_b32 s34, s34, 5
v_add_u32 v7, s34, v7
v_mul_u32_u24 v8, 578, v6
v_lshl_add_u32 v8, v7, 1, v8
v_add_u32 v8, 2, v8
s_mul_i32 s36, s35, 147968""")
    e.srd(12, 20, 1183744); e.srd(16, 22, 1183744)
    for gg in range(2):
        for tk in range(2):
            for r in range(4):
                i = gg*16 + tk*4 + r
                e(f"s_add_u32 s37, s36, {36992*(16*tk+r) + 1156*gg}")
                e.vmop(f"buffer_load_ushort v{16+i}, v8, s[12:15], s37 offen {OPT.get('ld_w','')}", gg)
                e.vmop(f"buffer_load_ushort v{24+i}, v8, s[16:19], s37 offen {OPT.get('ld_w','')}", gg)
    e(f"""v_lshlrev_b32 v9, 13, v7
v_lshrrev_b32 v10, 4, v6
v_lshl_add_u32 v9, v10, 11, v9
v_and_b32 v10, 15, v6
v_lshl_add_u32 v9, v10, 5, v9
s_lshl_b32 s36, s35, 9
s_add_u32 s36, s36, {WT}""")
    for gg in range(2):
        e.wait(vm=gg)
        for i in range(8): e(f"v_lshl_or_b32 v{16+16*gg+i}, v{24+16*gg+i}, 16, v{16+16*gg+i}")
        e.vmop(f"buffer_store_dwordx4 {vr(16+16*gg)}, v9, s[8:11], s36 offen offset:{64*gg} {OPT.get('sc_wt','')}", "st")
        e.vmop(f"buffer_store_dwordx4 {vr(20+16*gg)}, v9, s[8:11], s36 offen offset:{64*gg+16} {OPT.get('sc_wt','')}", "st")
    NC = OPT.get("chain", 0)
    if NC:
        e(f"s_cmp_ge_u32 s32, {NC}\ns_cbranch_scc1 {Lep}")
        e.srd(12, 28, 5308416); sdiv(e, 24, 34, 35, 32, 40)
        e(f"s_mov_b32 s33, 9216\ns_lshl_b32 s36, s34, 10\ns_add_u32 s36, s36, {W3P}\ns_mov_b32 s37, 8\ns_mov_b32 s38, 4\ns_mov_b32 s39, 8\ns_lshl_b32 s34, s34, 5")
        pack_job(e, OPT.get("ld_pk", "nt"), OPT.get("sc_pk", "sc1"))
    e(f"{Lep}:")
    epi(e, name, Lend, 1, 200, 200)
    e.add_launch(name, 256 + NS, lds=49152)

def p2x2(e):
    e(f"""s_lshl_b32 s35, s34, 13
s_add_u32 s35, s35, 4096
s_sub_u32 s36, {575*4096}, s35
s_add_u32 s36, s36, 4096
s_cmp_eq_u32 s34, 143
s_cselect_b32 s14, 0, {WS_SIZE}
s_cselect_b32 s38, 0, -1
s_sub_u32 s37, s36, 4096
s_and_b32 s45, s37, s38
s_lshl_b32 s39, s34, 14
s_lshl_b32 s40, s3, 11
s_add_u32 s39, s39, s40
s_add_u32 s39, s39, {WT}
s_add_u32 s46, s35, 4096
s_add_u32 s47, s39, 8192
v_lshlrev_b32 v6, 5, v1
s_cmp_eq_u32 s3, 1
s_cselect_b32 s48, s36, s35
s_cmp_eq_u32 s3, 2
s_cselect_b32 s48, s46, s48
s_cmp_eq_u32 s3, 3
s_cselect_b32 s48, s37, s48
s_cselect_b32 s14, s14, {WS_SIZE}
s_lshl_b32 s49, s3, 12
s_add_u32 m0, s49, 16384""")
    pro2(e)
    e("s_mov_b32 s12, s8\ns_mov_b32 s13, s9\ns_mov_b32 s15, 0x00020000")
    P, Q, WV, RE, IM, PR, PI = (16, 168), (32, 184), (48, 200), (152, 208), (160, 216), (8, 224), (12, 228)
    for f in range(4): e.vmop(f"buffer_load_dwordx4 v4, s[12:15], s48 offen offset:{f*1024} lds", "d")
    for c in range(2):
        e.vmop(f"buffer_load_dwordx4 {vr(WV[c])}, v6, s[8:11], s{(39,47)[c]} offen", ("w", c))
        e.vmop(f"buffer_load_dwordx4 {vr(WV[c]+4)}, v6, s[8:11], s{(39,47)[c]} offen offset:16", ("w", c))
    C64, S64, N64 = 56, 64, 72
    C32, S32, N32 = 80, 88, 96
    TC1, TS1, TC2, TS2 = 104, 112, 120, 128
    TMP = 136
    e("""s_lshl_b32 s40, s3, 4
v_add_u32 v7, s40, v3
v_cvt_f32_u32 v7, v7
v_lshlrev_b32 v5, 2, v2
v_cvt_f32_u32 v5, v5
v_cvt_f32_u32 v6, v3
s_mov_b32 s41, 0x80008000
s_brev_b32 s42, 1
v_and_b32 v0, 1, v3
v_mul_lo_u32 v0, v0, s41""")
    e(f"v_mul_f32 v8, {fhex(1/64)}, v7\nv_mul_f32 v9, v5, v8")
    for i in range(8): e(f"v_fmamk_f32 v{TMP+i}, v8, {fhex(float(16*(i>>2) + (i&3)))}, v9")
    for i in range(8): e(f"v_fract_f32 v{TMP+i}, v{TMP+i}")
    for i in range(8): e(f"v_sin_f32 v{TMP+8+i}, v{TMP+i}")
    for i in range(8): e(f"v_cos_f32 v{TMP+i}, v{TMP+i}")
    for m in range(4): e(f"v_cvt_pk_bf16_f32 v{S64+m}, v{TMP+8+2*m}, v{TMP+9+2*m}")
    for m in range(4): e(f"v_cvt_pk_bf16_f32 v{C64+m}, v{TMP+2*m}, v{TMP+1+2*m}")
    for m in range(4): e(f"v_xor_b32 v{N64+m}, s41, v{S64+m}")
    for b in (C64, S64, N64):
        for m in range(4): e(f"v_xor_b32 v{b+4+m}, v0, v{b+m}")
    tw1 = [f"v_mul_f32 v8, {fhex(1/2048)}, v7", "v_mul_f32 v9, v5, v8"]
    tw1 += [f"v_fmamk_f32 v{TC1+i}, v8, {fhex(float(16*(i>>2)+(i&3)))}, v9" for i in range(8)]
    tw1 += [f"v_sin_f32 v{TS1+i}, v{TC1+i}" for i in range(8)] + [f"v_cos_f32 v{TC1+i}, v{TC1+i}" for i in range(8)]
    for l in tw1: e(l)
    m32 = [f"v_mul_f32 v8, {fhex(1/32)}, v6", "v_mul_f32 v9, v5, v8"]
    m32 += [f"v_fmamk_f32 v{TC2+i}, v8, {fhex(float(i))}, v9" for i in range(4)]
    m32 += [f"v_fract_f32 v{TC2+i}, v{TC2+i}" for i in range(4)]
    m32 += [f"v_sin_f32 v{TC2+4+i}, v{TC2+i}" for i in range(4)] + [f"v_cos_f32 v{TC2+i}, v{TC2+i}" for i in range(4)]
    m32 += [f"v_cvt_pk_bf16_f32 v{S32+m}, v{TC2+4+2*m}, v{TC2+5+2*m}" for m in range(2)]
    m32 += [f"v_cvt_pk_bf16_f32 v{C32+m}, v{TC2+2*m}, v{TC2+1+2*m}" for m in range(2)]
    m32 += [f"v_xor_b32 v{b+2+m}, v0, v{b+m}" for b in (C32, S32) for m in range(2)]
    m32 += [f"v_xor_b32 v{b+4+m}, s42, v{b+m}" for b in (C32, S32) for m in range(4)]
    m32 += [f"v_xor_b32 v{N32+m}, s41, v{S32+m}" for m in range(8)]
    tw2 = ["v_cvt_f32_u32 v0, s40", "v_add_f32 v0, v0, v5", f"v_mul_f32 v7, {fhex(1/2048)}, v6", f"v_add_f32 v5, {fhex(16/2048)}, v7",
           "v_mul_f32 v6, v0, v7", "v_mul_f32 v0, v0, v5"]
    tw2 += [f"v_fmamk_f32 v{TC2+r}, v7, {fhex(float(r))}, v6" for r in range(4)]
    tw2 += [f"v_fmamk_f32 v{TC2+4+r}, v5, {fhex(float(r))}, v0" for r in range(4)]
    tw2 += [f"v_sin_f32 v{TS2+i}, v{TC2+i}" for i in range(8)] + [f"v_cos_f32 v{TC2+i}, v{TC2+i}" for i in range(8)]
    def steps(lst, fill=(), per=2, tail=0):
        fill = list(fill)
        n = len(lst[0][1])
        for k in range(n):
            for d, ch in lst:
                A, B = ch[k]
                e(f"{M16} {vr(d)}, {vr(A)}, {vr(B)}, {vr(d) if k else 0}")
                for _ in range(per):
                    if fill: e(fill.pop(0))
        nleft = len(fill)
        for l in fill: e(l)
        if nleft < tail: e(f"s_nop {tail - nleft - 1}")
    def cmul(c, cre, sim, sign):
        L = [f"v_mul_f32 v{TMP+i}, v{RE[c]+i}, v{cre+i}" for i in range(8)]
        L += [f"v_mul_f32 v{TMP+8+i}, v{IM[c]+i}, v{cre+i}" for i in range(8)]
        L += [f"v_fma_f32 v{TMP+i}, {'-' if sign > 0 else ''}v{IM[c]+i}, v{sim+i}, v{TMP+i}" for i in range(8)]
        L += [f"v_fma_f32 v{TMP+8+i}, {'' if sign > 0 else '-'}v{RE[c]+i}, v{sim+i}, v{TMP+8+i}" for i in range(8)]
        L += [f"v_cvt_pk_bf16_f32 v{PR[c]+m}, v{TMP+2*m}, v{TMP+2*m+1}" for m in range(4)]
        L += [f"v_cvt_pk_bf16_f32 v{PI[c]+m}, v{TMP+8+2*m}, v{TMP+9+2*m}" for m in range(4)]
        return L
    def MA(c, s1, s2): return ([(RE[c]+4*ts, [(P[c]+8*ts, C64), (Q[c]+8*ts, s1), (P[c]+8*ts+4, C64+4), (Q[c]+8*ts+4, s1+4)]) for ts in range(2)] +
                               [(IM[c]+4*ts, [(Q[c]+8*ts, C64), (P[c]+8*ts, s2), (Q[c]+8*ts+4, C64+4), (P[c]+8*ts+4, s2+4)]) for ts in range(2)])
    def MB(c): return ([(RE[c]+4*tk, [(C32+4*tk, PR[c]), (S32+4*tk, PI[c])]) for tk in range(2)] + [(IM[c]+4*tk, [(C32+4*tk, PI[c]), (N32+4*tk, PR[c])]) for tk in range(2)])
    def MC(c): return ([(RE[c]+4*ts, [(PR[c], C32+4*ts), (PI[c], N32+4*ts)]) for ts in range(2)] + [(IM[c]+4*ts, [(PI[c], C32+4*ts), (PR[c], S32+4*ts)]) for ts in range(2)])
    def wun(c):
        L = []
        for i in range(8): L += [f"v_lshlrev_b32 v{TC1+i}, 16, v{WV[c]+i}", f"v_and_b32 v{TS1+i}, 0xffff0000, v{WV[c]+i}"]
        return L
    stamp(e, lvl=6)
    for l in m32: e(l)
    stamp(e, lvl=7)
    e.wait(vm="d")
    e("s_barrier")
    for c in range(2):
        for js in range(2):
            for ts in range(2):
                f = ts*2 + js
                e.lgop(f"ds_read_b128 {vr(P[c]+4*f)}, v4 offset:{16384 + c*8192 + f*1024}", ("u", c))
                e.lgop(f"ds_read_b128 {vr(Q[c]+4*f)}, v4 offset:{16384 + c*8192 + 4096 + f*1024}", ("u", c))
    stamp(e, lvl=7)
    e.wait(lg=("u", 0))
    steps(MA(0, S64, N64), tw2, 2, 8)
    stamp(e, lvl=7)
    e.wait(lg=("u", 1))
    stamp(e, lvl=7)
    steps(MA(1, S64, N64), cmul(0, TC1, TS1, -1), 2, 8)
    e("s_nop 0")
    steps(MB(0), cmul(1, TC1, TS1, -1), 2, 8)
    stamp(e, lvl=7)
    e.wait(vm=("w", 1))
    stamp(e, lvl=7)
    steps(MB(1), wun(0) + cmul(0, TC1, TS1, +1), 2, 8)
    e("s_lshr_b32 s43, s3, 1\ns_lshl_b32 s43, s43, 10")
    steps(MC(0), wun(1) + cmul(1, TC1, TS1, +1), 2, 8)
    e("s_and_b32 s44, s3, 1\ns_lshl_b32 s44, s44, 3\ns_add_u32 s43, s43, s44")
    e("v_add_u32 v5, s43, v4")
    steps(MC(1), cmul(0, TC2, TS2, +1), 2, 8)
    stamp(e, lvl=7)
    for c in range(2):
        for l in (cmul(c, TC2, TS2, +1) if c else []): e(l)
        for ts in range(2):
            e.lgop(f"ds_write_b64 v5, {vr(PR[c]+2*ts,2)} offset:{c*8192 + (ts*2+0)*2048}", "x")
            e.lgop(f"ds_write_b64 v5, {vr(PI[c]+2*ts,2)} offset:{c*8192 + (ts*2+1)*2048}", "x")
    e(f"""s_lshl_b32 s40, s3, 9
v_lshrrev_b32 v6, 1, v3
v_lshlrev_b32 v6, 6, v6
v_and_b32 v7, 1, v3
v_lshl_add_u32 v6, v7, 11, v6
v_lshl_add_u32 v6, v2, 4, v6
v_add_u32 v6, s40, v6
s_add_u32 s35, s35, {VT}
s_add_u32 s36, s36, {VT}
s_add_u32 s46, s46, {VT}
s_add_u32 s45, s45, {VT}""")
    e.wait(lg="all")
    stamp(e, lvl=7)
    e("s_barrier")
    stamp(e, lvl=6); stamp(e, lvl=7)
    for c in range(2):
        for js in range(2):
            for ts in range(2):
                e.lgop(f"ds_read_b128 {vr(P[c]+8*ts+4*js)}, v4 offset:{c*8192 + ((ts*2+0)*2+js)*1024}", ("y", c))
                e.lgop(f"ds_read_b128 {vr(Q[c]+8*ts+4*js)}, v4 offset:{c*8192 + ((ts*2+1)*2+js)*1024}", ("y", c))
    def fin(c):
        L = [f"v_cvt_pk_bf16_f32 v{PR[c]+m}, v{RE[c]+2*m}, v{RE[c]+2*m+1}" for m in range(4)]
        L += [f"buffer_store_dwordx4 {vr(PR[c])}, v6, s[8:11], s{(35,46)[c]} offen sc1"]
        L += [f"v_cvt_pk_bf16_f32 v{PI[c]+m}, v{IM[c]+2*m}, v{IM[c]+2*m+1}" for m in range(4)]
        if c: L += [f"v_and_b32 v{PI[c]+m}, s38, v{PI[c]+m}" for m in range(4)]
        L += [f"buffer_store_dwordx4 {vr(PI[c])}, v6, s[8:11], s{(36,45)[c]} offen sc1"]
        return L
    e.wait(lg=("y", 0))
    steps(MA(0, N64, S64))
    e.wait(lg=("y", 1))
    steps(MA(1, N64, S64), ["s_nop 0"]*4 + fin(0), 1, 8)
    for l in fin(1): e(l)
    stamp(e, lvl=7)
    e.vm = []; e.lg = []

NPF = 32
def k3(e):
    name = "k3_kernel"
    Lend = pro(e, name, 256, x=True, extra=((22, 64), (20, 56), (18, 48)))
    W4K3 = 0
    ACC, BF, NB, HCR, TB, XR = 16, 64, 3, 40, 104, 212
    XV, AC, TT, KC, TMP, PK, RING, BASE = 16, 48, 64, 80, 92, 96, 104, 232
    DA = 244
    def acc(u, t): return ACC + (u*2+t)*4
    def wfrag(ph, ks, u):
        if ph == "T": return vr(TB + ((ks % 9)*3 + u)*4)
        f = ks*3 + u
        if ph == "W1": return vr(4*f, 4, "a")
        if f < 32: return vr(104 + 4*f)
        if f < 42: return vr(216 + 4*(f-32), 4, "a")
        return vr(4*(f-42), 4, "a")
    if OPT.get("burn3"): burn(e, OPT["burn3"])
    mp = OPT.get("map", 3)
    e("s_lshr_b32 s30, s2, 3\ns_and_b32 s31, s2, 7")
    if mp == 2:
        e("s_lshl_b32 s26, s31, 2\ns_lshr_b32 s32, s30, 3\ns_add_u32 s26, s26, s32\ns_and_b32 s24, s30, 3\ns_bfe_u32 s29, s30, 0x10002")
    elif mp == 3:
        e("s_lshr_b32 s26, s31, 1\ns_lshl_b32 s26, s26, 3\ns_lshr_b32 s32, s30, 2\ns_add_u32 s26, s26, s32\ns_and_b32 s24, s30, 3\ns_and_b32 s29, s31, 1")
    elif mp == 4:
        e("s_lshr_b32 s26, s31, 2\ns_lshl_b32 s26, s26, 4\ns_lshr_b32 s32, s30, 1\ns_add_u32 s26, s26, s32\ns_and_b32 s24, s31, 2\ns_and_b32 s32, s30, 1\ns_add_u32 s24, s24, s32\ns_and_b32 s29, s31, 1")
    elif mp == 1:
        e("s_mov_b32 s26, s30\ns_lshr_b32 s24, s31, 1\ns_and_b32 s29, s31, 1")
    e("""s_lshl_b32 s25, s26, 1
s_add_u32 s25, s25, s29
s_mul_i32 s27, s24, 9
s_mul_i32 s32, s3, 3
s_add_u32 s27, s27, s32
s_lshl_b32 s28, s29, 2
s_add_u32 s28, s28, s24""")
    HB = 73728
    def setup6():
        e(f"""s_mul_i32 s40, s26, 73728
s_mul_i32 s32, s3, 18432
s_add_u32 s40, s40, s32
s_add_u32 s40, s40, {X6}
v_lshlrev_b32 v6, 3, v3
v_mul_u32_u24 v7, 384, v2
v_add_u32 v6, v6, v7
s_lshl_b32 s37, s26, 12
s_add_u32 s37, s37, {SQ1}
s_lshr_b32 s33, s3, 1
s_lshl_b32 s33, s33, 10
s_and_b32 s36, s3, 1
s_lshl_b32 s36, s36, 3
s_add_u32 s33, s33, s36
s_add_u32 s33, s33, {HB}
v_add_u32 v8, s33, v4
v_add_u32 v9, 36864, v8
v_add_u32 v12, {HB}, v4
v_add_u32 v13, {HB+36864}, v4
v_add_u32 v14, s32, v4
s_lshl_b32 s34, s26, 2
s_add_u32 s34, s34, s3
s_mul_i32 s34, s34, 18432
s_mul_i32 s35, s28, {A_}
s_add_u32 s34, s34, s35
s_add_u32 s34, s34, {PART}""")
    NT = 2*162
    ORD = [0, 3, 6, 1, 4, 7, 2, 5, 8]
    def wload6(n):
        out = []
        if OPT.get("rot"):
            ph2 = n >= 162
            b, ks = divmod(n % 162, 18)
            rot = OPT["rot"] & (2 if ph2 else 1)
            if ks == 0:
                t = ORD[b] if ph2 else b
                if rot: out.append(("s", f"s_and_b32 s16, s26, 7\ns_add_u32 s16, s16, {t}\ns_cmp_ge_u32 s16, 9\ns_cselect_b32 s17, 9, 0\ns_sub_u32 s16, s16, s17\ns_mul_i32 s16, s16, 18432\ns_add_u32 s16, s16, s{31 if ph2 else 30}"))
                else: out.append(("s", f"s_add_u32 s16, s{31 if ph2 else 30}, {t*18432}"))
            if ks % 4 == 0: out.append(("s", f"s_add_u32 s17, s16, {ks*1024}"))
            out.append(("v", f"buffer_load_dwordx4 {vr(RING+4*(n % NPF))}, v4, s[8:11], s17 offen offset:{(ks&3)*1024} {OPT.get('ld6', 'sc1')}", ("w", n)))
        elif n < 162:
            if n % 4 == 0 and n: out.append(("s", "s_add_u32 s30, s30, 4096"))
            out.append(("v", f"buffer_load_dwordx4 {vr(RING+4*(n % NPF))}, v4, s[8:11], s30 offen offset:{(n&3)*1024} {OPT.get('ld6', 'sc1')}", ("w", n)))
        else:
            b, ks = divmod(n - 162, 18)
            if ks % 4 == 0: out.append(("s", f"s_add_u32 s30, s31, {ORD[b]*18432 + ks*1024}"))
            out.append(("v", f"buffer_load_dwordx4 {vr(RING+4*(n % NPF))}, v4, s[8:11], s30 offen offset:{(ks&3)*1024} {OPT.get('ld6', 'sc1')}", ("w", n)))
        return out
    def emit(x):
        if x[0] == "s": e(x[1])
        elif x[0] == "v": e.vmop(x[1], x[2])
        elif x[0] == "l": e.lgop(x[1], x[2])
        elif x[0] == "wv": e.wait(vm=x[1])
        elif x[0] == "wl": e.wait(lg=x[1])
        elif x[0] == "st": stamp(e, lvl=x[1])
    Lpack, Ljoin = e.label("pack"), e.label("join")
    e(f"s_cmp_ge_u32 s30, 18\ns_cbranch_scc1 {Lpack}\ns_lshl_b32 s34, s30, 3\ns_add_u32 s34, s34, s31\ns_mov_b32 s58, s34\ns_mov_b32 s56, 255\ns_mov_b32 s57, 0")
    p2x2(e)
    e(f"""s_branch {Ljoin}
{Lpack}:
s_sub_u32 s56, s30, 18
s_lshl_b32 s56, s56, 3
s_add_u32 s56, s56, s31""")
    e("""s_cmp_lt_u32 s3, 3
s_cselect_b32 s57, 1, 0
s_cmp_ge_u32 s56, 108
s_cselect_b32 s57, 0, s57
v_lshrrev_b32 v236, 3, v1
v_and_b32 v237, 7, v1
v_lshrrev_b32 v238, 2, v3""")
    pro2(e)
    e(f"s_cmp_eq_u32 s57, 0\ns_cbranch_scc1 {Ljoin}\ns_mul_i32 s42, s3, 24576\ns_add_u32 s42, s42, 36864\ns_mov_b32 s14, 5308416\ns_mov_b32 s15, 0x00020000")
    for k in range(2):
        e(f"""s_lshl_b32 s34, s3, 1
s_add_u32 s34, s34, {k}
s_cmp_ge_u32 s34, 3
s_cselect_b32 s35, 1, 0
s_cselect_b32 s36, 3, 0
s_sub_u32 s44, s34, s36
s_lshl_b32 s34, s56, 1
s_add_u32 s34, s34, s35""")
        sdiv(e, 27, 59, 43, 34, 40)
        e(f"""s_cmp_ge_u32 s43, 9
s_cselect_b32 s12, s20, s18
s_cselect_b32 s13, s21, s19
s_mov_b32 s33, 9216
s_cselect_b32 s33, 1152, s33
s_cselect_b32 s37, 4, 8
s_cselect_b32 s38, 16, 4
s_cselect_b32 s39, 136, 8
s_cselect_b32 s36, -9, 9
s_mov_b32 s{50+k}, {W3P}
s_cselect_b32 s{50+k}, {W4P}, s{50+k}
s_cselect_b32 s47, 1, 0
s_and_b32 s13, s13, 0xffff
s_add_u32 s43, s43, s36
s_mul_i32 s40, s59, 663552
s_add_u32 s{50+k}, s{50+k}, s40
s_lshl_b32 s40, s43, 10
s_add_u32 s{50+k}, s{50+k}, s40
s_mul_i32 s40, s44, {3*73728}
s_add_u32 s{50+k}, s{50+k}, s40
s_and_b32 s40, s43, 1
s_mul_i32 s40, s40, 288
s_lshr_b32 s46, s43, 1
s_lshl_b32 s46, s46, 4
s_add_u32 s40, s40, s46
s_mul_i32 s46, s59, 576
s_add_u32 s40, s40, s46
s_mul_i32 s40, s40, 1152
s_mul_i32 s46, s43, {32*9216}
s_mul_i32 s48, s59, 1152
s_add_u32 s46, s46, s48
s_cmp_eq_u32 s47, 1
s_cselect_b32 s40, s40, s46
s_mul_i32 s46, s44, 384
s_add_u32 s40, s40, s46
v_mul_lo_u32 v235, v236, s33
v_lshl_add_u32 v235, v237, 4, v235
s_lshl_b32 s41, s33, 3
s_mul_i32 s39, s39, s33
v_mul_lo_u32 v{240+2*k}, v2, s37
v_add_u32 v{240+2*k}, v{240+2*k}, v238
v_lshlrev_b32 v{240+2*k}, 7, v{240+2*k}
v_and_b32 v{241+2*k}, 3, v3
v_lshl_add_u32 v{240+2*k}, v{241+2*k}, 3, v{240+2*k}
v_add_u32 v{240+2*k}, s42, v{240+2*k}
s_lshl_b32 s43, s38, 7
v_add_u32 v{241+2*k}, s43, v{240+2*k}""")
        for f in range(4):
            for it in range(3):
                e(f"s_add_u32 m0, s42, {k*12288 + it*4096 + f*1024 - it*128}")
                e(f"s_add_u32 s40, s40, s{39 if f == 2 else 41}" if (it == 0 and f) else "s_nop 0")
                e(f"buffer_load_dwordx4 v235, s[12:15], s40 offen offset:{128*it} {OPT.get('ld_pk','nt')} lds")
    e(f"{Ljoin}:")
    e.vm = ["pk"]*24; e.lg = []
    def p2_signal():
        Ld = e.label("sigdone")
        e(f"""s_cmp_lg_u32 s56, 255
s_cbranch_scc1 {Ld}
s_waitcnt vmcnt(0)
s_barrier
s_cmp_lg_u32 s3, 3
s_cbranch_scc1 {Ld}
s_lshl_b32 s46, s58, 2
s_add_u32 s46, s46, {FLG2}
v_mov_b32 v250, 1
v_mul_u32_u24 v251, 640, v1
s_mov_b32 exec_hi, 0
buffer_store_dword v250, v251, s[8:11], s46 offen sc1
s_mov_b64 exec, -1
{Ld}:""")
        stamp(e, lvl=6)
    def pack_finish():
        Ld = e.label("pkdone")
        e(f"s_cmp_eq_u32 s56, 255\ns_cbranch_scc1 {Ld}\nv_add_u32 v239, 55296, v4")
        e.wait(vm="pk")
        Lb = e.label("pkbar")
        if OPT.get("lbar", 2) == 1: e("s_barrier")
        e(f"s_cmp_eq_u32 s57, 0\ns_cbranch_scc1 {Lb}")
        def rd(i):
            k, it = divmod(i, 3)
            for tt in range(4):
                o = 16*i + 4*tt; off = k*12288 + it*4096 + 32*tt
                e.lgop(f"ds_read_b64_tr_b16 {vr(o,2,'a')}, v{240+2*k} offset:{off}", (i, tt))
                e.lgop(f"ds_read_b64_tr_b16 {vr(o+2,2,'a')}, v{241+2*k} offset:{off}", (i, tt))
        rd(0)
        for i in range(6):
            if i < 5: rd(i + 1)
            for tt in range(4):
                e.wait(lg=(i, tt))
                e.vmop(f"buffer_store_dwordx4 {vr(16*i + 4*tt, 4, 'a')}, v{(4,10,11,239)[tt]}, s[8:11], s{50 + i//3} offen sc1", "pst")
            if i % 3 < 2: e(f"s_add_u32 s{50 + i//3}, s{50 + i//3}, 73728")
        e(f"{Lb}:")
        if OPT.get("lbar", 2) == 2: e("s_barrier")
        e(f"{Ld}:")
    e.srd(12, 6, A_)
    e(f"""v_lshrrev_b32 v6, 2, v1
v_lshlrev_b32 v6, 12, v6
v_lshrrev_b32 v7, 4, v1
v_and_b32 v7, 2, v7
v_and_b32 v5, 3, v1
v_xor_b32 v7, v7, v5
v_lshl_add_u32 v6, v7, 4, v6
s_mul_i32 s32, s3, 9216
s_mul_i32 s33, s3, {9*65536}
s_lshl_b32 s34, s26, 6
s_add_u32 s33, s33, s34
s_lshl_b32 s34, s29, 11
s_add_u32 s33, s33, s34
s_add_u32 s33, s33, {VT}
v_bfe_u32 v5, v3, 2, 1
v_lshlrev_b32 v5, 4, v5
v_lshrrev_b32 v7, 3, v3
v_lshl_add_u32 v5, v7, 2, v5
v_and_b32 v7, 3, v3
v_add_u32 v5, v5, v7
s_lshl_b32 s34, s25, 5
v_add_u32 v12, s34, v5
v_mul_u32_u24 v96, 1152, v12
v_lshl_add_u32 v96, v2, 3, v96
v_add_u32 v97, 9216, v96
v_lshrrev_b32 v5, 2, v5
v_lshlrev_b32 v98, 7, v5
v_lshl_add_u32 v98, v7, 4, v98
s_lshr_b32 s38, s25, 5
s_lshl_b32 s38, s38, 12
s_bfe_u32 s34, s25, 0x20002
s_lshl_b32 s34, s34, 10
s_add_u32 s38, s38, s34
s_bfe_u32 s34, s25, 0x10004
s_lshl_b32 s34, s34, 6
s_add_u32 s38, s38, s34
s_and_b32 s34, s25, 3
s_lshl_b32 s34, s34, 2
s_add_u32 s38, s38, s34
s_add_u32 s38, s38, {MX}
s_lshl_b32 s37, s27, 5""")
    e("v_mov_b32 v253, v6")
    def vdma():
        for idx in range(9):
            e(f"s_add_u32 m0, s32, {idx*1024}")
            e("s_add_u32 s33, s33, 65536" if idx else "s_nop 0")
            e.vmop("buffer_load_dwordx4 v253, s[8:11], s33 offen sc1 lds", "dma")
    Lw3 = e.label("w3"); Lp6 = e.label("p6")
    e(f"""s_mul_i32 s30, s28, 36
s_mul_i32 s31, s3, 9
s_add_u32 s30, s30, s31
s_mul_i32 s30, s30, 18432
s_add_u32 s31, s30, {W4P}
s_add_u32 s30, s30, {W3P}
v_add_u32 v10, 18432, v4
v_add_u32 v11, 36864, v4
s_mul_i32 s53, s25, 36864
s_add_u32 s53, s53, s32""")
    e(f"s_lshr_b32 s46, s3, 1\ns_lshl_b32 s46, s46, 3\ns_and_b32 s47, s3, 1\ns_add_u32 s47, s47, 1\ns_sub_u32 s48, s46, s47\ns_add_u32 s49, s46, s47\nv_mov_b32 v95, 2048\nv_lshlrev_b32 v91, 8, v2")
    for k, sr in ((0, 48), (2, 49)):
        e(f"""v_add_u32 v90, s{sr}, v12
v_cmp_lt_u32 vcc, v90, v95
v_bfe_u32 v92, v90, 5, 6
v_mul_u32_u24 v92, 36864, v92
v_bfe_u32 v93, v90, 3, 1
v_mul_u32_u24 v93, 18432, v93
v_bfe_u32 v94, v90, 2, 1
v_lshl_add_u32 v92, v94, 7, v92
v_bfe_u32 v94, v90, 4, 1
v_lshl_add_u32 v92, v94, 6, v92
v_and_b32 v94, 3, v90
v_lshl_add_u32 v92, v94, 4, v92
v_add3_u32 v92, v92, v93, v91
v_bfrev_b32 v93, 2
v_cndmask_b32 v{DA+k}, v93, v92, vcc""")
    e(f"v_cmp_gt_u32 vcc, 2, v2\ns_and_b32 s54, s3, 1\ns_mul_i32 s54, s54, 9216\ns_add_u32 s54, s54, {H1S}\nv_cndmask_b32 v{DA+1}, v{DA+2}, v{DA}, vcc")
    def dma_act(ph):
        if ph == 4:
            e(f"s_add_u32 s46, s53, {HC}")
            for i in range(9):
                if i % 4 == 0:
                    e(f"s_add_u32 m0, s32, {i*1024}")
                    e("s_add_u32 s46, s46, 4096" if i else "s_nop 0")
                e.vmop(f"buffer_load_dwordx4 v4, s[8:11], s46 offen offset:{(i&3)*1024} sc1 lds", "dma")
        else:
            for i in range(9):
                if i % 4 == 0:
                    e(f"s_add_u32 m0, s32, {i*1024}")
                    e("s_add_u32 s54, s54, 4096" if i else "s_nop 0")
                a = DA + (0 if i < 4 else 1 if i == 4 else 2)
                e.vmop(f"buffer_load_dwordx4 v{a}, s[8:11], s54 offen offset:{(i&3)*1024} sc1 lds", "dma")
    p2_signal()
    e(f"s_cmp_eq_u32 s3, 3\ns_cbranch_scc1 {Lw3}")
    vm_save = list(e.vm)
    def xloads():
        for u in range(3):
            for t in range(2):
                e.vmop(f"buffer_load_dwordx2 {vr(XR+(u*2+t)*2,2)}, v{96+t}, s[12:15], s37 offen offset:{32*u}", "x")
        e.vmop("buffer_load_dword v14, v98, s[8:11], s38 offen", "x")
        e.vmop("buffer_load_dword v15, v98, s[8:11], s38 offen offset:256", "x")
    ws_ = {"n": 0}
    def wnext(cnt, lim=108):
        for _ in range(cnt):
            n = ws_["n"]
            if n >= lim: return
            ph = "W1" if n < 54 else "W2"; f = n % 54; ks, u = divmod(f, 3)
            if f == 0: e(f"s_add_u32 s52, s36, {W1P if n == 0 else W2P}")
            elif u == 0 and ks % 4 == 0: e("s_add_u32 s52, s52, 4096")
            e.vmop(f"buffer_load_dwordx4 {wfrag(ph,ks,u)}, v{(4,10,11)[u]}, s[8:11], s52 offen offset:{(ks&3)*1024}", (ph, ks, u))
            ws_["n"] += 1
    e("s_mul_i32 s36, s27, 18432")
    XP = OPT.get("xp", 13)
    def thook(u, ks):
        if u*9 + ks == XP: xloads()
        if u*9 + ks == OPT.get("qb", 22): e("s_barrier")
    tgen(e, 27, TB, 16, hook=thook)
    e(f"""v_lshrrev_b32 v5, 1, v2
v_lshlrev_b32 v8, 8, v5
v_lshl_add_u32 v8, v3, 4, v8
v_and_b32 v5, 1, v2
v_mul_u32_u24 v9, 18432, v5
v_add_u32 v8, v8, v9
v_lshrrev_b32 v6, 2, v3
v_lshl_add_u32 v6, v2, 3, v6
v_lshlrev_b32 v6, 6, v6
v_and_b32 v7, 3, v3
v_lshl_add_u32 v6, v7, 3, v6
v_lshl_add_u32 v6, v5, 5, v6
v_xor_b32 v7, 32, v6
s_mul_i32 s39, s25, 36864
s_lshl_b32 s40, s27, 9
s_add_u32 s39, s39, s40
s_lshl_b32 s42, s25, 11
s_lshl_b32 s40, s3, 2
s_add_u32 s40, s40, s24
s_lshl_b32 s40, s40, 7
s_add_u32 s41, s42, s40
s_mov_b32 s43, {fhex(2.0/(2048*576))}
v_lshlrev_b32 v13, 3, v3
v_mul_u32_u24 v12, 384, v2
v_add_u32 v12, v12, v13
s_lshl_b32 s55, s24, 2
s_add_u32 s55, s55, s3
s_lshl_b32 s55, s55, 2
s_lshl_b32 s40, s25, 7
s_add_u32 s55, s55, s40
v_mov_b32 v250, 1
v_mov_b32 v251, 0""")
    stamp(e, lvl=6)
    pack_finish()
    wnext(OPT.get("wr", 12), 54)
    stamp(e, lvl=6)
    e("s_barrier")
    stamp(e, lvl=6)
    vdma()
    e.wait(vm="dma")
    e("s_barrier")
    stamp(e); stamp(e, lvl=6)
    def gemm(ph, tr, hook, fill=(), f0=0, f1=18, cinit=False):
        fill = list(fill); nf = len(fill); fi = 0
        def rd(ks):
            for t in range(2):
                b = BF + ((ks % NB)*2 + t)*4
                if tr:
                    e.lgop(f"ds_read_b64_tr_b16 {vr(b,2)}, v{6+t} offset:{ks*2048}", ("b", ks))
                    e.lgop(f"ds_read_b64_tr_b16 {vr(b+2,2)}, v{6+t} offset:{ks*2048+256}", ("b", ks))
                else:
                    e.lgop(f"ds_read_b128 {vr(b)}, v4 offset:{(t*18+ks)*1024}", ("b", ks))
        for ks in range(NB-1): rd(ks)
        for ks in range(18):
            if ks + NB - 1 < 18: rd(ks + NB - 1)
            e.wait(vm=(ph, ks, 2), lg=("b", ks))
            for u in range(3):
                for t in range(2):
                    d = vr(acc(u, t) + (24 if (ph == "T" and ks >= 9) else 0))
                    first = (ks == 0 and not cinit) or (ph == "T" and ks == 9)
                    e(f"{M16} {d}, {wfrag(ph,ks,u)}, {vr(BF + ((ks % NB)*2 + t)*4)}, {0 if first else d}")
                    g = (ks - f0)*6 + u*2 + t
                    if g >= 0:
                        while fi < min(nf, -(-nf*(g+1) // ((f1 - f0)*6))): emit(fill[fi]); fi += 1
            hook(ks)
        assert fi == nf
    def wsig(phase):
        if OPT.get("wgflag", 0): return
        e(f"s_add_u32 s46, s55, {FLG + phase*8192}\ns_mov_b64 exec, 1")
        e.vmop("buffer_store_dword v250, v251, s[8:11], s46 offen sc1", "f")
        e("s_mov_b64 exec, -1")
    def sq_store(region):
        red_g(e, (90, 91), (92, 93))
        e(f"s_add_u32 s46, s41, {region}\ns_mov_b64 exec, 0xffff")
        e.vmop(f"buffer_store_dwordx2 v[90:91], v13, s[8:11], s46 offen sc1", "st")
        e("s_mov_b64 exec, -1")
    def st16(o, sreg, off):
        e(f"s_nop 0\nv_permlane16_swap_b32 v{o}, v{o+2}\nv_permlane16_swap_b32 v{o+1}, v{o+3}")
        e.vmop(f"buffer_store_dwordx4 {vr(o)}, v8, s[8:11], s{sreg} offen offset:{off} sc1", "st")
    GL, AL = OPT.get("gl", 30), OPT.get("al", 24)
    lim_ = [54]
    def hookw(ks): wnext(GL*(ks+1)//18 - GL*ks//18, lim_[0])
    def hook3(ks):
        if XP == 27 + ks: xloads()
        hookw(ks)
    XM = 232
    XF = [224 + i for i in range(20)] + [100, 101, 102, 103]
    xfill = [("wv", "x")]
    for u in range(3):
        for t in range(2):
            x = XR + (u*2+t)*2; f = XF[(u*2+t)*4:(u*2+t)*4+4]
            xfill += [("s", f"v_lshlrev_b32 v{f[0]}, 16, v{x}"), ("s", f"v_and_b32 v{f[1]}, 0xffff0000, v{x}"),
                      ("s", f"v_lshlrev_b32 v{f[2]}, 16, v{x+1}"), ("s", f"v_and_b32 v{f[3]}, 0xffff0000, v{x+1}")]
            xfill += [("s", f"v_sub_f32 v{f[r]}, v{f[r]}, v{14+t}") for r in range(4)]
    xfill += [("s", f"s_add_u32 s44, s39, {HC}"), ("s", "v_mov_b32 v90, 0"), ("s", "v_mov_b32 v91, 0")]
    gemm("T", True, hook3, xfill, 9, 18)
    stamp(e)
    EARLY = OPT.get("early", 0)
    e("s_barrier" if EARLY else "s_nop 0")
    e("s_nop 4")
    for u in range(3):
        o = BF + 4*u
        for t in range(2):
            a = acc(u, t); h = HCR + (u*2+t)*4; f = XF[(u*2+t)*4:(u*2+t)*4+4]
            for r in range(4): e(f"v_{'sub' if r & 1 else 'add'}_f32 v{a+r}, v{a+r}, v{h+r}")
            for r in range(4): e(f"v_fma_f32 v{h+r}, v{a+r}, s43, v{f[r]}")
            e(f"v_cvt_pk_bf16_f32 v{o+2*t}, v{h}, v{h+1}\nv_cvt_pk_bf16_f32 v{o+2*t+1}, v{h+2}, v{h+3}")
            for r in range(4): e(f"v_fmac_f32 v{90+t}, v{h+r}, v{h+r}")
        st16(o, 44, 512*u)
    sq_store(SQH)
    e(f"s_add_u32 s44, s39, {H1S}\ns_add_u32 s47, s42, {SQH}")
    e.wait(vm="st")
    wsig(0)
    LA = OPT.get("la", 8)
    stamp(e, lvl=-1)
    lim_[0] = 54 + 42
    wnext(LA, lim_[0])
    e("s_barrier")
    wnext(AL - LA, lim_[0])
    assert ws_["n"] >= 54
    stamp(e, lvl=1)
    e("s_barrier")
    stamp(e, lvl=1)
    dma_act(4)
    for c in range(3): e.vmop(f"buffer_load_dwordx2 {vr(96+2*c,2)}, v12, s[8:11], s47 offen offset:{128*c} sc1", "q")
    stamp(e, lvl=1)
    e.wait(vm="dma")
    stamp(e, lvl=1)
    e("s_barrier")
    stamp(e, lvl=-1)
    e3 = Em()
    e3("v_add_f32 v97, v97, v99\nv_add_f32 v96, v96, v98\nv_add_f32 v96, v96, v100\nv_add_f32 v100, v97, v101")
    red_g(e3, (96, 100), (92, 93))
    for t in range(2): e3(f"v_mul_f32 v{96+4*t}, {fhex(1/576)}, v{96+4*t}")
    for t in range(2): e3(f"v_add_f32 v{88+t}, {fhex(EPS)}, v{96+4*t}")
    for t in range(2): e3(f"v_rsq_f32 v{88+t}, v{88+t}")
    e3("s_nop 0")
    for t in range(2): e3(f"v_mul_f32 v{98+4*t}, v{88+t}, v{88+t}")
    for t in range(2): e3(f"v_mul_f32 v{98+4*t}, v{98+4*t}, v{96+4*t}")
    for t in range(2): e3(f"v_add_f32 v{98+4*t}, {fhex(EPS)}, v{98+4*t}")
    for t in range(2): e3(f"v_rsq_f32 v{98+4*t}, v{98+4*t}")
    e3("s_nop 0")
    for t in range(2): e3(f"v_mul_f32 v{96+4*t}, v{88+t}, v{98+4*t}")
    for t in range(2): gelu_consts(e3, 96+4*t, 97+4*t, 98+4*t, 99+4*t)
    def hook4(ks):
        if ks == 4: lim_[0] = 108
        hookw(ks)
    gemm("W1", False, hook4, [("wv", "q")] + [("s", l.strip()) for l in e3.L], 2, 17)
    stamp(e)
    e("s_barrier" if EARLY else "s_nop 0")
    e("s_nop 4")
    for u in range(3):
        o = BF + 4*u
        for t in range(2):
            a = acc(u, t); s = 96 + 4*t
            for l in gelu4(a, 92, s+1, s+2, s+3): e(l)
            e(f"v_cvt_pk_bf16_f32 v{o+2*t}, v92, v93\nv_cvt_pk_bf16_f32 v{o+2*t+1}, v94, v95")
        e("s_nop 0")
        st16(o, 44, 512*u)
    e(f"s_add_u32 s44, s39, {X6}\nv_lshlrev_b32 v98, 2, v3\nv_mov_b32 v90, 0\nv_mov_b32 v91, 0")
    e.wait(vm="st")
    wsig(1)
    stamp(e, lvl=-1)
    wnext(LA)
    e("s_barrier")
    wnext(108)
    for u in range(3):
        for t in range(2):
            a = acc(u, t); h = HCR + (u*2+t)*4
            for r in range(4): e(f"v_mul_f32 v{a+r}, v{h+r}, v{88+t}")
            for r in range(4): e(f"v_add_f32 v{h+r}, v{h+r}, v{14+t}")
    stamp(e, lvl=1)
    e("s_barrier")
    stamp(e, lvl=1)
    dma_act(5)
    stamp(e, lvl=1)
    e.wait(vm="dma")
    stamp(e, lvl=1)
    e("s_barrier")
    stamp(e, lvl=-1)
    N5 = OPT.get("n5", 27)
    st5 = {"n": 0}
    def hook5(ks):
        while st5["n"] < min(N5, 3*ks + 3, (3*(ks+1))//2):
            for x in wload6(st5["n"]): emit(x)
            st5["n"] += 1
    gemm("W2", False, hook5, cinit=True)
    assert st5["n"] == N5
    stamp(e)
    e("s_barrier")
    e.lgop("ds_read_b32 v96, v98 offset:36864", "m"); e.lgop("ds_read_b32 v97, v98 offset:36928", "m")
    e("s_nop 3")
    for u in range(3):
        for t in range(2):
            a = acc(u, t); h = HCR + (u*2+t)*4
            for r in range(4): e(f"v_add_f32 v{h+r}, v{h+r}, v{a+r}")
    e.wait(lg="all")
    for u in range(3):
        x = BF + 4*u
        for t in range(2):
            a = acc(u, t)
            for r in range(4): e(f"v_sub_f32 v{a+r}, v{a+r}, v{96+t}")
            e(f"v_cvt_pk_bf16_f32 v{x+2*t}, v{a}, v{a+1}\nv_cvt_pk_bf16_f32 v{x+2*t+1}, v{a+2}, v{a+3}")
            for r in range(4): e(f"v_fmac_f32 v{90+t}, v{a+r}, v{a+r}")
        st16(x, 44, 512*u)
    sq_store(SQ1)
    for u in range(3):
        for t in range(2):
            h = HCR + (u*2+t)*4; o = BASE + 4*u + 2*t
            e(f"v_cvt_pk_bf16_f32 v{o}, v{h}, v{h+1}\nv_cvt_pk_bf16_f32 v{o+1}, v{h+2}, v{h+3}")
    e.wait(vm="st")
    wsig(2)
    if not OPT.get("l5"): e("s_barrier")
    vm_p6 = list(e.vm)
    stamp(e)
    nst_main = NST
    setup6()
    if OPT.get("l5"): e("s_barrier")
    e(f"s_barrier\ns_branch {Lp6}")
    def poll(phase, areg, nl=0):
        Lp = e.label("poll"); Ld = e.label("pd")
        if OPT.get("wgflag", 0):
            e(f"s_lshl_b32 s46, s25, 7\ns_lshl_b32 s47, s24, 4\ns_add_u32 s46, s46, s47\ns_add_u32 s46, s46, {FLG + phase*8192}\ns_mov_b64 exec, 1\nbuffer_store_dword v250, v251, s[8:11], s46 offen sc1\ns_mov_b64 exec, -1")
        ld = lambda r: f"buffer_load_dword v{r}, v{areg}, s[8:11], s46 offen sc1"
        if OPT.get("pipe", 0):
            e(f"""s_mov_b32 s46, {FLG + phase*8192}
s_mov_b32 s47, 0x20000
{ld(252)}
s_sleep {OPT.get('psl', 3)}
{Lp}:
{ld(253)}
s_waitcnt vmcnt(1)
v_cmp_ne_u32 vcc, 1, v252
s_cbranch_vccz {Ld}
{ld(252)}
s_waitcnt vmcnt(1)
v_cmp_ne_u32 vcc, 1, v253
s_cbranch_vccz {Ld}
s_sub_u32 s47, s47, 1
s_cbranch_scc0 {Lp}
{Ld}:""")
        else:
            e(f"""s_mov_b32 s46, {FLG + phase*8192}
s_mov_b32 s47, 0x40000
{("s_sleep %d" % OPT["ps0"]) if OPT.get("ps0") else "s_nop 0"}
{Lp}:
{ld(252)}
s_waitcnt vmcnt(0)
v_cmp_ne_u32 vcc, 1, v252
s_cbranch_vccz {Ld}
s_sub_u32 s47, s47, 1
s_cbranch_scc0 {Lp}
{Ld}:""")
        e.vm = ["p"]
    e(f"{Lw3}:")
    e.vm = vm_save; e.lg = []
    PKL = 40960
    if W4K3:
        e.srd(16, 20, 5308416)
        e("s_cmp_lt_u32 s2, 216\ns_cselect_b32 s18, 5308416, 0")
        e("v_lshrrev_b32 v16, 3, v1\nv_mul_u32_u24 v16, 1152, v16\nv_and_b32 v17, 7, v1\nv_lshl_add_u32 v16, v17, 4, v16")
        for k in range(2):
            e(f"s_lshl_b32 s40, s2, 1\ns_add_u32 s40, s40, {k}")
            sdiv(e, 3, 41, 42, 40, 46); sdiv(e, 18, 43, 44, 41, 46)
            e(f"""s_mul_i32 s{36+k}, s43, 663552
s_lshl_b32 s45, s44, 10
s_add_u32 s{36+k}, s{36+k}, s45
s_mul_i32 s45, s42, {3*73728}
s_add_u32 s{36+k}, s{36+k}, s45
s_add_u32 s{36+k}, s{36+k}, {W4P}
s_mul_i32 s40, s43, 576
s_and_b32 s45, s44, 1
s_mul_i32 s45, s45, 288
s_add_u32 s40, s40, s45
s_lshr_b32 s45, s44, 1
s_lshl_b32 s45, s45, 4
s_add_u32 s40, s40, s45
s_mul_i32 s40, s40, 1152
s_mul_i32 s45, s42, 384
s_add_u32 s40, s40, s45""")
            for f in range(4):
                for it in range(3):
                    e(f"s_mov_b32 m0, {PKL + k*12288 + it*4096 + f*1024 - it*128}")
                    e(f"s_add_u32 s40, s40, {1152*(136 if f == 2 else 8)}" if (it == 0 and f) else "s_nop 0")
                    e.vmop(f"buffer_load_dwordx4 v16, s[16:19], s40 offen offset:{128*it} {OPT.get('ld_pk','nt')} lds", ("pk", k))
    e(f"""v_mov_b32 v250, 1
v_mov_b32 v251, 0
v_and_b32 v19, 3, v1
v_min_u32 v19, {0 if OPT.get('wgflag', 0) else 2}, v19
v_lshlrev_b32 v19, 2, v19
v_bfe_u32 v20, v1, 2, 2
v_lshl_add_u32 v19, v20, 4, v19
s_lshl_b32 s46, s25, 7
v_add_u32 v247, s46, v19
v_bfe_u32 v21, v1, 4, 1
v_and_b32 v22, 1, v20
v_lshlrev_b32 v22, 1, v22
v_add_u32 v22, -1, v22
v_mul_lo_u32 v22, v22, v21
v_add_u32 v22, s25, v22
v_and_b32 v22, 63, v22
v_lshl_add_u32 v248, v22, 7, v19
s_lshl_b32 s46, s26, 8
v_lshl_add_u32 v249, v21, 7, v19
v_add_u32 v249, s46, v249""")
    if W4K3:
        e(f"""s_mul_i32 s46, s28, 108
s_add_u32 s46, s46, {3*8192}
v_subrev_u32 v19, 32, v1
v_min_u32 v19, 26, v19
v_lshlrev_b32 v19, 2, v19
v_add_u32 v19, s46, v19
v_cmp_lt_u32 vcc, 31, v1
s_nop 1
v_cndmask_b32 v249, v249, v19, vcc""")
    e(f"""s_mul_i32 s46, s28, 27
s_lshr_b32 s46, s46, 1
v_min_u32 v18, 14, v1
v_add_u32 v18, s46, v18
v_min_u32 v18, 107, v18
v_lshlrev_b32 v18, 2, v18""")
    Lq, Lqd = e.label("gp"), e.label("gpd")
    e(f"""v_min_u32 v19, 35, v1
v_lshlrev_b32 v19, 4, v19
s_lshr_b32 s46, s2, 3
s_mul_i32 s46, s46, 640
s_add_u32 s46, s46, {FLG2}
s_mov_b32 s47, 0x40000
{"s_barrier" if OPT.get("qb", 22) < 27 else "s_nop 0"}
s_cmp_eq_u32 s56, 255
s_cbranch_scc1 {Lq}s
s_barrier
{Lq}s:
{('s_sleep %d' % OPT.get('gs1', 0)) if OPT.get('gs1', 0) else 's_nop 0'}
{Lq}:
buffer_load_dwordx4 v[20:23], v19, s[8:11], s46 offen sc1
s_waitcnt vmcnt(0)
v_and_b32 v20, v20, v21
v_and_b32 v22, v22, v23
v_and_b32 v20, v20, v22
v_cmp_ne_u32 vcc, 1, v20
s_cbranch_vccz {Lqd}
s_sleep {OPT.get('gsl', 8)}
s_sub_u32 s47, s47, 1
s_cbranch_scc0 {Lq}
{Lqd}:
s_barrier""")
    e.vm = []
    vdma()
    e.wait(vm="dma")
    e("s_barrier")
    for ks in range(18):
        if ks % 4 == 0: e(f"s_mov_b32 s40, {W2P + 36*18432 + ks*1024}")
        e.vmop(f"buffer_load_dwordx4 {vr(4*ks,4,'a')}, v4, s[8:11], s40 offen offset:{(ks&3)*1024}", "mw")
    e("s_barrier")
    e.wait(vm="all")
    Lnf = e.label("nopf")
    e(f"s_cmp_ge_u32 s56, 108\ns_cbranch_scc1 {Lnf}\ns_lshl_b32 s46, s56, 2\ns_add_u32 s46, s46, {FLG + 6*8192}\ns_mov_b64 exec, 1\nbuffer_store_dword v250, v251, s[8:11], s46 offen sc1\ns_mov_b64 exec, -1\n{Lnf}:")
    poll(0, 247)
    if W4K3:
        e(f"s_lshl_b32 s46, s2, 2\ns_add_u32 s46, s46, {FLG + 5*8192}\ns_mov_b64 exec, 1\nbuffer_store_dword v250, v251, s[8:11], s46 offen sc1\ns_mov_b64 exec, -1")
        e.vm.append("f")
    e("s_barrier")
    dma_act(4); e.wait(vm="all")
    e("s_barrier")
    poll(6, 18)
    e("s_barrier")
    poll(1, 248)
    e("s_barrier")
    dma_act(5); e.wait(vm="all")
    e("s_barrier")
    NR = 3
    def rdm(ks):
        for t in range(2): e.lgop(f"ds_read_b128 {vr(40+((ks%NR)*2+t)*4)}, v4 offset:{(t*18+ks)*1024}", ks)
    for ks in range(NR-1): rdm(ks)
    for ks in range(18):
        if ks + NR - 1 < 18: rdm(ks + NR - 1)
        e.wait(lg=ks)
        for t in range(2):
            e(f"{M16} {vr(32+4*t)}, {vr(4*ks,4,'a')}, {vr(40+((ks%NR)*2+t)*4)}, {vr(32+4*t) if ks else 0}")
    e("v_lshlrev_b32 v23, 2, v3\ns_nop 7\ns_mov_b64 exec, 0xffff\nds_write_b32 v23, v32 offset:36864\nds_write_b32 v23, v36 offset:36928\ns_mov_b64 exec, -1")
    for n in range(N5):
        for x in wload6(n): emit(x)
    e("s_waitcnt lgkmcnt(0)\ns_barrier")
    setup6()
    e.wait(vm="all")
    if not EARLY: e("s_barrier")
    poll(2, 249)
    e("s_barrier")
    e(f"{Lp6}:")
    globals()["NST"] = nst_main
    e.vm = vm_p6; e.lg = []
    stamp(e)
    def X(t4, ks):
        i = ks*4 + t4
        return vr(4*i, 4, "a") if i < 64 else vr(XV + 4*(i-64))
    XS = OPT.get("xs", (0, 6, 12))
    stamp(e, lvl=4)
    def xdma(i):
        L = []
        if i % 4 == 0: L.append(("s", f"s_add_u32 m0, s32, {i*1024}\n" + ("s_add_u32 s40, s40, 4096" if i else "s_nop 0")))
        L.append(("v", f"buffer_load_dwordx4 v4, s[8:11], s40 offen offset:{(i&3)*1024} sc1 lds", ("xd", sum(1 for b in XS if b <= i) - 1)))
        return L
    X0 = OPT.get("x0", 18)
    for i in range(X0):
        for x in xdma(i): emit(x)
    sqld = [("v", f"buffer_load_dwordx2 {vr(TT+6*tp+2*c,2)}, v6, s[8:11], s37 offen offset:{2048*tp + 128*c} sc1", "q") for tp in range(2) for c in range(3)]
    late = [xdma(i) for i in range(X0, 18)] + [[x] for x in sqld]
    def bread(ks, hb):
        out = []
        for t4 in range(4):
            off = (t4*18 + ks)*1024
            base = (4, 11) if not hb else (12, 13)
            breg = base[0] if off < 36864 else base[1]
            out.append(("l", f"ds_read_b128 {X(t4,ks)}, v{breg} offset:{off % 36864}", ("b", hb, ks)))
        return out
    def const_fill():
        e2 = Em()
        R = [TT+12+t for t in range(4)]
        for t4 in range(4):
            b = TT + 6*(t4 >> 1) + (t4 & 1)
            e2(f"v_add_f32 v{R[t4]}, v{b}, v{b+2}\nv_add_f32 v{R[t4]}, v{R[t4]}, v{b+4}")
        red_g(e2, R, [TMP+t for t in range(4)])
        for r in R: e2(f"v_mul_f32 v{r}, {fhex(1/576)}, v{r}")
        for r in R: e2(f"v_add_f32 v{r}, {fhex(EPS)}, v{r}")
        for r in R: e2(f"v_rsq_f32 v{r}, v{r}")
        e2("s_nop 0")
        for t4 in range(4): gelu_consts(e2, R[t4], KC+t4, KC+4+t4, KC+8+t4)
        return [("wv", "q")] + [("s", l.strip()) for l in e2.L]
    def gelu_fill(ft):
        L = []
        for t4 in range(4):
            L += [("s", l) for l in gelu4(TT+4*t4, TMP, KC+t4, KC+4+t4, KC+8+t4)]
            L += [("s", f"v_cvt_pk_bf16_f32 v{PK+2*t4}, v{TMP}, v{TMP+1}"), ("s", f"v_cvt_pk_bf16_f32 v{PK+2*t4+1}, v{TMP+2}, v{TMP+3}")]
            L += [("l", f"ds_write_b64 v{8 + (t4>>1)}, {vr(PK+2*t4,2)} offset:{ft*2048 + (t4&1)*18432}", ("h", ft))]
        return L
    def out_fill(b):
        dt = ORD[b]
        L = [("s", f"s_add_u32 s35, s34, {dt*2048}")]
        for tp in range(2):
            for h in range(2):
                a = TT + 4*(2*tp+h)
                L += [("s", f"v_cvt_pk_bf16_f32 v{PK+4*tp+2*h}, v{a}, v{a+1}"), ("s", f"v_cvt_pk_bf16_f32 v{PK+4*tp+2*h+1}, v{a+2}, v{a+3}")]
            L += [("v", f"buffer_store_dwordx4 {vr(PK+4*tp)}, v4, s[8:11], s35 offen offset:{tp*1024} {OPT.get('sc_part','sc1')}", "st")]
            L += [("l", f"ds_write_b128 v14, {vr(PK+4*tp)} offset:{(dt*2+tp)*1024}", "o")]
        return L
    def block(blk, fill, G0=4, G1=66, pre=None, post=None, ramp0=0):
        nf = len(fill); fi = 0
        for ks in range(18):
            n = blk*18 + ks
            lgw = None
            if (blk, ks) in OPT.get("pts", ()): stamp(e, lvl=3)
            if pre:
                for x in pre(ks): emit(x)
                lgw = [("b", False, ks), ("b", True, ks)]
            e.wait(vm=[("w", n), ("w", n+1)] if ks % 2 == 0 else None, lg=lgw)
            for t4 in range(4):
                d = vr(TT+4*t4) if ks == 17 else vr(AC+4*t4)
                c = vr(AC+4*t4) if ks else "0"
                e(f"{M16} {d}, {vr(RING+4*(n % NPF))}, {X(t4,ks)}, {c}")
                gap = ks*4 + t4
                if ks >= ramp0 and t4 in (1, 3) and st5["n"] < NT and st5["n"] < n + NPF + (t4 == 3):
                    for x in wload6(st5["n"]): emit(x)
                    st5["n"] += 1
                if t4 == 3 and post:
                    for x in post(ks): emit(x)
                if gap >= G0:
                    tgt = min(nf, -(-nf*(gap - G0 + 1) // (G1 - G0)))
                    while fi < tgt: emit(fill[fi]); fi += 1
        assert fi == nf
    AH = 2
    def pre0(ks):
        L = []
        tgt = [ks + AH] if ks else list(range(AH + 1))
        for k in tgt:
            if k < 18:
                if k in XS: L += [("wv", ("xd", XS.index(k))), ("s", "s_barrier"), ("st", 4)]
                L += bread(k, False)
        return L
    stamp(e, lvl=4)
    def post0(ks):
        L = []
        for _ in range(3):
            if late: L += late.pop(0)
        return L
    block(0, const_fill(), 36, 66, pre=pre0, post=post0, ramp0=OPT.get("ramp0", 0))
    assert not late
    stamp(e, lvl=4)
    stamp(e)
    if not OPT.get('pts'): stamp(e, lvl=3)
    for ft in range(1, 8):
        block(ft, gelu_fill(ft-1))
        if ft in (1, 3, 5, 7) and not OPT.get('pts'): stamp(e, lvl=3)
        if ft in (1, 2): stamp(e, lvl=4)
    e.wait(lg="all")
    e("s_barrier")
    block(8, gelu_fill(7), post=lambda ks: bread(ks, True) if ks < 14 else [])
    stamp(e)
    def pre9(ks):
        L = []
        if ks == 12: L += [("wl", ("h", 8)), ("s", "s_barrier")] + bread(14, True) + bread(15, True)
        if ks == 13: L += bread(16, True) + bread(17, True)
        return L
    if not OPT.get('pts'): stamp(e, lvl=3)
    block(9, gelu_fill(8), 3, 46, pre=pre9)
    if not OPT.get('pts'): stamp(e, lvl=3)
    e2 = Em()
    e2.srd(12, 22, A_)
    e2(f"""s_lshl_b32 s38, s26, 2
s_add_u32 s38, s38, s24
s_mul_i32 s38, s38, 9
s_mul_i32 s39, s3, 3
s_add_u32 s38, s38, s39
s_lshl_b32 s38, s38, 1
s_add_u32 s38, s38, s29
s_lshl_b32 s38, s38, 10
s_add_u32 s38, s38, {PART}
s_mul_i32 s40, s25, {32*1152}
s_lshl_b32 s36, s27, 5
s_add_u32 s40, s40, s36
v_bfe_u32 v5, v3, 2, 1
v_lshlrev_b32 v5, 4, v5
v_lshrrev_b32 v7, 3, v3
v_lshl_add_u32 v5, v7, 2, v5
v_and_b32 v7, 3, v3
v_add_u32 v5, v5, v7
v_mul_u32_u24 v6, 1152, v5
v_lshl_add_u32 v6, v2, 3, v6
v_add_u32 v7, 9216, v6
v_add_u32 v11, 4096, v4
s_mul_i32 s41, s24, 18432
s_mul_i32 s42, s3, 6144
s_add_u32 s41, s41, s42
s_lshl_b32 s42, s29, 10
s_add_u32 s41, s41, s42
v_add_u32 v9, s41, v4
v_mov_b32 v250, 1
v_mov_b32 v251, 0
s_lshl_b32 s44, s26, 9
s_lshl_b32 s45, s24, 5
s_add_u32 s45, s45, s44
v_and_b32 v247, 7, v1
v_lshlrev_b32 v247, 2, v247
v_add_u32 v247, s45, v247
s_lshl_b32 s45, s3, 5
s_add_u32 s44, s44, s45
s_lshl_b32 s45, s28, 2
s_add_u32 s44, s44, s45
s_add_u32 s44, s44, {FLG + 3*8192}
s_mov_b32 s45, {FLG + 3*8192}""")
    e2(f"s_mov_b32 s48, s8\ns_mov_b32 s49, s9\ns_mov_b32 s51, 0x00020000")
    for i in range(7):
        e2(f"s_add_u32 s42, s28, {i+1}\ns_and_b32 s42, s42, 7\ns_mul_i32 s42, s42, {A_}\ns_add_u32 s{52+i}, s42, s38")
    setup7 = [("s", l.strip()) for l in e2.L] + [("s", f"s_cmp_eq_u32 s3, 3\ns_cselect_b32 s50, 0, {WS_SIZE}")]
    def flag_store(off):
        return [("s", "s_mov_b64 exec, 1"), ("v", f"buffer_store_dword v250, v251, s[8:11], s44 offen offset:{off} sc1", "f"), ("s", "s_mov_b64 exec, -1")]
    def poll7(off, first_tag=None):
        Lp = e.label("poll"); Ld = e.label("pd")
        if first_tag:
            e.wait(vm=first_tag)
            e(f"v_cmp_ne_u32 vcc, 1, v252\ns_cbranch_vccz {Ld}")
        e(f"""s_mov_b32 s47, 0x40000
{Lp}:
buffer_load_dword v252, v247, s[8:11], s45 offen offset:{off} sc1
s_waitcnt vmcnt(0)
v_cmp_ne_u32 vcc, 1, v252
s_cbranch_vccz {Ld}
s_sub_u32 s47, s47, 1
s_cbranch_scc0 {Lp}
{Ld}:""")
        if not first_tag: e.vm = []
    FK, PKS, G2 = OPT.get("fk", 1), OPT.get("pks", 14), OPT.get("g2", 28)
    def slot(i): return RING + 4*((292 + i) % NPF)
    def rload(i):
        return [("v", f"buffer_load_dwordx4 {vr(slot(i))}, v4, s[48:51], s{52 + i % 7} offen offset:{2048*(i//7)} sc1", ("r", i))]
    def chk(off):
        Lp = e.label("poll"); Ld = e.label("pd")
        return [("wv", "pa"), ("s", f"""v_cmp_ne_u32 vcc, 1, v252
s_cbranch_vccz {Ld}
s_mov_b32 s47, 0x40000
{Lp}:
buffer_load_dword v252, v247, s[8:11], s45 offen offset:{off} sc1
s_waitcnt vmcnt(0)
v_cmp_ne_u32 vcc, 1, v252
s_cbranch_vccz {Ld}
s_sub_u32 s47, s47, 1
s_cbranch_scc0 {Lp}
{Ld}:""")]
    def pa(off): return [("v", f"buffer_load_dword v252, v247, s[8:11], s45 offen offset:{off} sc1", "pa")]
    S = dict(sigA=13*18+1, paA=15*18+10, chkA=16*18, sigB=16*18+1, paB=16*18+14, chkB=17*18, stepB=2)
    S.update(OPT.get("sched", {}))
    ev_pre = {}
    def add(pos, L): ev_pre.setdefault(pos, []).extend(L)
    add(S["sigA"], [("wv", ("stf", 3))] + flag_store(0))
    add(S["paA"], pa(0)); add(S["chkA"], None or [("chk", 0)])
    add(S["sigB"], [("wv", ("stf", 6))] + flag_store(128))
    add(S["paB"], pa(128)); add(S["chkB"], [("chk", 128)])
    ev_post = {}
    for i in range(7): ev_post.setdefault(max(S["chkA"], 292) + i, []).extend(rload(i))
    for i in range(7): ev_post.setdefault(min(S["chkB"] + S["stepB"]*i, 323), []).extend(rload(7 + i))
    for dt in range(1, 9):
        fill = out_fill(dt-1)
        if dt == 1: fill = fill + setup7
        if dt in (3, 6): fill = [(x[0], x[1], ("stf", dt)) if x[0] == "v" else x for x in fill]
        def pre(ks, b=9+dt):
            L = []
            for x in ev_pre.get(b*18 + ks, []): L += chk(x[1]) if x[0] == "chk" else [x]
            return L
        post = lambda ks, b=9+dt: ev_post.get(b*18 + ks, [])
        block(9+dt, fill, 4, 66 if dt == 1 else G2, pre=pre, post=post)
        if dt in (1, 2, 4, 6, 8) and not OPT.get('pts'): stamp(e, lvl=3)
    stamp(e)
    e("s_nop 7")
    for x in out_fill(8): emit(x)
    def accum(x, a): e(f"v_lshlrev_b32 v8, 16, v{x}\nv_and_b32 v5, 0xffff0000, v{x}\nv_add_f32 v{a}, v{a}, v8\nv_add_f32 v{a+1}, v{a+1}, v5")
    for k in range(3):
        for j in range(4):
            x = BASE + 4*k + j; a = 16 + 8*k + 2*j
            e(f"v_lshlrev_b32 v{a}, 16, v{x}\nv_and_b32 v{a+1}, 0xffff0000, v{x}")
    e.wait(vm="st", lg="all")
    for x in flag_store(256): emit(x)
    Lep = e.label("ep")
    e(f"s_barrier\ns_cmp_eq_u32 s3, 3\ns_cbranch_scc1 {Lep}")
    for k in range(3): e.lgop(f"ds_read_b128 {vr(48+4*k)}, v9 offset:{2048*k}", "p")
    for i in range(14):
        for j in range(4): accum(slot(i) + j, 16 + 8*(i // 7) + 2*j)
    e.wait(lg="all")
    for k in range(3):
        for j in range(4): accum(48 + 4*k + j, 16 + 8*k + 2*j)
    def fin(k):
        for j in range(4): e(f"v_cvt_pk_bf16_f32 v{48+4*k+j}, v{16+8*k+2*j}, v{17+8*k+2*j}")
        e(f"buffer_store_dwordx2 {vr(48+4*k,2)}, v6, s[12:15], s40 offen offset:{32*k}\nbuffer_store_dwordx2 {vr(50+4*k,2)}, v7, s[12:15], s40 offen offset:{32*k}")
    stamp(e, lvl=2)
    poll7(256)
    stamp(e)
    for sl in range(7):
        e.vmop(f"buffer_load_dwordx4 {vr(64+4*sl)}, v11, s[8:11], s{52+sl} offen sc1", sl)
    fin(0); fin(1)
    e.vm += ["o"]*4
    for sl in range(7):
        e.wait(vm=sl)
        for j in range(4): accum(64 + 4*sl + j, 32 + 2*j)
    fin(2)
    e(f"{Lep}:")
    epi(e, name, Lend, 3, 512, 256)
    e.add_launch(name, 256, lds=147456)

def build(stamp=False, only=None, **opt):
    global STAMP, OPT
    STAMP = stamp; OPT = opt
    e = Em()
    e.L.append(".p2align 8\ncode_begin:\ns_nop 0")
    for k in (only or ["k1", "k3"]): globals()[k](e)
    e.L.append("code_end:\ns_nop 0")
    return finish(e)

if __name__ == "__main__":
    import sys, hazard
    out = "sequential_preLN__spectral_gfnet__mixer_s_mlp__prompt.s"
    txt = build(False)
    open(out, "w").write(txt); open("cur.s", "w").write(txt)
    errs = hazard.check(txt.split("\n")) + hazard.check_async(txt.split("\n"))
    print("\n".join(errs[:40])); print(len(errs), "hazards;", len(txt), "bytes")
    open("stamp.s", "w").write(build(True))
```

```python
from common import *
import common
common.castab = lambda: ''
STAMP = False
STAMP_OFF = 200 << 20
OPT = {}
FLG = WS_END
FLG_SZ = 72*1024
FLG2 = FLG + 49152 + 1024
NST = 0
M16 = "v_mfma_f32_16x16x32_bf16"

def stamp(e, first=False, lvl=0):
    global NST
    if not STAMP: return
    if (lvl != OPT.get("lvl", 0) and not (lvl == -1 and OPT.get("lvl", 0) < 2)) and not first: return
    assert NST < 15
    e(f"{'s_memtime' if (lvl == 3) else 's_memrealtime'} s[{60+2*NST}:{61+2*NST}]")
    if not first: e("s_waitcnt lgkmcnt(0)"); e.lg = []
    NST += 1

def pro(e, name, ngrid, x=False, T=False, extra=()):
    global NST
    e.begin(name)
    Lend = e.label("end")
    e(f"s_cmp_ge_u32 s2, {ngrid}\ns_cbranch_scc1 {Lend}")
    NST = 0
    stamp(e, True)
    e("s_load_dwordx2 s[4:5], s[0:1], 80")
    if x: e("s_load_dwordx2 s[6:7], s[0:1], 0")
    for (sreg, off) in extra: e(f"s_load_dwordx2 s[{sreg}:{sreg+1}], s[0:1], {off}")
    if T:
        e("s_getpc_b64 s[16:17]\ns_add_u32 s16, s16, castab@rel32@lo+4\ns_addc_u32 s17, s17, castab@rel32@hi+12")
        e("s_and_b32 s17, s17, 0xffff\ns_mov_b32 s18, 663552\ns_mov_b32 s19, 0x00020000")
    e("""v_lshrrev_b32 v5, 6, v0
v_and_b32 v1, 63, v0
v_readfirstlane_b32 s3, v5
v_lshrrev_b32 v2, 4, v1
v_and_b32 v3, 15, v1
v_lshlrev_b32 v4, 4, v1""")
    return Lend
def burn(e, n):
    L = e.label("burn")
    e(f"s_mov_b32 s58, {n}\n{L}:")
    for i in range(32): e(f"v_fma_f32 v{40+i%8}, v{40+i%8}, v{40+i%8}, v{40+i%8}")
    e(f"s_sub_u32 s58, s58, 1\ns_cmp_lg_u32 s58, 0\ns_cbranch_scc1 {L}")

def pro2(e, x=False):
    e("s_waitcnt lgkmcnt(0)")
    e.srd(8, 4, WS_SIZE)
    if x: e.srd(12, 6, A_)

def dump(e, slot):
    if STAMP:
        e(f"""s_waitcnt vmcnt(0) lgkmcnt(0)
s_mov_b64 exec, 1
s_memrealtime s[90:91]
s_lshl_b32 s92, s2, 2
s_add_u32 s92, s92, s3
s_lshl_b32 s92, s92, 7
s_add_u32 s92, s92, {STAMP_OFF + slot*(1<<20)}
s_waitcnt lgkmcnt(0)
v_mov_b32 v100, 0""")
        for k in range(8):
            for j in range(4): e(f"v_mov_b32 v{96+j}, s{60+4*k+j}")
            e(f"buffer_store_dwordx4 v[96:99], v100, s[8:11], s92 offen offset:{16*k}\ns_nop 1")
        e("s_mov_b64 exec, -1")

def epi(e, name, Lend, slot, vgpr, accum):
    dump(e, slot)
    e(f"{Lend}:")
    e.end(name, vgpr, accum, 96)

def red_g(e, regs, tmps):
    for sw in ("v_permlane32_swap_b32", "v_permlane16_swap_b32"):
        for v, t in zip(regs, tmps): e(f"v_mov_b32 v{t}, v{v}")
        e("s_nop 1" if len(regs) < 3 else "s_nop 0")
        for v, t in zip(regs, tmps): e(f"{sw} v{v}, v{t}")
        if len(regs) < 2: e("s_nop 0")
        for v, t in zip(regs, tmps): e(f"v_add_f32 v{v}, v{v}, v{t}")

def sdiv(e, d, q, r, x, tmp):
    m = (1 << 32) // d + 1
    e(f"s_mul_hi_u32 s{q}, s{x}, {m}\ns_mul_i32 s{tmp}, s{q}, {d}\ns_sub_u32 s{r}, s{x}, s{tmp}")

C0 = -2.0*math.sqrt(2.0/math.pi)*math.log2(math.e)
C1 = C0*0.044715
def gelu_consts(e, r, K0, K1, IR):
    e(f"v_rcp_f32 v{IR}, v{r}\nv_mul_f32 v{K0}, {fhex(C0)}, v{r}\nv_mul_f32 v{K1}, v{r}, v{r}\nv_mul_f32 v{K1}, v{K1}, v{r}\nv_mul_f32 v{K1}, {fhex(C1)}, v{K1}")
def gelu4(a, tmp, K0, K1, IR):
    L = []
    L += [f"v_mul_f32 v{tmp+r}, v{a+r}, v{a+r}" for r in range(4)]
    L += [f"v_fma_f32 v{tmp+r}, v{tmp+r}, v{K1}, v{K0}" for r in range(4)]
    L += [f"v_mul_f32 v{tmp+r}, v{tmp+r}, v{a+r}" for r in range(4)]
    L += [f"v_exp_f32 v{tmp+r}, v{tmp+r}" for r in range(4)]
    L += [f"v_fma_f32 v{tmp+r}, v{tmp+r}, v{IR}, v{IR}" for r in range(4)]
    L += [f"v_rcp_f32 v{tmp+r}, v{tmp+r}" for r in range(4)]
    L += [f"v_mul_f32 v{tmp+r}, v{tmp+r}, v{a+r}" for r in range(4)]
    return L


def tgen(e, j0s, TB, ST, us=(0, 1, 2), hook=None, agpr=None, init=None):
    S0, S1, FA, C1r, C32r, P0, K8, Q = ST, ST+8, ST+16, ST+17, ST+18, ST+19, ST+20, ST+21
    if (0 in us) or init: e(f"s_lshl_b32 s17, s{j0s}, 4\nv_add_u32 v{FA}, s17, v3\nv_cvt_f32_u32 v{FA}, v{FA}\nv_lshlrev_b32 v{Q+1}, 3, v2\nv_cvt_f32_u32 v{Q+1}, v{Q+1}\nv_mov_b32 v{K8}, 0x3e000000")
    for u in us:
        if u: e(f"v_add_f32 v{FA}, 0x41800000, v{FA}")
        e(f"""v_mul_f32 v{C1r}, {fhex(1/576)}, v{FA}
v_mul_f32 v{C32r}, {fhex(1/18)}, v{FA}
v_mul_f32 v{P0}, v{FA}, v{Q+1}
v_floor_f32 v{C32r}, v{C32r}
v_cos_f32 v{C1r}, v{C1r}
v_fmamk_f32 v{C32r}, v{C32r}, {fhex(-18.0)}, v{FA}
v_mul_f32 v{C32r}, {fhex(1/18)}, v{C32r}""")
        sd = [(S0, 0), (S0+1, 1), (S1, 32), (S1+1, 33)]
        for r, k in sd: e(f"v_fmamk_f32 v{r}, v{FA}, {fhex(float(k))}, v{P0}")
        e(f"v_cos_f32 v{C32r}, v{C32r}")
        for r, k in sd: e(f"v_mul_f32 v{r+2}, {fhex(1/576)}, v{r}")
        e(f"v_add_f32 v{C1r}, v{C1r}, v{C1r}")
        for r, k in sd: e(f"v_floor_f32 v{r+2}, v{r+2}")
        e(f"v_add_f32 v{C32r}, v{C32r}, v{C32r}")
        for r, k in sd: e(f"v_fmamk_f32 v{r}, v{r+2}, {fhex(-576.0)}, v{r}")
        for r, k in sd: e(f"v_fmamk_f32 v{r}, v{r}, {fhex(1/576)}, v{K8}")
        for r, k in sd: e(f"v_sin_f32 v{r}, v{r}")
        e("s_nop 0")
        for i in range(2, 8):
            for S in (S0, S1): e(f"v_fma_f32 v{S+i}, v{C1r}, v{S+i-1}, -v{S+i-2}")
        for ks in range(9):
            S = S0 if ks % 2 == 0 else S1; O = S1 if ks % 2 == 0 else S0
            if ks >= 2:
                for i in range(8): e(f"v_fma_f32 v{S+i}, v{C32r}, v{O+i}, -v{S+i}")
            if agpr is None:
                for m in range(4): e(f"v_cvt_pk_bf16_f32 v{TB+(ks*3+u)*4+m}, v{S+2*m}, v{S+2*m+1}")
            else:
                for m in range(4): e(f"v_cvt_pk_bf16_f32 v{ST+24+m}, v{S+2*m}, v{S+2*m+1}")
                for m in range(4): e(f"v_accvgpr_write_b32 a{agpr+4*ks+m}, v{ST+24+m}")
            if hook: hook(u, ks)

def pack_job(e, ldflag, stflag):
    e(f"s_mul_i32 s40, s35, {3*73728}\ns_add_u32 s36, s36, s40")
    e("s_mul_i32 s40, s34, s33\ns_mul_i32 s41, s35, 384\ns_add_u32 s40, s40, s41")
    e("""v_lshrrev_b32 v6, 3, v1
v_mul_lo_u32 v6, v6, s33
v_and_b32 v7, 7, v1
v_lshl_add_u32 v6, v7, 4, v6
s_lshl_b32 s41, s33, 3
s_mul_i32 s39, s39, s33
s_mul_i32 s42, s3, 12288""")
    for f in range(4):
        for it in range(3):
            e(f"s_add_u32 m0, s42, {it*4096 + f*1024 - it*128}")
            e(f"s_add_u32 s40, s40, s{39 if f == 2 else 41}" if (it == 0 and f) else "s_nop 0")
            e.vmop(f"buffer_load_dwordx4 v6, s[12:15], s40 offen offset:{128*it} {ldflag} lds", ("d", 0))
    e("""v_mul_lo_u32 v7, v2, s37
v_lshrrev_b32 v8, 2, v3
v_add_u32 v7, v7, v8
v_lshlrev_b32 v7, 7, v7
v_and_b32 v8, 3, v3
v_lshl_add_u32 v7, v8, 3, v7
v_add_u32 v7, s42, v7
s_lshl_b32 s43, s38, 7
v_add_u32 v8, s43, v7
v_add_u32 v9, 18432, v4
v_add_u32 v10, 36864, v4
v_add_u32 v11, 55296, v4""")
    nst_save = NST; globals()["NST"] = 1
    stamp(e, lvl=-1)
    for it in range(3):
        e.wait(vm=("d", it))
        if it == 0: stamp(e, lvl=-1)
        for tt in range(4):
            o = 16 + 16*it + 4*tt
            e.lgop(f"ds_read_b64_tr_b16 {vr(o,2)}, v7 offset:{it*4096 + 32*tt}", (it, tt))
            e.lgop(f"ds_read_b64_tr_b16 {vr(o+2,2)}, v8 offset:{it*4096 + 32*tt}", (it, tt))
        for tt in range(4):
            e.wait(lg=(it, tt))
            e.vmop(f"buffer_store_dwordx4 {vr(16 + 16*it + 4*tt)}, v{(4,9,10,11)[tt]}, s[8:11], s36 offen {stflag}", "st")
        if it < 2: e("s_add_u32 s36, s36, 73728")
    globals()["NST"] = nst_save
    e.vm = []; e.lg = []

def code_srd(e, d, label, nbytes):
    e(f"s_getpc_b64 s[{d}:{d+1}]\ns_add_u32 s{d}, s{d}, {label}@rel32@lo+4\ns_addc_u32 s{d+1}, s{d+1}, {label}@rel32@hi+12")
    e(f"s_and_b32 s{d+1}, s{d+1}, 0xffff\ns_mov_b32 s{d+2}, {nbytes}\ns_mov_b32 s{d+3}, 0x00020000")

def touch(e, srd, sreg, nbytes, vaddr, vd, stride=64):
    n = -(-nbytes // stride); i = 0
    while n > 0:
        if n < 64: e(f"s_mov_b32 exec_lo, {hex((1 << min(n,32)) - 1)}\ns_mov_b32 exec_hi, {hex((1 << max(n-32,0)) - 1)}")
        e(f"buffer_load_dword v{vd}, v{vaddr}, s[{srd}:{srd+3}], s{sreg} offen")
        n -= 64; i += 1
        if n > 0: e(f"s_add_u32 s{sreg}, s{sreg}, {64*stride}")
    e("s_mov_b64 exec, -1")

def k1(e):
    name = "k1_kernel"
    N3 = 216
    NS = 243
    Lend = pro(e, name, 256 + NS, x=True, extra=((20, 8), (22, 16), (24, 32), (26, 40), (28, 48), (30, 56), (18, 64)))
    if OPT.get("cpf0", 1):
        code_srd(e, 52, "code_begin", "k3_kernel-code_begin")
        e("s_lshr_b32 s44, s2, 3\ns_lshl_b32 s44, s44, 2\ns_add_u32 s44, s44, s3\ns_and_b32 s44, s44, 15\ns_lshl_b32 s44, s44, 10")
        e.vmop("buffer_load_dwordx4 v[196:199], v4, s[52:55], s44 offen", "c")
    if OPT.get("burn1"): burn(e, OPT["burn1"])
    Lside = e.label("side"); Lst = e.label("stats"); Lep = e.label("ep")
    ACC, BF, NB, TB = 16, 64, 3, 88
    def acc(h, u, t): return ACC + h*24 + (u*2+t)*4
    e(f"s_cmp_ge_u32 s2, 256\ns_cbranch_scc1 {Lside}")
    e("""s_bfe_u32 s34, s2, 0x20003
s_and_b32 s35, s2, 7
s_lshl_b32 s35, s35, 3
s_lshr_b32 s39, s2, 5
s_add_u32 s35, s35, s39
s_lshr_b32 s36, s35, 5
s_bfe_u32 s37, s35, 0x20003
s_and_b32 s38, s35, 7
s_lshl_b32 s40, s36, 5
s_lshr_b32 s41, s3, 1
s_lshl_b32 s41, s41, 4
s_add_u32 s40, s40, s41
s_lshl_b32 s41, s37, 2
s_add_u32 s40, s40, s41
s_lshl_b32 s40, s40, 5
s_lshl_b32 s41, s38, 2
s_add_u32 s40, s40, s41
v_lshrrev_b32 v5, 3, v1
v_and_b32 v7, 3, v5
v_lshlrev_b32 v7, 5, v7
v_lshrrev_b32 v6, 2, v5
s_and_b32 s41, s3, 1
s_lshl_b32 s41, s41, 1
s_add_u32 s41, s41, s40
v_add3_u32 v6, v6, v7, s41
v_mul_u32_u24 v7, 1152, v6
v_and_b32 v5, 6, v5
v_and_b32 v6, 7, v1
v_xor_b32 v6, v6, v5
v_lshl_add_u32 v7, v6, 4, v7
s_mul_i32 s42, s3, 9216
s_mul_i32 s44, s34, 9
s_mul_i32 s45, s3, 3
s_add_u32 s44, s44, s45""")
    pro2(e, x=True)
    for idx in range(9):
        e(f"s_add_u32 m0, s42, {idx*896}\ns_nop 0")
        e.vmop(f"buffer_load_dwordx4 v7, s[12:15], 0 offen offset:{128*idx} {OPT.get('ld_x','')} lds", "dma")
    e("""v_lshrrev_b32 v13, 3, v3
v_mul_u32_u24 v13, 9216, v13
v_and_b32 v14, 7, v3
v_lshl_add_u32 v13, v14, 7, v13
v_and_b32 v14, 6, v3
v_xor_b32 v14, v14, v2
v_lshl_add_u32 v14, v14, 4, v13
v_xor_b32 v15, 64, v14""")
    e(f"s_cmp_eq_u32 s3, 3\ns_cbranch_scc1 {Lst}")
    vm_save = list(e.vm)
    tgen(e, 44, TB, 16, (1, 2) if OPT.get("k1pre", 0) else (0, 1, 2))
    e(f"""v_lshlrev_b32 v8, 12, v3
v_lshl_add_u32 v8, v2, 4, v8
s_lshl_b32 s50, s44, 16
s_lshr_b32 s51, s38, 2
s_lshl_b32 s51, s51, 1
s_add_u32 s51, s51, s36
s_lshl_b32 s51, s51, 10
s_add_u32 s50, s50, s51
s_lshl_b32 s51, s37, 8
s_add_u32 s50, s50, s51
s_and_b32 s51, s38, 3
s_lshl_b32 s51, s51, 6
s_add_u32 s50, s50, s51
s_add_u32 s50, s50, {UT}
v_lshlrev_b32 v9, 4, v2
v_lshlrev_b32 v10, 31, v3
v_or_b32 v10, 1.0, v10""")
    stamp(e)
    e.wait(vm="dma")
    e("s_barrier")
    stamp(e)
    def rd(ks):
        for t in range(2):
            e.lgop(f"ds_read_b128 {vr(BF + ((ks % NB)*2 + t)*4)}, v{14 + (ks & 1)} offset:{t*18432 + (ks >> 1)*1024}", ("b", ks))
    for ks in range(NB-1): rd(ks)
    for ks in range(18):
        if ks + NB - 1 < 18: rd(ks + NB - 1)
        e.wait(lg=("b", ks))
        for u in range(3):
            for t in range(2):
                d = vr(acc(ks // 9, u, t))
                e(f"{M16} {d}, {vr(BF + ((ks % NB)*2 + t)*4)}, {vr(TB + ((ks % 9)*3 + u)*4)}, {d if ks % 9 else 0}")
    stamp(e)
    e("s_barrier")
    stamp(e)
    e.lgop("ds_read_b128 v[76:79], v9 offset:36864", "r"); e.lgop("ds_read_b128 v[80:83], v9 offset:36928", "r")
    e("s_nop 3")
    for u in range(3):
        for t in range(2):
            for r in range(4): e(f"v_fmac_f32 v{acc(0,u,t)+r}, v{acc(1,u,t)+r}, v10")
        e.wait(lg="all")
        for t in range(2):
            for r in range(4): e(f"v_mul_f32 v{acc(0,u,t)+r}, v{acc(0,u,t)+r}, v{76+4*t+r}")
        o = BF + 4*u
        for t in range(2):
            e(f"v_cvt_pk_bf16_f32 v{o+2*t}, v{acc(0,u,t)}, v{acc(0,u,t)+1}\nv_cvt_pk_bf16_f32 v{o+2*t+1}, v{acc(0,u,t)+2}, v{acc(0,u,t)+3}")
        e.vmop(f"buffer_store_dwordx4 {vr(o)}, v8, s[8:11], s50 offen {OPT.get('sc_ut','')}", "st")
        if u < 2: e("s_add_u32 s50, s50, 65536")
    stamp(e)
    if OPT.get("touch34"):
        ts = OPT.get("tstride", 64)
        e.srd(48, 28, 5308416); e.srd(52, 30, 5308416)
        e(f"v_mul_u32_u24 v11, {ts}, v1\ns_mul_i32 s38, s2, 3\ns_add_u32 s38, s38, s3\ns_mul_i32 s38, s38, 6912\ns_mov_b32 s39, s38")
        dump(e, 1)
        touch(e, 48, 38, 6912, 11, 16, ts); touch(e, 52, 39, 6912, 11, 20, ts)
        e("s_endpgm")
    e(f"s_branch {Lep}")
    e(f"{Lst}:")
    e.vm = vm_save; e.lg = []
    if OPT.get("cpf", 1):
        code_srd(e, 52, "code_begin", "code_end-code_begin")
        e("s_lshr_b32 s44, s2, 3\ns_mul_i32 s44, s44, 3072")
        for i in range(3): e.vmop(f"buffer_load_dwordx4 v[{100+4*i}:{103+4*i}], v4, s[52:55], s44 offen offset:{1024*i}", "c")
    if OPT.get("tlb"):
        st_ = OPT["tlb"]
        e.srd(48, 28, 5308416); e.srd(52, 30, 5308416); e.srd(56, 18, A_)
        e(f"v_lshlrev_b32 v11, {st_}, v1")
        n = -(-(FLG + FLG_SZ) >> st_)
        for i in range(-(-n // 64)):
            e(f"s_mov_b32 s44, {i << (st_ + 6)}")
            e.vmop("buffer_load_dword v44, v11, s[8:11], s44 offen", "t")
        for sr in (48, 52, 56): e.vmop(f"buffer_load_dword v44, v11, s[{sr}:{sr+3}], 0 offen", "t")
    for i in range(4): e(f"v_mov_b32 v{36+i}, 0x3f803f80")
    e("v_lshrrev_b32 v8, 2, v3\nv_and_b32 v9, 3, v3")
    e.wait(vm="dma")
    e("s_barrier")
    NR = 6
    def rds(f): e.lgop(f"ds_read_b128 {vr(64+4*(f%NR))}, v{14 + (f & 1)} offset:{(f // 18)*18432 + ((f % 18) >> 1)*1024}", f)
    for f in range(NR-1): rds(f)
    for f in range(36):
        if f + NR - 1 < 36: rds(f + NR - 1)
        e.wait(lg=f)
        t = f // 18; x = vr(64 + 4*(f % NR))
        e(f"{M16} {vr(16+8*t)}, {x}, v[36:39], {vr(16+8*t) if f % 18 else 0}")
        e(f"{M16} {vr(20+8*t)}, {x}, {x}, {vr(20+8*t) if f % 18 else 0}")
    e("v_cmp_eq_u32 s[40:41], 1, v9\nv_cmp_eq_u32 s[42:43], 2, v9\nv_cmp_eq_u32 s[46:47], 3, v9\nv_cmp_eq_u32 s[48:49], v8, v2\ns_nop 4")
    for b in (16, 20, 24, 28):
        e(f"v_cndmask_b32 v{b}, v{b}, v{b+1}, s[40:41]\nv_cndmask_b32 v{b}, v{b}, v{b+2}, s[42:43]\nv_cndmask_b32 v{b}, v{b}, v{b+3}, s[46:47]")
    e(f"v_mov_b32 v32, {fhex(1/576)}")
    for t in range(2):
        b = 16 + 8*t
        e(f"""v_mul_f32 v{b}, v32, v{b}
v_mul_f32 v{b+1}, v{b}, v{b}
v_fma_f32 v{b+4}, v{b+4}, v32, -v{b+1}
v_max_f32 v{b+4}, 0, v{b+4}
v_add_f32 v{b+4}, {fhex(EPS)}, v{b+4}
v_rsq_f32 v{b+4}, v{b+4}""")
    Lns = e.label("nost")
    e(f"""v_lshlrev_b32 v33, 2, v3
s_lshl_b32 s45, s35, 7
s_add_u32 s45, s45, {MX}
s_mov_b64 exec, s[48:49]
ds_write_b32 v33, v20 offset:36864
ds_write_b32 v33, v28 offset:36928
s_cmp_lg_u32 s34, 0
s_cbranch_scc1 {Lns}
buffer_store_dword v16, v33, s[8:11], s45 offen
buffer_store_dword v24, v33, s[8:11], s45 offen offset:64
{Lns}:
s_waitcnt lgkmcnt(0)
s_barrier
s_branch {Lep}""")
    e(f"{Lside}:")
    e.vm = []; e.lg = []
    Lwt, Lrm, L2, Lgo = [e.label(x) for x in ("wt", "rm", "w2", "go")]
    L3, Lgo2, Lpk, Lw1 = e.label("w3"), e.label("go2"), e.label("pk"), e.label("wv1")
    e(f"""s_sub_u32 s32, s2, 256
s_cmp_eq_u32 s3, 0
s_cbranch_scc1 {Lpk}
s_cmp_eq_u32 s3, 1
s_cbranch_scc1 {Lw1}
s_mul_i32 s33, s3, 243
s_add_u32 s32, s33, s32
s_sub_u32 s32, s32, 486
s_waitcnt lgkmcnt(0)
s_branch {Lwt}
{Lw1}:
s_add_u32 s32, s32, 243
s_cmp_lt_u32 s32, 324
s_cbranch_scc1 {Lpk}
s_waitcnt lgkmcnt(0)
s_sub_u32 s32, s32, 324
s_cmp_lt_u32 s32, 72
s_cbranch_scc1 {Lrm}
s_add_u32 s32, s32, {486 - 72}
s_branch {Lwt}
{Lpk}:""")
    pro2(e)
    e(f"s_cmp_lt_u32 s32, 216\ns_cbranch_scc1 {L3}\ns_sub_u32 s32, s32, 216\ns_cmp_ge_u32 s32, 54\ns_cbranch_scc1 {L2}")
    e.srd(12, 24, 663552)
    e(f"s_mov_b32 s39, {W1P}\ns_branch {Lgo}\n{L2}:\ns_sub_u32 s32, s32, 54")
    e.srd(12, 26, 663552)
    e(f"s_mov_b32 s39, {W2P}\n{Lgo}:")
    sdiv(e, 3, 34, 35, 32, 40)
    e("s_mov_b32 s33, 1152\ns_lshl_b32 s36, s34, 10\ns_add_u32 s36, s36, s39\ns_mov_b32 s37, 8\ns_mov_b32 s38, 4\ns_mov_b32 s39, 8\ns_lshl_b32 s34, s34, 5")
    pack_job(e, OPT.get("ld_p12", "nt"), OPT.get("sc_p12", "sc1"))
    e(f"s_branch {Lep}")
    if N3:
        e(f"{L3}:")
        e.srd(12, 28, 5308416); sdiv(e, 24, 34, 35, 32, 40)
        e(f"s_mov_b32 s33, 9216\ns_lshl_b32 s36, s34, 10\ns_add_u32 s36, s36, {W3P}\ns_mov_b32 s37, 8\ns_mov_b32 s38, 4\ns_mov_b32 s39, 8\ns_lshl_b32 s34, s34, 5")
        pack_job(e, OPT.get("ld_pk", "nt"), OPT.get("sc_pk", "sc1"))
        e(f"s_branch {Lep}")
    e(f"{Lrm}:")
    e.srd(8, 4, WS_SIZE)
    e.srd(12, 26, 663552)
    e("""v_lshrrev_b32 v6, 3, v1
v_mul_u32_u24 v7, 1152, v6
v_and_b32 v8, 7, v1
v_lshl_add_u32 v7, v8, 4, v7
s_mul_i32 s33, s32, 9216
s_mov_b32 s34, 0x3f803f80
v_mov_b32 v9, 0""")
    for m in range(9): e.vmop(f"buffer_load_dwordx4 {vr(16+4*m)}, v7, s[12:15], s33 offen offset:{128*m}", m)
    Lnz = e.label("nz")
    e(f"s_cmp_ge_u32 s32, 72\ns_cbranch_scc1 {Lnz}\nv_mov_b32 v56, 0\nv_mov_b32 v57, 0\nv_mov_b32 v58, 0\nv_mov_b32 v59, 0\ns_lshl_b32 s38, s32, 10\ns_add_u32 s38, s38, {FLG}")
    e(f"buffer_store_dwordx4 v[56:59], v4, s[8:11], s38 offen\n{Lnz}:")
    e.wait(vm="all")
    for j in range(36): e(f"v_dot2_f32_bf16 v9, v{16+j}, s34, v9")
    e(f"""s_nop 3
v_add_f32_dpp v9, v9, v9 quad_perm:[1,0,3,2] row_mask:0xf bank_mask:0xf
s_nop 1
v_add_f32_dpp v9, v9, v9 quad_perm:[2,3,0,1] row_mask:0xf bank_mask:0xf
s_nop 1
v_add_f32_dpp v9, v9, v9 row_half_mirror row_mask:0xf bank_mask:0xf
v_mul_f32 v9, {fhex(1/576)}, v9
v_cvt_pk_bf16_f32 v9, v9, v9
v_lshlrev_b32 v6, 1, v6
s_lshl_b32 s33, s32, 8
s_add_u32 s33, s33, {W2P + 36*18432}
v_cmp_eq_u32 vcc, 0, v8
s_nop 1
s_and_saveexec_b64 s[36:37], vcc
buffer_store_short v9, v6, s[8:11], s33 offen
s_branch {Lep}""")
    e(f"{Lwt}:")
    e.srd(8, 4, WS_SIZE)
    sdiv(e, 9, 33, 34, 32, 40)
    e("""s_lshr_b32 s35, s33, 4
s_and_b32 s33, s33, 15
v_lshrrev_b32 v6, 5, v1
s_lshl_b32 s33, s33, 2
v_add_u32 v6, s33, v6
v_and_b32 v7, 31, v1
s_lshl_b32 s34, s34, 5
v_add_u32 v7, s34, v7
v_mul_u32_u24 v8, 578, v6
v_lshl_add_u32 v8, v7, 1, v8
v_add_u32 v8, 2, v8
s_mul_i32 s36, s35, 147968""")
    e.srd(12, 20, 1183744); e.srd(16, 22, 1183744)
    for gg in range(2):
        for tk in range(2):
            for r in range(4):
                i = gg*16 + tk*4 + r
                e(f"s_add_u32 s37, s36, {36992*(16*tk+r) + 1156*gg}")
                e.vmop(f"buffer_load_ushort v{16+i}, v8, s[12:15], s37 offen {OPT.get('ld_w','')}", gg)
                e.vmop(f"buffer_load_ushort v{24+i}, v8, s[16:19], s37 offen {OPT.get('ld_w','')}", gg)
    e(f"""v_lshlrev_b32 v9, 13, v7
v_lshrrev_b32 v10, 4, v6
v_lshl_add_u32 v9, v10, 11, v9
v_and_b32 v10, 15, v6
v_lshl_add_u32 v9, v10, 5, v9
s_lshl_b32 s36, s35, 9
s_add_u32 s36, s36, {WT}""")
    for gg in range(2):
        e.wait(vm=gg)
        for i in range(8): e(f"v_lshl_or_b32 v{16+16*gg+i}, v{24+16*gg+i}, 16, v{16+16*gg+i}")
        e.vmop(f"buffer_store_dwordx4 {vr(16+16*gg)}, v9, s[8:11], s36 offen offset:{64*gg} {OPT.get('sc_wt','')}", "st")
        e.vmop(f"buffer_store_dwordx4 {vr(20+16*gg)}, v9, s[8:11], s36 offen offset:{64*gg+16} {OPT.get('sc_wt','')}", "st")
    NC = OPT.get("chain", 0)
    if NC:
        e(f"s_cmp_ge_u32 s32, {NC}\ns_cbranch_scc1 {Lep}")
        e.srd(12, 28, 5308416); sdiv(e, 24, 34, 35, 32, 40)
        e(f"s_mov_b32 s33, 9216\ns_lshl_b32 s36, s34, 10\ns_add_u32 s36, s36, {W3P}\ns_mov_b32 s37, 8\ns_mov_b32 s38, 4\ns_mov_b32 s39, 8\ns_lshl_b32 s34, s34, 5")
        pack_job(e, OPT.get("ld_pk", "nt"), OPT.get("sc_pk", "sc1"))
    e(f"{Lep}:")
    epi(e, name, Lend, 1, 200, 200)
    e.add_launch(name, 256 + NS, lds=49152)

def p2x2(e):
    e(f"""s_add_u32 s35, s34, 1
s_sub_u32 s46, 287, s34
s_cmp_eq_u32 s34, 143
s_cselect_b32 s46, 288, s46
s_cselect_b32 s14, 0, {WS_SIZE}
s_cselect_b32 s45, 0, s46
s_lshl_b32 s39, s34, 13
s_lshl_b32 s47, s46, 13
s_lshl_b32 s40, s3, 11
s_add_u32 s40, s40, {WT}
s_add_u32 s39, s39, s40
s_add_u32 s47, s47, s40
s_sub_u32 s47, s47, 8192
s_lshl_b32 s38, s35, 13
s_lshl_b32 s45, s45, 13
s_lshl_b32 s35, s35, 12
s_lshl_b32 s46, s46, 12
s_sub_u32 s36, {576*4096}, s35
s_sub_u32 s37, {576*4096}, s46
v_lshlrev_b32 v6, 5, v1
s_cmp_eq_u32 s3, 1
s_cselect_b32 s48, s36, s35
s_cmp_eq_u32 s3, 2
s_cselect_b32 s48, s46, s48
s_cmp_eq_u32 s3, 3
s_cselect_b32 s48, s37, s48
s_cselect_b32 s14, s14, {WS_SIZE}
s_lshl_b32 s49, s3, 12
s_add_u32 m0, s49, 16384""")
    pro2(e)
    e("s_mov_b32 s12, s8\ns_mov_b32 s13, s9\ns_mov_b32 s15, 0x00020000")
    P, Q, WV, RE, IM, PR, PI = (16, 168), (32, 184), (48, 200), (152, 208), (160, 216), (8, 224), (12, 228)
    for f in range(4): e.vmop(f"buffer_load_dwordx4 v4, s[12:15], s48 offen offset:{f*1024} lds", "d")
    for c in range(2):
        e.vmop(f"buffer_load_dwordx4 {vr(WV[c])}, v6, s[8:11], s{(39,47)[c]} offen", ("w", c))
        e.vmop(f"buffer_load_dwordx4 {vr(WV[c]+4)}, v6, s[8:11], s{(39,47)[c]} offen offset:16", ("w", c))
    C64, S64, N64 = 56, 64, 72
    C32, S32, N32 = 80, 88, 96
    TC1, TS1, TC2, TS2 = 104, 112, 120, 128
    TMP = 136
    e("""s_lshl_b32 s40, s3, 4
v_add_u32 v7, s40, v3
v_cvt_f32_u32 v7, v7
v_lshlrev_b32 v5, 2, v2
v_cvt_f32_u32 v5, v5
v_cvt_f32_u32 v6, v3
s_mov_b32 s41, 0x80008000
s_brev_b32 s42, 1
v_and_b32 v0, 1, v3
v_mul_lo_u32 v0, v0, s41""")
    e(f"v_mul_f32 v8, {fhex(1/64)}, v7\nv_mul_f32 v9, v5, v8")
    for i in range(8): e(f"v_fmamk_f32 v{TMP+i}, v8, {fhex(float(16*(i>>2) + (i&3)))}, v9")
    for i in range(8): e(f"v_fract_f32 v{TMP+i}, v{TMP+i}")
    for i in range(8): e(f"v_sin_f32 v{TMP+8+i}, v{TMP+i}")
    for i in range(8): e(f"v_cos_f32 v{TMP+i}, v{TMP+i}")
    for m in range(4): e(f"v_cvt_pk_bf16_f32 v{S64+m}, v{TMP+8+2*m}, v{TMP+9+2*m}")
    for m in range(4): e(f"v_cvt_pk_bf16_f32 v{C64+m}, v{TMP+2*m}, v{TMP+1+2*m}")
    for m in range(4): e(f"v_xor_b32 v{N64+m}, s41, v{S64+m}")
    for b in (C64, S64, N64):
        for m in range(4): e(f"v_xor_b32 v{b+4+m}, v0, v{b+m}")
    tw1 = [f"v_mul_f32 v8, {fhex(1/2048)}, v7", "v_mul_f32 v9, v5, v8"]
    tw1 += [f"v_fmamk_f32 v{TC1+i}, v8, {fhex(float(16*(i>>2)+(i&3)))}, v9" for i in range(8)]
    tw1 += [f"v_sin_f32 v{TS1+i}, v{TC1+i}" for i in range(8)] + [f"v_cos_f32 v{TC1+i}, v{TC1+i}" for i in range(8)]
    for l in tw1: e(l)
    m32 = [f"v_mul_f32 v8, {fhex(1/32)}, v6", "v_mul_f32 v9, v5, v8"]
    m32 += [f"v_fmamk_f32 v{TC2+i}, v8, {fhex(float(i))}, v9" for i in range(4)]
    m32 += [f"v_fract_f32 v{TC2+i}, v{TC2+i}" for i in range(4)]
    m32 += [f"v_sin_f32 v{TC2+4+i}, v{TC2+i}" for i in range(4)] + [f"v_cos_f32 v{TC2+i}, v{TC2+i}" for i in range(4)]
    m32 += [f"v_cvt_pk_bf16_f32 v{S32+m}, v{TC2+4+2*m}, v{TC2+5+2*m}" for m in range(2)]
    m32 += [f"v_cvt_pk_bf16_f32 v{C32+m}, v{TC2+2*m}, v{TC2+1+2*m}" for m in range(2)]
    m32 += [f"v_xor_b32 v{b+2+m}, v0, v{b+m}" for b in (C32, S32) for m in range(2)]
    m32 += [f"v_xor_b32 v{b+4+m}, s42, v{b+m}" for b in (C32, S32) for m in range(4)]
    m32 += [f"v_xor_b32 v{N32+m}, s41, v{S32+m}" for m in range(8)]
    tw2 = ["v_cvt_f32_u32 v0, s40", "v_add_f32 v0, v0, v5", f"v_mul_f32 v7, {fhex(1/2048)}, v6", f"v_add_f32 v5, {fhex(16/2048)}, v7",
           "v_mul_f32 v6, v0, v7", "v_mul_f32 v0, v0, v5"]
    tw2 += [f"v_fmamk_f32 v{TC2+r}, v7, {fhex(float(r))}, v6" for r in range(4)]
    tw2 += [f"v_fmamk_f32 v{TC2+4+r}, v5, {fhex(float(r))}, v0" for r in range(4)]
    tw2 += [f"v_sin_f32 v{TS2+i}, v{TC2+i}" for i in range(8)] + [f"v_cos_f32 v{TC2+i}, v{TC2+i}" for i in range(8)]
    def steps(lst, fill=(), per=2, tail=0):
        fill = list(fill)
        n = len(lst[0][1])
        for k in range(n):
            for d, ch in lst:
                A, B = ch[k]
                e(f"{M16} {vr(d)}, {vr(A)}, {vr(B)}, {vr(d) if k else 0}")
                for _ in range(per):
                    if fill: e(fill.pop(0))
        nleft = len(fill)
        for l in fill: e(l)
        if nleft < tail: e(f"s_nop {tail - nleft - 1}")
    def cmul(c, cre, sim, sign):
        L = [f"v_mul_f32 v{TMP+i}, v{RE[c]+i}, v{cre+i}" for i in range(8)]
        L += [f"v_mul_f32 v{TMP+8+i}, v{IM[c]+i}, v{cre+i}" for i in range(8)]
        L += [f"v_fma_f32 v{TMP+i}, {'-' if sign > 0 else ''}v{IM[c]+i}, v{sim+i}, v{TMP+i}" for i in range(8)]
        L += [f"v_fma_f32 v{TMP+8+i}, {'' if sign > 0 else '-'}v{RE[c]+i}, v{sim+i}, v{TMP+8+i}" for i in range(8)]
        L += [f"v_cvt_pk_bf16_f32 v{PR[c]+m}, v{TMP+2*m}, v{TMP+2*m+1}" for m in range(4)]
        L += [f"v_cvt_pk_bf16_f32 v{PI[c]+m}, v{TMP+8+2*m}, v{TMP+9+2*m}" for m in range(4)]
        return L
    def MA(c, s1, s2): return ([(RE[c]+4*ts, [(P[c]+8*ts, C64), (Q[c]+8*ts, s1), (P[c]+8*ts+4, C64+4), (Q[c]+8*ts+4, s1+4)]) for ts in range(2)] +
                               [(IM[c]+4*ts, [(Q[c]+8*ts, C64), (P[c]+8*ts, s2), (Q[c]+8*ts+4, C64+4), (P[c]+8*ts+4, s2+4)]) for ts in range(2)])
    def MB(c): return ([(RE[c]+4*tk, [(C32+4*tk, PR[c]), (S32+4*tk, PI[c])]) for tk in range(2)] + [(IM[c]+4*tk, [(C32+4*tk, PI[c]), (N32+4*tk, PR[c])]) for tk in range(2)])
    def MC(c): return ([(RE[c]+4*ts, [(PR[c], C32+4*ts), (PI[c], N32+4*ts)]) for ts in range(2)] + [(IM[c]+4*ts, [(PI[c], C32+4*ts), (PR[c], S32+4*ts)]) for ts in range(2)])
    def wun(c):
        L = []
        for i in range(8): L += [f"v_lshlrev_b32 v{TC1+i}, 16, v{WV[c]+i}", f"v_and_b32 v{TS1+i}, 0xffff0000, v{WV[c]+i}"]
        return L
    stamp(e, lvl=6)
    for l in m32: e(l)
    if OPT.get('t0a', 0): tgen(e, 27, 0, 16, (0,), agpr=216)
    stamp(e, lvl=7)
    e.wait(vm="d")
    e("s_barrier")
    for c in range(2):
        for js in range(2):
            for ts in range(2):
                f = ts*2 + js
                e.lgop(f"ds_read_b128 {vr(P[c]+4*f)}, v4 offset:{16384 + c*8192 + f*1024}", ("u", c))
                e.lgop(f"ds_read_b128 {vr(Q[c]+4*f)}, v4 offset:{16384 + c*8192 + 4096 + f*1024}", ("u", c))
    stamp(e, lvl=7)
    e.wait(lg=("u", 0))
    steps(MA(0, S64, N64), tw2, 2, 8)
    stamp(e, lvl=7)
    e.wait(lg=("u", 1))
    stamp(e, lvl=7)
    steps(MA(1, S64, N64), cmul(0, TC1, TS1, -1), 2, 8)
    e("s_nop 0")
    steps(MB(0), cmul(1, TC1, TS1, -1), 2, 8)
    stamp(e, lvl=7)
    e.wait(vm=("w", 1))
    stamp(e, lvl=7)
    steps(MB(1), wun(0) + cmul(0, TC1, TS1, +1), 2, 8)
    e("s_lshr_b32 s43, s3, 1\ns_lshl_b32 s43, s43, 10")
    steps(MC(0), wun(1) + cmul(1, TC1, TS1, +1), 2, 8)
    e("s_and_b32 s44, s3, 1\ns_lshl_b32 s44, s44, 3\ns_add_u32 s43, s43, s44")
    e("v_add_u32 v5, s43, v4")
    steps(MC(1), cmul(0, TC2, TS2, +1), 2, 8)
    stamp(e, lvl=7)
    for c in range(2):
        for l in (cmul(c, TC2, TS2, +1) if c else []): e(l)
        for ts in range(2):
            e.lgop(f"ds_write_b64 v5, {vr(PR[c]+2*ts,2)} offset:{c*8192 + (ts*2+0)*2048}", "x")
            e.lgop(f"ds_write_b64 v5, {vr(PI[c]+2*ts,2)} offset:{c*8192 + (ts*2+1)*2048}", "x")
    e(f"""s_lshl_b32 s40, s3, 11
v_and_b32 v6, 7, v3
v_lshlrev_b32 v6, 7, v6
v_lshrrev_b32 v7, 3, v3
v_lshl_add_u32 v6, v7, 6, v6
v_lshl_add_u32 v6, v2, 4, v6
v_add_u32 v6, s40, v6
s_add_u32 s38, s38, {VT}
s_add_u32 s45, s45, {VT}""")
    e.wait(lg="all")
    stamp(e, lvl=7)
    e("s_barrier")
    stamp(e, lvl=6); stamp(e, lvl=7)
    for c in range(2):
        for js in range(2):
            for ts in range(2):
                e.lgop(f"ds_read_b128 {vr(P[c]+8*ts+4*js)}, v4 offset:{c*8192 + ((ts*2+0)*2+js)*1024}", ("y", c))
                e.lgop(f"ds_read_b128 {vr(Q[c]+8*ts+4*js)}, v4 offset:{c*8192 + ((ts*2+1)*2+js)*1024}", ("y", c))
    def cv(dst, src): return [f"v_cvt_pk_bf16_f32 v{dst+m}, v{src+2*m}, v{src+2*m+1}" for m in range(4)]
    def merge(X, Y, sr):
        L = [f"v_mov_b32 v{TMP+m}, v{X+m}" for m in range(4)] + ["s_nop 0"]
        L += [f"v_mov_b32_dpp v{X+m}, v{Y+m} row_ror:8 row_mask:0xf bank_mask:0xc" for m in range(4)]
        L += [f"v_mov_b32_dpp v{Y+m}, v{TMP+m} row_ror:8 row_mask:0xf bank_mask:0x3" for m in range(4)]
        L += [f"buffer_store_dwordx4 {vr(X)}, v6, s[8:11], s{sr} offen sc1", f"buffer_store_dwordx4 {vr(Y)}, v6, s[8:11], s{sr} offen offset:1024 sc1"]
        return L
    mA, mB = MA(0, N64, S64), MA(1, N64, S64)
    Lsp, Lfin = e.label("special"), e.label("p2fin")
    e.wait(lg="all")
    steps(mA[:2] + mB[2:])
    e(f"s_cmp_eq_u32 s34, 143\ns_cbranch_scc1 {Lsp}")
    steps(mB[:2] + mA[2:], ["s_nop 0"]*3 + cv(PR[0], RE[0]) + cv(PI[1], IM[1]) + merge(PR[0], PI[1], 38), 2, 8)
    for l in cv(PR[1], RE[1]) + cv(PI[0], IM[0]) + merge(PR[1], PI[0], 45): e(l)
    e(f"s_branch {Lfin}\n{Lsp}:")
    steps(mB[:2] + mA[2:], (), 2, 8)
    for l in cv(PR[0], RE[0]) + cv(PI[0], IM[0]) + cv(PI[1], RE[1]) + [f"v_mov_b32 v{PR[1]+m}, 0" for m in range(4)]: e(l)
    for l in merge(PR[0], PI[0], 38) + merge(PR[1], PI[1], 45): e(l)
    e(f"{Lfin}:")
    stamp(e, lvl=7)
    e.vm = []; e.lg = []

NPF = 32
def k3(e):
    name = "k3_kernel"
    Lend = pro(e, name, 256, x=True, extra=((22, 64), (20, 56), (18, 48)))
    W4K3 = 0
    ACC, BF, NB, HCR, TB, XR = 16, 64, 3, 40, 104, 212
    XV, AC, TT, KC, TMP, PK, RING, BASE = 16, 48, 64, 80, 92, 96, 104, 232
    T0A = OPT.get('t0a', 0)
    DA = 244
    def acc(u, t): return ACC + (u*2+t)*4
    def wfrag(ph, ks, u):
        if ph == "T": return vr(216 + (ks % 9)*4, 4, "a") if (u == 0 and T0A) else vr(TB + ((ks % 9)*3 + u)*4)
        f = ks*3 + u
        if ph == "W1": return vr(4*f, 4, "a")
        if f < 32: return vr(104 + 4*f)
        if f < 42: return vr(216 + 4*(f-32), 4, "a")
        return vr(4*(f-42), 4, "a")
    if OPT.get("burn3"): burn(e, OPT["burn3"])
    mp = OPT.get("map", 3)
    e("s_lshr_b32 s30, s2, 3\ns_and_b32 s31, s2, 7")
    if mp == 2:
        e("s_lshl_b32 s26, s31, 2\ns_lshr_b32 s32, s30, 3\ns_add_u32 s26, s26, s32\ns_and_b32 s24, s30, 3\ns_bfe_u32 s29, s30, 0x10002")
    elif mp == 3:
        e("s_lshr_b32 s26, s31, 1\ns_lshl_b32 s26, s26, 3\ns_lshr_b32 s32, s30, 2\ns_add_u32 s26, s26, s32\ns_and_b32 s24, s30, 3\ns_and_b32 s29, s31, 1")
    elif mp == 4:
        e("s_lshr_b32 s26, s31, 2\ns_lshl_b32 s26, s26, 4\ns_lshr_b32 s32, s30, 1\ns_add_u32 s26, s26, s32\ns_and_b32 s24, s31, 2\ns_and_b32 s32, s30, 1\ns_add_u32 s24, s24, s32\ns_and_b32 s29, s31, 1")
    elif mp == 1:
        e("s_mov_b32 s26, s30\ns_lshr_b32 s24, s31, 1\ns_and_b32 s29, s31, 1")
    e("""s_lshl_b32 s25, s26, 1
s_add_u32 s25, s25, s29
s_mul_i32 s27, s24, 9
s_mul_i32 s32, s3, 3
s_add_u32 s27, s27, s32
s_lshl_b32 s28, s29, 2
s_add_u32 s28, s28, s24""")
    HB = 73728
    def setup6():
        e(f"""s_mul_i32 s40, s26, 73728
s_mul_i32 s32, s3, 18432
s_add_u32 s40, s40, s32
s_add_u32 s40, s40, {X6}
v_lshlrev_b32 v6, 3, v3
v_mul_u32_u24 v7, 384, v2
v_add_u32 v6, v6, v7
s_lshl_b32 s37, s26, 12
s_add_u32 s37, s37, {SQ1}
s_lshr_b32 s33, s3, 1
s_lshl_b32 s33, s33, 10
s_and_b32 s36, s3, 1
s_lshl_b32 s36, s36, 3
s_add_u32 s33, s33, s36
s_add_u32 s33, s33, {HB}
v_add_u32 v8, s33, v4
v_add_u32 v9, 36864, v8
v_add_u32 v12, {HB}, v4
v_add_u32 v13, {HB+36864}, v4
v_add_u32 v14, s32, v4
s_lshl_b32 s34, s26, 2
s_add_u32 s34, s34, s3
s_mul_i32 s34, s34, 18432
s_mul_i32 s35, s28, {A_}
s_add_u32 s34, s34, s35
s_add_u32 s34, s34, {PART}""")
    NT = 2*162
    ORD = [0, 3, 6, 1, 4, 7, 2, 5, 8]
    def wload6(n):
        out = []
        if OPT.get("rot"):
            ph2 = n >= 162
            b, ks = divmod(n % 162, 18)
            rot = OPT["rot"] & (2 if ph2 else 1)
            if ks == 0:
                t = ORD[b] if ph2 else b
                if rot: out.append(("s", f"s_and_b32 s16, s26, 7\ns_add_u32 s16, s16, {t}\ns_cmp_ge_u32 s16, 9\ns_cselect_b32 s17, 9, 0\ns_sub_u32 s16, s16, s17\ns_mul_i32 s16, s16, 18432\ns_add_u32 s16, s16, s{31 if ph2 else 30}"))
                else: out.append(("s", f"s_add_u32 s16, s{31 if ph2 else 30}, {t*18432}"))
            if ks % 4 == 0: out.append(("s", f"s_add_u32 s17, s16, {ks*1024}"))
            out.append(("v", f"buffer_load_dwordx4 {vr(RING+4*(n % NPF))}, v4, s[8:11], s17 offen offset:{(ks&3)*1024} {OPT.get('ld6', 'sc1')}", ("w", n)))
        elif n < 162:
            if n % 4 == 0 and n: out.append(("s", "s_add_u32 s30, s30, 4096"))
            out.append(("v", f"buffer_load_dwordx4 {vr(RING+4*(n % NPF))}, v4, s[8:11], s30 offen offset:{(n&3)*1024} {OPT.get('ld6', 'sc1')}", ("w", n)))
        else:
            b, ks = divmod(n - 162, 18)
            if ks % 4 == 0: out.append(("s", f"s_add_u32 s30, s31, {ORD[b]*18432 + ks*1024}"))
            out.append(("v", f"buffer_load_dwordx4 {vr(RING+4*(n % NPF))}, v4, s[8:11], s30 offen offset:{(ks&3)*1024} {OPT.get('ld6', 'sc1')}", ("w", n)))
        return out
    def emit(x):
        if x[0] == "s": e(x[1])
        elif x[0] == "v": e.vmop(x[1], x[2])
        elif x[0] == "l": e.lgop(x[1], x[2])
        elif x[0] == "wv": e.wait(vm=x[1])
        elif x[0] == "wl": e.wait(lg=x[1])
        elif x[0] == "st": stamp(e, lvl=x[1])
    Lpack, Ljoin = e.label("pack"), e.label("join")
    e(f"s_cmp_ge_u32 s30, 18\ns_cbranch_scc1 {Lpack}\ns_lshl_b32 s34, s30, 3\ns_add_u32 s34, s34, s31\ns_mov_b32 s58, s34\ns_mov_b32 s56, 255\ns_mov_b32 s57, 0")
    p2x2(e)
    e(f"""s_branch {Ljoin}
{Lpack}:
s_sub_u32 s56, s30, 18
s_lshl_b32 s56, s56, 3
s_add_u32 s56, s56, s31""")
    e("""s_cmp_lt_u32 s3, 3
s_cselect_b32 s57, 1, 0
s_cmp_ge_u32 s56, 108
s_cselect_b32 s57, 0, s57
v_lshrrev_b32 v236, 3, v1
v_and_b32 v237, 7, v1
v_lshrrev_b32 v238, 2, v3""")
    pro2(e)
    e(f"s_cmp_eq_u32 s57, 0\ns_cbranch_scc1 {Ljoin}{'0' if T0A else ''}\ns_mul_i32 s42, s3, 24576\ns_add_u32 s42, s42, 36864\ns_mov_b32 s14, 5308416\ns_mov_b32 s15, 0x00020000")
    for k in range(2):
        e(f"""s_lshl_b32 s34, s3, 1
s_add_u32 s34, s34, {k}
s_cmp_ge_u32 s34, 3
s_cselect_b32 s35, 1, 0
s_cselect_b32 s36, 3, 0
s_sub_u32 s44, s34, s36
s_lshl_b32 s34, s56, 1
s_add_u32 s34, s34, s35""")
        sdiv(e, 27, 59, 43, 34, 40)
        e(f"""s_cmp_ge_u32 s43, 9
s_cselect_b32 s12, s20, s18
s_cselect_b32 s13, s21, s19
s_mov_b32 s33, 9216
s_cselect_b32 s33, 1152, s33
s_cselect_b32 s37, 4, 8
s_cselect_b32 s38, 16, 4
s_cselect_b32 s39, 136, 8
s_cselect_b32 s36, -9, 9
s_mov_b32 s{50+k}, {W3P}
s_cselect_b32 s{50+k}, {W4P}, s{50+k}
s_cselect_b32 s47, 1, 0
s_and_b32 s13, s13, 0xffff
s_add_u32 s43, s43, s36
s_mul_i32 s40, s59, 663552
s_add_u32 s{50+k}, s{50+k}, s40
s_lshl_b32 s40, s43, 10
s_add_u32 s{50+k}, s{50+k}, s40
s_mul_i32 s40, s44, {3*73728}
s_add_u32 s{50+k}, s{50+k}, s40
s_and_b32 s40, s43, 1
s_mul_i32 s40, s40, 288
s_lshr_b32 s46, s43, 1
s_lshl_b32 s46, s46, 4
s_add_u32 s40, s40, s46
s_mul_i32 s46, s59, 576
s_add_u32 s40, s40, s46
s_mul_i32 s40, s40, 1152
s_mul_i32 s46, s43, {32*9216}
s_mul_i32 s48, s59, 1152
s_add_u32 s46, s46, s48
s_cmp_eq_u32 s47, 1
s_cselect_b32 s40, s40, s46
s_mul_i32 s46, s44, 384
s_add_u32 s40, s40, s46
v_mul_lo_u32 v235, v236, s33
v_lshl_add_u32 v235, v237, 4, v235
s_lshl_b32 s41, s33, 3
s_mul_i32 s39, s39, s33
v_mul_lo_u32 v{240+2*k}, v2, s37
v_add_u32 v{240+2*k}, v{240+2*k}, v238
v_lshlrev_b32 v{240+2*k}, 7, v{240+2*k}
v_and_b32 v{241+2*k}, 3, v3
v_lshl_add_u32 v{240+2*k}, v{241+2*k}, 3, v{240+2*k}
v_add_u32 v{240+2*k}, s42, v{240+2*k}
s_lshl_b32 s43, s38, 7
v_add_u32 v{241+2*k}, s43, v{240+2*k}""")
        for f in range(4):
            for it in range(3):
                e(f"s_add_u32 m0, s42, {k*12288 + it*4096 + f*1024 - it*128}")
                e(f"s_add_u32 s40, s40, s{39 if f == 2 else 41}" if (it == 0 and f) else "s_nop 0")
                e(f"buffer_load_dwordx4 v235, s[12:15], s40 offen offset:{128*it} {OPT.get('ld_pk','nt')} lds")
    if T0A:
        e(f"{Ljoin}0:")
        tgen(e, 27, 0, 16, (0,), agpr=216)
    e(f"{Ljoin}:")
    e.vm = ["pk"]*24; e.lg = []
    def p2_signal():
        Ld = e.label("sigdone")
        e(f"""s_cmp_lg_u32 s56, 255
s_cbranch_scc1 {Ld}
s_waitcnt vmcnt(0)
s_barrier
s_cmp_lg_u32 s3, 3
s_cbranch_scc1 {Ld}
s_lshl_b32 s46, s58, 2
s_add_u32 s46, s46, {FLG2}
v_mov_b32 v250, 1
v_mul_u32_u24 v251, 640, v1
s_mov_b32 exec_hi, 0
s_mov_b32 exec_lo, {hex((1 << OPT.get('nrep', 32)) - 1)}
buffer_store_dword v250, v251, s[8:11], s46 offen sc1
s_mov_b64 exec, -1
{Ld}:""")
        stamp(e, lvl=6)
    def pack_finish():
        Ld = e.label("pkdone")
        e(f"s_cmp_eq_u32 s56, 255\ns_cbranch_scc1 {Ld}\nv_add_u32 v239, 55296, v4")
        e.wait(vm="pk")
        Lb = e.label("pkbar")
        if OPT.get("lbar", 2) == 1: e("s_barrier")
        e(f"s_cmp_eq_u32 s57, 0\ns_cbranch_scc1 {Lb}")
        def rd(i):
            k, it = divmod(i, 3)
            for tt in range(4):
                o = 16*i + 4*tt; off = k*12288 + it*4096 + 32*tt
                e.lgop(f"ds_read_b64_tr_b16 {vr(o,2,'a')}, v{240+2*k} offset:{off}", (i, tt))
                e.lgop(f"ds_read_b64_tr_b16 {vr(o+2,2,'a')}, v{241+2*k} offset:{off}", (i, tt))
        rd(0)
        for i in range(6):
            if i < 5: rd(i + 1)
            for tt in range(4):
                e.wait(lg=(i, tt))
                e.vmop(f"buffer_store_dwordx4 {vr(16*i + 4*tt, 4, 'a')}, v{(4,10,11,239)[tt]}, s[8:11], s{50 + i//3} offen sc1", "pst")
            if i % 3 < 2: e(f"s_add_u32 s{50 + i//3}, s{50 + i//3}, 73728")
        e(f"{Lb}:")
        if OPT.get("lbar", 2) == 2: e("s_barrier")
        e(f"{Ld}:")
    e.srd(12, 6, A_)
    e(f"""v_lshrrev_b32 v6, 3, v1
v_and_b32 v7, 2, v6
v_lshlrev_b32 v6, 13, v6
v_and_b32 v5, 7, v1
v_xor_b32 v7, v7, v5
v_lshl_add_u32 v6, v7, 4, v6
s_and_b32 s34, s3, 1
s_lshl_b32 s34, s34, 6
v_xor_b32 v253, s34, v6
v_xor_b32 v254, 64, v253
s_mul_i32 s32, s3, 9216
s_mul_i32 s33, s3, {9*65536}
s_lshl_b32 s34, s25, 7
s_add_u32 s33, s33, s34
s_add_u32 s33, s33, {VT}
v_bfe_u32 v5, v3, 2, 1
v_lshlrev_b32 v5, 4, v5
v_lshrrev_b32 v7, 3, v3
v_lshl_add_u32 v5, v7, 2, v5
v_and_b32 v7, 3, v3
v_add_u32 v5, v5, v7
s_lshl_b32 s34, s25, 5
v_add_u32 v12, s34, v5
v_mul_u32_u24 v96, 1152, v12
v_lshl_add_u32 v96, v2, 3, v96
v_add_u32 v97, 9216, v96
v_lshrrev_b32 v5, 2, v5
v_lshlrev_b32 v98, 7, v5
v_lshl_add_u32 v98, v7, 4, v98
s_lshr_b32 s38, s25, 5
s_lshl_b32 s38, s38, 12
s_bfe_u32 s34, s25, 0x20002
s_lshl_b32 s34, s34, 10
s_add_u32 s38, s38, s34
s_bfe_u32 s34, s25, 0x10004
s_lshl_b32 s34, s34, 6
s_add_u32 s38, s38, s34
s_and_b32 s34, s25, 3
s_lshl_b32 s34, s34, 2
s_add_u32 s38, s38, s34
s_add_u32 s38, s38, {MX}
s_lshl_b32 s37, s27, 5""")
    def vdma():
        for idx in range(9):
            e(f"s_add_u32 m0, s32, {idx*1024}")
            e("s_add_u32 s33, s33, 65536" if idx else "s_nop 0")
            e.vmop(f"buffer_load_dwordx4 v{253 + (idx & 1)}, s[8:11], s33 offen sc1 lds", "dma")
    Lw3 = e.label("w3"); Lp6 = e.label("p6")
    e(f"""s_mul_i32 s30, s28, 36
s_mul_i32 s31, s3, 9
s_add_u32 s30, s30, s31
s_mul_i32 s30, s30, 18432
s_add_u32 s31, s30, {W4P}
s_add_u32 s30, s30, {W3P}
v_add_u32 v10, 18432, v4
v_add_u32 v11, 36864, v4
s_mul_i32 s53, s25, 36864
s_add_u32 s53, s53, s32""")
    e(f"s_lshr_b32 s46, s3, 1\ns_lshl_b32 s46, s46, 3\ns_and_b32 s47, s3, 1\ns_add_u32 s47, s47, 1\ns_sub_u32 s48, s46, s47\ns_add_u32 s49, s46, s47\nv_mov_b32 v95, 2048\nv_lshlrev_b32 v91, 8, v2")
    for k, sr in ((0, 48), (2, 49)):
        e(f"""v_add_u32 v90, s{sr}, v12
v_cmp_lt_u32 vcc, v90, v95
v_bfe_u32 v92, v90, 5, 6
v_mul_u32_u24 v92, 36864, v92
v_bfe_u32 v93, v90, 3, 1
v_mul_u32_u24 v93, 18432, v93
v_bfe_u32 v94, v90, 2, 1
v_lshl_add_u32 v92, v94, 7, v92
v_bfe_u32 v94, v90, 4, 1
v_lshl_add_u32 v92, v94, 6, v92
v_and_b32 v94, 3, v90
v_lshl_add_u32 v92, v94, 4, v92
v_add3_u32 v92, v92, v93, v91
v_bfrev_b32 v93, 2
v_cndmask_b32 v{DA+k}, v93, v92, vcc""")
    e(f"v_cmp_gt_u32 vcc, 2, v2\ns_and_b32 s54, s3, 1\ns_mul_i32 s54, s54, 9216\ns_add_u32 s54, s54, {H1S}\nv_cndmask_b32 v{DA+1}, v{DA+2}, v{DA}, vcc")
    def dma_act(ph):
        if ph == 4:
            e(f"s_add_u32 s46, s53, {HC}")
            for i in range(9):
                if i % 4 == 0:
                    e(f"s_add_u32 m0, s32, {i*1024}")
                    e("s_add_u32 s46, s46, 4096" if i else "s_nop 0")
                e.vmop(f"buffer_load_dwordx4 v4, s[8:11], s46 offen offset:{(i&3)*1024} sc1 lds", "dma")
        else:
            for i in range(9):
                if i % 4 == 0:
                    e(f"s_add_u32 m0, s32, {i*1024}")
                    e("s_add_u32 s54, s54, 4096" if i else "s_nop 0")
                a = DA + (0 if i < 4 else 1 if i == 4 else 2)
                e.vmop(f"buffer_load_dwordx4 v{a}, s[8:11], s54 offen offset:{(i&3)*1024} sc1 lds", "dma")
    p2_signal()
    e(f"s_cmp_eq_u32 s3, 3\ns_cbranch_scc1 {Lw3}")
    vm_save = list(e.vm)
    def xloads():
        for u in range(3):
            for t in range(2):
                e.vmop(f"buffer_load_dwordx2 {vr(XR+(u*2+t)*2,2)}, v{96+t}, s[12:15], s37 offen offset:{32*u}", "x")
        e.vmop("buffer_load_dword v14, v98, s[8:11], s38 offen", "x")
        e.vmop("buffer_load_dword v15, v98, s[8:11], s38 offen offset:256", "x")
    ws_ = {"n": 0}
    def wnext(cnt, lim=108):
        for _ in range(cnt):
            n = ws_["n"]
            if n >= lim: return
            ph = "W1" if n < 54 else "W2"; f = n % 54; ks, u = divmod(f, 3)
            if f == 0: e(f"s_add_u32 s52, s36, {W1P if n == 0 else W2P}")
            elif u == 0 and ks % 4 == 0: e("s_add_u32 s52, s52, 4096")
            e.vmop(f"buffer_load_dwordx4 {wfrag(ph,ks,u)}, v{(4,10,11)[u]}, s[8:11], s52 offen offset:{(ks&3)*1024}", (ph, ks, u))
            ws_["n"] += 1
    e("s_mul_i32 s36, s27, 18432")
    XP = OPT.get("xp", 13)
    def thook(u, ks):
        if u*9 + ks == XP: xloads()
        if u*9 + ks == OPT.get("qb", 20): e("s_barrier")
    tgen(e, 27, TB, 16, (1, 2) if T0A else (0, 1, 2), hook=thook, init=True)
    e(f"""v_lshrrev_b32 v5, 1, v2
v_lshlrev_b32 v8, 8, v5
v_lshl_add_u32 v8, v3, 4, v8
v_and_b32 v5, 1, v2
v_mul_u32_u24 v9, 18432, v5
v_add_u32 v8, v8, v9
v_lshrrev_b32 v6, 2, v3
v_lshl_add_u32 v6, v2, 3, v6
v_lshlrev_b32 v6, 7, v6
v_and_b32 v7, 3, v3
v_lshl_add_u32 v6, v7, 3, v6
v_lshl_add_u32 v6, v5, 6, v6
v_lshrrev_b32 v7, 3, v3
v_lshl_add_u32 v6, v7, 5, v6
v_xor_b32 v7, 32, v6
v_xor_b32 v5, 64, v6
v_xor_b32 v9, 96, v6
s_mul_i32 s39, s25, 36864
s_lshl_b32 s40, s27, 9
s_add_u32 s39, s39, s40
s_lshl_b32 s42, s25, 11
s_lshl_b32 s40, s3, 2
s_add_u32 s40, s40, s24
s_lshl_b32 s40, s40, 7
s_add_u32 s41, s42, s40
s_mov_b32 s43, {fhex(2.0/(2048*576))}
v_lshlrev_b32 v13, 3, v3
v_mul_u32_u24 v12, 384, v2
v_add_u32 v12, v12, v13
s_lshl_b32 s55, s24, 2
s_add_u32 s55, s55, s3
s_lshl_b32 s55, s55, 2
s_lshl_b32 s40, s25, 7
s_add_u32 s55, s55, s40
v_mov_b32 v250, 1
v_mov_b32 v251, 0""")
    stamp(e, lvl=6)
    pack_finish()
    wnext(OPT.get("wr", 12), 54)
    stamp(e, lvl=6)
    e("s_barrier")
    stamp(e, lvl=6)
    vdma()
    e.wait(vm="dma")
    e("s_barrier")
    stamp(e); stamp(e, lvl=6)
    def gemm(ph, tr, hook, fill=(), f0=0, f1=18, cinit=False):
        fill = list(fill); nf = len(fill); fi = 0
        def rd(ks):
            for t in range(2):
                b = BF + ((ks % NB)*2 + t)*4
                if tr:
                    ar = (6, 7, 5, 9)[2*(ks // 9) + t]
                    e.lgop(f"ds_read_b64_tr_b16 {vr(b,2)}, v{ar} offset:{(ks % 9)*4096}", ("b", ks))
                    e.lgop(f"ds_read_b64_tr_b16 {vr(b+2,2)}, v{ar} offset:{(ks % 9)*4096+512}", ("b", ks))
                else:
                    e.lgop(f"ds_read_b128 {vr(b)}, v4 offset:{(t*18+ks)*1024}", ("b", ks))
        for ks in range(NB-1): rd(ks)
        for ks in range(18):
            if ks + NB - 1 < 18: rd(ks + NB - 1)
            e.wait(vm=(ph, ks, 2), lg=("b", ks))
            for u in range(3):
                for t in range(2):
                    d = vr(acc(u, t) + (24 if (ph == "T" and ks >= 9) else 0))
                    first = (ks == 0 and not cinit) or (ph == "T" and ks == 9)
                    e(f"{M16} {d}, {wfrag(ph,ks,u)}, {vr(BF + ((ks % NB)*2 + t)*4)}, {0 if first else d}")
                    g = (ks - f0)*6 + u*2 + t
                    if g >= 0:
                        while fi < min(nf, -(-nf*(g+1) // ((f1 - f0)*6))): emit(fill[fi]); fi += 1
            hook(ks)
        assert fi == nf
    def wsig(phase):
        if OPT.get("wgflag", 0): return
        e(f"s_add_u32 s46, s55, {FLG + phase*8192}\ns_mov_b64 exec, 1")
        e.vmop("buffer_store_dword v250, v251, s[8:11], s46 offen sc1", "f")
        e("s_mov_b64 exec, -1")
    def sq_store(region):
        red_g(e, (90, 91), (92, 93))
        e(f"s_add_u32 s46, s41, {region}\ns_mov_b64 exec, 0xffff")
        e.vmop(f"buffer_store_dwordx2 v[90:91], v13, s[8:11], s46 offen sc1", "st")
        e("s_mov_b64 exec, -1")
    def st16(o, sreg, off):
        e(f"s_nop 0\nv_permlane16_swap_b32 v{o}, v{o+2}\nv_permlane16_swap_b32 v{o+1}, v{o+3}")
        e.vmop(f"buffer_store_dwordx4 {vr(o)}, v8, s[8:11], s{sreg} offen offset:{off} sc1", "st")
    GL, AL = OPT.get("gl", 30), OPT.get("al", 24)
    lim_ = [54]
    GLs = [OPT.get('gl3', GL)]
    def hookw(ks): wnext(GLs[0]*(ks+1)//18 - GLs[0]*ks//18, lim_[0])
    def hook3(ks):
        if XP == 27 + ks: xloads()
        hookw(ks)
    XM = 232
    XF = [224 + i for i in range(20)] + [100, 101, 102, 103]
    xfill = [("wv", "x")]
    for u in range(3):
        for t in range(2):
            x = XR + (u*2+t)*2; f = XF[(u*2+t)*4:(u*2+t)*4+4]
            xfill += [("s", f"v_lshlrev_b32 v{f[0]}, 16, v{x}"), ("s", f"v_and_b32 v{f[1]}, 0xffff0000, v{x}"),
                      ("s", f"v_lshlrev_b32 v{f[2]}, 16, v{x+1}"), ("s", f"v_and_b32 v{f[3]}, 0xffff0000, v{x+1}")]
            xfill += [("s", f"v_sub_f32 v{f[r]}, v{f[r]}, v{14+t}") for r in range(4)]
    xfill += [("s", f"s_add_u32 s44, s39, {HC}"), ("s", "v_mov_b32 v90, 0"), ("s", "v_mov_b32 v91, 0")]
    gemm("T", True, hook3, xfill, 9, 18)
    stamp(e)
    EARLY = OPT.get("early", 0)
    e("s_barrier" if EARLY else "s_nop 0")
    e("s_nop 4")
    for u in range(3):
        o = BF + 4*u
        for t in range(2):
            a = acc(u, t); h = HCR + (u*2+t)*4; f = XF[(u*2+t)*4:(u*2+t)*4+4]
            for r in range(4): e(f"v_{'sub' if r & 1 else 'add'}_f32 v{a+r}, v{a+r}, v{h+r}")
            for r in range(4): e(f"v_fma_f32 v{h+r}, v{a+r}, s43, v{f[r]}")
            e(f"v_cvt_pk_bf16_f32 v{o+2*t}, v{h}, v{h+1}\nv_cvt_pk_bf16_f32 v{o+2*t+1}, v{h+2}, v{h+3}")
            for r in range(4): e(f"v_fmac_f32 v{90+t}, v{h+r}, v{h+r}")
        st16(o, 44, 512*u)
    sq_store(SQH)
    e(f"s_add_u32 s44, s39, {H1S}\ns_add_u32 s47, s42, {SQH}")
    e.wait(vm="st")
    wsig(0)
    LA = OPT.get("la", 8)
    stamp(e, lvl=-1)
    lim_[0] = 54 + 42
    wnext(LA, lim_[0])
    e("s_barrier")
    wnext(AL - LA, lim_[0])
    assert ws_["n"] >= 54
    stamp(e, lvl=1)
    e("s_barrier")
    stamp(e, lvl=1)
    dma_act(4)
    for c in range(3): e.vmop(f"buffer_load_dwordx2 {vr(96+2*c,2)}, v12, s[8:11], s47 offen offset:{128*c} sc1", "q")
    stamp(e, lvl=1)
    e.wait(vm="dma")
    stamp(e, lvl=1)
    e("s_barrier")
    stamp(e, lvl=-1)
    e3 = Em()
    e3("v_add_f32 v97, v97, v99\nv_add_f32 v96, v96, v98\nv_add_f32 v96, v96, v100\nv_add_f32 v100, v97, v101")
    red_g(e3, (96, 100), (92, 93))
    for t in range(2): e3(f"v_mul_f32 v{96+4*t}, {fhex(1/576)}, v{96+4*t}")
    for t in range(2): e3(f"v_add_f32 v{88+t}, {fhex(EPS)}, v{96+4*t}")
    for t in range(2): e3(f"v_rsq_f32 v{88+t}, v{88+t}")
    e3("s_nop 0")
    for t in range(2): e3(f"v_mul_f32 v{98+4*t}, v{88+t}, v{88+t}")
    for t in range(2): e3(f"v_mul_f32 v{98+4*t}, v{98+4*t}, v{96+4*t}")
    for t in range(2): e3(f"v_add_f32 v{98+4*t}, {fhex(EPS)}, v{98+4*t}")
    for t in range(2): e3(f"v_rsq_f32 v{98+4*t}, v{98+4*t}")
    e3("s_nop 0")
    for t in range(2): e3(f"v_mul_f32 v{96+4*t}, v{88+t}, v{98+4*t}")
    for t in range(2): gelu_consts(e3, 96+4*t, 97+4*t, 98+4*t, 99+4*t)
    GLs[0] = OPT.get('gl4', GL)
    def hook4(ks):
        if ks == 4: lim_[0] = 108
        hookw(ks)
    gemm("W1", False, hook4, [("wv", "q")] + [("s", l.strip()) for l in e3.L], 2, 17)
    stamp(e)
    e("s_barrier" if EARLY else "s_nop 0")
    e("s_nop 4")
    for u in range(3):
        o = BF + 4*u
        for t in range(2):
            a = acc(u, t); s = 96 + 4*t
            for l in gelu4(a, 92, s+1, s+2, s+3): e(l)
            e(f"v_cvt_pk_bf16_f32 v{o+2*t}, v92, v93\nv_cvt_pk_bf16_f32 v{o+2*t+1}, v94, v95")
        e("s_nop 0")
        st16(o, 44, 512*u)
    e(f"s_add_u32 s44, s39, {X6}\nv_lshlrev_b32 v98, 2, v3\nv_mov_b32 v90, 0\nv_mov_b32 v91, 0")
    e.wait(vm="st")
    wsig(1)
    stamp(e, lvl=-1)
    wnext(LA)
    e("s_barrier")
    wnext(108)
    for u in range(3):
        for t in range(2):
            a = acc(u, t); h = HCR + (u*2+t)*4
            for r in range(4): e(f"v_mul_f32 v{a+r}, v{h+r}, v{88+t}")
            for r in range(4): e(f"v_add_f32 v{h+r}, v{h+r}, v{14+t}")
    stamp(e, lvl=1)
    e("s_barrier")
    stamp(e, lvl=1)
    dma_act(5)
    stamp(e, lvl=1)
    e.wait(vm="dma")
    stamp(e, lvl=1)
    e("s_barrier")
    stamp(e, lvl=-1)
    N5 = OPT.get("n5", 27)
    st5 = {"n": 0}
    def hook5(ks):
        while st5["n"] < min(N5, 3*ks + 3, (3*(ks+1))//2):
            for x in wload6(st5["n"]): emit(x)
            st5["n"] += 1
    gemm("W2", False, hook5, cinit=True)
    assert st5["n"] == N5
    stamp(e)
    e("s_barrier")
    e.lgop("ds_read_b32 v96, v98 offset:36864", "m"); e.lgop("ds_read_b32 v97, v98 offset:36928", "m")
    e("s_nop 3")
    for u in range(3):
        for t in range(2):
            a = acc(u, t); h = HCR + (u*2+t)*4
            for r in range(4): e(f"v_add_f32 v{h+r}, v{h+r}, v{a+r}")
    e.wait(lg="all")
    for u in range(3):
        x = BF + 4*u
        for t in range(2):
            a = acc(u, t)
            for r in range(4): e(f"v_sub_f32 v{a+r}, v{a+r}, v{96+t}")
            e(f"v_cvt_pk_bf16_f32 v{x+2*t}, v{a}, v{a+1}\nv_cvt_pk_bf16_f32 v{x+2*t+1}, v{a+2}, v{a+3}")
            for r in range(4): e(f"v_fmac_f32 v{90+t}, v{a+r}, v{a+r}")
        st16(x, 44, 512*u)
    sq_store(SQ1)
    for u in range(3):
        for t in range(2):
            h = HCR + (u*2+t)*4; o = BASE + 4*u + 2*t
            e(f"v_cvt_pk_bf16_f32 v{o}, v{h}, v{h+1}\nv_cvt_pk_bf16_f32 v{o+1}, v{h+2}, v{h+3}")
    e.wait(vm="st")
    wsig(2)
    if not OPT.get("l5"): e("s_barrier")
    vm_p6 = list(e.vm)
    stamp(e)
    nst_main = NST
    setup6()
    if OPT.get("l5"): e("s_barrier")
    e(f"s_barrier\ns_branch {Lp6}")
    def poll(phase, areg, nl=0):
        Lp = e.label("poll"); Ld = e.label("pd")
        if OPT.get("wgflag", 0):
            e(f"s_lshl_b32 s46, s25, 7\ns_lshl_b32 s47, s24, 4\ns_add_u32 s46, s46, s47\ns_add_u32 s46, s46, {FLG + phase*8192}\ns_mov_b64 exec, 1\nbuffer_store_dword v250, v251, s[8:11], s46 offen sc1\ns_mov_b64 exec, -1")
        ld = lambda r: f"buffer_load_dword v{r}, v{areg}, s[8:11], s46 offen sc1"
        if OPT.get("pipe", 0):
            e(f"""s_mov_b32 s46, {FLG + phase*8192}
s_mov_b32 s47, 0x20000
{ld(252)}
s_sleep {OPT.get('psl', 3)}
{Lp}:
{ld(253)}
s_waitcnt vmcnt(1)
v_cmp_ne_u32 vcc, 1, v252
s_cbranch_vccz {Ld}
{ld(252)}
s_waitcnt vmcnt(1)
v_cmp_ne_u32 vcc, 1, v253
s_cbranch_vccz {Ld}
s_sub_u32 s47, s47, 1
s_cbranch_scc0 {Lp}
{Ld}:""")
        else:
            e(f"""s_mov_b32 s46, {FLG + phase*8192}
s_mov_b32 s47, 0x40000
{("s_sleep %d" % OPT["ps0"]) if OPT.get("ps0") else "s_nop 0"}
{Lp}:
{ld(252)}
s_waitcnt vmcnt(0)
v_cmp_ne_u32 vcc, 1, v252
s_cbranch_vccz {Ld}
s_sub_u32 s47, s47, 1
s_cbranch_scc0 {Lp}
{Ld}:""")
        e.vm = ["p"]
    e(f"{Lw3}:")
    e.vm = vm_save; e.lg = []
    PKL = 40960
    if W4K3:
        e.srd(16, 20, 5308416)
        e("s_cmp_lt_u32 s2, 216\ns_cselect_b32 s18, 5308416, 0")
        e("v_lshrrev_b32 v16, 3, v1\nv_mul_u32_u24 v16, 1152, v16\nv_and_b32 v17, 7, v1\nv_lshl_add_u32 v16, v17, 4, v16")
        for k in range(2):
            e(f"s_lshl_b32 s40, s2, 1\ns_add_u32 s40, s40, {k}")
            sdiv(e, 3, 41, 42, 40, 46); sdiv(e, 18, 43, 44, 41, 46)
            e(f"""s_mul_i32 s{36+k}, s43, 663552
s_lshl_b32 s45, s44, 10
s_add_u32 s{36+k}, s{36+k}, s45
s_mul_i32 s45, s42, {3*73728}
s_add_u32 s{36+k}, s{36+k}, s45
s_add_u32 s{36+k}, s{36+k}, {W4P}
s_mul_i32 s40, s43, 576
s_and_b32 s45, s44, 1
s_mul_i32 s45, s45, 288
s_add_u32 s40, s40, s45
s_lshr_b32 s45, s44, 1
s_lshl_b32 s45, s45, 4
s_add_u32 s40, s40, s45
s_mul_i32 s40, s40, 1152
s_mul_i32 s45, s42, 384
s_add_u32 s40, s40, s45""")
            for f in range(4):
                for it in range(3):
                    e(f"s_mov_b32 m0, {PKL + k*12288 + it*4096 + f*1024 - it*128}")
                    e(f"s_add_u32 s40, s40, {1152*(136 if f == 2 else 8)}" if (it == 0 and f) else "s_nop 0")
                    e.vmop(f"buffer_load_dwordx4 v16, s[16:19], s40 offen offset:{128*it} {OPT.get('ld_pk','nt')} lds", ("pk", k))
    e(f"""v_mov_b32 v250, 1
v_mov_b32 v251, 0
v_and_b32 v19, 3, v1
v_min_u32 v19, {0 if OPT.get('wgflag', 0) else 2}, v19
v_lshlrev_b32 v19, 2, v19
v_bfe_u32 v20, v1, 2, 2
v_lshl_add_u32 v19, v20, 4, v19
s_lshl_b32 s46, s25, 7
v_add_u32 v247, s46, v19
v_bfe_u32 v21, v1, 4, 1
v_and_b32 v22, 1, v20
v_lshlrev_b32 v22, 1, v22
v_add_u32 v22, -1, v22
v_mul_lo_u32 v22, v22, v21
v_add_u32 v22, s25, v22
v_and_b32 v22, 63, v22
v_lshl_add_u32 v248, v22, 7, v19
s_lshl_b32 s46, s26, 8
v_lshl_add_u32 v249, v21, 7, v19
v_add_u32 v249, s46, v249""")
    if W4K3:
        e(f"""s_mul_i32 s46, s28, 108
s_add_u32 s46, s46, {3*8192}
v_subrev_u32 v19, 32, v1
v_min_u32 v19, 26, v19
v_lshlrev_b32 v19, 2, v19
v_add_u32 v19, s46, v19
v_cmp_lt_u32 vcc, 31, v1
s_nop 1
v_cndmask_b32 v249, v249, v19, vcc""")
    e(f"""s_mul_i32 s46, s28, 27
s_lshr_b32 s46, s46, 1
v_min_u32 v18, 14, v1
v_add_u32 v18, s46, v18
v_min_u32 v18, 107, v18
v_lshlrev_b32 v18, 2, v18""")
    Lq, Lqd = e.label("gp"), e.label("gpd")
    e(f"""v_min_u32 v19, 35, v1
v_lshlrev_b32 v19, 4, v19
s_lshr_b32 s46, s2, {OPT.get('rsh', 3)}
s_and_b32 s46, s46, {OPT.get('nrep', 32) - 1}
s_mul_i32 s46, s46, 640
s_add_u32 s46, s46, {FLG2}
s_mov_b32 s47, 0x40000
{"s_barrier" if OPT.get("qb", 20) < 27 else "s_nop 0"}
s_cmp_eq_u32 s56, 255
s_cbranch_scc1 {Lq}s
s_barrier
{Lq}s:
{('s_sleep %d' % OPT.get('gs1', 0)) if OPT.get('gs1', 0) else 's_nop 0'}
{Lq}:
buffer_load_dwordx4 v[20:23], v19, s[8:11], s46 offen sc1
s_waitcnt vmcnt(0)
v_and_b32 v20, v20, v21
v_and_b32 v22, v22, v23
v_and_b32 v20, v20, v22
v_cmp_ne_u32 vcc, 1, v20
s_cbranch_vccz {Lqd}
s_sleep {OPT.get('gsl', 8)}
s_sub_u32 s47, s47, 1
s_cbranch_scc0 {Lq}
{Lqd}:
s_barrier""")
    e.vm = []
    vdma()
    e.wait(vm="dma")
    e("s_barrier")
    for ks in range(18):
        if ks % 4 == 0: e(f"s_mov_b32 s40, {W2P + 36*18432 + ks*1024}")
        e.vmop(f"buffer_load_dwordx4 {vr(4*ks,4,'a')}, v4, s[8:11], s40 offen offset:{(ks&3)*1024}", "mw")
    e("s_barrier")
    e.wait(vm="all")
    Lnf = e.label("nopf")
    e(f"s_cmp_ge_u32 s56, 108\ns_cbranch_scc1 {Lnf}\ns_lshl_b32 s46, s56, 2\ns_add_u32 s46, s46, {FLG + 6*8192}\ns_mov_b64 exec, 1\nbuffer_store_dword v250, v251, s[8:11], s46 offen sc1\ns_mov_b64 exec, -1\n{Lnf}:")
    poll(0, 247)
    if W4K3:
        e(f"s_lshl_b32 s46, s2, 2\ns_add_u32 s46, s46, {FLG + 5*8192}\ns_mov_b64 exec, 1\nbuffer_store_dword v250, v251, s[8:11], s46 offen sc1\ns_mov_b64 exec, -1")
        e.vm.append("f")
    e("s_barrier")
    dma_act(4); e.wait(vm="all")
    e("s_barrier")
    poll(6, 18)
    e("s_barrier")
    poll(1, 248)
    e("s_barrier")
    dma_act(5); e.wait(vm="all")
    e("s_barrier")
    NR = 3
    def rdm(ks):
        for t in range(2): e.lgop(f"ds_read_b128 {vr(40+((ks%NR)*2+t)*4)}, v4 offset:{(t*18+ks)*1024}", ks)
    for ks in range(NR-1): rdm(ks)
    for ks in range(18):
        if ks + NR - 1 < 18: rdm(ks + NR - 1)
        e.wait(lg=ks)
        for t in range(2):
            e(f"{M16} {vr(32+4*t)}, {vr(4*ks,4,'a')}, {vr(40+((ks%NR)*2+t)*4)}, {vr(32+4*t) if ks else 0}")
    e("v_lshlrev_b32 v23, 2, v3\ns_nop 7\ns_mov_b64 exec, 0xffff\nds_write_b32 v23, v32 offset:36864\nds_write_b32 v23, v36 offset:36928\ns_mov_b64 exec, -1")
    for n in range(N5):
        for x in wload6(n): emit(x)
    e("s_waitcnt lgkmcnt(0)\ns_barrier")
    setup6()
    e.wait(vm="all")
    if not EARLY: e("s_barrier")
    poll(2, 249)
    e("s_barrier")
    e(f"{Lp6}:")
    globals()["NST"] = nst_main
    e.vm = vm_p6; e.lg = []
    stamp(e)
    def X(t4, ks):
        i = ks*4 + t4
        return vr(4*i, 4, "a") if i < 64 else vr(XV + 4*(i-64))
    XS = OPT.get("xs", (0, 6, 12))
    stamp(e, lvl=4)
    def xdma(i):
        L = []
        if i % 4 == 0: L.append(("s", f"s_add_u32 m0, s32, {i*1024}\n" + ("s_add_u32 s40, s40, 4096" if i else "s_nop 0")))
        L.append(("v", f"buffer_load_dwordx4 v4, s[8:11], s40 offen offset:{(i&3)*1024} sc1 lds", ("xd", sum(1 for b in XS if b <= i) - 1)))
        return L
    X0 = OPT.get("x0", 18)
    for i in range(X0):
        for x in xdma(i): emit(x)
    sqld = [("v", f"buffer_load_dwordx2 {vr(TT+6*tp+2*c,2)}, v6, s[8:11], s37 offen offset:{2048*tp + 128*c} sc1", "q") for tp in range(2) for c in range(3)]
    late = [xdma(i) for i in range(X0, 18)] + [[x] for x in sqld]
    def bread(ks, hb):
        out = []
        for t4 in range(4):
            off = (t4*18 + ks)*1024
            base = (4, 11) if not hb else (12, 13)
            breg = base[0] if off < 36864 else base[1]
            out.append(("l", f"ds_read_b128 {X(t4,ks)}, v{breg} offset:{off % 36864}", ("b", hb, ks)))
        return out
    def const_fill():
        e2 = Em()
        R = [TT+12+t for t in range(4)]
        for t4 in range(4):
            b = TT + 6*(t4 >> 1) + (t4 & 1)
            e2(f"v_add_f32 v{R[t4]}, v{b}, v{b+2}\nv_add_f32 v{R[t4]}, v{R[t4]}, v{b+4}")
        red_g(e2, R, [TMP+t for t in range(4)])
        for r in R: e2(f"v_mul_f32 v{r}, {fhex(1/576)}, v{r}")
        for r in R: e2(f"v_add_f32 v{r}, {fhex(EPS)}, v{r}")
        for r in R: e2(f"v_rsq_f32 v{r}, v{r}")
        e2("s_nop 0")
        for t4 in range(4): gelu_consts(e2, R[t4], KC+t4, KC+4+t4, KC+8+t4)
        return [("wv", "q")] + [("s", l.strip()) for l in e2.L]
    def gelu_fill(ft):
        L = []
        for t4 in range(4):
            L += [("s", l) for l in gelu4(TT+4*t4, TMP, KC+t4, KC+4+t4, KC+8+t4)]
            L += [("s", f"v_cvt_pk_bf16_f32 v{PK+2*t4}, v{TMP}, v{TMP+1}"), ("s", f"v_cvt_pk_bf16_f32 v{PK+2*t4+1}, v{TMP+2}, v{TMP+3}")]
            L += [("l", f"ds_write_b64 v{8 + (t4>>1)}, {vr(PK+2*t4,2)} offset:{ft*2048 + (t4&1)*18432}", ("h", ft))]
        return L
    def out_fill(b):
        dt = ORD[b]
        L = [("s", f"s_add_u32 s35, s34, {dt*2048}")]
        for tp in range(2):
            for h in range(2):
                a = TT + 4*(2*tp+h)
                L += [("s", f"v_cvt_pk_bf16_f32 v{PK+4*tp+2*h}, v{a}, v{a+1}"), ("s", f"v_cvt_pk_bf16_f32 v{PK+4*tp+2*h+1}, v{a+2}, v{a+3}")]
            L += [("v", f"buffer_store_dwordx4 {vr(PK+4*tp)}, v4, s[8:11], s35 offen offset:{tp*1024} {OPT.get('sc_part','sc1')}", "st")]
            L += [("l", f"ds_write_b128 v14, {vr(PK+4*tp)} offset:{(dt*2+tp)*1024}", "o")]
        return L
    def block(blk, fill, G0=4, G1=66, pre=None, post=None, ramp0=0):
        nf = len(fill); fi = 0
        for ks in range(18):
            n = blk*18 + ks
            lgw = None
            if (blk, ks) in OPT.get("pts", ()): stamp(e, lvl=3)
            if pre:
                for x in pre(ks): emit(x)
                lgw = [("b", False, ks), ("b", True, ks)]
            e.wait(vm=[("w", n), ("w", n+1)] if ks % 2 == 0 else None, lg=lgw)
            for t4 in range(4):
                d = vr(TT+4*t4) if ks == 17 else vr(AC+4*t4)
                c = vr(AC+4*t4) if ks else "0"
                e(f"{M16} {d}, {vr(RING+4*(n % NPF))}, {X(t4,ks)}, {c}")
                gap = ks*4 + t4
                if ks >= ramp0 and t4 in (1, 3) and st5["n"] < NT and st5["n"] < n + NPF + (t4 == 3):
                    for x in wload6(st5["n"]): emit(x)
                    st5["n"] += 1
                if t4 == 3 and post:
                    for x in post(ks): emit(x)
                if gap >= G0:
                    tgt = min(nf, -(-nf*(gap - G0 + 1) // (G1 - G0)))
                    while fi < tgt: emit(fill[fi]); fi += 1
        assert fi == nf
    AH = 2
    def pre0(ks):
        L = []
        tgt = [ks + AH] if ks else list(range(AH + 1))
        for k in tgt:
            if k < 18:
                if k in XS: L += [("wv", ("xd", XS.index(k))), ("s", "s_barrier"), ("st", 4)]
                L += bread(k, False)
        return L
    stamp(e, lvl=4)
    def post0(ks):
        L = []
        for _ in range(3):
            if late: L += late.pop(0)
        return L
    block(0, const_fill(), 36, 66, pre=pre0, post=post0, ramp0=OPT.get("ramp0", 0))
    assert not late
    stamp(e, lvl=4)
    stamp(e)
    if not OPT.get('pts'): stamp(e, lvl=3)
    for ft in range(1, 8):
        block(ft, gelu_fill(ft-1))
        if ft in (1, 3, 5, 7) and not OPT.get('pts'): stamp(e, lvl=3)
        if ft in (1, 2): stamp(e, lvl=4)
    e.wait(lg="all")
    e("s_barrier")
    block(8, gelu_fill(7), post=lambda ks: bread(ks, True) if ks < 14 else [])
    stamp(e)
    def pre9(ks):
        L = []
        if ks == 12: L += [("wl", ("h", 8)), ("s", "s_barrier")] + bread(14, True) + bread(15, True)
        if ks == 13: L += bread(16, True) + bread(17, True)
        return L
    if not OPT.get('pts'): stamp(e, lvl=3)
    block(9, gelu_fill(8), 3, 46, pre=pre9)
    if not OPT.get('pts'): stamp(e, lvl=3)
    e2 = Em()
    e2.srd(12, 22, A_)
    e2(f"""s_lshl_b32 s38, s26, 2
s_add_u32 s38, s38, s24
s_mul_i32 s38, s38, 9
s_mul_i32 s39, s3, 3
s_add_u32 s38, s38, s39
s_lshl_b32 s38, s38, 1
s_add_u32 s38, s38, s29
s_lshl_b32 s38, s38, 10
s_add_u32 s38, s38, {PART}
s_mul_i32 s40, s25, {32*1152}
s_lshl_b32 s36, s27, 5
s_add_u32 s40, s40, s36
v_bfe_u32 v5, v3, 2, 1
v_lshlrev_b32 v5, 4, v5
v_lshrrev_b32 v7, 3, v3
v_lshl_add_u32 v5, v7, 2, v5
v_and_b32 v7, 3, v3
v_add_u32 v5, v5, v7
v_mul_u32_u24 v6, 1152, v5
v_lshl_add_u32 v6, v2, 3, v6
v_add_u32 v7, 9216, v6
v_add_u32 v11, 4096, v4
s_mul_i32 s41, s24, 18432
s_mul_i32 s42, s3, 6144
s_add_u32 s41, s41, s42
s_lshl_b32 s42, s29, 10
s_add_u32 s41, s41, s42
v_add_u32 v9, s41, v4
v_mov_b32 v250, 1
v_mov_b32 v251, 0
s_lshl_b32 s44, s26, 9
s_lshl_b32 s45, s24, 5
s_add_u32 s45, s45, s44
v_and_b32 v247, 7, v1
v_lshlrev_b32 v247, 2, v247
v_add_u32 v247, s45, v247
s_lshl_b32 s45, s3, 5
s_add_u32 s44, s44, s45
s_lshl_b32 s45, s28, 2
s_add_u32 s44, s44, s45
s_add_u32 s44, s44, {FLG + 3*8192}
s_mov_b32 s45, {FLG + 3*8192}""")
    e2(f"s_mov_b32 s48, s8\ns_mov_b32 s49, s9\ns_mov_b32 s51, 0x00020000")
    for i in range(7):
        e2(f"s_add_u32 s42, s28, {i+1}\ns_and_b32 s42, s42, 7\ns_mul_i32 s42, s42, {A_}\ns_add_u32 s{52+i}, s42, s38")
    setup7 = [("s", l.strip()) for l in e2.L] + [("s", f"s_cmp_eq_u32 s3, 3\ns_cselect_b32 s50, 0, {WS_SIZE}")]
    def flag_store(off):
        return [("s", "s_mov_b64 exec, 1"), ("v", f"buffer_store_dword v250, v251, s[8:11], s44 offen offset:{off} sc1", "f"), ("s", "s_mov_b64 exec, -1")]
    def poll7(off, first_tag=None):
        Lp = e.label("poll"); Ld = e.label("pd")
        if first_tag:
            e.wait(vm=first_tag)
            e(f"v_cmp_ne_u32 vcc, 1, v252\ns_cbranch_vccz {Ld}")
        e(f"""s_mov_b32 s47, 0x40000
{Lp}:
buffer_load_dword v252, v247, s[8:11], s45 offen offset:{off} sc1
s_waitcnt vmcnt(0)
v_cmp_ne_u32 vcc, 1, v252
s_cbranch_vccz {Ld}
s_sub_u32 s47, s47, 1
s_cbranch_scc0 {Lp}
{Ld}:""")
        if not first_tag: e.vm = []
    FK, PKS, G2 = OPT.get("fk", 1), OPT.get("pks", 14), OPT.get("g2", 28)
    def slot(i): return RING + 4*((292 + i) % NPF)
    def rload(i):
        return [("v", f"buffer_load_dwordx4 {vr(slot(i))}, v4, s[48:51], s{52 + i % 7} offen offset:{2048*(i//7)} sc1", ("r", i))]
    def chk(off):
        Lp = e.label("poll"); Ld = e.label("pd")
        return [("wv", "pa"), ("s", f"""v_cmp_ne_u32 vcc, 1, v252
s_cbranch_vccz {Ld}
s_mov_b32 s47, 0x40000
{Lp}:
buffer_load_dword v252, v247, s[8:11], s45 offen offset:{off} sc1
s_waitcnt vmcnt(0)
v_cmp_ne_u32 vcc, 1, v252
s_cbranch_vccz {Ld}
s_sub_u32 s47, s47, 1
s_cbranch_scc0 {Lp}
{Ld}:""")]
    def pa(off): return [("v", f"buffer_load_dword v252, v247, s[8:11], s45 offen offset:{off} sc1", "pa")]
    S = dict(sigA=13*18+1, paA=15*18+10, chkA=16*18, sigB=16*18+1, paB=16*18+14, chkB=17*18, stepB=2)
    S.update(OPT.get("sched", {}))
    ev_pre = {}
    def add(pos, L): ev_pre.setdefault(pos, []).extend(L)
    add(S["sigA"], [("wv", ("stf", 3))] + flag_store(0))
    add(S["paA"], pa(0)); add(S["chkA"], None or [("chk", 0)])
    add(S["sigB"], [("wv", ("stf", 6))] + flag_store(128))
    add(S["paB"], pa(128)); add(S["chkB"], [("chk", 128)])
    ev_post = {}
    for i in range(7): ev_post.setdefault(max(S["chkA"], 292) + i, []).extend(rload(i))
    for i in range(7): ev_post.setdefault(min(S["chkB"] + S["stepB"]*i, 323), []).extend(rload(7 + i))
    for dt in range(1, 9):
        fill = out_fill(dt-1)
        if dt == 1: fill = fill + setup7
        if dt in (3, 6): fill = [(x[0], x[1], ("stf", dt)) if x[0] == "v" else x for x in fill]
        def pre(ks, b=9+dt):
            L = []
            for x in ev_pre.get(b*18 + ks, []): L += chk(x[1]) if x[0] == "chk" else [x]
            return L
        post = lambda ks, b=9+dt: ev_post.get(b*18 + ks, [])
        block(9+dt, fill, 4, 66 if dt == 1 else G2, pre=pre, post=post)
        if dt in (1, 2, 4, 6, 8) and not OPT.get('pts'): stamp(e, lvl=3)
    stamp(e)
    e("s_nop 7")
    for x in out_fill(8): emit(x)
    def accum(x, a): e(f"v_lshlrev_b32 v8, 16, v{x}\nv_and_b32 v5, 0xffff0000, v{x}\nv_add_f32 v{a}, v{a}, v8\nv_add_f32 v{a+1}, v{a+1}, v5")
    for k in range(3):
        for j in range(4):
            x = BASE + 4*k + j; a = 16 + 8*k + 2*j
            e(f"v_lshlrev_b32 v{a}, 16, v{x}\nv_and_b32 v{a+1}, 0xffff0000, v{x}")
    e.wait(vm="st", lg="all")
    for x in flag_store(256): emit(x)
    Lep = e.label("ep")
    e(f"s_barrier\ns_cmp_eq_u32 s3, 3\ns_cbranch_scc1 {Lep}")
    for k in range(3): e.lgop(f"ds_read_b128 {vr(48+4*k)}, v9 offset:{2048*k}", "p")
    for i in range(14):
        for j in range(4): accum(slot(i) + j, 16 + 8*(i // 7) + 2*j)
    e.wait(lg="all")
    for k in range(3):
        for j in range(4): accum(48 + 4*k + j, 16 + 8*k + 2*j)
    def fin(k):
        for j in range(4): e(f"v_cvt_pk_bf16_f32 v{48+4*k+j}, v{16+8*k+2*j}, v{17+8*k+2*j}")
        e(f"buffer_store_dwordx2 {vr(48+4*k,2)}, v6, s[12:15], s40 offen offset:{32*k} {OPT.get('sc_out','')}\nbuffer_store_dwordx2 {vr(50+4*k,2)}, v7, s[12:15], s40 offen offset:{32*k} {OPT.get('sc_out','')}")
    stamp(e, lvl=2)
    poll7(256)
    stamp(e)
    for sl in range(7):
        e.vmop(f"buffer_load_dwordx4 {vr(64+4*sl)}, v11, s[8:11], s{52+sl} offen sc1", sl)
    fin(0); fin(1)
    e.vm += ["o"]*4
    for sl in range(7):
        e.wait(vm=sl)
        for j in range(4): accum(64 + 4*sl + j, 32 + 2*j)
    fin(2)
    e(f"{Lep}:")
    epi(e, name, Lend, 3, 512, 256)
    e.add_launch(name, 256, lds=147456)

def build(stamp=False, only=None, **opt):
    global STAMP, OPT
    STAMP = stamp; OPT = opt
    e = Em()
    e.L.append(".p2align 8\ncode_begin:\ns_nop 0")
    for k in (only or ["k1", "k3"]): globals()[k](e)
    e.L.append("code_end:\ns_nop 0")
    return finish(e)

if __name__ == "__main__":
    import sys, hazard
    out = "sequential_preLN__spectral_gfnet__mixer_s_mlp__prompt.s"
    txt = build(False)
    open(out, "w").write(txt); open("cur.s", "w").write(txt)
    errs = hazard.check(txt.split("\n")) + hazard.check_async(txt.split("\n"))
    print("\n".join(errs[:40])); print(len(errs), "hazards;", len(txt), "bytes")
    open("stamp.s", "w").write(build(True))
```

```python
from common import *
import common
common.castab = lambda: ''
STAMP = False
STAMP_OFF = 200 << 20
OPT = {}
FLG = WS_END
FLG_SZ = 72*1024
FLG2 = FLG + 49152 + 1024
NST = 0
M16 = "v_mfma_f32_16x16x32_bf16"

def stamp(e, first=False, lvl=0):
    global NST
    if not STAMP: return
    if (lvl != OPT.get("lvl", 0) and not (lvl == -1 and OPT.get("lvl", 0) < 2)) and not first: return
    assert NST < 15
    e(f"{'s_memtime' if (lvl == 3) else 's_memrealtime'} s[{60+2*NST}:{61+2*NST}]")
    if not first: e("s_waitcnt lgkmcnt(0)"); e.lg = []
    NST += 1

def pro(e, name, ngrid, x=False, T=False, extra=()):
    global NST
    e.begin(name)
    Lend = e.label("end")
    e(f"s_cmp_ge_u32 s2, {ngrid}\ns_cbranch_scc1 {Lend}")
    NST = 0
    stamp(e, True)
    e("s_load_dwordx2 s[4:5], s[0:1], 80")
    if x: e("s_load_dwordx2 s[6:7], s[0:1], 0")
    for (sreg, off) in extra: e(f"s_load_dwordx2 s[{sreg}:{sreg+1}], s[0:1], {off}")
    if T:
        e("s_getpc_b64 s[16:17]\ns_add_u32 s16, s16, castab@rel32@lo+4\ns_addc_u32 s17, s17, castab@rel32@hi+12")
        e("s_and_b32 s17, s17, 0xffff\ns_mov_b32 s18, 663552\ns_mov_b32 s19, 0x00020000")
    e("""v_lshrrev_b32 v5, 6, v0
v_and_b32 v1, 63, v0
v_readfirstlane_b32 s3, v5
v_lshrrev_b32 v2, 4, v1
v_and_b32 v3, 15, v1
v_lshlrev_b32 v4, 4, v1""")
    return Lend
def burn(e, n):
    L = e.label("burn")
    e(f"s_mov_b32 s58, {n}\n{L}:")
    for i in range(32): e(f"v_fma_f32 v{40+i%8}, v{40+i%8}, v{40+i%8}, v{40+i%8}")
    e(f"s_sub_u32 s58, s58, 1\ns_cmp_lg_u32 s58, 0\ns_cbranch_scc1 {L}")

def pro2(e, x=False):
    e("s_waitcnt lgkmcnt(0)")
    e.srd(8, 4, WS_SIZE)
    if x: e.srd(12, 6, A_)

def dump(e, slot):
    if STAMP:
        e(f"""s_waitcnt vmcnt(0) lgkmcnt(0)
s_mov_b64 exec, 1
s_memrealtime s[90:91]
s_lshl_b32 s92, s2, 2
s_add_u32 s92, s92, s3
s_lshl_b32 s92, s92, 7
s_add_u32 s92, s92, {STAMP_OFF + slot*(1<<20)}
s_waitcnt lgkmcnt(0)
v_mov_b32 v100, 0""")
        for k in range(8):
            for j in range(4): e(f"v_mov_b32 v{96+j}, s{60+4*k+j}")
            e(f"buffer_store_dwordx4 v[96:99], v100, s[8:11], s92 offen offset:{16*k}\ns_nop 1")
        e("s_mov_b64 exec, -1")

def epi(e, name, Lend, slot, vgpr, accum):
    dump(e, slot)
    e(f"{Lend}:")
    e.end(name, vgpr, accum, 96)

def red_g(e, regs, tmps):
    for sw in ("v_permlane32_swap_b32", "v_permlane16_swap_b32"):
        for v, t in zip(regs, tmps): e(f"v_mov_b32 v{t}, v{v}")
        e("s_nop 1" if len(regs) < 3 else "s_nop 0")
        for v, t in zip(regs, tmps): e(f"{sw} v{v}, v{t}")
        if len(regs) < 2: e("s_nop 0")
        for v, t in zip(regs, tmps): e(f"v_add_f32 v{v}, v{v}, v{t}")

def sdiv(e, d, q, r, x, tmp):
    m = (1 << 32) // d + 1
    e(f"s_mul_hi_u32 s{q}, s{x}, {m}\ns_mul_i32 s{tmp}, s{q}, {d}\ns_sub_u32 s{r}, s{x}, s{tmp}")

C0 = -2.0*math.sqrt(2.0/math.pi)*math.log2(math.e)
C1 = C0*0.044715
def gelu_consts(e, r, K0, K1, IR):
    e(f"v_rcp_f32 v{IR}, v{r}\nv_mul_f32 v{K0}, {fhex(C0)}, v{r}\nv_mul_f32 v{K1}, v{r}, v{r}\nv_mul_f32 v{K1}, v{K1}, v{r}\nv_mul_f32 v{K1}, {fhex(C1)}, v{K1}")
def gelu4(a, tmp, K0, K1, IR):
    L = []
    L += [f"v_mul_f32 v{tmp+r}, v{a+r}, v{a+r}" for r in range(4)]
    L += [f"v_fma_f32 v{tmp+r}, v{tmp+r}, v{K1}, v{K0}" for r in range(4)]
    L += [f"v_mul_f32 v{tmp+r}, v{tmp+r}, v{a+r}" for r in range(4)]
    L += [f"v_exp_f32 v{tmp+r}, v{tmp+r}" for r in range(4)]
    L += [f"v_fma_f32 v{tmp+r}, v{tmp+r}, v{IR}, v{IR}" for r in range(4)]
    L += [f"v_rcp_f32 v{tmp+r}, v{tmp+r}" for r in range(4)]
    L += [f"v_mul_f32 v{tmp+r}, v{tmp+r}, v{a+r}" for r in range(4)]
    return L


def tgen(e, j0s, TB, ST, us=(0, 1, 2), hook=None, agpr=None, init=None):
    S0, S1, FA, C1r, C32r, P0, K8, Q = ST, ST+8, ST+16, ST+17, ST+18, ST+19, ST+20, ST+21
    if (0 in us) or init: e(f"s_lshl_b32 s17, s{j0s}, 4\nv_add_u32 v{FA}, s17, v3\nv_cvt_f32_u32 v{FA}, v{FA}\nv_lshlrev_b32 v{Q+1}, 3, v2\nv_cvt_f32_u32 v{Q+1}, v{Q+1}\nv_mov_b32 v{K8}, 0x3e000000")
    for u in us:
        if u: e(f"v_add_f32 v{FA}, 0x41800000, v{FA}")
        e(f"""v_mul_f32 v{C1r}, {fhex(1/576)}, v{FA}
v_mul_f32 v{C32r}, {fhex(1/18)}, v{FA}
v_mul_f32 v{P0}, v{FA}, v{Q+1}
v_floor_f32 v{C32r}, v{C32r}
v_cos_f32 v{C1r}, v{C1r}
v_fmamk_f32 v{C32r}, v{C32r}, {fhex(-18.0)}, v{FA}
v_mul_f32 v{C32r}, {fhex(1/18)}, v{C32r}""")
        sd = [(S0, 0), (S0+1, 1), (S1, 32), (S1+1, 33)]
        for r, k in sd: e(f"v_fmamk_f32 v{r}, v{FA}, {fhex(float(k))}, v{P0}")
        e(f"v_cos_f32 v{C32r}, v{C32r}")
        for r, k in sd: e(f"v_mul_f32 v{r+2}, {fhex(1/576)}, v{r}")
        e(f"v_add_f32 v{C1r}, v{C1r}, v{C1r}")
        for r, k in sd: e(f"v_floor_f32 v{r+2}, v{r+2}")
        e(f"v_add_f32 v{C32r}, v{C32r}, v{C32r}")
        for r, k in sd: e(f"v_fmamk_f32 v{r}, v{r+2}, {fhex(-576.0)}, v{r}")
        for r, k in sd: e(f"v_fmamk_f32 v{r}, v{r}, {fhex(1/576)}, v{K8}")
        for r, k in sd: e(f"v_sin_f32 v{r}, v{r}")
        e("s_nop 0")
        for i in range(2, 8):
            for S in (S0, S1): e(f"v_fma_f32 v{S+i}, v{C1r}, v{S+i-1}, -v{S+i-2}")
        for ks in range(9):
            S = S0 if ks % 2 == 0 else S1; O = S1 if ks % 2 == 0 else S0
            if ks >= 2:
                for i in range(8): e(f"v_fma_f32 v{S+i}, v{C32r}, v{O+i}, -v{S+i}")
            if agpr is None:
                for m in range(4): e(f"v_cvt_pk_bf16_f32 v{TB+(ks*3+u)*4+m}, v{S+2*m}, v{S+2*m+1}")
            else:
                for m in range(4): e(f"v_cvt_pk_bf16_f32 v{ST+24+m}, v{S+2*m}, v{S+2*m+1}")
                for m in range(4): e(f"v_accvgpr_write_b32 a{agpr+4*ks+m}, v{ST+24+m}")
            if hook: hook(u, ks)

def pack_job(e, ldflag, stflag):
    e(f"s_mul_i32 s40, s35, {3*73728}\ns_add_u32 s36, s36, s40")
    e("s_mul_i32 s40, s34, s33\ns_mul_i32 s41, s35, 384\ns_add_u32 s40, s40, s41")
    e("""v_lshrrev_b32 v6, 3, v1
v_mul_lo_u32 v6, v6, s33
v_and_b32 v7, 7, v1
v_lshl_add_u32 v6, v7, 4, v6
s_lshl_b32 s41, s33, 3
s_mul_i32 s39, s39, s33
s_mul_i32 s42, s3, 12288""")
    for f in range(4):
        for it in range(3):
            e(f"s_add_u32 m0, s42, {it*4096 + f*1024 - it*128}")
            e(f"s_add_u32 s40, s40, s{39 if f == 2 else 41}" if (it == 0 and f) else "s_nop 0")
            e.vmop(f"buffer_load_dwordx4 v6, s[12:15], s40 offen offset:{128*it} {ldflag} lds", ("d", 0))
    e("""v_mul_lo_u32 v7, v2, s37
v_lshrrev_b32 v8, 2, v3
v_add_u32 v7, v7, v8
v_lshlrev_b32 v7, 7, v7
v_and_b32 v8, 3, v3
v_lshl_add_u32 v7, v8, 3, v7
v_add_u32 v7, s42, v7
s_lshl_b32 s43, s38, 7
v_add_u32 v8, s43, v7
v_add_u32 v9, 18432, v4
v_add_u32 v10, 36864, v4
v_add_u32 v11, 55296, v4""")
    nst_save = NST; globals()["NST"] = 1
    stamp(e, lvl=-1)
    for it in range(3):
        e.wait(vm=("d", it))
        if it == 0: stamp(e, lvl=-1)
        for tt in range(4):
            o = 16 + 16*it + 4*tt
            e.lgop(f"ds_read_b64_tr_b16 {vr(o,2)}, v7 offset:{it*4096 + 32*tt}", (it, tt))
            e.lgop(f"ds_read_b64_tr_b16 {vr(o+2,2)}, v8 offset:{it*4096 + 32*tt}", (it, tt))
        for tt in range(4):
            e.wait(lg=(it, tt))
            e.vmop(f"buffer_store_dwordx4 {vr(16 + 16*it + 4*tt)}, v{(4,9,10,11)[tt]}, s[8:11], s36 offen {stflag}", "st")
        if it < 2: e("s_add_u32 s36, s36, 73728")
    globals()["NST"] = nst_save
    e.vm = []; e.lg = []

def code_srd(e, d, label, nbytes):
    e(f"s_getpc_b64 s[{d}:{d+1}]\ns_add_u32 s{d}, s{d}, {label}@rel32@lo+4\ns_addc_u32 s{d+1}, s{d+1}, {label}@rel32@hi+12")
    e(f"s_and_b32 s{d+1}, s{d+1}, 0xffff\ns_mov_b32 s{d+2}, {nbytes}\ns_mov_b32 s{d+3}, 0x00020000")

def touch(e, srd, sreg, nbytes, vaddr, vd, stride=64):
    n = -(-nbytes // stride); i = 0
    while n > 0:
        if n < 64: e(f"s_mov_b32 exec_lo, {hex((1 << min(n,32)) - 1)}\ns_mov_b32 exec_hi, {hex((1 << max(n-32,0)) - 1)}")
        e(f"buffer_load_dword v{vd}, v{vaddr}, s[{srd}:{srd+3}], s{sreg} offen")
        n -= 64; i += 1
        if n > 0: e(f"s_add_u32 s{sreg}, s{sreg}, {64*stride}")
    e("s_mov_b64 exec, -1")

def k1(e):
    name = "k1_kernel"
    N3 = 0
    NS = 189
    Lend = pro(e, name, 256 + NS, x=True, extra=((20, 8), (22, 16), (24, 32), (26, 40), (28, 48), (30, 56), (18, 64)))
    def cpf0():
        code_srd(e, 52, "code_begin", "k3_kernel-code_begin")
        e("s_lshr_b32 s44, s2, 3\ns_lshl_b32 s44, s44, 2\ns_add_u32 s44, s44, s3\ns_and_b32 s44, s44, 15\ns_lshl_b32 s44, s44, 10")
        if OPT.get("cpf0", 1) == 3: e("s_cmp_lt_u32 s2, 64\ns_cselect_b32 s54, s54, 0")
        e.vmop("buffer_load_dwordx4 v[196:199], v4, s[52:55], s44 offen", "c")
    if OPT.get("cpf0", 1) in (1, 3): cpf0()
    if OPT.get("burn1"): burn(e, OPT["burn1"])
    Lside = e.label("side"); Lst = e.label("stats"); Lep = e.label("ep")
    ACC, BF, NB, TB = 16, 64, 3, 88
    def acc(h, u, t): return ACC + h*24 + (u*2+t)*4
    e(f"s_cmp_ge_u32 s2, 256\ns_cbranch_scc1 {Lside}")
    if OPT.get("cpf0", 1) == 2: cpf0()
    e("""s_bfe_u32 s34, s2, 0x20003
s_and_b32 s35, s2, 7
s_lshl_b32 s35, s35, 3
s_lshr_b32 s39, s2, 5
s_add_u32 s35, s35, s39
s_lshr_b32 s36, s35, 5
s_bfe_u32 s37, s35, 0x20003
s_and_b32 s38, s35, 7
s_lshl_b32 s40, s36, 5
s_lshr_b32 s41, s3, 1
s_lshl_b32 s41, s41, 4
s_add_u32 s40, s40, s41
s_lshl_b32 s41, s37, 2
s_add_u32 s40, s40, s41
s_lshl_b32 s40, s40, 5
s_lshl_b32 s41, s38, 2
s_add_u32 s40, s40, s41
v_lshrrev_b32 v5, 3, v1
v_and_b32 v7, 3, v5
v_lshlrev_b32 v7, 5, v7
v_lshrrev_b32 v6, 2, v5
s_and_b32 s41, s3, 1
s_lshl_b32 s41, s41, 1
s_add_u32 s41, s41, s40
v_add3_u32 v6, v6, v7, s41
v_mul_u32_u24 v7, 1152, v6
v_and_b32 v5, 6, v5
v_and_b32 v6, 7, v1
v_xor_b32 v6, v6, v5
v_lshl_add_u32 v7, v6, 4, v7
s_mul_i32 s42, s3, 9216
s_mul_i32 s44, s34, 9
s_mul_i32 s45, s3, 3
s_add_u32 s44, s44, s45""")
    pro2(e, x=True)
    for idx in range(9):
        e(f"s_add_u32 m0, s42, {idx*896}\ns_nop 0")
        e.vmop(f"buffer_load_dwordx4 v7, s[12:15], 0 offen offset:{128*idx} {OPT.get('ld_x','')} lds", "dma")
    e("""v_lshrrev_b32 v13, 3, v3
v_mul_u32_u24 v13, 9216, v13
v_and_b32 v14, 7, v3
v_lshl_add_u32 v13, v14, 7, v13
v_and_b32 v14, 6, v3
v_xor_b32 v14, v14, v2
v_lshl_add_u32 v14, v14, 4, v13
v_xor_b32 v15, 64, v14""")
    e(f"s_cmp_eq_u32 s3, 3\ns_cbranch_scc1 {Lst}")
    vm_save = list(e.vm)
    tgen(e, 44, TB, 16, (1, 2) if OPT.get("k1pre", 0) else (0, 1, 2))
    e(f"""v_lshlrev_b32 v8, 12, v3
v_lshl_add_u32 v8, v2, 4, v8
s_lshl_b32 s50, s44, 16
s_lshr_b32 s51, s38, 2
s_lshl_b32 s51, s51, 1
s_add_u32 s51, s51, s36
s_lshl_b32 s51, s51, 10
s_add_u32 s50, s50, s51
s_lshl_b32 s51, s37, 8
s_add_u32 s50, s50, s51
s_and_b32 s51, s38, 3
s_lshl_b32 s51, s51, 6
s_add_u32 s50, s50, s51
s_add_u32 s50, s50, {UT}
v_lshlrev_b32 v9, 4, v2
v_lshlrev_b32 v10, 31, v3
v_or_b32 v10, 1.0, v10""")
    stamp(e)
    e.wait(vm="dma")
    e("s_barrier")
    stamp(e)
    def rd(ks):
        for t in range(2):
            e.lgop(f"ds_read_b128 {vr(BF + ((ks % NB)*2 + t)*4)}, v{14 + (ks & 1)} offset:{t*18432 + (ks >> 1)*1024}", ("b", ks))
    for ks in range(NB-1): rd(ks)
    for ks in range(18):
        if ks + NB - 1 < 18: rd(ks + NB - 1)
        e.wait(lg=("b", ks))
        for u in range(3):
            for t in range(2):
                d = vr(acc(ks // 9, u, t))
                e(f"{M16} {d}, {vr(BF + ((ks % NB)*2 + t)*4)}, {vr(TB + ((ks % 9)*3 + u)*4)}, {d if ks % 9 else 0}")
    stamp(e)
    e("s_barrier")
    stamp(e)
    e.lgop("ds_read_b128 v[76:79], v9 offset:36864", "r"); e.lgop("ds_read_b128 v[80:83], v9 offset:36928", "r")
    e("s_nop 3")
    for u in range(3):
        for t in range(2):
            for r in range(4): e(f"v_fmac_f32 v{acc(0,u,t)+r}, v{acc(1,u,t)+r}, v10")
        e.wait(lg="all")
        for t in range(2):
            for r in range(4): e(f"v_mul_f32 v{acc(0,u,t)+r}, v{acc(0,u,t)+r}, v{76+4*t+r}")
        o = BF + 4*u
        for t in range(2):
            e(f"v_cvt_pk_bf16_f32 v{o+2*t}, v{acc(0,u,t)}, v{acc(0,u,t)+1}\nv_cvt_pk_bf16_f32 v{o+2*t+1}, v{acc(0,u,t)+2}, v{acc(0,u,t)+3}")
        e.vmop(f"buffer_store_dwordx4 {vr(o)}, v8, s[8:11], s50 offen {OPT.get('sc_ut','')}", "st")
        if u < 2: e("s_add_u32 s50, s50, 65536")
    stamp(e)
    if OPT.get("touch34"):
        ts = OPT.get("tstride", 64)
        e.srd(48, 28, 5308416); e.srd(52, 30, 5308416)
        e(f"v_mul_u32_u24 v11, {ts}, v1\ns_mul_i32 s38, s2, 3\ns_add_u32 s38, s38, s3\ns_mul_i32 s38, s38, 6912\ns_mov_b32 s39, s38")
        dump(e, 1)
        touch(e, 48, 38, 6912, 11, 16, ts); touch(e, 52, 39, 6912, 11, 20, ts)
        e("s_endpgm")
    e(f"s_branch {Lep}")
    e(f"{Lst}:")
    e.vm = vm_save; e.lg = []
    def cpf():
        code_srd(e, 52, "code_begin", "code_end-code_begin")
        e("s_lshr_b32 s44, s2, 3\ns_mul_i32 s44, s44, 3072")
        for i in range(3): e.vmop(f"buffer_load_dwordx4 v[{100+4*i}:{103+4*i}], v4, s[52:55], s44 offen offset:{1024*i}", "c")
    if OPT.get("cpf", 1) == 1: cpf()
    if OPT.get("tlb"):
        st_ = OPT["tlb"]
        e.srd(48, 28, 5308416); e.srd(52, 30, 5308416); e.srd(56, 18, A_)
        e(f"v_lshlrev_b32 v11, {st_}, v1")
        n = -(-(FLG + FLG_SZ) >> st_)
        for i in range(-(-n // 64)):
            e(f"s_mov_b32 s44, {i << (st_ + 6)}")
            e.vmop("buffer_load_dword v44, v11, s[8:11], s44 offen", "t")
        for sr in (48, 52, 56): e.vmop(f"buffer_load_dword v44, v11, s[{sr}:{sr+3}], 0 offen", "t")
    for i in range(4): e(f"v_mov_b32 v{36+i}, 0x3f803f80")
    e("v_lshrrev_b32 v8, 2, v3\nv_and_b32 v9, 3, v3")
    e.wait(vm="dma")
    e("s_barrier")
    if OPT.get("cpf", 1) == 2: cpf()
    NR = 6
    def rds(f): e.lgop(f"ds_read_b128 {vr(64+4*(f%NR))}, v{14 + (f & 1)} offset:{(f // 18)*18432 + ((f % 18) >> 1)*1024}", f)
    for f in range(NR-1): rds(f)
    for f in range(36):
        if f + NR - 1 < 36: rds(f + NR - 1)
        e.wait(lg=f)
        t = f // 18; x = vr(64 + 4*(f % NR))
        e(f"{M16} {vr(16+8*t)}, {x}, v[36:39], {vr(16+8*t) if f % 18 else 0}")
        e(f"{M16} {vr(20+8*t)}, {x}, {x}, {vr(20+8*t) if f % 18 else 0}")
    e("v_cmp_eq_u32 s[40:41], 1, v9\nv_cmp_eq_u32 s[42:43], 2, v9\nv_cmp_eq_u32 s[46:47], 3, v9\nv_cmp_eq_u32 s[48:49], v8, v2\ns_nop 4")
    for b in (16, 20, 24, 28):
        e(f"v_cndmask_b32 v{b}, v{b}, v{b+1}, s[40:41]\nv_cndmask_b32 v{b}, v{b}, v{b+2}, s[42:43]\nv_cndmask_b32 v{b}, v{b}, v{b+3}, s[46:47]")
    e(f"v_mov_b32 v32, {fhex(1/576)}")
    for t in range(2):
        b = 16 + 8*t
        e(f"""v_mul_f32 v{b}, v32, v{b}
v_mul_f32 v{b+1}, v{b}, v{b}
v_fma_f32 v{b+4}, v{b+4}, v32, -v{b+1}
v_max_f32 v{b+4}, 0, v{b+4}
v_add_f32 v{b+4}, {fhex(EPS)}, v{b+4}
v_rsq_f32 v{b+4}, v{b+4}""")
    Lns = e.label("nost")
    e(f"""v_lshlrev_b32 v33, 2, v3
s_lshl_b32 s45, s35, 7
s_add_u32 s45, s45, {MX}
s_mov_b64 exec, s[48:49]
ds_write_b32 v33, v20 offset:36864
ds_write_b32 v33, v28 offset:36928
s_cmp_lg_u32 s34, 0
s_cbranch_scc1 {Lns}
buffer_store_dword v16, v33, s[8:11], s45 offen
buffer_store_dword v24, v33, s[8:11], s45 offen offset:64
{Lns}:
s_waitcnt lgkmcnt(0)
s_barrier
s_branch {Lep}""")
    e(f"{Lside}:")
    e.vm = []; e.lg = []
    Lwt, Lrm, L2, Lgo = [e.label(x) for x in ("wt", "rm", "w2", "go")]
    L3, Lgo2, Lpk, Lw1 = e.label("w3"), e.label("go2"), e.label("pk"), e.label("wv1")
    e(f"""s_sub_u32 s32, s2, 256
s_cmp_eq_u32 s3, 1
s_cbranch_scc1 {Lw1}
s_cmp_lg_u32 s3, 0
s_cselect_b32 s33, 1, 0
s_cmp_ge_u32 s32, 108
s_cselect_b32 s34, 1, 0
s_or_b32 s33, s33, s34
s_cbranch_scc0 {Lpk}
s_mul_i32 s33, s3, 189
s_add_u32 s33, s33, s32
s_sub_u32 s33, s33, 378
s_add_u32 s34, s32, 270
s_cmp_eq_u32 s3, 0
s_cselect_b32 s32, s34, s33
s_waitcnt lgkmcnt(0)
s_branch {Lwt}
{Lw1}:
s_waitcnt lgkmcnt(0)
s_cmp_lt_u32 s32, 72
s_cbranch_scc1 {Lrm}
s_add_u32 s32, s32, {459 - 72}
s_branch {Lwt}
{Lpk}:""")
    pro2(e)
    e(f"s_cmp_ge_u32 s32, 54\ns_cbranch_scc1 {L2}")
    e.srd(12, 24, 663552)
    e(f"s_mov_b32 s39, {W1P}\ns_branch {Lgo}\n{L2}:\ns_sub_u32 s32, s32, 54")
    e.srd(12, 26, 663552)
    e(f"s_mov_b32 s39, {W2P}\n{Lgo}:")
    sdiv(e, 3, 34, 35, 32, 40)
    e("s_mov_b32 s33, 1152\ns_lshl_b32 s36, s34, 10\ns_add_u32 s36, s36, s39\ns_mov_b32 s37, 8\ns_mov_b32 s38, 4\ns_mov_b32 s39, 8\ns_lshl_b32 s34, s34, 5")
    pack_job(e, OPT.get("ld_p12", "nt"), OPT.get("sc_p12", "sc1"))
    e(f"s_branch {Lep}")
    if N3:
        e(f"{L3}:")
        e.srd(12, 28, 5308416); sdiv(e, 24, 34, 35, 32, 40)
        e(f"s_mov_b32 s33, 9216\ns_lshl_b32 s36, s34, 10\ns_add_u32 s36, s36, {W3P}\ns_mov_b32 s37, 8\ns_mov_b32 s38, 4\ns_mov_b32 s39, 8\ns_lshl_b32 s34, s34, 5")
        pack_job(e, OPT.get("ld_pk", "nt"), OPT.get("sc_pk", "sc1"))
        e(f"s_branch {Lep}")
    e(f"{Lrm}:")
    e.srd(8, 4, WS_SIZE)
    e.srd(12, 26, 663552)
    e("""v_lshrrev_b32 v6, 3, v1
v_mul_u32_u24 v7, 1152, v6
v_and_b32 v8, 7, v1
v_lshl_add_u32 v7, v8, 4, v7
s_mul_i32 s33, s32, 9216
s_mov_b32 s34, 0x3f803f80
v_mov_b32 v9, 0""")
    for m in range(9): e.vmop(f"buffer_load_dwordx4 {vr(16+4*m)}, v7, s[12:15], s33 offen offset:{128*m}", m)
    Lnz = e.label("nz")
    e(f"s_cmp_ge_u32 s32, 72\ns_cbranch_scc1 {Lnz}\nv_mov_b32 v56, 0\nv_mov_b32 v57, 0\nv_mov_b32 v58, 0\nv_mov_b32 v59, 0\ns_lshl_b32 s38, s32, 10\ns_add_u32 s38, s38, {FLG}")
    e(f"buffer_store_dwordx4 v[56:59], v4, s[8:11], s38 offen\n{Lnz}:")
    e.wait(vm="all")
    for j in range(36): e(f"v_dot2_f32_bf16 v9, v{16+j}, s34, v9")
    e(f"""s_nop 3
v_add_f32_dpp v9, v9, v9 quad_perm:[1,0,3,2] row_mask:0xf bank_mask:0xf
s_nop 1
v_add_f32_dpp v9, v9, v9 quad_perm:[2,3,0,1] row_mask:0xf bank_mask:0xf
s_nop 1
v_add_f32_dpp v9, v9, v9 row_half_mirror row_mask:0xf bank_mask:0xf
v_mul_f32 v9, {fhex(1/576)}, v9
v_cvt_pk_bf16_f32 v9, v9, v9
v_lshlrev_b32 v6, 1, v6
s_lshl_b32 s33, s32, 8
s_add_u32 s33, s33, {W2P + 36*18432}
v_cmp_eq_u32 vcc, 0, v8
s_nop 1
s_and_saveexec_b64 s[36:37], vcc
buffer_store_short v9, v6, s[8:11], s33 offen
s_branch {Lep}""")
    e(f"{Lwt}:")
    e.srd(8, 4, WS_SIZE)
    sdiv(e, 9, 33, 34, 32, 40)
    e("""s_lshr_b32 s35, s33, 4
s_and_b32 s33, s33, 15
v_lshrrev_b32 v6, 5, v1
s_lshl_b32 s33, s33, 2
v_add_u32 v6, s33, v6
v_and_b32 v7, 31, v1
s_lshl_b32 s34, s34, 5
v_add_u32 v7, s34, v7
v_mul_u32_u24 v8, 578, v6
v_lshl_add_u32 v8, v7, 1, v8
v_add_u32 v8, 2, v8
s_mul_i32 s36, s35, 147968""")
    e.srd(12, 20, 1183744); e.srd(16, 22, 1183744)
    for gg in range(2):
        for tk in range(2):
            for r in range(4):
                i = gg*16 + tk*4 + r
                e(f"s_add_u32 s37, s36, {36992*(16*tk+r) + 1156*gg}")
                e.vmop(f"buffer_load_ushort v{16+i}, v8, s[12:15], s37 offen {OPT.get('ld_w','')}", gg)
                e.vmop(f"buffer_load_ushort v{24+i}, v8, s[16:19], s37 offen {OPT.get('ld_w','')}", gg)
    e(f"""v_lshlrev_b32 v9, 13, v7
v_lshrrev_b32 v10, 4, v6
v_lshl_add_u32 v9, v10, 11, v9
v_and_b32 v10, 15, v6
v_lshl_add_u32 v9, v10, 5, v9
s_lshl_b32 s36, s35, 9
s_add_u32 s36, s36, {WT}""")
    for gg in range(2):
        e.wait(vm=gg)
        for i in range(8): e(f"v_lshl_or_b32 v{16+16*gg+i}, v{24+16*gg+i}, 16, v{16+16*gg+i}")
        e.vmop(f"buffer_store_dwordx4 {vr(16+16*gg)}, v9, s[8:11], s36 offen offset:{64*gg} {OPT.get('sc_wt','')}", "st")
        e.vmop(f"buffer_store_dwordx4 {vr(20+16*gg)}, v9, s[8:11], s36 offen offset:{64*gg+16} {OPT.get('sc_wt','')}", "st")
    NC = OPT.get("chain", 0)
    if NC:
        e(f"s_cmp_ge_u32 s32, {NC}\ns_cbranch_scc1 {Lep}")
        e.srd(12, 28, 5308416); sdiv(e, 24, 34, 35, 32, 40)
        e(f"s_mov_b32 s33, 9216\ns_lshl_b32 s36, s34, 10\ns_add_u32 s36, s36, {W3P}\ns_mov_b32 s37, 8\ns_mov_b32 s38, 4\ns_mov_b32 s39, 8\ns_lshl_b32 s34, s34, 5")
        pack_job(e, OPT.get("ld_pk", "nt"), OPT.get("sc_pk", "sc1"))
    e(f"{Lep}:")
    epi(e, name, Lend, 1, 200, 200)
    e.add_launch(name, 256 + NS, lds=49152)

def p2x2(e):
    e(f"""s_add_u32 s35, s34, 1
s_sub_u32 s46, 287, s34
s_cmp_eq_u32 s34, 143
s_cselect_b32 s46, 288, s46
s_cselect_b32 s14, 0, {WS_SIZE}
s_cselect_b32 s45, 0, s46
s_lshl_b32 s39, s34, 13
s_lshl_b32 s47, s46, 13
s_lshl_b32 s40, s3, 11
s_add_u32 s40, s40, {WT}
s_add_u32 s39, s39, s40
s_add_u32 s47, s47, s40
s_sub_u32 s47, s47, 8192
s_lshl_b32 s38, s35, 13
s_lshl_b32 s45, s45, 13
s_lshl_b32 s35, s35, 12
s_lshl_b32 s46, s46, 12
s_sub_u32 s36, {576*4096}, s35
s_sub_u32 s37, {576*4096}, s46
v_lshlrev_b32 v6, 5, v1
s_cmp_eq_u32 s3, 1
s_cselect_b32 s48, s36, s35
s_cmp_eq_u32 s3, 2
s_cselect_b32 s48, s46, s48
s_cmp_eq_u32 s3, 3
s_cselect_b32 s48, s37, s48
s_cselect_b32 s14, s14, {WS_SIZE}
s_lshl_b32 s49, s3, 12
s_add_u32 m0, s49, 16384""")
    pro2(e)
    e("s_mov_b32 s12, s8\ns_mov_b32 s13, s9\ns_mov_b32 s15, 0x00020000")
    P, Q, WV, RE, IM, PR, PI = (16, 168), (32, 184), (48, 200), (152, 208), (160, 216), (8, 224), (12, 228)
    for f in range(4): e.vmop(f"buffer_load_dwordx4 v4, s[12:15], s48 offen offset:{f*1024} lds", "d")
    for c in range(2):
        e.vmop(f"buffer_load_dwordx4 {vr(WV[c])}, v6, s[8:11], s{(39,47)[c]} offen", ("w", c))
        e.vmop(f"buffer_load_dwordx4 {vr(WV[c]+4)}, v6, s[8:11], s{(39,47)[c]} offen offset:16", ("w", c))
    C64, S64, N64 = 56, 64, 72
    C32, S32, N32 = 80, 88, 96
    TC1, TS1, TC2, TS2 = 104, 112, 120, 128
    TMP = 136
    e("""s_lshl_b32 s40, s3, 4
v_add_u32 v7, s40, v3
v_cvt_f32_u32 v7, v7
v_lshlrev_b32 v5, 2, v2
v_cvt_f32_u32 v5, v5
v_cvt_f32_u32 v6, v3
s_mov_b32 s41, 0x80008000
s_brev_b32 s42, 1
v_and_b32 v0, 1, v3
v_mul_lo_u32 v0, v0, s41""")
    e(f"v_mul_f32 v8, {fhex(1/64)}, v7\nv_mul_f32 v9, v5, v8")
    for i in range(8): e(f"v_fmamk_f32 v{TMP+i}, v8, {fhex(float(16*(i>>2) + (i&3)))}, v9")
    for i in range(8): e(f"v_fract_f32 v{TMP+i}, v{TMP+i}")
    for i in range(8): e(f"v_sin_f32 v{TMP+8+i}, v{TMP+i}")
    for i in range(8): e(f"v_cos_f32 v{TMP+i}, v{TMP+i}")
    for m in range(4): e(f"v_cvt_pk_bf16_f32 v{S64+m}, v{TMP+8+2*m}, v{TMP+9+2*m}")
    for m in range(4): e(f"v_cvt_pk_bf16_f32 v{C64+m}, v{TMP+2*m}, v{TMP+1+2*m}")
    for m in range(4): e(f"v_xor_b32 v{N64+m}, s41, v{S64+m}")
    for b in (C64, S64, N64):
        for m in range(4): e(f"v_xor_b32 v{b+4+m}, v0, v{b+m}")
    tw1 = [f"v_mul_f32 v8, {fhex(1/2048)}, v7", "v_mul_f32 v9, v5, v8"]
    tw1 += [f"v_fmamk_f32 v{TC1+i}, v8, {fhex(float(16*(i>>2)+(i&3)))}, v9" for i in range(8)]
    tw1 += [f"v_sin_f32 v{TS1+i}, v{TC1+i}" for i in range(8)] + [f"v_cos_f32 v{TC1+i}, v{TC1+i}" for i in range(8)]
    for l in tw1: e(l)
    m32 = [f"v_mul_f32 v8, {fhex(1/32)}, v6", "v_mul_f32 v9, v5, v8"]
    m32 += [f"v_fmamk_f32 v{TC2+i}, v8, {fhex(float(i))}, v9" for i in range(4)]
    m32 += [f"v_fract_f32 v{TC2+i}, v{TC2+i}" for i in range(4)]
    m32 += [f"v_sin_f32 v{TC2+4+i}, v{TC2+i}" for i in range(4)] + [f"v_cos_f32 v{TC2+i}, v{TC2+i}" for i in range(4)]
    m32 += [f"v_cvt_pk_bf16_f32 v{S32+m}, v{TC2+4+2*m}, v{TC2+5+2*m}" for m in range(2)]
    m32 += [f"v_cvt_pk_bf16_f32 v{C32+m}, v{TC2+2*m}, v{TC2+1+2*m}" for m in range(2)]
    m32 += [f"v_xor_b32 v{b+2+m}, v0, v{b+m}" for b in (C32, S32) for m in range(2)]
    m32 += [f"v_xor_b32 v{b+4+m}, s42, v{b+m}" for b in (C32, S32) for m in range(4)]
    m32 += [f"v_xor_b32 v{N32+m}, s41, v{S32+m}" for m in range(8)]
    tw2 = ["v_cvt_f32_u32 v0, s40", "v_add_f32 v0, v0, v5", f"v_mul_f32 v7, {fhex(1/2048)}, v6", f"v_add_f32 v5, {fhex(16/2048)}, v7",
           "v_mul_f32 v6, v0, v7", "v_mul_f32 v0, v0, v5"]
    tw2 += [f"v_fmamk_f32 v{TC2+r}, v7, {fhex(float(r))}, v6" for r in range(4)]
    tw2 += [f"v_fmamk_f32 v{TC2+4+r}, v5, {fhex(float(r))}, v0" for r in range(4)]
    tw2 += [f"v_sin_f32 v{TS2+i}, v{TC2+i}" for i in range(8)] + [f"v_cos_f32 v{TC2+i}, v{TC2+i}" for i in range(8)]
    def steps(lst, fill=(), per=2, tail=0):
        fill = list(fill)
        n = len(lst[0][1])
        for k in range(n):
            for d, ch in lst:
                A, B = ch[k]
                e(f"{M16} {vr(d)}, {vr(A)}, {vr(B)}, {vr(d) if k else 0}")
                for _ in range(per):
                    if fill: e(fill.pop(0))
        nleft = len(fill)
        for l in fill: e(l)
        if nleft < tail: e(f"s_nop {tail - nleft - 1}")
    def cmul(c, cre, sim, sign):
        L = [f"v_mul_f32 v{TMP+i}, v{RE[c]+i}, v{cre+i}" for i in range(8)]
        L += [f"v_mul_f32 v{TMP+8+i}, v{IM[c]+i}, v{cre+i}" for i in range(8)]
        L += [f"v_fma_f32 v{TMP+i}, {'-' if sign > 0 else ''}v{IM[c]+i}, v{sim+i}, v{TMP+i}" for i in range(8)]
        L += [f"v_fma_f32 v{TMP+8+i}, {'' if sign > 0 else '-'}v{RE[c]+i}, v{sim+i}, v{TMP+8+i}" for i in range(8)]
        L += [f"v_cvt_pk_bf16_f32 v{PR[c]+m}, v{TMP+2*m}, v{TMP+2*m+1}" for m in range(4)]
        L += [f"v_cvt_pk_bf16_f32 v{PI[c]+m}, v{TMP+8+2*m}, v{TMP+9+2*m}" for m in range(4)]
        return L
    def MA(c, s1, s2): return ([(RE[c]+4*ts, [(P[c]+8*ts, C64), (Q[c]+8*ts, s1), (P[c]+8*ts+4, C64+4), (Q[c]+8*ts+4, s1+4)]) for ts in range(2)] +
                               [(IM[c]+4*ts, [(Q[c]+8*ts, C64), (P[c]+8*ts, s2), (Q[c]+8*ts+4, C64+4), (P[c]+8*ts+4, s2+4)]) for ts in range(2)])
    def MB(c): return ([(RE[c]+4*tk, [(C32+4*tk, PR[c]), (S32+4*tk, PI[c])]) for tk in range(2)] + [(IM[c]+4*tk, [(C32+4*tk, PI[c]), (N32+4*tk, PR[c])]) for tk in range(2)])
    def MC(c): return ([(RE[c]+4*ts, [(PR[c], C32+4*ts), (PI[c], N32+4*ts)]) for ts in range(2)] + [(IM[c]+4*ts, [(PI[c], C32+4*ts), (PR[c], S32+4*ts)]) for ts in range(2)])
    def wun(c):
        L = []
        for i in range(8): L += [f"v_lshlrev_b32 v{TC1+i}, 16, v{WV[c]+i}", f"v_and_b32 v{TS1+i}, 0xffff0000, v{WV[c]+i}"]
        return L
    stamp(e, lvl=6)
    for l in m32: e(l)
    e.srd(12, 18, 5308416)
    e("v_lshrrev_b32 v232, 3, v1\nv_and_b32 v233, 7, v1\nv_mul_u32_u24 v232, 9216, v232\nv_lshl_add_u32 v232, v233, 4, v232")
    e("s_lshr_b32 s52, s34, 1\ns_mul_i32 s52, s52, 3\ns_and_b32 s53, s34, 1\ns_lshl_b32 s53, s53, 1\ns_add_u32 s55, s52, s53")
    for k in range(2):
        if k: e("s_add_u32 s55, s55, 1")
        dst = 50 + k; src = 16 + k
        sdiv(e, 27, 52, 53, 55, 49); sdiv(e, 3, 54, 59, 53, 49)
        e(f"""s_mul_i32 s{dst}, s52, 663552
s_lshl_b32 s49, s54, 10
s_add_u32 s{dst}, s{dst}, s49
s_mul_i32 s49, s59, {3*73728}
s_add_u32 s{dst}, s{dst}, s49
s_add_u32 s{dst}, s{dst}, {W3P}
s_lshl_b32 s54, s54, 2
s_add_u32 s54, s54, s3
s_mul_i32 s{src}, s54, {8*9216}
s_mul_i32 s52, s52, 1152
s_add_u32 s{src}, s{src}, s52
s_mul_i32 s59, s59, 384
s_add_u32 s{src}, s{src}, s59""")
    e("s_lshl_b32 s52, s3, 10")
    def early_issue():
        Lne = e.label("noearly")
        for k in range(2):
            if k: e(f"s_bitcmp1_b32 s34, 0\ns_cbranch_scc1 {Lne}")
            for it in range(3):
                e(f"s_add_u32 m0, s52, {49152 + k*12288 + it*4096 - it*128}\ns_nop 0")
                e(f"buffer_load_dwordx4 v232, s[12:15], s{16+k} offen offset:{128*it} {OPT.get('ld_pk','nt')} lds")
        e(f"{Lne}:")
    if OPT.get('t0a', 0): tgen(e, 27, 0, 16, (0,), agpr=216)
    stamp(e, lvl=7)
    e.wait(vm="d")
    e("s_barrier")
    for c in range(2):
        for js in range(2):
            for ts in range(2):
                f = ts*2 + js
                e.lgop(f"ds_read_b128 {vr(P[c]+4*f)}, v4 offset:{16384 + c*8192 + f*1024}", ("u", c))
                e.lgop(f"ds_read_b128 {vr(Q[c]+4*f)}, v4 offset:{16384 + c*8192 + 4096 + f*1024}", ("u", c))
    stamp(e, lvl=7)
    e.wait(lg=("u", 0))
    steps(MA(0, S64, N64), tw2, 2, 8)
    stamp(e, lvl=7)
    e.wait(lg=("u", 1))
    stamp(e, lvl=7)
    steps(MA(1, S64, N64), cmul(0, TC1, TS1, -1), 2, 8)
    e("s_nop 0")
    steps(MB(0), cmul(1, TC1, TS1, -1), 2, 8)
    stamp(e, lvl=7)
    e.wait(vm=("w", 1))
    early_issue()
    stamp(e, lvl=7)
    steps(MB(1), wun(0) + cmul(0, TC1, TS1, +1), 2, 8)
    e("s_lshr_b32 s43, s3, 1\ns_lshl_b32 s43, s43, 10")
    steps(MC(0), wun(1) + cmul(1, TC1, TS1, +1), 2, 8)
    e("s_and_b32 s44, s3, 1\ns_lshl_b32 s44, s44, 3\ns_add_u32 s43, s43, s44")
    e("v_add_u32 v5, s43, v4")
    steps(MC(1), cmul(0, TC2, TS2, +1), 2, 8)
    stamp(e, lvl=7)
    for c in range(2):
        for l in (cmul(c, TC2, TS2, +1) if c else []): e(l)
        for ts in range(2):
            e.lgop(f"ds_write_b64 v5, {vr(PR[c]+2*ts,2)} offset:{c*8192 + (ts*2+0)*2048}", "x")
            e.lgop(f"ds_write_b64 v5, {vr(PI[c]+2*ts,2)} offset:{c*8192 + (ts*2+1)*2048}", "x")
    e(f"""s_lshl_b32 s40, s3, 11
v_and_b32 v6, 7, v3
v_lshlrev_b32 v6, 7, v6
v_lshrrev_b32 v7, 3, v3
v_lshl_add_u32 v6, v7, 6, v6
v_lshl_add_u32 v6, v2, 4, v6
v_add_u32 v6, s40, v6
s_add_u32 s38, s38, {VT}
s_add_u32 s45, s45, {VT}""")
    e.wait(lg="all")
    stamp(e, lvl=7)
    e("s_barrier")
    stamp(e, lvl=6); stamp(e, lvl=7)
    for c in range(2):
        for js in range(2):
            for ts in range(2):
                e.lgop(f"ds_read_b128 {vr(P[c]+8*ts+4*js)}, v4 offset:{c*8192 + ((ts*2+0)*2+js)*1024}", ("y", c))
                e.lgop(f"ds_read_b128 {vr(Q[c]+8*ts+4*js)}, v4 offset:{c*8192 + ((ts*2+1)*2+js)*1024}", ("y", c))
    def cv(dst, src): return [f"v_cvt_pk_bf16_f32 v{dst+m}, v{src+2*m}, v{src+2*m+1}" for m in range(4)]
    def merge(X, Y, sr):
        L = [f"v_mov_b32 v{TMP+m}, v{X+m}" for m in range(4)] + ["s_nop 0"]
        L += [f"v_mov_b32_dpp v{X+m}, v{Y+m} row_ror:8 row_mask:0xf bank_mask:0xc" for m in range(4)]
        L += [f"v_mov_b32_dpp v{Y+m}, v{TMP+m} row_ror:8 row_mask:0xf bank_mask:0x3" for m in range(4)]
        L += [f"buffer_store_dwordx4 {vr(X)}, v6, s[8:11], s{sr} offen sc1", f"buffer_store_dwordx4 {vr(Y)}, v6, s[8:11], s{sr} offen offset:1024 sc1"]
        return L
    mA, mB = MA(0, N64, S64), MA(1, N64, S64)
    Lsp, Lfin = e.label("special"), e.label("p2fin")
    e.wait(lg="all")
    steps(mA[:2] + mB[2:])
    e(f"s_cmp_eq_u32 s34, 143\ns_cbranch_scc1 {Lsp}")
    steps(mB[:2] + mA[2:], ["s_nop 0"]*3 + cv(PR[0], RE[0]) + cv(PI[1], IM[1]) + merge(PR[0], PI[1], 38), 2, 8)
    for l in cv(PR[1], RE[1]) + cv(PI[0], IM[0]) + merge(PR[1], PI[0], 45): e(l)
    e(f"s_branch {Lfin}\n{Lsp}:")
    steps(mB[:2] + mA[2:], (), 2, 8)
    for l in cv(PR[0], RE[0]) + cv(PI[0], IM[0]) + cv(PI[1], RE[1]) + [f"v_mov_b32 v{PR[1]+m}, 0" for m in range(4)]: e(l)
    for l in merge(PR[0], PI[0], 38) + merge(PR[1], PI[1], 45): e(l)
    e(f"{Lfin}:")
    stamp(e, lvl=7)
    e.vm = []; e.lg = []

NPF = 32
def k3(e):
    name = "k3_kernel"
    Lend = pro(e, name, 256, x=True, extra=((22, 64), (20, 56), (18, 48)))
    W4K3 = 0
    ACC, BF, NB, HCR, TB, XR = 16, 64, 3, 40, 104, 212
    XV, AC, TT, KC, TMP, PK, RING, BASE = 16, 48, 64, 80, 92, 96, 104, 232
    T0A = OPT.get('t0a', 0)
    DA = 244
    def acc(u, t): return ACC + (u*2+t)*4
    def wfrag(ph, ks, u):
        if ph == "T": return vr(216 + (ks % 9)*4, 4, "a") if (u == 0 and T0A) else vr(TB + ((ks % 9)*3 + u)*4)
        f = ks*3 + u
        if ph == "W1": return vr(4*f, 4, "a")
        if f < 32: return vr(104 + 4*f)
        if f < 42: return vr(216 + 4*(f-32), 4, "a")
        return vr(4*(f-42), 4, "a")
    if OPT.get("burn3"): burn(e, OPT["burn3"])
    mp = OPT.get("map", 3)
    e("s_lshr_b32 s30, s2, 3\ns_and_b32 s31, s2, 7")
    if mp == 2:
        e("s_lshl_b32 s26, s31, 2\ns_lshr_b32 s32, s30, 3\ns_add_u32 s26, s26, s32\ns_and_b32 s24, s30, 3\ns_bfe_u32 s29, s30, 0x10002")
    elif mp == 3:
        e("s_lshr_b32 s26, s31, 1\ns_lshl_b32 s26, s26, 3\ns_lshr_b32 s32, s30, 2\ns_add_u32 s26, s26, s32\ns_and_b32 s24, s30, 3\ns_and_b32 s29, s31, 1")
    elif mp == 4:
        e("s_lshr_b32 s26, s31, 2\ns_lshl_b32 s26, s26, 4\ns_lshr_b32 s32, s30, 1\ns_add_u32 s26, s26, s32\ns_and_b32 s24, s31, 2\ns_and_b32 s32, s30, 1\ns_add_u32 s24, s24, s32\ns_and_b32 s29, s31, 1")
    elif mp == 1:
        e("s_mov_b32 s26, s30\ns_lshr_b32 s24, s31, 1\ns_and_b32 s29, s31, 1")
    e("""s_lshl_b32 s25, s26, 1
s_add_u32 s25, s25, s29
s_mul_i32 s27, s24, 9
s_mul_i32 s32, s3, 3
s_add_u32 s27, s27, s32
s_lshl_b32 s28, s29, 2
s_add_u32 s28, s28, s24""")
    HB = 73728
    def setup6():
        e(f"""s_mul_i32 s40, s26, 73728
s_mul_i32 s32, s3, 18432
s_add_u32 s40, s40, s32
s_add_u32 s40, s40, {X6}
v_lshlrev_b32 v6, 3, v3
v_mul_u32_u24 v7, 384, v2
v_add_u32 v6, v6, v7
s_lshl_b32 s37, s26, 12
s_add_u32 s37, s37, {SQ1}
s_lshr_b32 s33, s3, 1
s_lshl_b32 s33, s33, 10
s_and_b32 s36, s3, 1
s_lshl_b32 s36, s36, 3
s_add_u32 s33, s33, s36
s_add_u32 s33, s33, {HB}
v_add_u32 v8, s33, v4
v_add_u32 v9, 36864, v8
v_add_u32 v12, {HB}, v4
v_add_u32 v13, {HB+36864}, v4
v_add_u32 v14, s32, v4
v_add_u32 v15, 4096, v4
v_add_u32 v5, 8192, v4
v_add_u32 v7, 12288, v4
s_lshl_b32 s34, s26, 2
s_add_u32 s34, s34, s3
s_mul_i32 s34, s34, 18432
s_mul_i32 s35, s28, {A_}
s_add_u32 s34, s34, s35
s_add_u32 s34, s34, {PART}""")
    NT = 2*162
    ORD = [0, 3, 6, 1, 4, 7, 2, 5, 8]
    def wload6(n):
        out = []
        if OPT.get("rot"):
            ph2 = n >= 162
            b, ks = divmod(n % 162, 18)
            rot = OPT["rot"] & (2 if ph2 else 1)
            if ks == 0:
                t = ORD[b] if ph2 else b
                if rot: out.append(("s", f"s_and_b32 s16, s26, 7\ns_add_u32 s16, s16, {t}\ns_cmp_ge_u32 s16, 9\ns_cselect_b32 s17, 9, 0\ns_sub_u32 s16, s16, s17\ns_mul_i32 s16, s16, 18432\ns_add_u32 s16, s16, s{31 if ph2 else 30}"))
                else: out.append(("s", f"s_add_u32 s16, s{31 if ph2 else 30}, {t*18432}"))
            if ks % 4 == 0: out.append(("s", f"s_add_u32 s17, s16, {ks*1024}"))
            out.append(("v", f"buffer_load_dwordx4 {vr(RING+4*(n % NPF))}, v4, s[8:11], s17 offen offset:{(ks&3)*1024} {OPT.get('ld6', 'sc1')}", ("w", n)))
        elif n < 162:
            if OPT.get("v4x") and n >= 32:
                if n % 16 == 0: out.append(("s", f"s_add_u32 s30, s30, {4096 if n == 32 else 16384}"))
                out.append(("v", f"buffer_load_dwordx4 {vr(RING+4*(n % NPF))}, v{(4,15,5,7)[(n >> 2) & 3]}, s[8:11], s30 offen offset:{(n&3)*1024} {OPT.get('ld6', 'sc1')}", ("w", n)))
                return out
            if n % 4 == 0 and n: out.append(("s", "s_add_u32 s30, s30, 4096"))
            out.append(("v", f"buffer_load_dwordx4 {vr(RING+4*(n % NPF))}, v4, s[8:11], s30 offen offset:{(n&3)*1024} {OPT.get('ld6', 'sc1')}", ("w", n)))
        else:
            b, ks = divmod(n - 162, 18)
            if ks % 4 == 0: out.append(("s", f"s_add_u32 s30, s31, {ORD[b]*18432 + ks*1024}"))
            out.append(("v", f"buffer_load_dwordx4 {vr(RING+4*(n % NPF))}, v4, s[8:11], s30 offen offset:{(ks&3)*1024} {OPT.get('ld6', 'sc1')}", ("w", n)))
        return out
    def emit(x):
        if x[0] == "s": e(x[1])
        elif x[0] == "v": e.vmop(x[1], x[2])
        elif x[0] == "l": e.lgop(x[1], x[2])
        elif x[0] == "wv": e.wait(vm=x[1])
        elif x[0] == "wl": e.wait(lg=x[1])
        elif x[0] == "st": stamp(e, lvl=x[1])
    Lpack, Ljoin = e.label("pack"), e.label("join")
    e(f"s_cmp_ge_u32 s30, 18\ns_cbranch_scc1 {Lpack}\ns_lshl_b32 s34, s30, 3\ns_add_u32 s34, s34, s31\ns_mov_b32 s58, s34\ns_mov_b32 s56, 255\ns_mov_b32 s57, 0")
    p2x2(e)
    e(f"""s_branch {Ljoin}
{Lpack}:
s_sub_u32 s56, s30, 18
s_lshl_b32 s56, s56, 3
s_add_u32 s56, s56, s31""")
    e("""s_cmp_lt_u32 s3, 3
s_cselect_b32 s57, 1, 0
s_cmp_ge_u32 s56, 108
s_cselect_b32 s57, 0, s57
v_lshrrev_b32 v236, 3, v1
v_and_b32 v237, 7, v1
v_lshrrev_b32 v238, 2, v3""")
    pro2(e)
    e(f"s_cmp_eq_u32 s57, 0\ns_cbranch_scc1 {Ljoin}{'0' if T0A else ''}\ns_mul_i32 s42, s3, 24576\ns_add_u32 s42, s42, 36864\ns_mov_b32 s14, 5308416\ns_mov_b32 s15, 0x00020000")
    for k in range(2):
        e(f"""s_lshl_b32 s34, s3, 1
s_add_u32 s34, s34, {k}
s_cmp_ge_u32 s34, 3
s_cselect_b32 s35, 1, 0
s_cselect_b32 s36, 3, 0
s_sub_u32 s44, s34, s36
s_lshl_b32 s34, s56, 1
s_add_u32 s34, s34, s35""")
        sdiv(e, 27, 59, 43, 34, 40)
        e(f"""s_cmp_ge_u32 s43, 9
s_cselect_b32 s12, s20, s18
s_cselect_b32 s13, s21, s19
s_mov_b32 s33, 9216
s_cselect_b32 s33, 1152, s33
s_cselect_b32 s37, 4, 8
s_cselect_b32 s38, 16, 4
s_cselect_b32 s39, 136, 8
s_cselect_b32 s36, -9, 9
s_mov_b32 s{50+k}, {W3P}
s_cselect_b32 s{50+k}, {W4P}, s{50+k}
s_cselect_b32 s47, 1, 0
s_and_b32 s13, s13, 0xffff
s_add_u32 s43, s43, s36
s_mul_i32 s40, s59, 663552
s_add_u32 s{50+k}, s{50+k}, s40
s_lshl_b32 s40, s43, 10
s_add_u32 s{50+k}, s{50+k}, s40
s_mul_i32 s40, s44, {3*73728}
s_add_u32 s{50+k}, s{50+k}, s40
s_and_b32 s40, s43, 1
s_mul_i32 s40, s40, 288
s_lshr_b32 s46, s43, 1
s_lshl_b32 s46, s46, 4
s_add_u32 s40, s40, s46
s_mul_i32 s46, s59, 576
s_add_u32 s40, s40, s46
s_mul_i32 s40, s40, 1152
s_mul_i32 s46, s43, {32*9216}
s_mul_i32 s48, s59, 1152
s_add_u32 s46, s46, s48
s_cmp_eq_u32 s47, 1
s_cselect_b32 s40, s40, s46
s_mul_i32 s46, s44, 384
s_add_u32 s40, s40, s46
v_mul_lo_u32 v235, v236, s33
v_lshl_add_u32 v235, v237, 4, v235
s_lshl_b32 s41, s33, 3
s_mul_i32 s39, s39, s33
v_mul_lo_u32 v{240+2*k}, v2, s37
v_add_u32 v{240+2*k}, v{240+2*k}, v238
v_lshlrev_b32 v{240+2*k}, 7, v{240+2*k}
v_and_b32 v{241+2*k}, 3, v3
v_lshl_add_u32 v{240+2*k}, v{241+2*k}, 3, v{240+2*k}
v_add_u32 v{240+2*k}, s42, v{240+2*k}
s_lshl_b32 s43, s38, 7
v_add_u32 v{241+2*k}, s43, v{240+2*k}""")
        for f in range(4):
            for it in range(3):
                e(f"s_add_u32 m0, s42, {k*12288 + it*4096 + f*1024 - it*128}")
                e(f"s_add_u32 s40, s40, s{39 if f == 2 else 41}" if (it == 0 and f) else "s_nop 0")
                e(f"buffer_load_dwordx4 v235, s[12:15], s40 offen offset:{128*it} {OPT.get('ld_pk','nt')} lds")
    if T0A:
        e(f"{Ljoin}0:")
        tgen(e, 27, 0, 16, (0,), agpr=216)
    e(f"{Ljoin}:")
    e.vm = ["pk"]*24; e.lg = []
    def p2_signal():
        Ld = e.label("sigdone")
        e(f"""s_cmp_lg_u32 s56, 255
s_cbranch_scc1 {Ld}
s_waitcnt vmcnt(0)
s_barrier
s_cmp_lg_u32 s3, 3
s_cbranch_scc1 {Ld}
s_lshl_b32 s46, s58, 2
s_add_u32 s46, s46, {FLG2}
v_mov_b32 v250, 1
v_mul_u32_u24 v251, 640, v1
s_mov_b32 exec_hi, 0
s_mov_b32 exec_lo, {hex((1 << OPT.get('nrep', 32)) - 1)}
buffer_store_dword v250, v251, s[8:11], s46 offen sc1
s_mov_b64 exec, -1
{Ld}:""")
        stamp(e, lvl=6)
    def pack_finish():
        Ld = e.label("pkdone")
        e(f"s_cmp_eq_u32 s56, 255\ns_cbranch_scc1 {Ld}\nv_add_u32 v239, 55296, v4")
        e.wait(vm="pk")
        Lb = e.label("pkbar")
        if OPT.get("lbar", 2) == 1: e("s_barrier")
        e(f"s_cmp_eq_u32 s57, 0\ns_cbranch_scc1 {Lb}")
        def rd(i):
            k, it = divmod(i, 3)
            for tt in range(4):
                o = 16*i + 4*tt; off = k*12288 + it*4096 + 32*tt
                e.lgop(f"ds_read_b64_tr_b16 {vr(o,2,'a')}, v{240+2*k} offset:{off}", (i, tt))
                e.lgop(f"ds_read_b64_tr_b16 {vr(o+2,2,'a')}, v{241+2*k} offset:{off}", (i, tt))
        rd(0)
        for i in range(6):
            if i < 5: rd(i + 1)
            for tt in range(4):
                e.wait(lg=(i, tt))
                e.vmop(f"buffer_store_dwordx4 {vr(16*i + 4*tt, 4, 'a')}, v{(4,10,11,239)[tt]}, s[8:11], s{50 + i//3} offen sc1", "pst")
            if i % 3 < 2: e(f"s_add_u32 s{50 + i//3}, s{50 + i//3}, 73728")
        e(f"{Lb}:")
        if OPT.get("lbar", 2) == 2: e("s_barrier")
        e(f"{Ld}:")
    e.srd(12, 6, A_)
    e(f"""v_lshrrev_b32 v6, 3, v1
v_and_b32 v7, 2, v6
v_lshlrev_b32 v6, 13, v6
v_and_b32 v5, 7, v1
v_xor_b32 v7, v7, v5
v_lshl_add_u32 v6, v7, 4, v6
s_and_b32 s34, s3, 1
s_lshl_b32 s34, s34, 6
v_xor_b32 v253, s34, v6
v_xor_b32 v254, 64, v253
s_mul_i32 s32, s3, 9216
s_mul_i32 s33, s3, {9*65536}
s_lshl_b32 s34, s25, 7
s_add_u32 s33, s33, s34
s_add_u32 s33, s33, {VT}
v_bfe_u32 v5, v3, 2, 1
v_lshlrev_b32 v5, 4, v5
v_lshrrev_b32 v7, 3, v3
v_lshl_add_u32 v5, v7, 2, v5
v_and_b32 v7, 3, v3
v_add_u32 v5, v5, v7
s_lshl_b32 s34, s25, 5
v_add_u32 v12, s34, v5
v_mul_u32_u24 v96, 1152, v12
v_lshl_add_u32 v96, v2, 3, v96
v_add_u32 v97, 9216, v96
v_lshrrev_b32 v5, 2, v5
v_lshlrev_b32 v98, 7, v5
v_lshl_add_u32 v98, v7, 4, v98
s_lshr_b32 s38, s25, 5
s_lshl_b32 s38, s38, 12
s_bfe_u32 s34, s25, 0x20002
s_lshl_b32 s34, s34, 10
s_add_u32 s38, s38, s34
s_bfe_u32 s34, s25, 0x10004
s_lshl_b32 s34, s34, 6
s_add_u32 s38, s38, s34
s_and_b32 s34, s25, 3
s_lshl_b32 s34, s34, 2
s_add_u32 s38, s38, s34
s_add_u32 s38, s38, {MX}
s_lshl_b32 s37, s27, 5""")
    def vdma():
        for idx in range(9):
            e(f"s_add_u32 m0, s32, {idx*1024}")
            e("s_add_u32 s33, s33, 65536" if idx else "s_nop 0")
            e.vmop(f"buffer_load_dwordx4 v{253 + (idx & 1)}, s[8:11], s33 offen sc1 lds", "dma")
    Lw3 = e.label("w3"); Lp6 = e.label("p6")
    e(f"""s_mul_i32 s30, s28, 36
s_mul_i32 s31, s3, 9
s_add_u32 s30, s30, s31
s_mul_i32 s30, s30, 18432
s_add_u32 s31, s30, {W4P}
s_add_u32 s30, s30, {W3P}
v_add_u32 v10, 18432, v4
v_add_u32 v11, 36864, v4
s_mul_i32 s53, s25, 36864
s_add_u32 s53, s53, s32""")
    e(f"s_lshr_b32 s46, s3, 1\ns_lshl_b32 s46, s46, 3\ns_and_b32 s47, s3, 1\ns_add_u32 s47, s47, 1\ns_sub_u32 s48, s46, s47\ns_add_u32 s49, s46, s47\nv_mov_b32 v95, 2048\nv_lshlrev_b32 v91, 8, v2")
    for k, sr in ((0, 48), (2, 49)):
        e(f"""v_add_u32 v90, s{sr}, v12
v_cmp_lt_u32 vcc, v90, v95
v_bfe_u32 v92, v90, 5, 6
v_mul_u32_u24 v92, 36864, v92
v_bfe_u32 v93, v90, 3, 1
v_mul_u32_u24 v93, 18432, v93
v_bfe_u32 v94, v90, 2, 1
v_lshl_add_u32 v92, v94, 7, v92
v_bfe_u32 v94, v90, 4, 1
v_lshl_add_u32 v92, v94, 6, v92
v_and_b32 v94, 3, v90
v_lshl_add_u32 v92, v94, 4, v92
v_add3_u32 v92, v92, v93, v91
v_bfrev_b32 v93, 2
v_cndmask_b32 v{DA+k}, v93, v92, vcc""")
    e(f"v_cmp_gt_u32 vcc, 2, v2\ns_and_b32 s54, s3, 1\ns_mul_i32 s54, s54, 9216\ns_add_u32 s54, s54, {H1S}\nv_cndmask_b32 v{DA+1}, v{DA+2}, v{DA}, vcc")
    def dma_act(ph):
        if ph == 4:
            e(f"s_add_u32 s46, s53, {HC}")
            for i in range(9):
                if i % 4 == 0:
                    e(f"s_add_u32 m0, s32, {i*1024}")
                    e("s_add_u32 s46, s46, 4096" if i else "s_nop 0")
                e.vmop(f"buffer_load_dwordx4 v4, s[8:11], s46 offen offset:{(i&3)*1024} sc1 lds", "dma")
        else:
            for i in range(9):
                if i % 4 == 0:
                    e(f"s_add_u32 m0, s32, {i*1024}")
                    e("s_add_u32 s54, s54, 4096" if i else "s_nop 0")
                a = DA + (0 if i < 4 else 1 if i == 4 else 2)
                e.vmop(f"buffer_load_dwordx4 v{a}, s[8:11], s54 offen offset:{(i&3)*1024} sc1 lds", "dma")
    p2_signal()
    e(f"s_cmp_eq_u32 s3, 3\ns_cbranch_scc1 {Lw3}")
    vm_save = list(e.vm)
    def xloads():
        for u in range(3):
            for t in range(2):
                e.vmop(f"buffer_load_dwordx2 {vr(XR+(u*2+t)*2,2)}, v{96+t}, s[12:15], s37 offen offset:{32*u}", "x")
        e.vmop("buffer_load_dword v14, v98, s[8:11], s38 offen", "x")
        e.vmop("buffer_load_dword v15, v98, s[8:11], s38 offen offset:256", "x")
    ws_ = {"n": 0}
    def wnext(cnt, lim=108):
        for _ in range(cnt):
            n = ws_["n"]
            if n >= lim: return
            ph = "W1" if n < 54 else "W2"; f = n % 54; ks, u = divmod(f, 3)
            if f == 0: e(f"s_add_u32 s52, s36, {W1P if n == 0 else W2P}")
            elif u == 0 and ks % 4 == 0: e("s_add_u32 s52, s52, 4096")
            e.vmop(f"buffer_load_dwordx4 {wfrag(ph,ks,u)}, v{(4,10,11)[u]}, s[8:11], s52 offen offset:{(ks&3)*1024}", (ph, ks, u))
            ws_["n"] += 1
    e("s_mul_i32 s36, s27, 18432")
    XP = OPT.get("xp", 13)
    def thook(u, ks):
        if u*9 + ks == XP: xloads()
        if u*9 + ks == OPT.get("qb", 20): e("s_barrier")
    tgen(e, 27, TB, 16, (1, 2) if T0A else (0, 1, 2), hook=thook, init=True)
    e(f"""v_lshrrev_b32 v5, 1, v2
v_lshlrev_b32 v8, 8, v5
v_lshl_add_u32 v8, v3, 4, v8
v_and_b32 v5, 1, v2
v_mul_u32_u24 v9, 18432, v5
v_add_u32 v8, v8, v9
v_lshrrev_b32 v6, 2, v3
v_lshl_add_u32 v6, v2, 3, v6
v_lshlrev_b32 v6, 7, v6
v_and_b32 v7, 3, v3
v_lshl_add_u32 v6, v7, 3, v6
v_lshl_add_u32 v6, v5, 6, v6
v_lshrrev_b32 v7, 3, v3
v_lshl_add_u32 v6, v7, 5, v6
v_xor_b32 v7, 32, v6
v_xor_b32 v5, 64, v6
v_xor_b32 v9, 96, v6
s_mul_i32 s39, s25, 36864
s_lshl_b32 s40, s27, 9
s_add_u32 s39, s39, s40
s_lshl_b32 s42, s25, 11
s_lshl_b32 s40, s3, 2
s_add_u32 s40, s40, s24
s_lshl_b32 s40, s40, 7
s_add_u32 s41, s42, s40
s_mov_b32 s43, {fhex(2.0/(2048*576))}
v_lshlrev_b32 v13, 3, v3
v_mul_u32_u24 v12, 384, v2
v_add_u32 v12, v12, v13
s_lshl_b32 s55, s24, 2
s_add_u32 s55, s55, s3
s_lshl_b32 s55, s55, 2
s_lshl_b32 s40, s25, 7
s_add_u32 s55, s55, s40
v_mov_b32 v250, 1
v_mov_b32 v251, 0""")
    stamp(e, lvl=6)
    pack_finish()
    wnext(OPT.get("wr", 12), 54)
    stamp(e, lvl=6)
    e("s_barrier")
    stamp(e, lvl=6)
    vdma()
    e.wait(vm="dma")
    e("s_barrier")
    stamp(e); stamp(e, lvl=6)
    def gemm(ph, tr, hook, fill=(), f0=0, f1=18, cinit=False):
        fill = list(fill); nf = len(fill); fi = 0
        def rd(ks):
            for t in range(2):
                b = BF + ((ks % NB)*2 + t)*4
                if tr:
                    ar = (6, 7, 5, 9)[2*(ks // 9) + t]
                    e.lgop(f"ds_read_b64_tr_b16 {vr(b,2)}, v{ar} offset:{(ks % 9)*4096}", ("b", ks))
                    e.lgop(f"ds_read_b64_tr_b16 {vr(b+2,2)}, v{ar} offset:{(ks % 9)*4096+512}", ("b", ks))
                else:
                    e.lgop(f"ds_read_b128 {vr(b)}, v4 offset:{(t*18+ks)*1024}", ("b", ks))
        for ks in range(NB-1): rd(ks)
        for ks in range(18):
            if ks + NB - 1 < 18: rd(ks + NB - 1)
            e.wait(vm=(ph, ks, 2), lg=("b", ks))
            for u in range(3):
                for t in range(2):
                    d = vr(acc(u, t) + (24 if (ph == "T" and ks >= 9) else 0))
                    first = (ks == 0 and not cinit) or (ph == "T" and ks == 9)
                    e(f"{M16} {d}, {wfrag(ph,ks,u)}, {vr(BF + ((ks % NB)*2 + t)*4)}, {0 if first else d}")
                    g = (ks - f0)*6 + u*2 + t
                    if g >= 0:
                        while fi < min(nf, -(-nf*(g+1) // ((f1 - f0)*6))): emit(fill[fi]); fi += 1
            hook(ks)
        assert fi == nf
    def wsig(phase):
        if OPT.get("wgflag", 0): return
        e(f"s_add_u32 s46, s55, {FLG + phase*8192}\ns_mov_b64 exec, 1")
        e.vmop("buffer_store_dword v250, v251, s[8:11], s46 offen sc1", "f")
        e("s_mov_b64 exec, -1")
    def sq_store(region):
        red_g(e, (90, 91), (92, 93))
        e(f"s_add_u32 s46, s41, {region}\ns_mov_b64 exec, 0xffff")
        e.vmop(f"buffer_store_dwordx2 v[90:91], v13, s[8:11], s46 offen sc1", "st")
        e("s_mov_b64 exec, -1")
    def st16(o, sreg, off):
        e(f"s_nop 0\nv_permlane16_swap_b32 v{o}, v{o+2}\nv_permlane16_swap_b32 v{o+1}, v{o+3}")
        e.vmop(f"buffer_store_dwordx4 {vr(o)}, v8, s[8:11], s{sreg} offen offset:{off} sc1", "st")
    GL, AL = OPT.get("gl", 30), OPT.get("al", 24)
    lim_ = [54]
    GLs = [OPT.get('gl3', 18)]
    def hookw(ks): wnext(GLs[0]*(ks+1)//18 - GLs[0]*ks//18, lim_[0])
    def hook3(ks):
        if XP == 27 + ks: xloads()
        hookw(ks)
    XM = 232
    XF = [224 + i for i in range(20)] + [100, 101, 102, 103]
    xfill = [("wv", "x")]
    for u in range(3):
        for t in range(2):
            x = XR + (u*2+t)*2; f = XF[(u*2+t)*4:(u*2+t)*4+4]
            xfill += [("s", f"v_lshlrev_b32 v{f[0]}, 16, v{x}"), ("s", f"v_and_b32 v{f[1]}, 0xffff0000, v{x}"),
                      ("s", f"v_lshlrev_b32 v{f[2]}, 16, v{x+1}"), ("s", f"v_and_b32 v{f[3]}, 0xffff0000, v{x+1}")]
            xfill += [("s", f"v_sub_f32 v{f[r]}, v{f[r]}, v{14+t}") for r in range(4)]
    xfill += [("s", f"s_add_u32 s44, s39, {HC}"), ("s", "v_mov_b32 v90, 0"), ("s", "v_mov_b32 v91, 0")]
    gemm("T", True, hook3, xfill, 9, 18)
    stamp(e)
    EARLY = OPT.get("early", 0)
    e("s_barrier" if EARLY else "s_nop 0")
    e("s_nop 4")
    for u in range(3):
        o = BF + 4*u
        for t in range(2):
            a = acc(u, t); h = HCR + (u*2+t)*4; f = XF[(u*2+t)*4:(u*2+t)*4+4]
            for r in range(4): e(f"v_{'sub' if r & 1 else 'add'}_f32 v{a+r}, v{a+r}, v{h+r}")
            for r in range(4): e(f"v_fma_f32 v{h+r}, v{a+r}, s43, v{f[r]}")
            e(f"v_cvt_pk_bf16_f32 v{o+2*t}, v{h}, v{h+1}\nv_cvt_pk_bf16_f32 v{o+2*t+1}, v{h+2}, v{h+3}")
            for r in range(4): e(f"v_fmac_f32 v{90+t}, v{h+r}, v{h+r}")
        st16(o, 44, 512*u)
    sq_store(SQH)
    e(f"s_add_u32 s44, s39, {H1S}\ns_add_u32 s47, s42, {SQH}")
    e.wait(vm="st")
    wsig(0)
    LA = OPT.get("la", 8)
    stamp(e, lvl=-1)
    lim_[0] = 54 + 42
    wnext(LA, lim_[0])
    e("s_barrier")
    wnext(AL - LA, lim_[0])
    assert ws_["n"] >= 54
    stamp(e, lvl=1)
    e("s_barrier")
    stamp(e, lvl=1)
    dma_act(4)
    for c in range(3): e.vmop(f"buffer_load_dwordx2 {vr(96+2*c,2)}, v12, s[8:11], s47 offen offset:{128*c} sc1", "q")
    stamp(e, lvl=1)
    e.wait(vm="dma")
    stamp(e, lvl=1)
    e("s_barrier")
    stamp(e, lvl=-1)
    e3 = Em()
    e3("v_add_f32 v97, v97, v99\nv_add_f32 v96, v96, v98\nv_add_f32 v96, v96, v100\nv_add_f32 v100, v97, v101")
    red_g(e3, (96, 100), (92, 93))
    for t in range(2): e3(f"v_mul_f32 v{96+4*t}, {fhex(1/576)}, v{96+4*t}")
    for t in range(2): e3(f"v_add_f32 v{88+t}, {fhex(EPS)}, v{96+4*t}")
    for t in range(2): e3(f"v_rsq_f32 v{88+t}, v{88+t}")
    e3("s_nop 0")
    for t in range(2): e3(f"v_mul_f32 v{98+4*t}, v{88+t}, v{88+t}")
    for t in range(2): e3(f"v_mul_f32 v{98+4*t}, v{98+4*t}, v{96+4*t}")
    for t in range(2): e3(f"v_add_f32 v{98+4*t}, {fhex(EPS)}, v{98+4*t}")
    for t in range(2): e3(f"v_rsq_f32 v{98+4*t}, v{98+4*t}")
    e3("s_nop 0")
    for t in range(2): e3(f"v_mul_f32 v{96+4*t}, v{88+t}, v{98+4*t}")
    for t in range(2): gelu_consts(e3, 96+4*t, 97+4*t, 98+4*t, 99+4*t)
    GLs[0] = OPT.get('gl4', 36)
    def hook4(ks):
        if ks == 4: lim_[0] = 108
        hookw(ks)
    gemm("W1", False, hook4, [("wv", "q")] + [("s", l.strip()) for l in e3.L], 2, 17)
    stamp(e)
    e("s_barrier" if EARLY else "s_nop 0")
    e("s_nop 4")
    for u in range(3):
        o = BF + 4*u
        for t in range(2):
            a = acc(u, t); s = 96 + 4*t
            for l in gelu4(a, 92, s+1, s+2, s+3): e(l)
            e(f"v_cvt_pk_bf16_f32 v{o+2*t}, v92, v93\nv_cvt_pk_bf16_f32 v{o+2*t+1}, v94, v95")
        e("s_nop 0")
        st16(o, 44, 512*u)
    e(f"s_add_u32 s44, s39, {X6}\nv_lshlrev_b32 v98, 2, v3\nv_mov_b32 v90, 0\nv_mov_b32 v91, 0")
    e.wait(vm="st")
    wsig(1)
    stamp(e, lvl=-1)
    wnext(LA)
    e("s_barrier")
    wnext(108)
    for u in range(3):
        for t in range(2):
            a = acc(u, t); h = HCR + (u*2+t)*4
            for r in range(4): e(f"v_mul_f32 v{a+r}, v{h+r}, v{88+t}")
            for r in range(4): e(f"v_add_f32 v{h+r}, v{h+r}, v{14+t}")
    stamp(e, lvl=1)
    e("s_barrier")
    stamp(e, lvl=1)
    dma_act(5)
    stamp(e, lvl=1)
    e.wait(vm="dma")
    stamp(e, lvl=1)
    e("s_barrier")
    stamp(e, lvl=-1)
    N5 = OPT.get("n5", 27)
    st5 = {"n": 0}
    def hook5(ks):
        while st5["n"] < min(N5, 3*ks + 3, (3*(ks+1))//2):
            for x in wload6(st5["n"]): emit(x)
            st5["n"] += 1
    gemm("W2", False, hook5, cinit=True)
    assert st5["n"] == N5
    stamp(e)
    e("s_barrier")
    e.lgop("ds_read_b32 v96, v98 offset:36864", "m"); e.lgop("ds_read_b32 v97, v98 offset:36928", "m")
    e("s_nop 3")
    for u in range(3):
        for t in range(2):
            a = acc(u, t); h = HCR + (u*2+t)*4
            for r in range(4): e(f"v_add_f32 v{h+r}, v{h+r}, v{a+r}")
    e.wait(lg="all")
    for u in range(3):
        x = BF + 4*u
        for t in range(2):
            a = acc(u, t)
            for r in range(4): e(f"v_sub_f32 v{a+r}, v{a+r}, v{96+t}")
            e(f"v_cvt_pk_bf16_f32 v{x+2*t}, v{a}, v{a+1}\nv_cvt_pk_bf16_f32 v{x+2*t+1}, v{a+2}, v{a+3}")
            for r in range(4): e(f"v_fmac_f32 v{90+t}, v{a+r}, v{a+r}")
        st16(x, 44, 512*u)
    sq_store(SQ1)
    for u in range(3):
        for t in range(2):
            h = HCR + (u*2+t)*4; o = BASE + 4*u + 2*t
            e(f"v_cvt_pk_bf16_f32 v{o}, v{h}, v{h+1}\nv_cvt_pk_bf16_f32 v{o+1}, v{h+2}, v{h+3}")
    e.wait(vm="st")
    wsig(2)
    if not OPT.get("l5"): e("s_barrier")
    vm_p6 = list(e.vm)
    stamp(e)
    nst_main = NST
    setup6()
    if OPT.get("l5"): e("s_barrier")
    e(f"s_barrier\ns_branch {Lp6}")
    def poll(phase, areg, nl=0):
        Lp = e.label("poll"); Ld = e.label("pd")
        if OPT.get("wgflag", 0):
            e(f"s_lshl_b32 s46, s25, 7\ns_lshl_b32 s47, s24, 4\ns_add_u32 s46, s46, s47\ns_add_u32 s46, s46, {FLG + phase*8192}\ns_mov_b64 exec, 1\nbuffer_store_dword v250, v251, s[8:11], s46 offen sc1\ns_mov_b64 exec, -1")
        ld = lambda r: f"buffer_load_dword v{r}, v{areg}, s[8:11], s46 offen sc1"
        if OPT.get("pipe", 0):
            e(f"""s_mov_b32 s46, {FLG + phase*8192}
s_mov_b32 s47, 0x20000
{ld(252)}
s_sleep {OPT.get('psl', 3)}
{Lp}:
{ld(253)}
s_waitcnt vmcnt(1)
v_cmp_ne_u32 vcc, 1, v252
s_cbranch_vccz {Ld}
{ld(252)}
s_waitcnt vmcnt(1)
v_cmp_ne_u32 vcc, 1, v253
s_cbranch_vccz {Ld}
s_sub_u32 s47, s47, 1
s_cbranch_scc0 {Lp}
{Ld}:""")
        else:
            e(f"""s_mov_b32 s46, {FLG + phase*8192}
s_mov_b32 s47, 0x40000
{("s_sleep %d" % OPT["ps0"]) if OPT.get("ps0") else "s_nop 0"}
{Lp}:
{ld(252)}
s_waitcnt vmcnt(0)
v_cmp_ne_u32 vcc, 1, v252
s_cbranch_vccz {Ld}
s_sub_u32 s47, s47, 1
s_cbranch_scc0 {Lp}
{Ld}:""")
        e.vm = ["p"]
    e(f"{Lw3}:")
    e.vm = []; e.lg = []
    Lef = e.label("efd")
    e(f"""s_cmp_lg_u32 s56, 255
s_cbranch_scc1 {Lef}
v_lshlrev_b32 v16, 3, v2
v_lshrrev_b32 v17, 2, v3
v_add_u32 v16, v16, v17
v_lshlrev_b32 v16, 7, v16
v_and_b32 v17, 3, v3
v_lshl_add_u32 v16, v17, 3, v16
v_add_u32 v17, 55296, v4
v_add_u32 v18, 16384, v16""")
    for i in range(6):
        if i == 3: e(f"s_bitcmp1_b32 s58, 0\ns_cbranch_scc1 {Lef}")
        for tt in range(4):
            o = 16*i + 4*tt; off = 49152 + i*4096 + 32*tt
            e.lgop(f"ds_read_b64_tr_b16 {vr(o,2,'a')}, v16 offset:{off}" if off + 512 < 65536 else f"ds_read_b64_tr_b16 {vr(o,2,'a')}, v18 offset:{off - 16384}", (i, tt))
            e.lgop(f"ds_read_b64_tr_b16 {vr(o+2,2,'a')}, v16 offset:{off + 512}" if off + 512 < 65536 else f"ds_read_b64_tr_b16 {vr(o+2,2,'a')}, v18 offset:{off + 512 - 16384}", (i, tt))
        for tt in range(4):
            e.wait(lg=(i, tt))
            e.vmop(f"buffer_store_dwordx4 {vr(16*i + 4*tt, 4, 'a')}, v{(4,10,11,17)[tt]}, s[8:11], s{50 + i//3} offen sc1", "pst")
        if i % 3 < 2: e(f"s_add_u32 s{50 + i//3}, s{50 + i//3}, 73728")
    e(f"{Lef}:")
    PKL = 40960
    if W4K3:
        e.srd(16, 20, 5308416)
        e("s_cmp_lt_u32 s2, 216\ns_cselect_b32 s18, 5308416, 0")
        e("v_lshrrev_b32 v16, 3, v1\nv_mul_u32_u24 v16, 1152, v16\nv_and_b32 v17, 7, v1\nv_lshl_add_u32 v16, v17, 4, v16")
        for k in range(2):
            e(f"s_lshl_b32 s40, s2, 1\ns_add_u32 s40, s40, {k}")
            sdiv(e, 3, 41, 42, 40, 46); sdiv(e, 18, 43, 44, 41, 46)
            e(f"""s_mul_i32 s{36+k}, s43, 663552
s_lshl_b32 s45, s44, 10
s_add_u32 s{36+k}, s{36+k}, s45
s_mul_i32 s45, s42, {3*73728}
s_add_u32 s{36+k}, s{36+k}, s45
s_add_u32 s{36+k}, s{36+k}, {W4P}
s_mul_i32 s40, s43, 576
s_and_b32 s45, s44, 1
s_mul_i32 s45, s45, 288
s_add_u32 s40, s40, s45
s_lshr_b32 s45, s44, 1
s_lshl_b32 s45, s45, 4
s_add_u32 s40, s40, s45
s_mul_i32 s40, s40, 1152
s_mul_i32 s45, s42, 384
s_add_u32 s40, s40, s45""")
            for f in range(4):
                for it in range(3):
                    e(f"s_mov_b32 m0, {PKL + k*12288 + it*4096 + f*1024 - it*128}")
                    e(f"s_add_u32 s40, s40, {1152*(136 if f == 2 else 8)}" if (it == 0 and f) else "s_nop 0")
                    e.vmop(f"buffer_load_dwordx4 v16, s[16:19], s40 offen offset:{128*it} {OPT.get('ld_pk','nt')} lds", ("pk", k))
    e(f"""v_mov_b32 v250, 1
v_mov_b32 v251, 0
v_and_b32 v19, 3, v1
v_min_u32 v19, {0 if OPT.get('wgflag', 0) else 2}, v19
v_lshlrev_b32 v19, 2, v19
v_bfe_u32 v20, v1, 2, 2
v_lshl_add_u32 v19, v20, 4, v19
s_lshl_b32 s46, s25, 7
v_add_u32 v247, s46, v19
v_bfe_u32 v21, v1, 4, 1
v_and_b32 v22, 1, v20
v_lshlrev_b32 v22, 1, v22
v_add_u32 v22, -1, v22
v_mul_lo_u32 v22, v22, v21
v_add_u32 v22, s25, v22
v_and_b32 v22, 63, v22
v_lshl_add_u32 v248, v22, 7, v19
s_lshl_b32 s46, s26, 8
v_lshl_add_u32 v249, v21, 7, v19
v_add_u32 v249, s46, v249""")
    if W4K3:
        e(f"""s_mul_i32 s46, s28, 108
s_add_u32 s46, s46, {3*8192}
v_subrev_u32 v19, 32, v1
v_min_u32 v19, 26, v19
v_lshlrev_b32 v19, 2, v19
v_add_u32 v19, s46, v19
v_cmp_lt_u32 vcc, 31, v1
s_nop 1
v_cndmask_b32 v249, v249, v19, vcc""")
    e(f"""s_mul_i32 s46, s28, 27
s_lshr_b32 s46, s46, 1
v_min_u32 v18, 14, v1
v_add_u32 v18, s46, v18
v_min_u32 v18, 107, v18
s_mul_i32 s46, s28, 18
s_add_u32 s46, s46, 108
v_subrev_u32 v19, 32, v1
v_min_u32 v19, 17, v19
v_cmp_lt_u32 vcc, 31, v1
v_add_u32 v19, s46, v19
s_nop 0
v_cndmask_b32 v18, v18, v19, vcc
v_lshlrev_b32 v18, 2, v18""")
    Lq, Lqd = e.label("gp"), e.label("gpd")
    e(f"""v_min_u32 v19, 35, v1
v_lshlrev_b32 v19, 4, v19
s_lshr_b32 s46, s2, {OPT.get('rsh', 3)}
s_and_b32 s46, s46, {OPT.get('nrep', 32) - 1}
s_mul_i32 s46, s46, 640
s_add_u32 s46, s46, {FLG2}
s_mov_b32 s47, 0x40000
{"s_barrier" if OPT.get("qb", 20) < 27 else "s_nop 0"}
s_cmp_eq_u32 s56, 255
s_cbranch_scc1 {Lq}s
s_barrier
{Lq}s:
{('s_sleep %d' % OPT.get('gs1', 0)) if OPT.get('gs1', 0) else 's_nop 0'}
{Lq}:
buffer_load_dwordx4 v[20:23], v19, s[8:11], s46 offen sc1
s_waitcnt vmcnt(0)
v_and_b32 v20, v20, v21
v_and_b32 v22, v22, v23
v_and_b32 v20, v20, v22
v_cmp_ne_u32 vcc, 1, v20
s_cbranch_vccz {Lqd}
s_sleep {OPT.get('gsl', 8)}
s_sub_u32 s47, s47, 1
s_cbranch_scc0 {Lq}
{Lqd}:
s_barrier""")
    e.vm = []
    vdma()
    e.wait(vm="dma")
    e("s_barrier")
    for ks in range(18):
        if ks % 4 == 0: e(f"s_mov_b32 s40, {W2P + 36*18432 + ks*1024}")
        e.vmop(f"buffer_load_dwordx4 {vr(4*ks,4,'a')}, v4, s[8:11], s40 offen offset:{(ks&3)*1024}", "mw")
    e("s_barrier")
    e.wait(vm="all")
    Lnf = e.label("nopf")
    e(f"s_add_u32 s46, s58, 108\ns_cmp_eq_u32 s56, 255\ns_cselect_b32 s46, s46, s56\ns_cselect_b32 s47, 0, s56\ns_cmp_ge_u32 s47, 108\ns_cbranch_scc1 {Lnf}\ns_lshl_b32 s46, s46, 2\ns_add_u32 s46, s46, {FLG + 6*8192}\ns_mov_b64 exec, 1\nbuffer_store_dword v250, v251, s[8:11], s46 offen sc1\ns_mov_b64 exec, -1\n{Lnf}:")
    poll(0, 247)
    if W4K3:
        e(f"s_lshl_b32 s46, s2, 2\ns_add_u32 s46, s46, {FLG + 5*8192}\ns_mov_b64 exec, 1\nbuffer_store_dword v250, v251, s[8:11], s46 offen sc1\ns_mov_b64 exec, -1")
        e.vm.append("f")
    e("s_barrier")
    dma_act(4); e.wait(vm="all")
    e("s_barrier")
    poll(6, 18)
    e("s_barrier")
    poll(1, 248)
    e("s_barrier")
    dma_act(5); e.wait(vm="all")
    e("s_barrier")
    NR = 3
    def rdm(ks):
        for t in range(2): e.lgop(f"ds_read_b128 {vr(40+((ks%NR)*2+t)*4)}, v4 offset:{(t*18+ks)*1024}", ks)
    for ks in range(NR-1): rdm(ks)
    for ks in range(18):
        if ks + NR - 1 < 18: rdm(ks + NR - 1)
        e.wait(lg=ks)
        for t in range(2):
            e(f"{M16} {vr(32+4*t)}, {vr(4*ks,4,'a')}, {vr(40+((ks%NR)*2+t)*4)}, {vr(32+4*t) if ks else 0}")
    e("v_lshlrev_b32 v23, 2, v3\ns_nop 7\ns_mov_b64 exec, 0xffff\nds_write_b32 v23, v32 offset:36864\nds_write_b32 v23, v36 offset:36928\ns_mov_b64 exec, -1")
    for n in range(N5):
        for x in wload6(n): emit(x)
    e("s_waitcnt lgkmcnt(0)\ns_barrier")
    setup6()
    e.wait(vm="all")
    if not EARLY: e("s_barrier")
    poll(2, 249)
    e("s_barrier")
    e(f"{Lp6}:")
    globals()["NST"] = nst_main
    e.vm = vm_p6; e.lg = []
    stamp(e)
    def X(t4, ks):
        i = ks*4 + t4
        return vr(4*i, 4, "a") if i < 64 else vr(XV + 4*(i-64))
    XS = OPT.get("xs", (0, 6, 12))
    stamp(e, lvl=4)
    def xdma(i):
        L = []
        if i % 4 == 0: L.append(("s", f"s_add_u32 m0, s32, {i*1024}\n" + ("s_add_u32 s40, s40, 4096" if i else "s_nop 0")))
        L.append(("v", f"buffer_load_dwordx4 v4, s[8:11], s40 offen offset:{(i&3)*1024} sc1 lds", ("xd", sum(1 for b in XS if b <= i) - 1)))
        return L
    X0 = OPT.get("x0", 18)
    for i in range(X0):
        for x in xdma(i): emit(x)
    sqld = [("v", f"buffer_load_dwordx2 {vr(TT+6*tp+2*c,2)}, v6, s[8:11], s37 offen offset:{2048*tp + 128*c} sc1", "q") for tp in range(2) for c in range(3)]
    late = [xdma(i) for i in range(X0, 18)] + [[x] for x in sqld]
    def bread(ks, hb):
        out = []
        for t4 in range(4):
            off = (t4*18 + ks)*1024
            base = (4, 11) if not hb else (12, 13)
            breg = base[0] if off < 36864 else base[1]
            out.append(("l", f"ds_read_b128 {X(t4,ks)}, v{breg} offset:{off % 36864}", ("b", hb, ks)))
        return out
    def const_fill():
        e2 = Em()
        R = [TT+12+t for t in range(4)]
        for t4 in range(4):
            b = TT + 6*(t4 >> 1) + (t4 & 1)
            e2(f"v_add_f32 v{R[t4]}, v{b}, v{b+2}\nv_add_f32 v{R[t4]}, v{R[t4]}, v{b+4}")
        red_g(e2, R, [TMP+t for t in range(4)])
        for r in R: e2(f"v_mul_f32 v{r}, {fhex(1/576)}, v{r}")
        for r in R: e2(f"v_add_f32 v{r}, {fhex(EPS)}, v{r}")
        for r in R: e2(f"v_rsq_f32 v{r}, v{r}")
        e2("s_nop 0")
        for t4 in range(4): gelu_consts(e2, R[t4], KC+t4, KC+4+t4, KC+8+t4)
        return [("wv", "q")] + [("s", l.strip()) for l in e2.L]
    def gelu_fill(ft):
        L = []
        for t4 in range(4):
            L += [("s", l) for l in gelu4(TT+4*t4, TMP, KC+t4, KC+4+t4, KC+8+t4)]
            L += [("s", f"v_cvt_pk_bf16_f32 v{PK+2*t4}, v{TMP}, v{TMP+1}"), ("s", f"v_cvt_pk_bf16_f32 v{PK+2*t4+1}, v{TMP+2}, v{TMP+3}")]
            L += [("l", f"ds_write_b64 v{8 + (t4>>1)}, {vr(PK+2*t4,2)} offset:{ft*2048 + (t4&1)*18432}", ("h", ft))]
        return L
    def out_fill(b):
        dt = ORD[b]
        L = [("s", f"s_add_u32 s35, s34, {dt*2048}")]
        for tp in range(2):
            for h in range(2):
                a = TT + 4*(2*tp+h)
                L += [("s", f"v_cvt_pk_bf16_f32 v{PK+4*tp+2*h}, v{a}, v{a+1}"), ("s", f"v_cvt_pk_bf16_f32 v{PK+4*tp+2*h+1}, v{a+2}, v{a+3}")]
            L += [("v", f"buffer_store_dwordx4 {vr(PK+4*tp)}, v4, s[8:11], s35 offen offset:{tp*1024} {OPT.get('sc_part','sc1')}", "st")]
            L += [("l", f"ds_write_b128 v14, {vr(PK+4*tp)} offset:{(dt*2+tp)*1024}", "o")]
        return L
    def block(blk, fill, G0=4, G1=66, pre=None, post=None, ramp0=0):
        nf = len(fill); fi = 0
        for ks in range(18):
            n = blk*18 + ks
            lgw = None
            if (blk, ks) in OPT.get("pts", ()): stamp(e, lvl=3)
            if pre:
                for x in pre(ks): emit(x)
                lgw = [("b", False, ks), ("b", True, ks)]
            WG_ = OPT.get("wgrp", 2)
            e.wait(vm=[("w", n+j) for j in range(WG_)] if ks % WG_ == 0 else None, lg=lgw)
            for t4 in range(4):
                d = vr(TT+4*t4) if ks == 17 else vr(AC+4*t4)
                c = vr(AC+4*t4) if ks else "0"
                e(f"{M16} {d}, {vr(RING+4*(n % NPF))}, {X(t4,ks)}, {c}")
                gap = ks*4 + t4
                if ks >= ramp0 and t4 in (1, 3) and st5["n"] < NT and st5["n"] < n + NPF + (t4 == 3):
                    for x in wload6(st5["n"]): emit(x)
                    st5["n"] += 1
                if t4 == 3 and post:
                    for x in post(ks): emit(x)
                if gap >= G0:
                    tgt = min(nf, -(-nf*(gap - G0 + 1) // (G1 - G0)))
                    while fi < tgt: emit(fill[fi]); fi += 1
        assert fi == nf
    AH = 2
    def pre0(ks):
        L = []
        tgt = [ks + AH] if ks else list(range(AH + 1))
        for k in tgt:
            if k < 18:
                if k in XS: L += [("wv", ("xd", XS.index(k))), ("s", "s_barrier"), ("st", 4)]
                L += bread(k, False)
        return L
    stamp(e, lvl=4)
    def post0(ks):
        L = []
        for _ in range(3):
            if late: L += late.pop(0)
        return L
    block(0, const_fill(), 36, 66, pre=pre0, post=post0, ramp0=OPT.get("ramp0", 0))
    assert not late
    stamp(e, lvl=4)
    stamp(e)
    if not OPT.get('pts'): stamp(e, lvl=3)
    for ft in range(1, 8):
        block(ft, gelu_fill(ft-1), OPT.get('g0', 4), OPT.get('g1', 66))
        if ft in (1, 3, 5, 7) and not OPT.get('pts'): stamp(e, lvl=3)
        if ft in (1, 2): stamp(e, lvl=4)
    e.wait(lg="all")
    e("s_barrier")
    block(8, gelu_fill(7), post=lambda ks: bread(ks, True) if ks < 14 else [])
    stamp(e)
    def pre9(ks):
        L = []
        if ks == 12: L += [("wl", ("h", 8)), ("s", "s_barrier")] + bread(14, True) + bread(15, True)
        if ks == 13: L += bread(16, True) + bread(17, True)
        return L
    if not OPT.get('pts'): stamp(e, lvl=3)
    block(9, gelu_fill(8), 3, 46, pre=pre9)
    if not OPT.get('pts'): stamp(e, lvl=3)
    e2 = Em()
    e2.srd(12, 22, A_)
    e2(f"""s_lshl_b32 s38, s26, 2
s_add_u32 s38, s38, s24
s_mul_i32 s38, s38, 9
s_mul_i32 s39, s3, 3
s_add_u32 s38, s38, s39
s_lshl_b32 s38, s38, 1
s_add_u32 s38, s38, s29
s_lshl_b32 s38, s38, 10
s_add_u32 s38, s38, {PART}
s_mul_i32 s40, s25, {32*1152}
s_lshl_b32 s36, s27, 5
s_add_u32 s40, s40, s36
v_bfe_u32 v5, v3, 2, 1
v_lshlrev_b32 v5, 4, v5
v_lshrrev_b32 v7, 3, v3
v_lshl_add_u32 v5, v7, 2, v5
v_and_b32 v7, 3, v3
v_add_u32 v5, v5, v7
v_mul_u32_u24 v6, 1152, v5
v_lshl_add_u32 v6, v2, 3, v6
v_add_u32 v7, 9216, v6
v_add_u32 v11, 4096, v4
s_mul_i32 s41, s24, 18432
s_mul_i32 s42, s3, 6144
s_add_u32 s41, s41, s42
s_lshl_b32 s42, s29, 10
s_add_u32 s41, s41, s42
v_add_u32 v9, s41, v4
v_mov_b32 v250, 1
v_mov_b32 v251, 0
s_lshl_b32 s44, s26, 9
s_lshl_b32 s45, s24, 5
s_add_u32 s45, s45, s44
v_and_b32 v247, 7, v1
v_lshlrev_b32 v247, 2, v247
v_add_u32 v247, s45, v247
s_lshl_b32 s45, s3, 5
s_add_u32 s44, s44, s45
s_lshl_b32 s45, s28, 2
s_add_u32 s44, s44, s45
s_add_u32 s44, s44, {FLG + 3*8192}
s_mov_b32 s45, {FLG + 3*8192}""")
    e2(f"s_mov_b32 s48, s8\ns_mov_b32 s49, s9\ns_mov_b32 s51, 0x00020000")
    for i in range(7):
        e2(f"s_add_u32 s42, s28, {i+1}\ns_and_b32 s42, s42, 7\ns_mul_i32 s42, s42, {A_}\ns_add_u32 s{52+i}, s42, s38")
    setup7 = [("s", l.strip()) for l in e2.L] + [("s", f"s_cmp_eq_u32 s3, 3\ns_cselect_b32 s50, 0, {WS_SIZE}")]
    def flag_store(off):
        return [("s", "s_mov_b64 exec, 1"), ("v", f"buffer_store_dword v250, v251, s[8:11], s44 offen offset:{off} sc1", "f"), ("s", "s_mov_b64 exec, -1")]
    def poll7(off, first_tag=None):
        Lp = e.label("poll"); Ld = e.label("pd")
        if first_tag:
            e.wait(vm=first_tag)
            e(f"v_cmp_ne_u32 vcc, 1, v252\ns_cbranch_vccz {Ld}")
        e(f"""s_mov_b32 s47, 0x40000
{Lp}:
buffer_load_dword v252, v247, s[8:11], s45 offen offset:{off} sc1
s_waitcnt vmcnt(0)
v_cmp_ne_u32 vcc, 1, v252
s_cbranch_vccz {Ld}
s_sub_u32 s47, s47, 1
s_cbranch_scc0 {Lp}
{Ld}:""")
        if not first_tag: e.vm = []
    FK, PKS, G2 = OPT.get("fk", 1), OPT.get("pks", 14), OPT.get("g2", 28)
    def slot(i): return RING + 4*((292 + i) % NPF)
    def rload(i):
        return [("v", f"buffer_load_dwordx4 {vr(slot(i))}, v4, s[48:51], s{52 + i % 7} offen offset:{2048*(i//7)} sc1", ("r", i))]
    def chk(off):
        Lp = e.label("poll"); Ld = e.label("pd")
        return [("wv", "pa"), ("s", f"""v_cmp_ne_u32 vcc, 1, v252
s_cbranch_vccz {Ld}
s_mov_b32 s47, 0x40000
{Lp}:
buffer_load_dword v252, v247, s[8:11], s45 offen offset:{off} sc1
s_waitcnt vmcnt(0)
v_cmp_ne_u32 vcc, 1, v252
s_cbranch_vccz {Ld}
s_sub_u32 s47, s47, 1
s_cbranch_scc0 {Lp}
{Ld}:""")]
    def pa(off): return [("v", f"buffer_load_dword v252, v247, s[8:11], s45 offen offset:{off} sc1", "pa")]
    S = dict(sigA=13*18+1, paA=15*18+10, chkA=16*18, sigB=16*18+1, paB=16*18+14, chkB=17*18, stepB=2)
    S.update(OPT.get("sched", {}))
    ev_pre = {}
    def add(pos, L): ev_pre.setdefault(pos, []).extend(L)
    add(S["sigA"], [("wv", ("stf", 3))] + flag_store(0))
    add(S["paA"], pa(0)); add(S["chkA"], None or [("chk", 0)])
    add(S["sigB"], [("wv", ("stf", 6))] + flag_store(128))
    add(S["paB"], pa(128)); add(S["chkB"], [("chk", 128)])
    ev_post = {}
    for i in range(7): ev_post.setdefault(max(S["chkA"], 292) + i, []).extend(rload(i))
    for i in range(7): ev_post.setdefault(min(S["chkB"] + S["stepB"]*i, 323), []).extend(rload(7 + i))
    for dt in range(1, 9):
        fill = out_fill(dt-1)
        if dt == 1: fill = fill + setup7
        if dt in (3, 6): fill = [(x[0], x[1], ("stf", dt)) if x[0] == "v" else x for x in fill]
        def pre(ks, b=9+dt):
            L = []
            for x in ev_pre.get(b*18 + ks, []): L += chk(x[1]) if x[0] == "chk" else [x]
            return L
        post = lambda ks, b=9+dt: ev_post.get(b*18 + ks, [])
        block(9+dt, fill, 4, 66 if dt == 1 else G2, pre=pre, post=post)
        if dt in (1, 2, 4, 6, 8) and not OPT.get('pts'): stamp(e, lvl=3)
    stamp(e)
    e("s_nop 7")
    for x in out_fill(8): emit(x)
    def accum(x, a): e(f"v_lshlrev_b32 v8, 16, v{x}\nv_and_b32 v5, 0xffff0000, v{x}\nv_add_f32 v{a}, v{a}, v8\nv_add_f32 v{a+1}, v{a+1}, v5")
    for k in range(3):
        for j in range(4):
            x = BASE + 4*k + j; a = 16 + 8*k + 2*j
            e(f"v_lshlrev_b32 v{a}, 16, v{x}\nv_and_b32 v{a+1}, 0xffff0000, v{x}")
    e.wait(vm="st", lg="all")
    for x in flag_store(256): emit(x)
    Lep = e.label("ep")
    e(f"s_barrier\ns_cmp_eq_u32 s3, 3\ns_cbranch_scc1 {Lep}")
    for k in range(3): e.lgop(f"ds_read_b128 {vr(48+4*k)}, v9 offset:{2048*k}", "p")
    for i in range(14):
        for j in range(4): accum(slot(i) + j, 16 + 8*(i // 7) + 2*j)
    e.wait(lg="all")
    for k in range(3):
        for j in range(4): accum(48 + 4*k + j, 16 + 8*k + 2*j)
    def fin(k):
        for j in range(4): e(f"v_cvt_pk_bf16_f32 v{48+4*k+j}, v{16+8*k+2*j}, v{17+8*k+2*j}")
        e(f"buffer_store_dwordx2 {vr(48+4*k,2)}, v6, s[12:15], s40 offen offset:{32*k} {OPT.get('sc_out','')}\nbuffer_store_dwordx2 {vr(50+4*k,2)}, v7, s[12:15], s40 offen offset:{32*k} {OPT.get('sc_out','')}")
    stamp(e, lvl=2)
    poll7(256)
    stamp(e)
    for sl in range(7):
        e.vmop(f"buffer_load_dwordx4 {vr(64+4*sl)}, v11, s[8:11], s{52+sl} offen sc1", sl)
    fin(0); fin(1)
    e.vm += ["o"]*4
    for sl in range(7):
        e.wait(vm=sl)
        for j in range(4): accum(64 + 4*sl + j, 32 + 2*j)
    fin(2)
    e(f"{Lep}:")
    epi(e, name, Lend, 3, 512, 256)
    e.add_launch(name, 256, lds=147456)

def build(stamp=False, only=None, **opt):
    global STAMP, OPT
    STAMP = stamp; OPT = opt
    e = Em()
    e.L.append(".p2align 8\ncode_begin:\ns_nop 0")
    for k in (only or ["k1", "k3"]): globals()[k](e)
    e.L.append("code_end:\ns_nop 0")
    return finish(e)

if __name__ == "__main__":
    import sys, hazard
    out = "sequential_preLN__spectral_gfnet__mixer_s_mlp__prompt.s"
    txt = build(False)
    open(out, "w").write(txt); open("cur.s", "w").write(txt)
    errs = hazard.check(txt.split("\n")) + hazard.check_async(txt.split("\n"))
    print("\n".join(errs[:40])); print(len(errs), "hazards;", len(txt), "bytes")
    open("stamp.s", "w").write(build(True))
```

```python
from common import *
import common
common.castab = lambda: ''
STAMP = False
STAMP_OFF = 200 << 20
OPT = {}
FLG = WS_END
FLG_SZ = 72*1024
FLG2 = FLG + 49152 + 1024
NST = 0
M16 = "v_mfma_f32_16x16x32_bf16"

def stamp(e, first=False, lvl=0):
    global NST
    if not STAMP: return
    if (lvl != OPT.get("lvl", 0) and not (lvl == -1 and OPT.get("lvl", 0) < 2)) and not first: return
    assert NST < 15
    e(f"{'s_memtime' if (lvl == 3) else 's_memrealtime'} s[{60+2*NST}:{61+2*NST}]")
    if not first: e("s_waitcnt lgkmcnt(0)"); e.lg = []
    NST += 1

def pro(e, name, ngrid, x=False, T=False, extra=()):
    global NST
    e.begin(name)
    Lend = e.label("end")
    e(f"s_cmp_ge_u32 s2, {ngrid}\ns_cbranch_scc1 {Lend}")
    NST = 0
    stamp(e, True)
    e("s_load_dwordx2 s[4:5], s[0:1], 80")
    if x: e("s_load_dwordx2 s[6:7], s[0:1], 0")
    for (sreg, off) in extra: e(f"s_load_dwordx2 s[{sreg}:{sreg+1}], s[0:1], {off}")
    if T:
        e("s_getpc_b64 s[16:17]\ns_add_u32 s16, s16, castab@rel32@lo+4\ns_addc_u32 s17, s17, castab@rel32@hi+12")
        e("s_and_b32 s17, s17, 0xffff\ns_mov_b32 s18, 663552\ns_mov_b32 s19, 0x00020000")
    e("""v_lshrrev_b32 v5, 6, v0
v_and_b32 v1, 63, v0
v_readfirstlane_b32 s3, v5
v_lshrrev_b32 v2, 4, v1
v_and_b32 v3, 15, v1
v_lshlrev_b32 v4, 4, v1""")
    return Lend
def burn(e, n):
    L = e.label("burn")
    e(f"s_mov_b32 s58, {n}\n{L}:")
    for i in range(32): e(f"v_fma_f32 v{40+i%8}, v{40+i%8}, v{40+i%8}, v{40+i%8}")
    e(f"s_sub_u32 s58, s58, 1\ns_cmp_lg_u32 s58, 0\ns_cbranch_scc1 {L}")

def pro2(e, x=False):
    e("s_waitcnt lgkmcnt(0)")
    e.srd(8, 4, WS_SIZE)
    if x: e.srd(12, 6, A_)

def dump(e, slot):
    if STAMP:
        e(f"""s_waitcnt vmcnt(0) lgkmcnt(0)
s_mov_b64 exec, 1
s_memrealtime s[90:91]
s_lshl_b32 s92, s2, 2
s_add_u32 s92, s92, s3
s_lshl_b32 s92, s92, 7
s_add_u32 s92, s92, {STAMP_OFF + slot*(1<<20)}
s_waitcnt lgkmcnt(0)
v_mov_b32 v100, 0""")
        for k in range(8):
            for j in range(4): e(f"v_mov_b32 v{96+j}, s{60+4*k+j}")
            e(f"buffer_store_dwordx4 v[96:99], v100, s[8:11], s92 offen offset:{16*k}\ns_nop 1")
        e("s_mov_b64 exec, -1")

def epi(e, name, Lend, slot, vgpr, accum):
    dump(e, slot)
    e(f"{Lend}:")
    e.end(name, vgpr, accum, 96)

def red_g(e, regs, tmps):
    for sw in ("v_permlane32_swap_b32", "v_permlane16_swap_b32"):
        for v, t in zip(regs, tmps): e(f"v_mov_b32 v{t}, v{v}")
        e("s_nop 1" if len(regs) < 3 else "s_nop 0")
        for v, t in zip(regs, tmps): e(f"{sw} v{v}, v{t}")
        if len(regs) < 2: e("s_nop 0")
        for v, t in zip(regs, tmps): e(f"v_add_f32 v{v}, v{v}, v{t}")

def sdiv(e, d, q, r, x, tmp):
    m = (1 << 32) // d + 1
    e(f"s_mul_hi_u32 s{q}, s{x}, {m}\ns_mul_i32 s{tmp}, s{q}, {d}\ns_sub_u32 s{r}, s{x}, s{tmp}")

C0 = -2.0*math.sqrt(2.0/math.pi)*math.log2(math.e)
C1 = C0*0.044715
def gelu_consts(e, r, K0, K1, IR):
    e(f"v_rcp_f32 v{IR}, v{r}\nv_mul_f32 v{K0}, {fhex(C0)}, v{r}\nv_mul_f32 v{K1}, v{r}, v{r}\nv_mul_f32 v{K1}, v{K1}, v{r}\nv_mul_f32 v{K1}, {fhex(C1)}, v{K1}")
def gelu4(a, tmp, K0, K1, IR):
    L = []
    L += [f"v_mul_f32 v{tmp+r}, v{a+r}, v{a+r}" for r in range(4)]
    L += [f"v_fma_f32 v{tmp+r}, v{tmp+r}, v{K1}, v{K0}" for r in range(4)]
    L += [f"v_mul_f32 v{tmp+r}, v{tmp+r}, v{a+r}" for r in range(4)]
    L += [f"v_exp_f32 v{tmp+r}, v{tmp+r}" for r in range(4)]
    L += [f"v_fma_f32 v{tmp+r}, v{tmp+r}, v{IR}, v{IR}" for r in range(4)]
    L += [f"v_rcp_f32 v{tmp+r}, v{tmp+r}" for r in range(4)]
    L += [f"v_mul_f32 v{tmp+r}, v{tmp+r}, v{a+r}" for r in range(4)]
    return L


def tgen(e, j0s, TB, ST, us=(0, 1, 2), hook=None, agpr=None, init=None):
    S0, S1, FA, C1r, C32r, P0, K8, Q = ST, ST+8, ST+16, ST+17, ST+18, ST+19, ST+20, ST+21
    if (0 in us) or init: e(f"s_lshl_b32 s17, s{j0s}, 4\nv_add_u32 v{FA}, s17, v3\nv_cvt_f32_u32 v{FA}, v{FA}\nv_lshlrev_b32 v{Q+1}, 3, v2\nv_cvt_f32_u32 v{Q+1}, v{Q+1}\nv_mov_b32 v{K8}, 0x3e000000")
    for u in us:
        if u: e(f"v_add_f32 v{FA}, 0x41800000, v{FA}")
        e(f"""v_mul_f32 v{C1r}, {fhex(1/576)}, v{FA}
v_mul_f32 v{C32r}, {fhex(1/18)}, v{FA}
v_mul_f32 v{P0}, v{FA}, v{Q+1}
v_floor_f32 v{C32r}, v{C32r}
v_cos_f32 v{C1r}, v{C1r}
v_fmamk_f32 v{C32r}, v{C32r}, {fhex(-18.0)}, v{FA}
v_mul_f32 v{C32r}, {fhex(1/18)}, v{C32r}""")
        sd = [(S0, 0), (S0+1, 1), (S1, 32), (S1+1, 33)]
        for r, k in sd: e(f"v_fmamk_f32 v{r}, v{FA}, {fhex(float(k))}, v{P0}")
        e(f"v_cos_f32 v{C32r}, v{C32r}")
        for r, k in sd: e(f"v_mul_f32 v{r+2}, {fhex(1/576)}, v{r}")
        e(f"v_add_f32 v{C1r}, v{C1r}, v{C1r}")
        for r, k in sd: e(f"v_floor_f32 v{r+2}, v{r+2}")
        e(f"v_add_f32 v{C32r}, v{C32r}, v{C32r}")
        for r, k in sd: e(f"v_fmamk_f32 v{r}, v{r+2}, {fhex(-576.0)}, v{r}")
        for r, k in sd: e(f"v_fmamk_f32 v{r}, v{r}, {fhex(1/576)}, v{K8}")
        for r, k in sd: e(f"v_sin_f32 v{r}, v{r}")
        e("s_nop 0")
        for i in range(2, 8):
            for S in (S0, S1): e(f"v_fma_f32 v{S+i}, v{C1r}, v{S+i-1}, -v{S+i-2}")
        for ks in range(9):
            S = S0 if ks % 2 == 0 else S1; O = S1 if ks % 2 == 0 else S0
            if ks >= 2:
                for i in range(8): e(f"v_fma_f32 v{S+i}, v{C32r}, v{O+i}, -v{S+i}")
            if agpr is None:
                for m in range(4): e(f"v_cvt_pk_bf16_f32 v{TB+(ks*3+u)*4+m}, v{S+2*m}, v{S+2*m+1}")
            else:
                for m in range(4): e(f"v_cvt_pk_bf16_f32 v{ST+24+m}, v{S+2*m}, v{S+2*m+1}")
                for m in range(4): e(f"v_accvgpr_write_b32 a{agpr+4*ks+m}, v{ST+24+m}")
            if hook: hook(u, ks)

def pack_job(e, ldflag, stflag):
    e(f"s_mul_i32 s40, s35, {3*73728}\ns_add_u32 s36, s36, s40")
    e("s_mul_i32 s40, s34, s33\ns_mul_i32 s41, s35, 384\ns_add_u32 s40, s40, s41")
    e("""v_lshrrev_b32 v6, 3, v1
v_mul_lo_u32 v6, v6, s33
v_and_b32 v7, 7, v1
v_lshl_add_u32 v6, v7, 4, v6
s_lshl_b32 s41, s33, 3
s_mul_i32 s39, s39, s33
s_mul_i32 s42, s3, 12288""")
    for f in range(4):
        for it in range(3):
            e(f"s_add_u32 m0, s42, {it*4096 + f*1024 - it*128}")
            e(f"s_add_u32 s40, s40, s{39 if f == 2 else 41}" if (it == 0 and f) else "s_nop 0")
            e.vmop(f"buffer_load_dwordx4 v6, s[12:15], s40 offen offset:{128*it} {ldflag} lds", ("d", 0))
    e("""v_mul_lo_u32 v7, v2, s37
v_lshrrev_b32 v8, 2, v3
v_add_u32 v7, v7, v8
v_lshlrev_b32 v7, 7, v7
v_and_b32 v8, 3, v3
v_lshl_add_u32 v7, v8, 3, v7
v_add_u32 v7, s42, v7
s_lshl_b32 s43, s38, 7
v_add_u32 v8, s43, v7
v_add_u32 v9, 18432, v4
v_add_u32 v10, 36864, v4
v_add_u32 v11, 55296, v4""")
    nst_save = NST; globals()["NST"] = 1
    stamp(e, lvl=-1)
    for it in range(3):
        e.wait(vm=("d", it))
        if it == 0: stamp(e, lvl=-1)
        for tt in range(4):
            o = 16 + 16*it + 4*tt
            e.lgop(f"ds_read_b64_tr_b16 {vr(o,2)}, v7 offset:{it*4096 + 32*tt}", (it, tt))
            e.lgop(f"ds_read_b64_tr_b16 {vr(o+2,2)}, v8 offset:{it*4096 + 32*tt}", (it, tt))
        for tt in range(4):
            e.wait(lg=(it, tt))
            e.vmop(f"buffer_store_dwordx4 {vr(16 + 16*it + 4*tt)}, v{(4,9,10,11)[tt]}, s[8:11], s36 offen {stflag}", "st")
        if it < 2: e("s_add_u32 s36, s36, 73728")
    globals()["NST"] = nst_save
    e.vm = []; e.lg = []

def code_srd(e, d, label, nbytes):
    e(f"s_getpc_b64 s[{d}:{d+1}]\ns_add_u32 s{d}, s{d}, {label}@rel32@lo+4\ns_addc_u32 s{d+1}, s{d+1}, {label}@rel32@hi+12")
    e(f"s_and_b32 s{d+1}, s{d+1}, 0xffff\ns_mov_b32 s{d+2}, {nbytes}\ns_mov_b32 s{d+3}, 0x00020000")

def touch(e, srd, sreg, nbytes, vaddr, vd, stride=64):
    n = -(-nbytes // stride); i = 0
    while n > 0:
        if n < 64: e(f"s_mov_b32 exec_lo, {hex((1 << min(n,32)) - 1)}\ns_mov_b32 exec_hi, {hex((1 << max(n-32,0)) - 1)}")
        e(f"buffer_load_dword v{vd}, v{vaddr}, s[{srd}:{srd+3}], s{sreg} offen")
        n -= 64; i += 1
        if n > 0: e(f"s_add_u32 s{sreg}, s{sreg}, {64*stride}")
    e("s_mov_b64 exec, -1")

def k1(e):
    name = "k1_kernel"
    N3 = 0
    NS = 189
    Lend = pro(e, name, 256 + NS, x=True, extra=((20, 8), (22, 16), (24, 32), (26, 40), (28, 48), (30, 56), (18, 64)))
    def cpf0():
        code_srd(e, 52, "code_begin", "k3_kernel-code_begin")
        e("s_lshr_b32 s44, s2, 3\ns_lshl_b32 s44, s44, 2\ns_add_u32 s44, s44, s3\ns_and_b32 s44, s44, 15\ns_lshl_b32 s44, s44, 10")
        if OPT.get("cpf0", 1) == 3: e("s_cmp_lt_u32 s2, 64\ns_cselect_b32 s54, s54, 0")
        e.vmop("buffer_load_dwordx4 v[196:199], v4, s[52:55], s44 offen", "c")
    if OPT.get("cpf0", 1) in (1, 3): cpf0()
    if OPT.get("burn1"): burn(e, OPT["burn1"])
    Lside = e.label("side"); Lst = e.label("stats"); Lep = e.label("ep")
    ACC, BF, NB, TB = 16, 64, 3, 88
    def acc(h, u, t): return ACC + h*24 + (u*2+t)*4
    e(f"s_cmp_ge_u32 s2, 256\ns_cbranch_scc1 {Lside}")
    if OPT.get("cpf0", 1) == 2: cpf0()
    e("""s_bfe_u32 s34, s2, 0x20003
s_and_b32 s35, s2, 7
s_lshl_b32 s35, s35, 3
s_lshr_b32 s39, s2, 5
s_add_u32 s35, s35, s39
s_lshr_b32 s36, s35, 5
s_bfe_u32 s37, s35, 0x20003
s_and_b32 s38, s35, 7
s_lshl_b32 s40, s36, 5
s_lshr_b32 s41, s3, 1
s_lshl_b32 s41, s41, 4
s_add_u32 s40, s40, s41
s_lshl_b32 s41, s37, 2
s_add_u32 s40, s40, s41
s_lshl_b32 s40, s40, 5
s_lshl_b32 s41, s38, 2
s_add_u32 s40, s40, s41
v_lshrrev_b32 v5, 3, v1
v_and_b32 v7, 3, v5
v_lshlrev_b32 v7, 5, v7
v_lshrrev_b32 v6, 2, v5
s_and_b32 s41, s3, 1
s_lshl_b32 s41, s41, 1
s_add_u32 s41, s41, s40
v_add3_u32 v6, v6, v7, s41
v_mul_u32_u24 v7, 1152, v6
v_and_b32 v5, 6, v5
v_and_b32 v6, 7, v1
v_xor_b32 v6, v6, v5
v_lshl_add_u32 v7, v6, 4, v7
s_mul_i32 s42, s3, 9216
s_mul_i32 s44, s34, 9
s_mul_i32 s45, s3, 3
s_add_u32 s44, s44, s45""")
    pro2(e, x=True)
    for idx in range(9):
        e(f"s_add_u32 m0, s42, {idx*896}\ns_nop 0")
        e.vmop(f"buffer_load_dwordx4 v7, s[12:15], 0 offen offset:{128*idx} {OPT.get('ld_x','')} lds", "dma")
    e("""v_lshrrev_b32 v13, 3, v3
v_mul_u32_u24 v13, 9216, v13
v_and_b32 v14, 7, v3
v_lshl_add_u32 v13, v14, 7, v13
v_and_b32 v14, 6, v3
v_xor_b32 v14, v14, v2
v_lshl_add_u32 v14, v14, 4, v13
v_xor_b32 v15, 64, v14""")
    e(f"s_cmp_eq_u32 s3, 3\ns_cbranch_scc1 {Lst}")
    vm_save = list(e.vm)
    tgen(e, 44, TB, 16, (1, 2) if OPT.get("k1pre", 0) else (0, 1, 2))
    e(f"""v_lshlrev_b32 v8, 12, v3
v_lshl_add_u32 v8, v2, 4, v8
s_lshl_b32 s50, s44, 16
s_lshr_b32 s51, s38, 2
s_lshl_b32 s51, s51, 1
s_add_u32 s51, s51, s36
s_lshl_b32 s51, s51, 10
s_add_u32 s50, s50, s51
s_lshl_b32 s51, s37, 8
s_add_u32 s50, s50, s51
s_and_b32 s51, s38, 3
s_lshl_b32 s51, s51, 6
s_add_u32 s50, s50, s51
s_add_u32 s50, s50, {UT}
v_lshlrev_b32 v9, 4, v2
v_lshlrev_b32 v10, 31, v3
v_or_b32 v10, 1.0, v10""")
    stamp(e)
    e.wait(vm="dma")
    e("s_barrier")
    stamp(e)
    def rd(ks):
        for t in range(2):
            e.lgop(f"ds_read_b128 {vr(BF + ((ks % NB)*2 + t)*4)}, v{14 + (ks & 1)} offset:{t*18432 + (ks >> 1)*1024}", ("b", ks))
    for ks in range(NB-1): rd(ks)
    for ks in range(18):
        if ks + NB - 1 < 18: rd(ks + NB - 1)
        e.wait(lg=("b", ks))
        for u in range(3):
            for t in range(2):
                d = vr(acc(ks // 9, u, t))
                e(f"{M16} {d}, {vr(BF + ((ks % NB)*2 + t)*4)}, {vr(TB + ((ks % 9)*3 + u)*4)}, {d if ks % 9 else 0}")
    stamp(e)
    e("s_barrier")
    stamp(e)
    e.lgop("ds_read_b128 v[76:79], v9 offset:36864", "r"); e.lgop("ds_read_b128 v[80:83], v9 offset:36928", "r")
    e("s_nop 3")
    for u in range(3):
        for t in range(2):
            for r in range(4): e(f"v_fmac_f32 v{acc(0,u,t)+r}, v{acc(1,u,t)+r}, v10")
        e.wait(lg="all")
        for t in range(2):
            for r in range(4): e(f"v_mul_f32 v{acc(0,u,t)+r}, v{acc(0,u,t)+r}, v{76+4*t+r}")
        o = BF + 4*u
        for t in range(2):
            e(f"v_cvt_pk_bf16_f32 v{o+2*t}, v{acc(0,u,t)}, v{acc(0,u,t)+1}\nv_cvt_pk_bf16_f32 v{o+2*t+1}, v{acc(0,u,t)+2}, v{acc(0,u,t)+3}")
        e.vmop(f"buffer_store_dwordx4 {vr(o)}, v8, s[8:11], s50 offen {OPT.get('sc_ut','')}", "st")
        if u < 2: e("s_add_u32 s50, s50, 65536")
    stamp(e)
    if OPT.get("touch34"):
        ts = OPT.get("tstride", 64)
        e.srd(48, 28, 5308416); e.srd(52, 30, 5308416)
        e(f"v_mul_u32_u24 v11, {ts}, v1\ns_mul_i32 s38, s2, 3\ns_add_u32 s38, s38, s3\ns_mul_i32 s38, s38, 6912\ns_mov_b32 s39, s38")
        dump(e, 1)
        touch(e, 48, 38, 6912, 11, 16, ts); touch(e, 52, 39, 6912, 11, 20, ts)
        e("s_endpgm")
    e(f"s_branch {Lep}")
    e(f"{Lst}:")
    e.vm = vm_save; e.lg = []
    def cpf():
        code_srd(e, 52, "code_begin", "code_end-code_begin")
        e("s_lshr_b32 s44, s2, 3\ns_mul_i32 s44, s44, 3072")
        for i in range(3): e.vmop(f"buffer_load_dwordx4 v[{100+4*i}:{103+4*i}], v4, s[52:55], s44 offen offset:{1024*i}", "c")
    if OPT.get("cpf", 1) == 1: cpf()
    if OPT.get("tlb"):
        st_ = OPT["tlb"]
        e.srd(48, 28, 5308416); e.srd(52, 30, 5308416); e.srd(56, 18, A_)
        e(f"v_lshlrev_b32 v11, {st_}, v1")
        n = -(-(FLG + FLG_SZ) >> st_)
        for i in range(-(-n // 64)):
            e(f"s_mov_b32 s44, {i << (st_ + 6)}")
            e.vmop("buffer_load_dword v44, v11, s[8:11], s44 offen", "t")
        for sr in (48, 52, 56): e.vmop(f"buffer_load_dword v44, v11, s[{sr}:{sr+3}], 0 offen", "t")
    for i in range(4): e(f"v_mov_b32 v{36+i}, 0x3f803f80")
    e("v_lshrrev_b32 v8, 2, v3\nv_and_b32 v9, 3, v3")
    e.wait(vm="dma")
    e("s_barrier")
    if OPT.get("cpf", 1) == 2: cpf()
    NR = 6
    def rds(f): e.lgop(f"ds_read_b128 {vr(64+4*(f%NR))}, v{14 + (f & 1)} offset:{(f // 18)*18432 + ((f % 18) >> 1)*1024}", f)
    for f in range(NR-1): rds(f)
    for f in range(36):
        if f + NR - 1 < 36: rds(f + NR - 1)
        e.wait(lg=f)
        t = f // 18; x = vr(64 + 4*(f % NR))
        e(f"{M16} {vr(16+8*t)}, {x}, v[36:39], {vr(16+8*t) if f % 18 else 0}")
        e(f"{M16} {vr(20+8*t)}, {x}, {x}, {vr(20+8*t) if f % 18 else 0}")
    e("v_cmp_eq_u32 s[40:41], 1, v9\nv_cmp_eq_u32 s[42:43], 2, v9\nv_cmp_eq_u32 s[46:47], 3, v9\nv_cmp_eq_u32 s[48:49], v8, v2\ns_nop 4")
    for b in (16, 20, 24, 28):
        e(f"v_cndmask_b32 v{b}, v{b}, v{b+1}, s[40:41]\nv_cndmask_b32 v{b}, v{b}, v{b+2}, s[42:43]\nv_cndmask_b32 v{b}, v{b}, v{b+3}, s[46:47]")
    e(f"v_mov_b32 v32, {fhex(1/576)}")
    for t in range(2):
        b = 16 + 8*t
        e(f"""v_mul_f32 v{b}, v32, v{b}
v_mul_f32 v{b+1}, v{b}, v{b}
v_fma_f32 v{b+4}, v{b+4}, v32, -v{b+1}
v_max_f32 v{b+4}, 0, v{b+4}
v_add_f32 v{b+4}, {fhex(EPS)}, v{b+4}
v_rsq_f32 v{b+4}, v{b+4}""")
    Lns = e.label("nost")
    e(f"""v_lshlrev_b32 v33, 2, v3
s_lshl_b32 s45, s35, 7
s_add_u32 s45, s45, {MX}
s_mov_b64 exec, s[48:49]
ds_write_b32 v33, v20 offset:36864
ds_write_b32 v33, v28 offset:36928
s_cmp_lg_u32 s34, 0
s_cbranch_scc1 {Lns}
buffer_store_dword v16, v33, s[8:11], s45 offen
buffer_store_dword v24, v33, s[8:11], s45 offen offset:64
{Lns}:
s_waitcnt lgkmcnt(0)
s_barrier
s_branch {Lep}""")
    e(f"{Lside}:")
    e.vm = []; e.lg = []
    Lwt, Lrm, L2, Lgo = [e.label(x) for x in ("wt", "rm", "w2", "go")]
    L3, Lgo2, Lpk, Lw1 = e.label("w3"), e.label("go2"), e.label("pk"), e.label("wv1")
    e(f"""s_sub_u32 s32, s2, 256
s_cmp_eq_u32 s3, 1
s_cbranch_scc1 {Lw1}
s_cmp_lg_u32 s3, 0
s_cselect_b32 s33, 1, 0
s_cmp_ge_u32 s32, 108
s_cselect_b32 s34, 1, 0
s_or_b32 s33, s33, s34
s_cbranch_scc0 {Lpk}
s_mul_i32 s33, s3, 189
s_add_u32 s33, s33, s32
s_sub_u32 s33, s33, 378
s_add_u32 s34, s32, 270
s_cmp_eq_u32 s3, 0
s_cselect_b32 s32, s34, s33
s_waitcnt lgkmcnt(0)
s_branch {Lwt}
{Lw1}:
s_waitcnt lgkmcnt(0)
s_cmp_lt_u32 s32, 72
s_cbranch_scc1 {Lrm}
s_add_u32 s32, s32, {459 - 72}
s_branch {Lwt}
{Lpk}:""")
    pro2(e)
    e(f"s_cmp_ge_u32 s32, 54\ns_cbranch_scc1 {L2}")
    e.srd(12, 24, 663552)
    e(f"s_mov_b32 s39, {W1P}\ns_branch {Lgo}\n{L2}:\ns_sub_u32 s32, s32, 54")
    e.srd(12, 26, 663552)
    e(f"s_mov_b32 s39, {W2P}\n{Lgo}:")
    sdiv(e, 3, 34, 35, 32, 40)
    e("s_mov_b32 s33, 1152\ns_lshl_b32 s36, s34, 10\ns_add_u32 s36, s36, s39\ns_mov_b32 s37, 8\ns_mov_b32 s38, 4\ns_mov_b32 s39, 8\ns_lshl_b32 s34, s34, 5")
    pack_job(e, OPT.get("ld_p12", "nt"), OPT.get("sc_p12", "sc1"))
    e(f"s_branch {Lep}")
    if N3:
        e(f"{L3}:")
        e.srd(12, 28, 5308416); sdiv(e, 24, 34, 35, 32, 40)
        e(f"s_mov_b32 s33, 9216\ns_lshl_b32 s36, s34, 10\ns_add_u32 s36, s36, {W3P}\ns_mov_b32 s37, 8\ns_mov_b32 s38, 4\ns_mov_b32 s39, 8\ns_lshl_b32 s34, s34, 5")
        pack_job(e, OPT.get("ld_pk", "nt"), OPT.get("sc_pk", "sc1"))
        e(f"s_branch {Lep}")
    e(f"{Lrm}:")
    e.srd(8, 4, WS_SIZE)
    e.srd(12, 26, 663552)
    e("""v_lshrrev_b32 v6, 3, v1
v_mul_u32_u24 v7, 1152, v6
v_and_b32 v8, 7, v1
v_lshl_add_u32 v7, v8, 4, v7
s_mul_i32 s33, s32, 9216
s_mov_b32 s34, 0x3f803f80
v_mov_b32 v9, 0""")
    for m in range(9): e.vmop(f"buffer_load_dwordx4 {vr(16+4*m)}, v7, s[12:15], s33 offen offset:{128*m}", m)
    Lnz = e.label("nz")
    e(f"s_cmp_ge_u32 s32, 72\ns_cbranch_scc1 {Lnz}\nv_mov_b32 v56, 0\nv_mov_b32 v57, 0\nv_mov_b32 v58, 0\nv_mov_b32 v59, 0\ns_lshl_b32 s38, s32, 10\ns_add_u32 s38, s38, {FLG}")
    e(f"buffer_store_dwordx4 v[56:59], v4, s[8:11], s38 offen\n{Lnz}:")
    e.wait(vm="all")
    for j in range(36): e(f"v_dot2_f32_bf16 v9, v{16+j}, s34, v9")
    e(f"""s_nop 3
v_add_f32_dpp v9, v9, v9 quad_perm:[1,0,3,2] row_mask:0xf bank_mask:0xf
s_nop 1
v_add_f32_dpp v9, v9, v9 quad_perm:[2,3,0,1] row_mask:0xf bank_mask:0xf
s_nop 1
v_add_f32_dpp v9, v9, v9 row_half_mirror row_mask:0xf bank_mask:0xf
v_mul_f32 v9, {fhex(1/576)}, v9
v_cvt_pk_bf16_f32 v10, v9, v9
v_and_b32 v11, 0xffff0000, v10
v_sub_f32 v9, v9, v11
v_cvt_pk_bf16_f32 v9, v9, v9
v_lshlrev_b32 v6, 1, v6
s_lshl_b32 s33, s32, 8
s_add_u32 s33, s33, {W2P + 36*18432}
v_cmp_eq_u32 vcc, 0, v8
s_nop 1
s_and_saveexec_b64 s[36:37], vcc
buffer_store_short v10, v6, s[8:11], s33 offen
buffer_store_short v9, v6, s[8:11], s33 offen offset:16
s_branch {Lep}""")
    e(f"{Lwt}:")
    e.srd(8, 4, WS_SIZE)
    sdiv(e, 9, 33, 34, 32, 40)
    e("""s_lshr_b32 s35, s33, 4
s_and_b32 s33, s33, 15
v_lshrrev_b32 v6, 5, v1
s_lshl_b32 s33, s33, 2
v_add_u32 v6, s33, v6
v_and_b32 v7, 31, v1
s_lshl_b32 s34, s34, 5
v_add_u32 v7, s34, v7
v_mul_u32_u24 v8, 578, v6
v_lshl_add_u32 v8, v7, 1, v8
v_add_u32 v8, 2, v8
s_mul_i32 s36, s35, 147968""")
    e.srd(12, 20, 1183744); e.srd(16, 22, 1183744)
    for gg in range(2):
        for tk in range(2):
            for r in range(4):
                i = gg*16 + tk*4 + r
                e(f"s_add_u32 s37, s36, {36992*(16*tk+r) + 1156*gg}")
                e.vmop(f"buffer_load_ushort v{16+i}, v8, s[12:15], s37 offen {OPT.get('ld_w','')}", gg)
                e.vmop(f"buffer_load_ushort v{24+i}, v8, s[16:19], s37 offen {OPT.get('ld_w','')}", gg)
    e(f"""v_lshlrev_b32 v9, 13, v7
v_lshrrev_b32 v10, 4, v6
v_lshl_add_u32 v9, v10, 11, v9
v_and_b32 v10, 15, v6
v_lshl_add_u32 v9, v10, 5, v9
s_lshl_b32 s36, s35, 9
s_add_u32 s36, s36, {WT}""")
    for gg in range(2):
        e.wait(vm=gg)
        for i in range(8): e(f"v_lshl_or_b32 v{16+16*gg+i}, v{24+16*gg+i}, 16, v{16+16*gg+i}")
        e.vmop(f"buffer_store_dwordx4 {vr(16+16*gg)}, v9, s[8:11], s36 offen offset:{64*gg} {OPT.get('sc_wt','')}", "st")
        e.vmop(f"buffer_store_dwordx4 {vr(20+16*gg)}, v9, s[8:11], s36 offen offset:{64*gg+16} {OPT.get('sc_wt','')}", "st")
    NC = OPT.get("chain", 0)
    if NC:
        e(f"s_cmp_ge_u32 s32, {NC}\ns_cbranch_scc1 {Lep}")
        e.srd(12, 28, 5308416); sdiv(e, 24, 34, 35, 32, 40)
        e(f"s_mov_b32 s33, 9216\ns_lshl_b32 s36, s34, 10\ns_add_u32 s36, s36, {W3P}\ns_mov_b32 s37, 8\ns_mov_b32 s38, 4\ns_mov_b32 s39, 8\ns_lshl_b32 s34, s34, 5")
        pack_job(e, OPT.get("ld_pk", "nt"), OPT.get("sc_pk", "sc1"))
    e(f"{Lep}:")
    epi(e, name, Lend, 1, 200, 200)
    e.add_launch(name, 256 + NS, lds=49152)

def p2x2(e):
    e(f"""s_add_u32 s35, s34, 1
s_sub_u32 s46, 287, s34
s_cmp_eq_u32 s34, 143
s_cselect_b32 s46, 288, s46
s_cselect_b32 s14, 0, {WS_SIZE}
s_cselect_b32 s45, 0, s46
s_lshl_b32 s39, s34, 13
s_lshl_b32 s47, s46, 13
s_lshl_b32 s40, s3, 11
s_add_u32 s40, s40, {WT}
s_add_u32 s39, s39, s40
s_add_u32 s47, s47, s40
s_sub_u32 s47, s47, 8192
s_lshl_b32 s38, s35, 13
s_lshl_b32 s45, s45, 13
s_lshl_b32 s35, s35, 12
s_lshl_b32 s46, s46, 12
s_sub_u32 s36, {576*4096}, s35
s_sub_u32 s37, {576*4096}, s46
v_lshlrev_b32 v6, 5, v1
s_cmp_eq_u32 s3, 1
s_cselect_b32 s48, s36, s35
s_cmp_eq_u32 s3, 2
s_cselect_b32 s48, s46, s48
s_cmp_eq_u32 s3, 3
s_cselect_b32 s48, s37, s48
s_cselect_b32 s14, s14, {WS_SIZE}
s_lshl_b32 s49, s3, 12
s_add_u32 m0, s49, 16384""")
    pro2(e)
    e("s_mov_b32 s12, s8\ns_mov_b32 s13, s9\ns_mov_b32 s15, 0x00020000")
    P, Q, WV, RE, IM, PR, PI = (16, 168), (32, 184), (48, 200), (152, 208), (160, 216), (8, 224), (12, 228)
    for f in range(4): e.vmop(f"buffer_load_dwordx4 v4, s[12:15], s48 offen offset:{f*1024} lds", "d")
    for c in range(2):
        e.vmop(f"buffer_load_dwordx4 {vr(WV[c])}, v6, s[8:11], s{(39,47)[c]} offen", ("w", c))
        e.vmop(f"buffer_load_dwordx4 {vr(WV[c]+4)}, v6, s[8:11], s{(39,47)[c]} offen offset:16", ("w", c))
    C64, S64, N64 = 56, 64, 72
    C32, S32, N32 = 80, 88, 96
    TC1, TS1, TC2, TS2 = 104, 112, 120, 128
    TMP = 136
    e("""s_lshl_b32 s40, s3, 4
v_add_u32 v7, s40, v3
v_cvt_f32_u32 v7, v7
v_lshlrev_b32 v5, 2, v2
v_cvt_f32_u32 v5, v5
v_cvt_f32_u32 v6, v3
s_mov_b32 s41, 0x80008000
s_brev_b32 s42, 1
v_and_b32 v0, 1, v3
v_mul_lo_u32 v0, v0, s41""")
    e(f"v_mul_f32 v8, {fhex(1/64)}, v7\nv_mul_f32 v9, v5, v8")
    for i in range(8): e(f"v_fmamk_f32 v{TMP+i}, v8, {fhex(float(16*(i>>2) + (i&3)))}, v9")
    for i in range(8): e(f"v_fract_f32 v{TMP+i}, v{TMP+i}")
    for i in range(8): e(f"v_sin_f32 v{TMP+8+i}, v{TMP+i}")
    for i in range(8): e(f"v_cos_f32 v{TMP+i}, v{TMP+i}")
    for m in range(4): e(f"v_cvt_pk_bf16_f32 v{S64+m}, v{TMP+8+2*m}, v{TMP+9+2*m}")
    for m in range(4): e(f"v_cvt_pk_bf16_f32 v{C64+m}, v{TMP+2*m}, v{TMP+1+2*m}")
    for m in range(4): e(f"v_xor_b32 v{N64+m}, s41, v{S64+m}")
    for b in (C64, S64, N64):
        for m in range(4): e(f"v_xor_b32 v{b+4+m}, v0, v{b+m}")
    tw1 = [f"v_mul_f32 v8, {fhex(1/2048)}, v7", "v_mul_f32 v9, v5, v8"]
    tw1 += [f"v_fmamk_f32 v{TC1+i}, v8, {fhex(float(16*(i>>2)+(i&3)))}, v9" for i in range(8)]
    tw1 += [f"v_sin_f32 v{TS1+i}, v{TC1+i}" for i in range(8)] + [f"v_cos_f32 v{TC1+i}, v{TC1+i}" for i in range(8)]
    for l in tw1: e(l)
    m32 = [f"v_mul_f32 v8, {fhex(1/32)}, v6", "v_mul_f32 v9, v5, v8"]
    m32 += [f"v_fmamk_f32 v{TC2+i}, v8, {fhex(float(i))}, v9" for i in range(4)]
    m32 += [f"v_fract_f32 v{TC2+i}, v{TC2+i}" for i in range(4)]
    m32 += [f"v_sin_f32 v{TC2+4+i}, v{TC2+i}" for i in range(4)] + [f"v_cos_f32 v{TC2+i}, v{TC2+i}" for i in range(4)]
    m32 += [f"v_cvt_pk_bf16_f32 v{S32+m}, v{TC2+4+2*m}, v{TC2+5+2*m}" for m in range(2)]
    m32 += [f"v_cvt_pk_bf16_f32 v{C32+m}, v{TC2+2*m}, v{TC2+1+2*m}" for m in range(2)]
    m32 += [f"v_xor_b32 v{b+2+m}, v0, v{b+m}" for b in (C32, S32) for m in range(2)]
    m32 += [f"v_xor_b32 v{b+4+m}, s42, v{b+m}" for b in (C32, S32) for m in range(4)]
    m32 += [f"v_xor_b32 v{N32+m}, s41, v{S32+m}" for m in range(8)]
    tw2 = ["v_cvt_f32_u32 v0, s40", "v_add_f32 v0, v0, v5", f"v_mul_f32 v7, {fhex(1/2048)}, v6", f"v_add_f32 v5, {fhex(16/2048)}, v7",
           "v_mul_f32 v6, v0, v7", "v_mul_f32 v0, v0, v5"]
    tw2 += [f"v_fmamk_f32 v{TC2+r}, v7, {fhex(float(r))}, v6" for r in range(4)]
    tw2 += [f"v_fmamk_f32 v{TC2+4+r}, v5, {fhex(float(r))}, v0" for r in range(4)]
    tw2 += [f"v_sin_f32 v{TS2+i}, v{TC2+i}" for i in range(8)] + [f"v_cos_f32 v{TC2+i}, v{TC2+i}" for i in range(8)]
    def steps(lst, fill=(), per=2, tail=0):
        fill = list(fill)
        n = len(lst[0][1])
        for k in range(n):
            for d, ch in lst:
                A, B = ch[k]
                e(f"{M16} {vr(d)}, {vr(A)}, {vr(B)}, {vr(d) if k else 0}")
                for _ in range(per):
                    if fill: e(fill.pop(0))
        nleft = len(fill)
        for l in fill: e(l)
        if nleft < tail: e(f"s_nop {tail - nleft - 1}")
    def cmul(c, cre, sim, sign):
        L = [f"v_mul_f32 v{TMP+i}, v{RE[c]+i}, v{cre+i}" for i in range(8)]
        L += [f"v_mul_f32 v{TMP+8+i}, v{IM[c]+i}, v{cre+i}" for i in range(8)]
        L += [f"v_fma_f32 v{TMP+i}, {'-' if sign > 0 else ''}v{IM[c]+i}, v{sim+i}, v{TMP+i}" for i in range(8)]
        L += [f"v_fma_f32 v{TMP+8+i}, {'' if sign > 0 else '-'}v{RE[c]+i}, v{sim+i}, v{TMP+8+i}" for i in range(8)]
        L += [f"v_cvt_pk_bf16_f32 v{PR[c]+m}, v{TMP+2*m}, v{TMP+2*m+1}" for m in range(4)]
        L += [f"v_cvt_pk_bf16_f32 v{PI[c]+m}, v{TMP+8+2*m}, v{TMP+9+2*m}" for m in range(4)]
        return L
    def MA(c, s1, s2): return ([(RE[c]+4*ts, [(P[c]+8*ts, C64), (Q[c]+8*ts, s1), (P[c]+8*ts+4, C64+4), (Q[c]+8*ts+4, s1+4)]) for ts in range(2)] +
                               [(IM[c]+4*ts, [(Q[c]+8*ts, C64), (P[c]+8*ts, s2), (Q[c]+8*ts+4, C64+4), (P[c]+8*ts+4, s2+4)]) for ts in range(2)])
    def MB(c): return ([(RE[c]+4*tk, [(C32+4*tk, PR[c]), (S32+4*tk, PI[c])]) for tk in range(2)] + [(IM[c]+4*tk, [(C32+4*tk, PI[c]), (N32+4*tk, PR[c])]) for tk in range(2)])
    def MC(c): return ([(RE[c]+4*ts, [(PR[c], C32+4*ts), (PI[c], N32+4*ts)]) for ts in range(2)] + [(IM[c]+4*ts, [(PI[c], C32+4*ts), (PR[c], S32+4*ts)]) for ts in range(2)])
    def wun(c):
        L = []
        for i in range(8): L += [f"v_lshlrev_b32 v{TC1+i}, 16, v{WV[c]+i}", f"v_and_b32 v{TS1+i}, 0xffff0000, v{WV[c]+i}"]
        return L
    stamp(e, lvl=6)
    for l in m32: e(l)
    e.srd(12, 18, 5308416)
    e("v_lshrrev_b32 v232, 3, v1\nv_and_b32 v233, 7, v1\nv_mul_u32_u24 v232, 9216, v232\nv_lshl_add_u32 v232, v233, 4, v232")
    e("s_lshr_b32 s52, s34, 1\ns_mul_i32 s52, s52, 3\ns_and_b32 s53, s34, 1\ns_lshl_b32 s53, s53, 1\ns_add_u32 s55, s52, s53")
    for k in range(2):
        if k: e("s_add_u32 s55, s55, 1")
        dst = 50 + k; src = 16 + k
        sdiv(e, 27, 52, 53, 55, 49); sdiv(e, 3, 54, 59, 53, 49)
        e(f"""s_mul_i32 s{dst}, s52, 663552
s_lshl_b32 s49, s54, 10
s_add_u32 s{dst}, s{dst}, s49
s_mul_i32 s49, s59, {3*73728}
s_add_u32 s{dst}, s{dst}, s49
s_add_u32 s{dst}, s{dst}, {W3P}
s_lshl_b32 s54, s54, 2
s_add_u32 s54, s54, s3
s_mul_i32 s{src}, s54, {8*9216}
s_mul_i32 s52, s52, 1152
s_add_u32 s{src}, s{src}, s52
s_mul_i32 s59, s59, 384
s_add_u32 s{src}, s{src}, s59""")
    e("s_lshl_b32 s52, s3, 10")
    def early_issue():
        Lne = e.label("noearly")
        for k in range(2):
            if k: e(f"s_bitcmp1_b32 s34, 0\ns_cbranch_scc1 {Lne}")
            for it in range(3):
                e(f"s_add_u32 m0, s52, {49152 + k*12288 + it*4096 - it*128}\ns_nop 0")
                e(f"buffer_load_dwordx4 v232, s[12:15], s{16+k} offen offset:{128*it} {OPT.get('ld_pk','nt')} lds")
        e(f"{Lne}:")
    if OPT.get('t0a', 0): tgen(e, 27, 0, 16, (0,), agpr=216)
    stamp(e, lvl=7)
    e.wait(vm="d")
    e("s_barrier")
    for c in range(2):
        for js in range(2):
            for ts in range(2):
                f = ts*2 + js
                e.lgop(f"ds_read_b128 {vr(P[c]+4*f)}, v4 offset:{16384 + c*8192 + f*1024}", ("u", c))
                e.lgop(f"ds_read_b128 {vr(Q[c]+4*f)}, v4 offset:{16384 + c*8192 + 4096 + f*1024}", ("u", c))
    stamp(e, lvl=7)
    e.wait(lg=("u", 0))
    steps(MA(0, S64, N64), tw2, 2, 8)
    stamp(e, lvl=7)
    e.wait(lg=("u", 1))
    stamp(e, lvl=7)
    steps(MA(1, S64, N64), cmul(0, TC1, TS1, -1), 2, 8)
    e("s_nop 0")
    steps(MB(0), cmul(1, TC1, TS1, -1), 2, 8)
    stamp(e, lvl=7)
    e.wait(vm=("w", 1))
    early_issue()
    stamp(e, lvl=7)
    steps(MB(1), wun(0) + cmul(0, TC1, TS1, +1), 2, 8)
    e("s_lshr_b32 s43, s3, 1\ns_lshl_b32 s43, s43, 10")
    steps(MC(0), wun(1) + cmul(1, TC1, TS1, +1), 2, 8)
    e("s_and_b32 s44, s3, 1\ns_lshl_b32 s44, s44, 3\ns_add_u32 s43, s43, s44")
    e("v_add_u32 v5, s43, v4")
    steps(MC(1), cmul(0, TC2, TS2, +1), 2, 8)
    stamp(e, lvl=7)
    for c in range(2):
        for l in (cmul(c, TC2, TS2, +1) if c else []): e(l)
        for ts in range(2):
            e.lgop(f"ds_write_b64 v5, {vr(PR[c]+2*ts,2)} offset:{c*8192 + (ts*2+0)*2048}", "x")
            e.lgop(f"ds_write_b64 v5, {vr(PI[c]+2*ts,2)} offset:{c*8192 + (ts*2+1)*2048}", "x")
    e(f"""s_lshl_b32 s40, s3, 11
v_and_b32 v6, 7, v3
v_lshlrev_b32 v6, 7, v6
v_lshrrev_b32 v7, 3, v3
v_lshl_add_u32 v6, v7, 6, v6
v_lshl_add_u32 v6, v2, 4, v6
v_add_u32 v6, s40, v6
s_add_u32 s38, s38, {VT}
s_add_u32 s45, s45, {VT}""")
    e.wait(lg="all")
    stamp(e, lvl=7)
    e("s_barrier")
    stamp(e, lvl=6); stamp(e, lvl=7)
    for c in range(2):
        for js in range(2):
            for ts in range(2):
                e.lgop(f"ds_read_b128 {vr(P[c]+8*ts+4*js)}, v4 offset:{c*8192 + ((ts*2+0)*2+js)*1024}", ("y", c))
                e.lgop(f"ds_read_b128 {vr(Q[c]+8*ts+4*js)}, v4 offset:{c*8192 + ((ts*2+1)*2+js)*1024}", ("y", c))
    def cv(dst, src): return [f"v_cvt_pk_bf16_f32 v{dst+m}, v{src+2*m}, v{src+2*m+1}" for m in range(4)]
    def merge(X, Y, sr):
        L = [f"v_mov_b32 v{TMP+m}, v{X+m}" for m in range(4)] + ["s_nop 0"]
        L += [f"v_mov_b32_dpp v{X+m}, v{Y+m} row_ror:8 row_mask:0xf bank_mask:0xc" for m in range(4)]
        L += [f"v_mov_b32_dpp v{Y+m}, v{TMP+m} row_ror:8 row_mask:0xf bank_mask:0x3" for m in range(4)]
        L += [f"buffer_store_dwordx4 {vr(X)}, v6, s[8:11], s{sr} offen sc1", f"buffer_store_dwordx4 {vr(Y)}, v6, s[8:11], s{sr} offen offset:1024 sc1"]
        return L
    mA, mB = MA(0, N64, S64), MA(1, N64, S64)
    Lsp, Lfin = e.label("special"), e.label("p2fin")
    e.wait(lg="all")
    steps(mA[:2] + mB[2:])
    e(f"s_cmp_eq_u32 s34, 143\ns_cbranch_scc1 {Lsp}")
    steps(mB[:2] + mA[2:], ["s_nop 0"]*3 + cv(PR[0], RE[0]) + cv(PI[1], IM[1]) + merge(PR[0], PI[1], 38), 2, 8)
    for l in cv(PR[1], RE[1]) + cv(PI[0], IM[0]) + merge(PR[1], PI[0], 45): e(l)
    e(f"s_branch {Lfin}\n{Lsp}:")
    steps(mB[:2] + mA[2:], (), 2, 8)
    for l in cv(PR[0], RE[0]) + cv(PI[0], IM[0]) + cv(PI[1], RE[1]) + [f"v_mov_b32 v{PR[1]+m}, 0" for m in range(4)]: e(l)
    for l in merge(PR[0], PI[0], 38) + merge(PR[1], PI[1], 45): e(l)
    e(f"{Lfin}:")
    stamp(e, lvl=7)
    e.vm = []; e.lg = []

NPF = 32
def k3(e):
    name = "k3_kernel"
    Lend = pro(e, name, 256, x=True, extra=((22, 64), (20, 56), (18, 48)))
    W4K3 = 0
    ACC, BF, NB, HCR, TB, XR = 16, 64, 3, 40, 104, 212
    XV, AC, TT, KC, TMP, PK, RING, BASE = 16, 48, 64, 80, 92, 96, 104, 232
    T0A = OPT.get('t0a', 0)
    DA = 244
    def acc(u, t): return ACC + (u*2+t)*4
    def wfrag(ph, ks, u):
        if ph == "T": return vr(216 + (ks % 9)*4, 4, "a") if (u == 0 and T0A) else vr(TB + ((ks % 9)*3 + u)*4)
        f = ks*3 + u
        if ph == "W1": return vr(4*f, 4, "a")
        if f < 32: return vr(104 + 4*f)
        if f < 42: return vr(216 + 4*(f-32), 4, "a")
        return vr(4*(f-42), 4, "a")
    if OPT.get("burn3"): burn(e, OPT["burn3"])
    mp = OPT.get("map", 3)
    e("s_lshr_b32 s30, s2, 3\ns_and_b32 s31, s2, 7")
    if mp == 2:
        e("s_lshl_b32 s26, s31, 2\ns_lshr_b32 s32, s30, 3\ns_add_u32 s26, s26, s32\ns_and_b32 s24, s30, 3\ns_bfe_u32 s29, s30, 0x10002")
    elif mp == 3:
        e("s_lshr_b32 s26, s31, 1\ns_lshl_b32 s26, s26, 3\ns_lshr_b32 s32, s30, 2\ns_add_u32 s26, s26, s32\ns_and_b32 s24, s30, 3\ns_and_b32 s29, s31, 1")
    elif mp == 4:
        e("s_lshr_b32 s26, s31, 2\ns_lshl_b32 s26, s26, 4\ns_lshr_b32 s32, s30, 1\ns_add_u32 s26, s26, s32\ns_and_b32 s24, s31, 2\ns_and_b32 s32, s30, 1\ns_add_u32 s24, s24, s32\ns_and_b32 s29, s31, 1")
    elif mp == 1:
        e("s_mov_b32 s26, s30\ns_lshr_b32 s24, s31, 1\ns_and_b32 s29, s31, 1")
    e("""s_lshl_b32 s25, s26, 1
s_add_u32 s25, s25, s29
s_mul_i32 s27, s24, 9
s_mul_i32 s32, s3, 3
s_add_u32 s27, s27, s32
s_lshl_b32 s28, s29, 2
s_add_u32 s28, s28, s24""")
    HB = 73728
    def setup6():
        e(f"""s_mul_i32 s40, s26, 73728
s_mul_i32 s32, s3, 18432
s_add_u32 s40, s40, s32
s_add_u32 s40, s40, {X6}
v_lshlrev_b32 v6, 3, v3
v_mul_u32_u24 v7, 384, v2
v_add_u32 v6, v6, v7
s_lshl_b32 s37, s26, 12
s_add_u32 s37, s37, {SQ1}
s_lshr_b32 s33, s3, 1
s_lshl_b32 s33, s33, 10
s_and_b32 s36, s3, 1
s_lshl_b32 s36, s36, 3
s_add_u32 s33, s33, s36
s_add_u32 s33, s33, {HB}
v_add_u32 v8, s33, v4
v_add_u32 v9, 36864, v8
v_add_u32 v12, {HB}, v4
v_add_u32 v13, {HB+36864}, v4
v_add_u32 v14, s32, v4
v_add_u32 v15, 4096, v4
v_add_u32 v5, 8192, v4
v_add_u32 v7, 12288, v4
s_lshl_b32 s34, s26, 2
s_add_u32 s34, s34, s3
s_mul_i32 s34, s34, 18432
s_mul_i32 s35, s28, {A_}
s_add_u32 s34, s34, s35
s_add_u32 s34, s34, {PART}""")
    NT = 2*162
    ORD = [0, 3, 6, 1, 4, 7, 2, 5, 8]
    def wload6(n):
        out = []
        if OPT.get("rot"):
            ph2 = n >= 162
            b, ks = divmod(n % 162, 18)
            rot = OPT["rot"] & (2 if ph2 else 1)
            if ks == 0:
                t = ORD[b] if ph2 else b
                if rot: out.append(("s", f"s_and_b32 s16, s26, 7\ns_add_u32 s16, s16, {t}\ns_cmp_ge_u32 s16, 9\ns_cselect_b32 s17, 9, 0\ns_sub_u32 s16, s16, s17\ns_mul_i32 s16, s16, 18432\ns_add_u32 s16, s16, s{31 if ph2 else 30}"))
                else: out.append(("s", f"s_add_u32 s16, s{31 if ph2 else 30}, {t*18432}"))
            if ks % 4 == 0: out.append(("s", f"s_add_u32 s17, s16, {ks*1024}"))
            out.append(("v", f"buffer_load_dwordx4 {vr(RING+4*(n % NPF))}, v4, s[8:11], s17 offen offset:{(ks&3)*1024} {OPT.get('ld6', 'sc1')}", ("w", n)))
        elif n < 162:
            if OPT.get("v4x") and n >= 32:
                if n % 16 == 0: out.append(("s", f"s_add_u32 s30, s30, {4096 if n == 32 else 16384}"))
                out.append(("v", f"buffer_load_dwordx4 {vr(RING+4*(n % NPF))}, v{(4,15,5,7)[(n >> 2) & 3]}, s[8:11], s30 offen offset:{(n&3)*1024} {OPT.get('ld6', 'sc1')}", ("w", n)))
                return out
            if n % 4 == 0 and n: out.append(("s", "s_add_u32 s30, s30, 4096"))
            out.append(("v", f"buffer_load_dwordx4 {vr(RING+4*(n % NPF))}, v4, s[8:11], s30 offen offset:{(n&3)*1024} {OPT.get('ld6', 'sc1')}", ("w", n)))
        else:
            b, ks = divmod(n - 162, 18)
            if ks % 4 == 0: out.append(("s", f"s_add_u32 s30, s31, {ORD[b]*18432 + ks*1024}"))
            out.append(("v", f"buffer_load_dwordx4 {vr(RING+4*(n % NPF))}, v4, s[8:11], s30 offen offset:{(ks&3)*1024} {OPT.get('ld6', 'sc1')}", ("w", n)))
        return out
    def emit(x):
        if x[0] == "s": e(x[1])
        elif x[0] == "v": e.vmop(x[1], x[2])
        elif x[0] == "l": e.lgop(x[1], x[2])
        elif x[0] == "wv": e.wait(vm=x[1])
        elif x[0] == "wl": e.wait(lg=x[1])
        elif x[0] == "st": stamp(e, lvl=x[1])
    Lpack, Ljoin = e.label("pack"), e.label("join")
    e(f"s_cmp_ge_u32 s30, 18\ns_cbranch_scc1 {Lpack}\ns_lshl_b32 s34, s30, 3\ns_add_u32 s34, s34, s31\ns_mov_b32 s58, s34\ns_mov_b32 s56, 255\ns_mov_b32 s57, 0")
    p2x2(e)
    e(f"""s_branch {Ljoin}
{Lpack}:
s_sub_u32 s56, s30, 18
s_lshl_b32 s56, s56, 3
s_add_u32 s56, s56, s31""")
    e("""s_cmp_lt_u32 s3, 3
s_cselect_b32 s57, 1, 0
s_cmp_ge_u32 s56, 108
s_cselect_b32 s57, 0, s57
v_lshrrev_b32 v236, 3, v1
v_and_b32 v237, 7, v1
v_lshrrev_b32 v238, 2, v3""")
    pro2(e)
    e(f"s_cmp_eq_u32 s57, 0\ns_cbranch_scc1 {Ljoin}{'0' if T0A else ''}\ns_mul_i32 s42, s3, 24576\ns_add_u32 s42, s42, 36864\ns_mov_b32 s14, 5308416\ns_mov_b32 s15, 0x00020000")
    for k in range(2):
        e(f"""s_lshl_b32 s34, s3, 1
s_add_u32 s34, s34, {k}
s_cmp_ge_u32 s34, 3
s_cselect_b32 s35, 1, 0
s_cselect_b32 s36, 3, 0
s_sub_u32 s44, s34, s36
s_lshl_b32 s34, s56, 1
s_add_u32 s34, s34, s35""")
        sdiv(e, 27, 59, 43, 34, 40)
        e(f"""s_cmp_ge_u32 s43, 9
s_cselect_b32 s12, s20, s18
s_cselect_b32 s13, s21, s19
s_mov_b32 s33, 9216
s_cselect_b32 s33, 1152, s33
s_cselect_b32 s37, 4, 8
s_cselect_b32 s38, 16, 4
s_cselect_b32 s39, 136, 8
s_cselect_b32 s36, -9, 9
s_mov_b32 s{50+k}, {W3P}
s_cselect_b32 s{50+k}, {W4P}, s{50+k}
s_cselect_b32 s47, 1, 0
s_and_b32 s13, s13, 0xffff
s_add_u32 s43, s43, s36
s_mul_i32 s40, s59, 663552
s_add_u32 s{50+k}, s{50+k}, s40
s_lshl_b32 s40, s43, 10
s_add_u32 s{50+k}, s{50+k}, s40
s_mul_i32 s40, s44, {3*73728}
s_add_u32 s{50+k}, s{50+k}, s40
s_and_b32 s40, s43, 1
s_mul_i32 s40, s40, 288
s_lshr_b32 s46, s43, 1
s_lshl_b32 s46, s46, 4
s_add_u32 s40, s40, s46
s_mul_i32 s46, s59, 576
s_add_u32 s40, s40, s46
s_mul_i32 s40, s40, 1152
s_mul_i32 s46, s43, {32*9216}
s_mul_i32 s48, s59, 1152
s_add_u32 s46, s46, s48
s_cmp_eq_u32 s47, 1
s_cselect_b32 s40, s40, s46
s_mul_i32 s46, s44, 384
s_add_u32 s40, s40, s46
v_mul_lo_u32 v235, v236, s33
v_lshl_add_u32 v235, v237, 4, v235
s_lshl_b32 s41, s33, 3
s_mul_i32 s39, s39, s33
v_mul_lo_u32 v{240+2*k}, v2, s37
v_add_u32 v{240+2*k}, v{240+2*k}, v238
v_lshlrev_b32 v{240+2*k}, 7, v{240+2*k}
v_and_b32 v{241+2*k}, 3, v3
v_lshl_add_u32 v{240+2*k}, v{241+2*k}, 3, v{240+2*k}
v_add_u32 v{240+2*k}, s42, v{240+2*k}
s_lshl_b32 s43, s38, 7
v_add_u32 v{241+2*k}, s43, v{240+2*k}""")
        for f in range(4):
            for it in range(3):
                e(f"s_add_u32 m0, s42, {k*12288 + it*4096 + f*1024 - it*128}")
                e(f"s_add_u32 s40, s40, s{39 if f == 2 else 41}" if (it == 0 and f) else "s_nop 0")
                e(f"buffer_load_dwordx4 v235, s[12:15], s40 offen offset:{128*it} {OPT.get('ld_pk','nt')} lds")
    if T0A:
        e(f"{Ljoin}0:")
        tgen(e, 27, 0, 16, (0,), agpr=216)
    e(f"{Ljoin}:")
    e.vm = ["pk"]*24; e.lg = []
    def p2_signal():
        Ld = e.label("sigdone")
        e(f"""s_cmp_lg_u32 s56, 255
s_cbranch_scc1 {Ld}
s_waitcnt vmcnt(0)
s_barrier
s_cmp_lg_u32 s3, 3
s_cbranch_scc1 {Ld}
s_lshl_b32 s46, s58, {4 if OPT.get('pad16', 1) else 2}
s_add_u32 s46, s46, {FLG2}
v_mov_b32 v250, 1
v_mul_u32_u24 v251, {2304 if OPT.get('pad16', 1) else 640}, v1
s_mov_b32 exec_hi, 0
s_mov_b32 exec_lo, {hex((1 << OPT.get('nrep', 4)) - 1)}
buffer_store_dword v250, v251, s[8:11], s46 offen sc1
s_mov_b64 exec, -1
{Ld}:""")
        stamp(e, lvl=6)
    def pack_finish():
        Ld = e.label("pkdone")
        e(f"s_cmp_eq_u32 s56, 255\ns_cbranch_scc1 {Ld}\nv_add_u32 v239, 55296, v4")
        e.wait(vm="pk")
        Lb = e.label("pkbar")
        if OPT.get("lbar", 2) == 1: e("s_barrier")
        e(f"s_cmp_eq_u32 s57, 0\ns_cbranch_scc1 {Lb}")
        def rd(i):
            k, it = divmod(i, 3)
            for tt in range(4):
                o = 16*i + 4*tt; off = k*12288 + it*4096 + 32*tt
                e.lgop(f"ds_read_b64_tr_b16 {vr(o,2,'a')}, v{240+2*k} offset:{off}", (i, tt))
                e.lgop(f"ds_read_b64_tr_b16 {vr(o+2,2,'a')}, v{241+2*k} offset:{off}", (i, tt))
        rd(0)
        for i in range(6):
            if i < 5: rd(i + 1)
            for tt in range(4):
                e.wait(lg=(i, tt))
                e.vmop(f"buffer_store_dwordx4 {vr(16*i + 4*tt, 4, 'a')}, v{(4,10,11,239)[tt]}, s[8:11], s{50 + i//3} offen sc1", "pst")
            if i % 3 < 2: e(f"s_add_u32 s{50 + i//3}, s{50 + i//3}, 73728")
        e(f"{Lb}:")
        if OPT.get("lbar", 2) == 2: e("s_barrier")
        e(f"{Ld}:")
    e.srd(12, 6, A_)
    e(f"""v_lshrrev_b32 v6, 3, v1
v_and_b32 v7, 2, v6
v_lshlrev_b32 v6, 13, v6
v_and_b32 v5, 7, v1
v_xor_b32 v7, v7, v5
v_lshl_add_u32 v6, v7, 4, v6
s_and_b32 s34, s3, 1
s_lshl_b32 s34, s34, 6
v_xor_b32 v253, s34, v6
v_xor_b32 v254, 64, v253
s_mul_i32 s32, s3, 9216
s_mul_i32 s33, s3, {9*65536}
s_lshl_b32 s34, s25, 7
s_add_u32 s33, s33, s34
s_add_u32 s33, s33, {VT}
v_bfe_u32 v5, v3, 2, 1
v_lshlrev_b32 v5, 4, v5
v_lshrrev_b32 v7, 3, v3
v_lshl_add_u32 v5, v7, 2, v5
v_and_b32 v7, 3, v3
v_add_u32 v5, v5, v7
s_lshl_b32 s34, s25, 5
v_add_u32 v12, s34, v5
v_mul_u32_u24 v96, 1152, v12
v_lshl_add_u32 v96, v2, 3, v96
v_add_u32 v97, 9216, v96
v_lshrrev_b32 v5, 2, v5
v_lshlrev_b32 v98, 7, v5
v_lshl_add_u32 v98, v7, 4, v98
s_lshr_b32 s38, s25, 5
s_lshl_b32 s38, s38, 12
s_bfe_u32 s34, s25, 0x20002
s_lshl_b32 s34, s34, 10
s_add_u32 s38, s38, s34
s_bfe_u32 s34, s25, 0x10004
s_lshl_b32 s34, s34, 6
s_add_u32 s38, s38, s34
s_and_b32 s34, s25, 3
s_lshl_b32 s34, s34, 2
s_add_u32 s38, s38, s34
s_add_u32 s38, s38, {MX}
s_lshl_b32 s37, s27, 5""")
    def vdma():
        for idx in range(9):
            e(f"s_add_u32 m0, s32, {idx*1024}")
            e("s_add_u32 s33, s33, 65536" if idx else "s_nop 0")
            e.vmop(f"buffer_load_dwordx4 v{253 + (idx & 1)}, s[8:11], s33 offen sc1 lds", "dma")
    Lw3 = e.label("w3"); Lp6 = e.label("p6")
    e(f"""s_mul_i32 s30, s28, 36
s_mul_i32 s31, s3, 9
s_add_u32 s30, s30, s31
s_mul_i32 s30, s30, 18432
s_add_u32 s31, s30, {W4P}
s_add_u32 s30, s30, {W3P}
v_add_u32 v10, 18432, v4
v_add_u32 v11, 36864, v4
s_mul_i32 s53, s25, 36864
s_add_u32 s53, s53, s32""")
    e(f"s_lshr_b32 s46, s3, 1\ns_lshl_b32 s46, s46, 3\ns_and_b32 s47, s3, 1\ns_add_u32 s47, s47, 1\ns_sub_u32 s48, s46, s47\ns_add_u32 s49, s46, s47\nv_mov_b32 v95, 2048\nv_lshlrev_b32 v91, 8, v2")
    for k, sr in ((0, 48), (2, 49)):
        e(f"""v_add_u32 v90, s{sr}, v12
v_cmp_lt_u32 vcc, v90, v95
v_bfe_u32 v92, v90, 5, 6
v_mul_u32_u24 v92, 36864, v92
v_bfe_u32 v93, v90, 3, 1
v_mul_u32_u24 v93, 18432, v93
v_bfe_u32 v94, v90, 2, 1
v_lshl_add_u32 v92, v94, 7, v92
v_bfe_u32 v94, v90, 4, 1
v_lshl_add_u32 v92, v94, 6, v92
v_and_b32 v94, 3, v90
v_lshl_add_u32 v92, v94, 4, v92
v_add3_u32 v92, v92, v93, v91
v_bfrev_b32 v93, 2
v_cndmask_b32 v{DA+k}, v93, v92, vcc""")
    e(f"v_cmp_gt_u32 vcc, 2, v2\ns_and_b32 s54, s3, 1\ns_mul_i32 s54, s54, 9216\ns_add_u32 s54, s54, {H1S}\nv_cndmask_b32 v{DA+1}, v{DA+2}, v{DA}, vcc")
    def dma_act(ph):
        if ph == 4:
            e(f"s_add_u32 s46, s53, {HC}")
            for i in range(9):
                if i % 4 == 0:
                    e(f"s_add_u32 m0, s32, {i*1024}")
                    e("s_add_u32 s46, s46, 4096" if i else "s_nop 0")
                e.vmop(f"buffer_load_dwordx4 v4, s[8:11], s46 offen offset:{(i&3)*1024} sc1 lds", "dma")
        else:
            for i in range(9):
                if i % 4 == 0:
                    e(f"s_add_u32 m0, s32, {i*1024}")
                    e("s_add_u32 s54, s54, 4096" if i else "s_nop 0")
                a = DA + (0 if i < 4 else 1 if i == 4 else 2)
                e.vmop(f"buffer_load_dwordx4 v{a}, s[8:11], s54 offen offset:{(i&3)*1024} sc1 lds", "dma")
    p2_signal()
    e(f"s_cmp_eq_u32 s3, 3\ns_cbranch_scc1 {Lw3}")
    vm_save = list(e.vm)
    def xloads():
        for u in range(3):
            for t in range(2):
                e.vmop(f"buffer_load_dwordx2 {vr(XR+(u*2+t)*2,2)}, v{96+t}, s[12:15], s37 offen offset:{32*u}", "x")
        e.vmop("buffer_load_dword v14, v98, s[8:11], s38 offen", "x")
        e.vmop("buffer_load_dword v15, v98, s[8:11], s38 offen offset:256", "x")
    ws_ = {"n": 0}
    def wnext(cnt, lim=108):
        for _ in range(cnt):
            n = ws_["n"]
            if n >= lim: return
            ph = "W1" if n < 54 else "W2"; f = n % 54; ks, u = divmod(f, 3)
            if f == 0: e(f"s_add_u32 s52, s36, {W1P if n == 0 else W2P}")
            elif u == 0 and ks % 4 == 0: e("s_add_u32 s52, s52, 4096")
            e.vmop(f"buffer_load_dwordx4 {wfrag(ph,ks,u)}, v{(4,10,11)[u]}, s[8:11], s52 offen offset:{(ks&3)*1024}", (ph, ks, u))
            ws_["n"] += 1
    e("s_mul_i32 s36, s27, 18432")
    XP = OPT.get("xp", 13)
    def thook(u, ks):
        if u*9 + ks == XP: xloads()
        if u*9 + ks == OPT.get("qb", 20): e("s_barrier")
    tgen(e, 27, TB, 16, (1, 2) if T0A else (0, 1, 2), hook=thook, init=True)
    e(f"""v_lshrrev_b32 v5, 1, v2
v_lshlrev_b32 v8, 8, v5
v_lshl_add_u32 v8, v3, 4, v8
v_and_b32 v5, 1, v2
v_mul_u32_u24 v9, 18432, v5
v_add_u32 v8, v8, v9
v_lshrrev_b32 v6, 2, v3
v_lshl_add_u32 v6, v2, 3, v6
v_lshlrev_b32 v6, 7, v6
v_and_b32 v7, 3, v3
v_lshl_add_u32 v6, v7, 3, v6
v_lshl_add_u32 v6, v5, 6, v6
v_lshrrev_b32 v7, 3, v3
v_lshl_add_u32 v6, v7, 5, v6
v_xor_b32 v7, 32, v6
v_xor_b32 v5, 64, v6
v_xor_b32 v9, 96, v6
s_mul_i32 s39, s25, 36864
s_lshl_b32 s40, s27, 9
s_add_u32 s39, s39, s40
s_lshl_b32 s42, s25, 11
s_lshl_b32 s40, s3, 2
s_add_u32 s40, s40, s24
s_lshl_b32 s40, s40, 7
s_add_u32 s41, s42, s40
s_mov_b32 s43, {fhex(2.0/(2048*576))}
v_lshlrev_b32 v13, 3, v3
v_mul_u32_u24 v12, 384, v2
v_add_u32 v12, v12, v13
s_lshl_b32 s55, s24, 2
s_add_u32 s55, s55, s3
s_lshl_b32 s55, s55, 2
s_lshl_b32 s40, s25, 7
s_add_u32 s55, s55, s40
v_mov_b32 v250, 1
v_mov_b32 v251, 0""")
    stamp(e, lvl=6)
    pack_finish()
    wnext(OPT.get("wr", 12), 54)
    stamp(e, lvl=6)
    e("s_barrier")
    stamp(e, lvl=6)
    vdma()
    e.wait(vm="dma")
    e("s_barrier")
    stamp(e); stamp(e, lvl=6)
    def gemm(ph, tr, hook, fill=(), f0=0, f1=18, cinit=False):
        fill = list(fill); nf = len(fill); fi = 0
        def rd(ks):
            for t in range(2):
                b = BF + ((ks % NB)*2 + t)*4
                if tr:
                    ar = (6, 7, 5, 9)[2*(ks // 9) + t]
                    e.lgop(f"ds_read_b64_tr_b16 {vr(b,2)}, v{ar} offset:{(ks % 9)*4096}", ("b", ks))
                    e.lgop(f"ds_read_b64_tr_b16 {vr(b+2,2)}, v{ar} offset:{(ks % 9)*4096+512}", ("b", ks))
                else:
                    e.lgop(f"ds_read_b128 {vr(b)}, v4 offset:{(t*18+ks)*1024}", ("b", ks))
        for ks in range(NB-1): rd(ks)
        for ks in range(18):
            if ks + NB - 1 < 18: rd(ks + NB - 1)
            e.wait(vm=(ph, ks, 2), lg=("b", ks))
            for u in range(3):
                for t in range(2):
                    d = vr(acc(u, t) + (24 if (ph == "T" and ks >= 9) else 0))
                    first = (ks == 0 and not cinit) or (ph == "T" and ks == 9)
                    e(f"{M16} {d}, {wfrag(ph,ks,u)}, {vr(BF + ((ks % NB)*2 + t)*4)}, {0 if first else d}")
                    g = (ks - f0)*6 + u*2 + t
                    if g >= 0:
                        while fi < min(nf, -(-nf*(g+1) // ((f1 - f0)*6))): emit(fill[fi]); fi += 1
            hook(ks)
        assert fi == nf
    def wsig(phase):
        if OPT.get("wgflag", 0): return
        e(f"s_add_u32 s46, s55, {FLG + phase*8192}\ns_mov_b64 exec, 1")
        e.vmop("buffer_store_dword v250, v251, s[8:11], s46 offen sc1", "f")
        e("s_mov_b64 exec, -1")
    def sq_store(region):
        red_g(e, (90, 91), (92, 93))
        e(f"s_add_u32 s46, s41, {region}\ns_mov_b64 exec, 0xffff")
        e.vmop(f"buffer_store_dwordx2 v[90:91], v13, s[8:11], s46 offen sc1", "st")
        e("s_mov_b64 exec, -1")
    def st16(o, sreg, off):
        e(f"s_nop 0\nv_permlane16_swap_b32 v{o}, v{o+2}\nv_permlane16_swap_b32 v{o+1}, v{o+3}")
        e.vmop(f"buffer_store_dwordx4 {vr(o)}, v8, s[8:11], s{sreg} offen offset:{off} sc1", "st")
    GL, AL = OPT.get("gl", 30), OPT.get("al", 24)
    lim_ = [54]
    GLs = [OPT.get('gl3', 18)]
    def hookw(ks): wnext(GLs[0]*(ks+1)//18 - GLs[0]*ks//18, lim_[0])
    def hook3(ks):
        if XP == 27 + ks: xloads()
        hookw(ks)
    XM = 232
    XF = [224 + i for i in range(20)] + [100, 101, 102, 103]
    xfill = [("wv", "x")]
    for u in range(3):
        for t in range(2):
            x = XR + (u*2+t)*2; f = XF[(u*2+t)*4:(u*2+t)*4+4]
            xfill += [("s", f"v_lshlrev_b32 v{f[0]}, 16, v{x}"), ("s", f"v_and_b32 v{f[1]}, 0xffff0000, v{x}"),
                      ("s", f"v_lshlrev_b32 v{f[2]}, 16, v{x+1}"), ("s", f"v_and_b32 v{f[3]}, 0xffff0000, v{x+1}")]
            xfill += [("s", f"v_sub_f32 v{f[r]}, v{f[r]}, v{14+t}") for r in range(4)]
    xfill += [("s", f"s_add_u32 s44, s39, {HC}"), ("s", "v_mov_b32 v90, 0"), ("s", "v_mov_b32 v91, 0")]
    gemm("T", True, hook3, xfill, 9, 18)
    stamp(e)
    EARLY = OPT.get("early", 0)
    e("s_barrier" if EARLY else "s_nop 0")
    e("s_nop 4")
    for u in range(3):
        o = BF + 4*u
        for t in range(2):
            a = acc(u, t); h = HCR + (u*2+t)*4; f = XF[(u*2+t)*4:(u*2+t)*4+4]
            for r in range(4): e(f"v_{'sub' if r & 1 else 'add'}_f32 v{a+r}, v{a+r}, v{h+r}")
            for r in range(4): e(f"v_fma_f32 v{h+r}, v{a+r}, s43, v{f[r]}")
            e(f"v_cvt_pk_bf16_f32 v{o+2*t}, v{h}, v{h+1}\nv_cvt_pk_bf16_f32 v{o+2*t+1}, v{h+2}, v{h+3}")
            for r in range(4): e(f"v_fmac_f32 v{90+t}, v{h+r}, v{h+r}")
        st16(o, 44, 512*u)
    sq_store(SQH)
    e(f"s_add_u32 s44, s39, {H1S}\ns_add_u32 s47, s42, {SQH}")
    e.wait(vm="st")
    wsig(0)
    LA = OPT.get("la", 4)
    stamp(e, lvl=-1)
    lim_[0] = 54 + 42
    wnext(LA, lim_[0])
    e("s_barrier")
    wnext(AL - LA, lim_[0])
    assert ws_["n"] >= 54
    stamp(e, lvl=1)
    e("s_barrier")
    stamp(e, lvl=1)
    dma_act(4)
    for c in range(3): e.vmop(f"buffer_load_dwordx2 {vr(96+2*c,2)}, v12, s[8:11], s47 offen offset:{128*c} sc1", "q")
    stamp(e, lvl=1)
    e.wait(vm="dma")
    stamp(e, lvl=1)
    e("s_barrier")
    stamp(e, lvl=-1)
    e3 = Em()
    e3("v_add_f32 v97, v97, v99\nv_add_f32 v96, v96, v98\nv_add_f32 v96, v96, v100\nv_add_f32 v100, v97, v101")
    red_g(e3, (96, 100), (92, 93))
    for t in range(2): e3(f"v_mul_f32 v{96+4*t}, {fhex(1/576)}, v{96+4*t}")
    for t in range(2): e3(f"v_add_f32 v{88+t}, {fhex(EPS)}, v{96+4*t}")
    for t in range(2): e3(f"v_rsq_f32 v{88+t}, v{88+t}")
    e3("s_nop 0")
    for t in range(2): e3(f"v_mul_f32 v{98+4*t}, v{88+t}, v{88+t}")
    for t in range(2): e3(f"v_mul_f32 v{98+4*t}, v{98+4*t}, v{96+4*t}")
    for t in range(2): e3(f"v_add_f32 v{98+4*t}, {fhex(EPS)}, v{98+4*t}")
    for t in range(2): e3(f"v_rsq_f32 v{98+4*t}, v{98+4*t}")
    e3("s_nop 0")
    for t in range(2): e3(f"v_mul_f32 v{96+4*t}, v{88+t}, v{98+4*t}")
    for t in range(2): gelu_consts(e3, 96+4*t, 97+4*t, 98+4*t, 99+4*t)
    GLs[0] = OPT.get('gl4', 36)
    def hook4(ks):
        if ks == 4: lim_[0] = 108
        hookw(ks)
    gemm("W1", False, hook4, [("wv", "q")] + [("s", l.strip()) for l in e3.L], 2, 17)
    stamp(e)
    e("s_barrier" if EARLY else "s_nop 0")
    e("s_nop 4")
    for u in range(3):
        o = BF + 4*u
        for t in range(2):
            a = acc(u, t); s = 96 + 4*t
            for l in gelu4(a, 92, s+1, s+2, s+3): e(l)
            e(f"v_cvt_pk_bf16_f32 v{o+2*t}, v92, v93\nv_cvt_pk_bf16_f32 v{o+2*t+1}, v94, v95")
        e("s_nop 0")
        st16(o, 44, 512*u)
    e(f"s_add_u32 s44, s39, {X6}\nv_lshlrev_b32 v98, 2, v3\nv_mov_b32 v90, 0\nv_mov_b32 v91, 0")
    e.wait(vm="st")
    wsig(1)
    stamp(e, lvl=-1)
    wnext(LA)
    e("s_barrier")
    wnext(108)
    for u in range(3):
        for t in range(2):
            a = acc(u, t); h = HCR + (u*2+t)*4
            for r in range(4): e(f"v_mul_f32 v{a+r}, v{h+r}, v{88+t}")
            for r in range(4): e(f"v_add_f32 v{h+r}, v{h+r}, v{14+t}")
    stamp(e, lvl=1)
    e("s_barrier")
    stamp(e, lvl=1)
    dma_act(5)
    stamp(e, lvl=1)
    e.wait(vm="dma")
    stamp(e, lvl=1)
    e("s_barrier")
    stamp(e, lvl=-1)
    N5 = OPT.get("n5", 27)
    st5 = {"n": 0}
    def hook5(ks):
        while st5["n"] < min(N5, 3*ks + 3, (3*(ks+1))//2):
            for x in wload6(st5["n"]): emit(x)
            st5["n"] += 1
    gemm("W2", False, hook5, cinit=True)
    assert st5["n"] == N5
    stamp(e)
    e("s_barrier")
    e.lgop("ds_read_b32 v96, v98 offset:36864", "m"); e.lgop("ds_read_b32 v97, v98 offset:36928", "m")
    e("s_nop 3")
    for u in range(3):
        for t in range(2):
            a = acc(u, t); h = HCR + (u*2+t)*4
            for r in range(4): e(f"v_add_f32 v{h+r}, v{h+r}, v{a+r}")
    e.wait(lg="all")
    for u in range(3):
        x = BF + 4*u
        for t in range(2):
            a = acc(u, t)
            for r in range(4): e(f"v_sub_f32 v{a+r}, v{a+r}, v{96+t}")
            e(f"v_cvt_pk_bf16_f32 v{x+2*t}, v{a}, v{a+1}\nv_cvt_pk_bf16_f32 v{x+2*t+1}, v{a+2}, v{a+3}")
            for r in range(4): e(f"v_fmac_f32 v{90+t}, v{a+r}, v{a+r}")
        st16(x, 44, 512*u)
    sq_store(SQ1)
    for u in range(3):
        for t in range(2):
            h = HCR + (u*2+t)*4; o = BASE + 4*u + 2*t
            e(f"v_cvt_pk_bf16_f32 v{o}, v{h}, v{h+1}\nv_cvt_pk_bf16_f32 v{o+1}, v{h+2}, v{h+3}")
    e.wait(vm="st")
    wsig(2)
    if not OPT.get("l5"): e("s_barrier")
    vm_p6 = list(e.vm)
    stamp(e)
    nst_main = NST
    setup6()
    if OPT.get("l5"): e("s_barrier")
    e(f"s_barrier\ns_branch {Lp6}")
    def poll(phase, areg, nl=0):
        Lp = e.label("poll"); Ld = e.label("pd")
        if OPT.get("wgflag", 0):
            e(f"s_lshl_b32 s46, s25, 7\ns_lshl_b32 s47, s24, 4\ns_add_u32 s46, s46, s47\ns_add_u32 s46, s46, {FLG + phase*8192}\ns_mov_b64 exec, 1\nbuffer_store_dword v250, v251, s[8:11], s46 offen sc1\ns_mov_b64 exec, -1")
        ld = lambda r: f"buffer_load_dword v{r}, v{areg}, s[8:11], s46 offen sc1"
        if OPT.get("pipe", 0):
            e(f"""s_mov_b32 s46, {FLG + phase*8192}
s_mov_b32 s47, 0x20000
{ld(252)}
s_sleep {OPT.get('psl', 3)}
{Lp}:
{ld(253)}
s_waitcnt vmcnt(1)
v_cmp_ne_u32 vcc, 1, v252
s_cbranch_vccz {Ld}
{ld(252)}
s_waitcnt vmcnt(1)
v_cmp_ne_u32 vcc, 1, v253
s_cbranch_vccz {Ld}
s_sub_u32 s47, s47, 1
s_cbranch_scc0 {Lp}
{Ld}:""")
        else:
            e(f"""s_mov_b32 s46, {FLG + phase*8192}
s_mov_b32 s47, 0x40000
{("s_sleep %d" % OPT["ps0"]) if OPT.get("ps0") else "s_nop 0"}
{Lp}:
{ld(252)}
s_waitcnt vmcnt(0)
v_cmp_ne_u32 vcc, 1, v252
s_cbranch_vccz {Ld}
s_sub_u32 s47, s47, 1
s_cbranch_scc0 {Lp}
{Ld}:""")
        e.vm = ["p"]
    e(f"{Lw3}:")
    e.vm = []; e.lg = []
    Lef = e.label("efd")
    e(f"""s_cmp_lg_u32 s56, 255
s_cbranch_scc1 {Lef}
v_lshlrev_b32 v16, 3, v2
v_lshrrev_b32 v17, 2, v3
v_add_u32 v16, v16, v17
v_lshlrev_b32 v16, 7, v16
v_and_b32 v17, 3, v3
v_lshl_add_u32 v16, v17, 3, v16
v_add_u32 v17, 55296, v4
v_add_u32 v18, 16384, v16""")
    for i in range(6):
        if i == 3: e(f"s_bitcmp1_b32 s58, 0\ns_cbranch_scc1 {Lef}")
        for tt in range(4):
            o = 16*i + 4*tt; off = 49152 + i*4096 + 32*tt
            e.lgop(f"ds_read_b64_tr_b16 {vr(o,2,'a')}, v16 offset:{off}" if off + 512 < 65536 else f"ds_read_b64_tr_b16 {vr(o,2,'a')}, v18 offset:{off - 16384}", (i, tt))
            e.lgop(f"ds_read_b64_tr_b16 {vr(o+2,2,'a')}, v16 offset:{off + 512}" if off + 512 < 65536 else f"ds_read_b64_tr_b16 {vr(o+2,2,'a')}, v18 offset:{off + 512 - 16384}", (i, tt))
        for tt in range(4):
            e.wait(lg=(i, tt))
            e.vmop(f"buffer_store_dwordx4 {vr(16*i + 4*tt, 4, 'a')}, v{(4,10,11,17)[tt]}, s[8:11], s{50 + i//3} offen sc1", "pst")
        if i % 3 < 2: e(f"s_add_u32 s{50 + i//3}, s{50 + i//3}, 73728")
    e(f"{Lef}:")
    PKL = 40960
    if W4K3:
        e.srd(16, 20, 5308416)
        e("s_cmp_lt_u32 s2, 216\ns_cselect_b32 s18, 5308416, 0")
        e("v_lshrrev_b32 v16, 3, v1\nv_mul_u32_u24 v16, 1152, v16\nv_and_b32 v17, 7, v1\nv_lshl_add_u32 v16, v17, 4, v16")
        for k in range(2):
            e(f"s_lshl_b32 s40, s2, 1\ns_add_u32 s40, s40, {k}")
            sdiv(e, 3, 41, 42, 40, 46); sdiv(e, 18, 43, 44, 41, 46)
            e(f"""s_mul_i32 s{36+k}, s43, 663552
s_lshl_b32 s45, s44, 10
s_add_u32 s{36+k}, s{36+k}, s45
s_mul_i32 s45, s42, {3*73728}
s_add_u32 s{36+k}, s{36+k}, s45
s_add_u32 s{36+k}, s{36+k}, {W4P}
s_mul_i32 s40, s43, 576
s_and_b32 s45, s44, 1
s_mul_i32 s45, s45, 288
s_add_u32 s40, s40, s45
s_lshr_b32 s45, s44, 1
s_lshl_b32 s45, s45, 4
s_add_u32 s40, s40, s45
s_mul_i32 s40, s40, 1152
s_mul_i32 s45, s42, 384
s_add_u32 s40, s40, s45""")
            for f in range(4):
                for it in range(3):
                    e(f"s_mov_b32 m0, {PKL + k*12288 + it*4096 + f*1024 - it*128}")
                    e(f"s_add_u32 s40, s40, {1152*(136 if f == 2 else 8)}" if (it == 0 and f) else "s_nop 0")
                    e.vmop(f"buffer_load_dwordx4 v16, s[16:19], s40 offen offset:{128*it} {OPT.get('ld_pk','nt')} lds", ("pk", k))
    e(f"""v_mov_b32 v250, 1
v_mov_b32 v251, 0
v_and_b32 v19, 3, v1
v_min_u32 v19, {0 if OPT.get('wgflag', 0) else 2}, v19
v_lshlrev_b32 v19, 2, v19
v_bfe_u32 v20, v1, 2, 2
v_lshl_add_u32 v19, v20, 4, v19
s_lshl_b32 s46, s25, 7
v_add_u32 v247, s46, v19
v_bfe_u32 v21, v1, 4, 1
v_and_b32 v22, 1, v20
v_lshlrev_b32 v22, 1, v22
v_add_u32 v22, -1, v22
v_mul_lo_u32 v22, v22, v21
v_add_u32 v22, s25, v22
v_and_b32 v22, 63, v22
v_lshl_add_u32 v248, v22, 7, v19
s_lshl_b32 s46, s26, 8
v_lshl_add_u32 v249, v21, 7, v19
v_add_u32 v249, s46, v249""")
    if W4K3:
        e(f"""s_mul_i32 s46, s28, 108
s_add_u32 s46, s46, {3*8192}
v_subrev_u32 v19, 32, v1
v_min_u32 v19, 26, v19
v_lshlrev_b32 v19, 2, v19
v_add_u32 v19, s46, v19
v_cmp_lt_u32 vcc, 31, v1
s_nop 1
v_cndmask_b32 v249, v249, v19, vcc""")
    e(f"""s_mul_i32 s46, s28, 27
s_lshr_b32 s46, s46, 1
v_min_u32 v18, 14, v1
v_add_u32 v18, s46, v18
v_min_u32 v18, 107, v18
s_mul_i32 s46, s28, 18
s_add_u32 s46, s46, 108
v_subrev_u32 v19, 32, v1
v_min_u32 v19, 17, v19
v_cmp_lt_u32 vcc, 31, v1
v_add_u32 v19, s46, v19
s_nop 0
v_cndmask_b32 v18, v18, v19, vcc
v_lshlrev_b32 v18, 2, v18""")
    Lq, Lqd = e.label("gp"), e.label("gpd")
    POLL2 = """buffer_load_dwordx4 v[20:23], v19, s[8:11], s46 offen sc1
s_waitcnt vmcnt(0)
v_and_b32 v20, v20, v21
v_and_b32 v22, v22, v23
v_and_b32 v20, v20, v22
"""
    if OPT.get('pad16', 1):
        e("v_min_u32 v17, 15, v1\nv_lshlrev_b32 v17, 4, v17")
        POLL2 = """buffer_load_dword v20, v4, s[8:11], s46 offen sc1
buffer_load_dword v21, v4, s[8:11], s46 offen offset:1024 sc1
buffer_load_dword v22, v17, s[8:11], s46 offen offset:2048 sc1
s_waitcnt vmcnt(0)
v_and_b32 v20, v20, v21
v_and_b32 v20, v20, v22
"""
    e(f"""v_min_u32 v19, 35, v1
v_lshlrev_b32 v19, 4, v19
s_lshr_b32 s46, s2, {OPT.get('rsh', 3)}
s_and_b32 s46, s46, {OPT.get('nrep', 4) - 1}
s_mul_i32 s46, s46, {2304 if OPT.get('pad16', 1) else 640}
s_add_u32 s46, s46, {FLG2}
s_mov_b32 s47, 0x40000
{"s_barrier" if OPT.get("qb", 20) < 27 else "s_nop 0"}
s_cmp_eq_u32 s56, 255
s_cbranch_scc1 {Lq}s
s_barrier
{Lq}s:
{('s_sleep %d' % OPT.get('gs1', 0)) if OPT.get('gs1', 0) else 's_nop 0'}
{Lq}:
{POLL2}v_cmp_ne_u32 vcc, 1, v20
s_cbranch_vccz {Lqd}
s_sleep {OPT.get('gsl', 8)}
s_sub_u32 s47, s47, 1
s_cbranch_scc0 {Lq}
{Lqd}:
s_barrier""")
    e.vm = []
    vdma()
    e.wait(vm="dma")
    e("s_barrier")
    for ks in range(18):
        if ks % 4 == 0: e(f"s_mov_b32 s40, {W2P + 36*18432 + ks*1024}")
        e.vmop(f"buffer_load_dwordx4 {vr(4*ks,4,'a')}, v4, s[8:11], s40 offen offset:{(ks&3)*1024}", "mw")
    e("s_barrier")
    e.wait(vm="all")
    Lnf = e.label("nopf")
    e(f"s_add_u32 s46, s58, 108\ns_cmp_eq_u32 s56, 255\ns_cselect_b32 s46, s46, s56\ns_cselect_b32 s47, 0, s56\ns_cmp_ge_u32 s47, 108\ns_cbranch_scc1 {Lnf}\ns_lshl_b32 s46, s46, 2\ns_add_u32 s46, s46, {FLG + 6*8192}\ns_mov_b64 exec, 1\nbuffer_store_dword v250, v251, s[8:11], s46 offen sc1\ns_mov_b64 exec, -1\n{Lnf}:")
    poll(0, 247)
    if W4K3:
        e(f"s_lshl_b32 s46, s2, 2\ns_add_u32 s46, s46, {FLG + 5*8192}\ns_mov_b64 exec, 1\nbuffer_store_dword v250, v251, s[8:11], s46 offen sc1\ns_mov_b64 exec, -1")
        e.vm.append("f")
    e("s_barrier")
    dma_act(4); e.wait(vm="all")
    e("s_barrier")
    poll(6, 18)
    e("s_barrier")
    poll(1, 248)
    e("s_barrier")
    dma_act(5); e.wait(vm="all")
    e("s_barrier")
    NR = 3
    def rdm(ks):
        for t in range(2): e.lgop(f"ds_read_b128 {vr(40+((ks%NR)*2+t)*4)}, v4 offset:{(t*18+ks)*1024}", ks)
    for ks in range(NR-1): rdm(ks)
    for ks in range(18):
        if ks + NR - 1 < 18: rdm(ks + NR - 1)
        e.wait(lg=ks)
        for t in range(2):
            e(f"{M16} {vr(32+4*t)}, {vr(4*ks,4,'a')}, {vr(40+((ks%NR)*2+t)*4)}, {vr(32+4*t) if ks else 0}")
    e("v_lshlrev_b32 v23, 2, v3\ns_nop 7\nv_add_f32 v32, v32, v33\nv_add_f32 v36, v36, v37\ns_mov_b64 exec, 0xffff\nds_write_b32 v23, v32 offset:36864\nds_write_b32 v23, v36 offset:36928\ns_mov_b64 exec, -1")
    for n in range(N5):
        for x in wload6(n): emit(x)
    e("s_waitcnt lgkmcnt(0)\ns_barrier")
    setup6()
    e.wait(vm="all")
    if not EARLY: e("s_barrier")
    poll(2, 249)
    e("s_barrier")
    e(f"{Lp6}:")
    globals()["NST"] = nst_main
    e.vm = vm_p6; e.lg = []
    stamp(e)
    def X(t4, ks):
        i = ks*4 + t4
        return vr(4*i, 4, "a") if i < 64 else vr(XV + 4*(i-64))
    XS = OPT.get("xs", (0, 4, 10))
    stamp(e, lvl=4)
    def xdma(i):
        L = []
        if i % 4 == 0: L.append(("s", f"s_add_u32 m0, s32, {i*1024}\n" + ("s_add_u32 s40, s40, 4096" if i else "s_nop 0")))
        L.append(("v", f"buffer_load_dwordx4 v4, s[8:11], s40 offen offset:{(i&3)*1024} sc1 lds", ("xd", sum(1 for b in XS if b <= i) - 1)))
        return L
    X0 = OPT.get("x0", 18)
    for i in range(X0):
        for x in xdma(i): emit(x)
    sqld = [("v", f"buffer_load_dwordx2 {vr(TT+6*tp+2*c,2)}, v6, s[8:11], s37 offen offset:{2048*tp + 128*c} sc1", "q") for tp in range(2) for c in range(3)]
    late = [xdma(i) for i in range(X0, 18)] + [[x] for x in sqld]
    def bread(ks, hb):
        out = []
        for t4 in range(4):
            off = (t4*18 + ks)*1024
            base = (4, 11) if not hb else (12, 13)
            breg = base[0] if off < 36864 else base[1]
            out.append(("l", f"ds_read_b128 {X(t4,ks)}, v{breg} offset:{off % 36864}", ("b", hb, ks)))
        return out
    def const_fill():
        e2 = Em()
        R = [TT+12+t for t in range(4)]
        for t4 in range(4):
            b = TT + 6*(t4 >> 1) + (t4 & 1)
            e2(f"v_add_f32 v{R[t4]}, v{b}, v{b+2}\nv_add_f32 v{R[t4]}, v{R[t4]}, v{b+4}")
        red_g(e2, R, [TMP+t for t in range(4)])
        for r in R: e2(f"v_mul_f32 v{r}, {fhex(1/576)}, v{r}")
        for r in R: e2(f"v_add_f32 v{r}, {fhex(EPS)}, v{r}")
        for r in R: e2(f"v_rsq_f32 v{r}, v{r}")
        e2("s_nop 0")
        for t4 in range(4): gelu_consts(e2, R[t4], KC+t4, KC+4+t4, KC+8+t4)
        return [("wv", "q")] + [("s", l.strip()) for l in e2.L]
    def gelu_fill(ft):
        L = []
        for t4 in range(4):
            L += [("s", l) for l in gelu4(TT+4*t4, TMP, KC+t4, KC+4+t4, KC+8+t4)]
            L += [("s", f"v_cvt_pk_bf16_f32 v{PK+2*t4}, v{TMP}, v{TMP+1}"), ("s", f"v_cvt_pk_bf16_f32 v{PK+2*t4+1}, v{TMP+2}, v{TMP+3}")]
            L += [("l", f"ds_write_b64 v{8 + (t4>>1)}, {vr(PK+2*t4,2)} offset:{ft*2048 + (t4&1)*18432}", ("h", ft))]
        return L
    def out_fill(b):
        dt = ORD[b]
        L = [("s", f"s_add_u32 s35, s34, {dt*2048}")]
        for tp in range(2):
            for h in range(2):
                a = TT + 4*(2*tp+h)
                L += [("s", f"v_cvt_pk_bf16_f32 v{PK+4*tp+2*h}, v{a}, v{a+1}"), ("s", f"v_cvt_pk_bf16_f32 v{PK+4*tp+2*h+1}, v{a+2}, v{a+3}")]
            L += [("v", f"buffer_store_dwordx4 {vr(PK+4*tp)}, v4, s[8:11], s35 offen offset:{tp*1024} {OPT.get('sc_part','sc1')}", "st")]
            L += [("l", f"ds_write_b128 v14, {vr(PK+4*tp)} offset:{(dt*2+tp)*1024}", "o")]
        return L
    def block(blk, fill, G0=4, G1=66, pre=None, post=None, ramp0=0):
        nf = len(fill); fi = 0
        for ks in range(18):
            n = blk*18 + ks
            lgw = None
            if (blk, ks) in OPT.get("pts", ()): stamp(e, lvl=3)
            if pre:
                for x in pre(ks): emit(x)
                lgw = [("b", False, ks), ("b", True, ks)]
            WG_ = OPT.get("wgrp", 2)
            e.wait(vm=[("w", n+j) for j in range(WG_)] if ks % WG_ == 0 else None, lg=lgw)
            for t4 in range(4):
                d = vr(TT+4*t4) if ks == 17 else vr(AC+4*t4)
                c = vr(AC+4*t4) if ks else "0"
                e(f"{M16} {d}, {vr(RING+4*(n % NPF))}, {X(t4,ks)}, {c}")
                gap = ks*4 + t4
                if ks >= ramp0 and t4 in (1, 3) and st5["n"] < NT and st5["n"] < n + NPF + (t4 == 3):
                    for x in wload6(st5["n"]): emit(x)
                    st5["n"] += 1
                if t4 == 3 and post:
                    for x in post(ks): emit(x)
                if gap >= G0:
                    tgt = min(nf, -(-nf*(gap - G0 + 1) // (G1 - G0)))
                    while fi < tgt: emit(fill[fi]); fi += 1
        assert fi == nf
    AH = 2
    def pre0(ks):
        L = []
        tgt = [ks + AH] if ks else list(range(AH + 1))
        for k in tgt:
            if k < 18:
                if k in XS: L += [("wv", ("xd", XS.index(k))), ("s", "s_barrier"), ("st", 4)]
                L += bread(k, False)
        return L
    stamp(e, lvl=4)
    def post0(ks):
        L = []
        for _ in range(3):
            if late: L += late.pop(0)
        return L
    block(0, const_fill(), 36, 66, pre=pre0, post=post0, ramp0=OPT.get("ramp0", 0))
    assert not late
    stamp(e, lvl=4)
    stamp(e)
    if not OPT.get('pts'): stamp(e, lvl=3)
    for ft in range(1, 8):
        block(ft, gelu_fill(ft-1), OPT.get('g0', 4), OPT.get('g1', 66))
        if ft in (1, 3, 5, 7) and not OPT.get('pts'): stamp(e, lvl=3)
        if ft in (1, 2): stamp(e, lvl=4)
    e.wait(lg="all")
    e("s_barrier")
    block(8, gelu_fill(7), post=lambda ks: bread(ks, True) if ks < 14 else [])
    stamp(e)
    def pre9(ks):
        L = []
        if ks == 12: L += [("wl", ("h", 8)), ("s", "s_barrier")] + bread(14, True) + bread(15, True)
        if ks == 13: L += bread(16, True) + bread(17, True)
        return L
    if not OPT.get('pts'): stamp(e, lvl=3)
    block(9, gelu_fill(8), 3, 46, pre=pre9)
    if not OPT.get('pts'): stamp(e, lvl=3)
    e2 = Em()
    e2.srd(12, 22, A_)
    e2(f"""s_lshl_b32 s38, s26, 2
s_add_u32 s38, s38, s24
s_mul_i32 s38, s38, 9
s_mul_i32 s39, s3, 3
s_add_u32 s38, s38, s39
s_lshl_b32 s38, s38, 1
s_add_u32 s38, s38, s29
s_lshl_b32 s38, s38, 10
s_add_u32 s38, s38, {PART}
s_mul_i32 s40, s25, {32*1152}
s_lshl_b32 s36, s27, 5
s_add_u32 s40, s40, s36
v_bfe_u32 v5, v3, 2, 1
v_lshlrev_b32 v5, 4, v5
v_lshrrev_b32 v7, 3, v3
v_lshl_add_u32 v5, v7, 2, v5
v_and_b32 v7, 3, v3
v_add_u32 v5, v5, v7
v_mul_u32_u24 v6, 1152, v5
v_lshl_add_u32 v6, v2, 3, v6
v_add_u32 v7, 9216, v6
v_add_u32 v11, 4096, v4
s_mul_i32 s41, s24, 18432
s_mul_i32 s42, s3, 6144
s_add_u32 s41, s41, s42
s_lshl_b32 s42, s29, 10
s_add_u32 s41, s41, s42
v_add_u32 v9, s41, v4
v_mov_b32 v250, 1
v_mov_b32 v251, 0
s_lshl_b32 s44, s26, 9
s_lshl_b32 s45, s24, 5
s_add_u32 s45, s45, s44
v_and_b32 v247, 7, v1
v_lshlrev_b32 v247, 2, v247
v_add_u32 v247, s45, v247
s_lshl_b32 s45, s3, 5
s_add_u32 s44, s44, s45
s_lshl_b32 s45, s28, 2
s_add_u32 s44, s44, s45
s_add_u32 s44, s44, {FLG + 3*8192}
s_mov_b32 s45, {FLG + 3*8192}""")
    e2(f"s_mov_b32 s48, s8\ns_mov_b32 s49, s9\ns_mov_b32 s51, 0x00020000")
    for i in range(7):
        e2(f"s_add_u32 s42, s28, {i+1}\ns_and_b32 s42, s42, 7\ns_mul_i32 s42, s42, {A_}\ns_add_u32 s{52+i}, s42, s38")
    setup7 = [("s", l.strip()) for l in e2.L] + [("s", f"s_cmp_eq_u32 s3, 3\ns_cselect_b32 s50, 0, {WS_SIZE}")]
    def flag_store(off):
        return [("s", "s_mov_b64 exec, 1"), ("v", f"buffer_store_dword v250, v251, s[8:11], s44 offen offset:{off} sc1", "f"), ("s", "s_mov_b64 exec, -1")]
    def poll7(off, first_tag=None):
        Lp = e.label("poll"); Ld = e.label("pd")
        if first_tag:
            e.wait(vm=first_tag)
            e(f"v_cmp_ne_u32 vcc, 1, v252\ns_cbranch_vccz {Ld}")
        e(f"""s_mov_b32 s47, 0x40000
{Lp}:
buffer_load_dword v252, v247, s[8:11], s45 offen offset:{off} sc1
s_waitcnt vmcnt(0)
v_cmp_ne_u32 vcc, 1, v252
s_cbranch_vccz {Ld}
s_sub_u32 s47, s47, 1
s_cbranch_scc0 {Lp}
{Ld}:""")
        if not first_tag: e.vm = []
    FK, PKS, G2 = OPT.get("fk", 1), OPT.get("pks", 14), OPT.get("g2", 28)
    def slot(i): return RING + 4*((292 + i) % NPF)
    def rload(i):
        return [("v", f"buffer_load_dwordx4 {vr(slot(i))}, v4, s[48:51], s{52 + i % 7} offen offset:{2048*(i//7)} sc1", ("r", i))]
    def chk(off):
        Lp = e.label("poll"); Ld = e.label("pd")
        return [("wv", "pa"), ("s", f"""v_cmp_ne_u32 vcc, 1, v252
s_cbranch_vccz {Ld}
s_mov_b32 s47, 0x40000
{Lp}:
buffer_load_dword v252, v247, s[8:11], s45 offen offset:{off} sc1
s_waitcnt vmcnt(0)
v_cmp_ne_u32 vcc, 1, v252
s_cbranch_vccz {Ld}
s_sub_u32 s47, s47, 1
s_cbranch_scc0 {Lp}
{Ld}:""")]
    def pa(off): return [("v", f"buffer_load_dword v252, v247, s[8:11], s45 offen offset:{off} sc1", "pa")]
    S = dict(sigA=13*18+1, paA=15*18+10, chkA=16*18, sigB=16*18+1, paB=16*18+14, chkB=17*18, stepB=2)
    S.update(OPT.get("sched", {}))
    ev_pre = {}
    def add(pos, L): ev_pre.setdefault(pos, []).extend(L)
    add(S["sigA"], [("wv", ("stf", 3))] + flag_store(0))
    add(S["paA"], pa(0)); add(S["chkA"], None or [("chk", 0)])
    add(S["sigB"], [("wv", ("stf", 6))] + flag_store(128))
    add(S["paB"], pa(128)); add(S["chkB"], [("chk", 128)])
    ev_post = {}
    for i in range(7): ev_post.setdefault(max(S["chkA"], 292) + i, []).extend(rload(i))
    for i in range(7): ev_post.setdefault(min(S["chkB"] + S["stepB"]*i, 323), []).extend(rload(7 + i))
    for dt in range(1, 9):
        fill = out_fill(dt-1)
        if dt == 1: fill = fill + setup7
        if dt in (3, 6): fill = [(x[0], x[1], ("stf", dt)) if x[0] == "v" else x for x in fill]
        def pre(ks, b=9+dt):
            L = []
            for x in ev_pre.get(b*18 + ks, []): L += chk(x[1]) if x[0] == "chk" else [x]
            return L
        post = lambda ks, b=9+dt: ev_post.get(b*18 + ks, [])
        block(9+dt, fill, 4, 66 if dt == 1 else G2, pre=pre, post=post)
        if dt in (1, 2, 4, 6, 8) and not OPT.get('pts'): stamp(e, lvl=3)
    stamp(e)
    e("s_nop 7")
    for x in out_fill(8): emit(x)
    def accum(x, a): e(f"v_lshlrev_b32 v8, 16, v{x}\nv_and_b32 v5, 0xffff0000, v{x}\nv_add_f32 v{a}, v{a}, v8\nv_add_f32 v{a+1}, v{a+1}, v5")
    for k in range(3):
        for j in range(4):
            x = BASE + 4*k + j; a = 16 + 8*k + 2*j
            e(f"v_lshlrev_b32 v{a}, 16, v{x}\nv_and_b32 v{a+1}, 0xffff0000, v{x}")
    e.wait(vm="st", lg="all")
    for x in flag_store(256): emit(x)
    Lep = e.label("ep")
    e(f"s_barrier\ns_cmp_eq_u32 s3, 3\ns_cbranch_scc1 {Lep}")
    for k in range(3): e.lgop(f"ds_read_b128 {vr(48+4*k)}, v9 offset:{2048*k}", "p")
    for i in range(14):
        for j in range(4): accum(slot(i) + j, 16 + 8*(i // 7) + 2*j)
    e.wait(lg="all")
    for k in range(3):
        for j in range(4): accum(48 + 4*k + j, 16 + 8*k + 2*j)
    def fin(k):
        for j in range(4): e(f"v_cvt_pk_bf16_f32 v{48+4*k+j}, v{16+8*k+2*j}, v{17+8*k+2*j}")
        e(f"buffer_store_dwordx2 {vr(48+4*k,2)}, v6, s[12:15], s40 offen offset:{32*k} {OPT.get('sc_out','')}\nbuffer_store_dwordx2 {vr(50+4*k,2)}, v7, s[12:15], s40 offen offset:{32*k} {OPT.get('sc_out','')}")
    stamp(e, lvl=2)
    poll7(256)
    stamp(e)
    for sl in range(7):
        e.vmop(f"buffer_load_dwordx4 {vr(64+4*sl)}, v11, s[8:11], s{52+sl} offen sc1", sl)
    fin(0); fin(1)
    e.vm += ["o"]*4
    for sl in range(7):
        e.wait(vm=sl)
        for j in range(4): accum(64 + 4*sl + j, 32 + 2*j)
    fin(2)
    e(f"{Lep}:")
    epi(e, name, Lend, 3, 512, 256)
    e.add_launch(name, 256, lds=147456)

def build(stamp=False, only=None, **opt):
    global STAMP, OPT
    STAMP = stamp; OPT = opt
    e = Em()
    e.L.append(".p2align 8\ncode_begin:\ns_nop 0")
    for k in (only or ["k1", "k3"]): globals()[k](e)
    e.L.append("code_end:\ns_nop 0")
    return finish(e)

if __name__ == "__main__":
    import sys, hazard
    out = "sequential_preLN__spectral_gfnet__mixer_s_mlp__prompt.s"
    txt = build(False)
    open(out, "w").write(txt); open("cur.s", "w").write(txt)
    errs = hazard.check(txt.split("\n")) + hazard.check_async(txt.split("\n"))
    print("\n".join(errs[:40])); print(len(errs), "hazards;", len(txt), "bytes")
    open("stamp.s", "w").write(build(True))
```

```python
from common import *
import common
common.castab = lambda: ''
STAMP = False
STAMP_OFF = 200 << 20
OPT = {}
FLG = WS_END
FLG_SZ = 72*1024
FLG2 = FLG + 49152 + 1024
NST = 0
M16 = "v_mfma_f32_16x16x32_bf16"

def stamp(e, first=False, lvl=0):
    global NST
    if not STAMP: return
    if (lvl != OPT.get("lvl", 0) and not (lvl == -1 and OPT.get("lvl", 0) < 2)) and not first: return
    assert NST < 15
    e(f"{'s_memtime' if (lvl == 3) else 's_memrealtime'} s[{60+2*NST}:{61+2*NST}]")
    if not first: e("s_waitcnt lgkmcnt(0)"); e.lg = []
    NST += 1

def pro(e, name, ngrid, x=False, T=False, extra=()):
    global NST
    e.begin(name)
    Lend = e.label("end")
    e(f"s_cmp_ge_u32 s2, {ngrid}\ns_cbranch_scc1 {Lend}")
    NST = 0
    stamp(e, True)
    e("s_load_dwordx2 s[4:5], s[0:1], 80")
    if x: e("s_load_dwordx2 s[6:7], s[0:1], 0")
    for (sreg, off) in extra: e(f"s_load_dwordx2 s[{sreg}:{sreg+1}], s[0:1], {off}")
    if T:
        e("s_getpc_b64 s[16:17]\ns_add_u32 s16, s16, castab@rel32@lo+4\ns_addc_u32 s17, s17, castab@rel32@hi+12")
        e("s_and_b32 s17, s17, 0xffff\ns_mov_b32 s18, 663552\ns_mov_b32 s19, 0x00020000")
    e("""v_lshrrev_b32 v5, 6, v0
v_and_b32 v1, 63, v0
v_readfirstlane_b32 s3, v5
v_lshrrev_b32 v2, 4, v1
v_and_b32 v3, 15, v1
v_lshlrev_b32 v4, 4, v1""")
    return Lend
def burn(e, n):
    L = e.label("burn")
    e(f"s_mov_b32 s58, {n}\n{L}:")
    for i in range(32): e(f"v_fma_f32 v{40+i%8}, v{40+i%8}, v{40+i%8}, v{40+i%8}")
    e(f"s_sub_u32 s58, s58, 1\ns_cmp_lg_u32 s58, 0\ns_cbranch_scc1 {L}")

def pro2(e, x=False):
    e("s_waitcnt lgkmcnt(0)")
    e.srd(8, 4, WS_SIZE)
    if x: e.srd(12, 6, A_)

def dump(e, slot):
    if STAMP:
        e(f"""s_waitcnt vmcnt(0) lgkmcnt(0)
s_mov_b64 exec, 1
s_memrealtime s[90:91]
s_lshl_b32 s92, s2, 2
s_add_u32 s92, s92, s3
s_lshl_b32 s92, s92, 7
s_add_u32 s92, s92, {STAMP_OFF + slot*(1<<20)}
s_waitcnt lgkmcnt(0)
v_mov_b32 v100, 0""")
        for k in range(8):
            for j in range(4): e(f"v_mov_b32 v{96+j}, s{60+4*k+j}")
            e(f"buffer_store_dwordx4 v[96:99], v100, s[8:11], s92 offen offset:{16*k}\ns_nop 1")
        e("s_mov_b64 exec, -1")

def epi(e, name, Lend, slot, vgpr, accum):
    dump(e, slot)
    e(f"{Lend}:")
    e.end(name, vgpr, accum, 96)

def red_g(e, regs, tmps):
    for sw in ("v_permlane32_swap_b32", "v_permlane16_swap_b32"):
        for v, t in zip(regs, tmps): e(f"v_mov_b32 v{t}, v{v}")
        e("s_nop 1" if len(regs) < 3 else "s_nop 0")
        for v, t in zip(regs, tmps): e(f"{sw} v{v}, v{t}")
        if len(regs) < 2: e("s_nop 0")
        for v, t in zip(regs, tmps): e(f"v_add_f32 v{v}, v{v}, v{t}")

def sdiv(e, d, q, r, x, tmp):
    m = (1 << 32) // d + 1
    e(f"s_mul_hi_u32 s{q}, s{x}, {m}\ns_mul_i32 s{tmp}, s{q}, {d}\ns_sub_u32 s{r}, s{x}, s{tmp}")

C0 = -2.0*math.sqrt(2.0/math.pi)*math.log2(math.e)
C1 = C0*0.044715
def gelu_consts(e, r, K0, K1, IR):
    e(f"v_rcp_f32 v{IR}, v{r}\nv_mul_f32 v{K0}, {fhex(C0)}, v{r}\nv_mul_f32 v{K1}, v{r}, v{r}\nv_mul_f32 v{K1}, v{K1}, v{r}\nv_mul_f32 v{K1}, {fhex(C1)}, v{K1}")
def gelu4(a, tmp, K0, K1, IR):
    L = []
    L += [f"v_mul_f32 v{tmp+r}, v{a+r}, v{a+r}" for r in range(4)]
    L += [f"v_fma_f32 v{tmp+r}, v{tmp+r}, v{K1}, v{K0}" for r in range(4)]
    L += [f"v_mul_f32 v{tmp+r}, v{tmp+r}, v{a+r}" for r in range(4)]
    L += [f"v_exp_f32 v{tmp+r}, v{tmp+r}" for r in range(4)]
    L += [f"v_fma_f32 v{tmp+r}, v{tmp+r}, v{IR}, v{IR}" for r in range(4)]
    L += [f"v_rcp_f32 v{tmp+r}, v{tmp+r}" for r in range(4)]
    L += [f"v_mul_f32 v{tmp+r}, v{tmp+r}, v{a+r}" for r in range(4)]
    return L


def tgen(e, j0s, TB, ST, us=(0, 1, 2), hook=None, agpr=None, init=None):
    S0, S1, FA, C1r, C32r, P0, K8, Q = ST, ST+8, ST+16, ST+17, ST+18, ST+19, ST+20, ST+21
    if (0 in us) or init: e(f"s_lshl_b32 s17, s{j0s}, 4\nv_add_u32 v{FA}, s17, v3\nv_cvt_f32_u32 v{FA}, v{FA}\nv_lshlrev_b32 v{Q+1}, 3, v2\nv_cvt_f32_u32 v{Q+1}, v{Q+1}\nv_mov_b32 v{K8}, 0x3e000000")
    for u in us:
        if u: e(f"v_add_f32 v{FA}, 0x41800000, v{FA}")
        e(f"""v_mul_f32 v{C1r}, {fhex(1/576)}, v{FA}
v_mul_f32 v{C32r}, {fhex(1/18)}, v{FA}
v_mul_f32 v{P0}, v{FA}, v{Q+1}
v_floor_f32 v{C32r}, v{C32r}
v_cos_f32 v{C1r}, v{C1r}
v_fmamk_f32 v{C32r}, v{C32r}, {fhex(-18.0)}, v{FA}
v_mul_f32 v{C32r}, {fhex(1/18)}, v{C32r}""")
        sd = [(S0, 0), (S0+1, 1), (S1, 32), (S1+1, 33)]
        for r, k in sd: e(f"v_fmamk_f32 v{r}, v{FA}, {fhex(float(k))}, v{P0}")
        e(f"v_cos_f32 v{C32r}, v{C32r}")
        for r, k in sd: e(f"v_mul_f32 v{r+2}, {fhex(1/576)}, v{r}")
        e(f"v_add_f32 v{C1r}, v{C1r}, v{C1r}")
        for r, k in sd: e(f"v_floor_f32 v{r+2}, v{r+2}")
        e(f"v_add_f32 v{C32r}, v{C32r}, v{C32r}")
        for r, k in sd: e(f"v_fmamk_f32 v{r}, v{r+2}, {fhex(-576.0)}, v{r}")
        for r, k in sd: e(f"v_fmamk_f32 v{r}, v{r}, {fhex(1/576)}, v{K8}")
        for r, k in sd: e(f"v_sin_f32 v{r}, v{r}")
        e("s_nop 0")
        for i in range(2, 8):
            for S in (S0, S1): e(f"v_fma_f32 v{S+i}, v{C1r}, v{S+i-1}, -v{S+i-2}")
        for ks in range(9):
            S = S0 if ks % 2 == 0 else S1; O = S1 if ks % 2 == 0 else S0
            if ks >= 2:
                for i in range(8): e(f"v_fma_f32 v{S+i}, v{C32r}, v{O+i}, -v{S+i}")
            if agpr is None:
                for m in range(4): e(f"v_cvt_pk_bf16_f32 v{TB+(ks*3+u)*4+m}, v{S+2*m}, v{S+2*m+1}")
            else:
                for m in range(4): e(f"v_cvt_pk_bf16_f32 v{ST+24+m}, v{S+2*m}, v{S+2*m+1}")
                for m in range(4): e(f"v_accvgpr_write_b32 a{agpr+4*ks+m}, v{ST+24+m}")
            if hook: hook(u, ks)

def pack_job(e, ldflag, stflag):
    e(f"s_mul_i32 s40, s35, {3*73728}\ns_add_u32 s36, s36, s40")
    e("s_mul_i32 s40, s34, s33\ns_mul_i32 s41, s35, 384\ns_add_u32 s40, s40, s41")
    e("""v_lshrrev_b32 v6, 3, v1
v_mul_lo_u32 v6, v6, s33
v_and_b32 v7, 7, v1
v_lshl_add_u32 v6, v7, 4, v6
s_lshl_b32 s41, s33, 3
s_mul_i32 s39, s39, s33
s_mul_i32 s42, s3, 12288""")
    for f in range(4):
        for it in range(3):
            e(f"s_add_u32 m0, s42, {it*4096 + f*1024 - it*128}")
            e(f"s_add_u32 s40, s40, s{39 if f == 2 else 41}" if (it == 0 and f) else "s_nop 0")
            e.vmop(f"buffer_load_dwordx4 v6, s[12:15], s40 offen offset:{128*it} {ldflag} lds", ("d", 0))
    e("""v_mul_lo_u32 v7, v2, s37
v_lshrrev_b32 v8, 2, v3
v_add_u32 v7, v7, v8
v_lshlrev_b32 v7, 7, v7
v_and_b32 v8, 3, v3
v_lshl_add_u32 v7, v8, 3, v7
v_add_u32 v7, s42, v7
s_lshl_b32 s43, s38, 7
v_add_u32 v8, s43, v7
v_add_u32 v9, 18432, v4
v_add_u32 v10, 36864, v4
v_add_u32 v11, 55296, v4""")
    nst_save = NST; globals()["NST"] = 1
    stamp(e, lvl=-1)
    for it in range(3):
        e.wait(vm=("d", it))
        if it == 0: stamp(e, lvl=-1)
        for tt in range(4):
            o = 16 + 16*it + 4*tt
            e.lgop(f"ds_read_b64_tr_b16 {vr(o,2)}, v7 offset:{it*4096 + 32*tt}", (it, tt))
            e.lgop(f"ds_read_b64_tr_b16 {vr(o+2,2)}, v8 offset:{it*4096 + 32*tt}", (it, tt))
        for tt in range(4):
            e.wait(lg=(it, tt))
            e.vmop(f"buffer_store_dwordx4 {vr(16 + 16*it + 4*tt)}, v{(4,9,10,11)[tt]}, s[8:11], s36 offen {stflag}", "st")
        if it < 2: e("s_add_u32 s36, s36, 73728")
    globals()["NST"] = nst_save
    e.vm = []; e.lg = []

def code_srd(e, d, label, nbytes):
    e(f"s_getpc_b64 s[{d}:{d+1}]\ns_add_u32 s{d}, s{d}, {label}@rel32@lo+4\ns_addc_u32 s{d+1}, s{d+1}, {label}@rel32@hi+12")
    e(f"s_and_b32 s{d+1}, s{d+1}, 0xffff\ns_mov_b32 s{d+2}, {nbytes}\ns_mov_b32 s{d+3}, 0x00020000")

def touch(e, srd, sreg, nbytes, vaddr, vd, stride=64):
    n = -(-nbytes // stride); i = 0
    while n > 0:
        if n < 64: e(f"s_mov_b32 exec_lo, {hex((1 << min(n,32)) - 1)}\ns_mov_b32 exec_hi, {hex((1 << max(n-32,0)) - 1)}")
        e(f"buffer_load_dword v{vd}, v{vaddr}, s[{srd}:{srd+3}], s{sreg} offen")
        n -= 64; i += 1
        if n > 0: e(f"s_add_u32 s{sreg}, s{sreg}, {64*stride}")
    e("s_mov_b64 exec, -1")

def k1(e):
    name = "k1_kernel"
    N3 = 0
    NS = 256
    Lend = pro(e, name, 256 + NS, x=True, extra=((20, 8), (22, 16), (24, 32), (26, 40), (28, 48), (30, 56), (18, 64)))
    def cpf0():
        code_srd(e, 52, "code_begin", "k3_kernel-code_begin")
        e("s_lshr_b32 s44, s2, 3\ns_lshl_b32 s44, s44, 2\ns_add_u32 s44, s44, s3\ns_and_b32 s44, s44, 15\ns_lshl_b32 s44, s44, 10")
        if OPT.get("cpf0", 1) == 3: e("s_cmp_lt_u32 s2, 64\ns_cselect_b32 s54, s54, 0")
        e.vmop("buffer_load_dwordx4 v[196:199], v4, s[52:55], s44 offen", "c")
    if OPT.get("cpf0", 1) in (1, 3): cpf0()
    if OPT.get("burn1"): burn(e, OPT["burn1"])
    Lside = e.label("side"); Lst = e.label("stats"); Lep = e.label("ep")
    ACC, BF, NB, TB = 16, 64, 3, 88
    def acc(h, u, t): return ACC + h*24 + (u*2+t)*4
    e(f"s_cmp_ge_u32 s2, 256\ns_cbranch_scc1 {Lside}")
    if OPT.get("cpf0", 1) == 2: cpf0()
    e("""s_bfe_u32 s34, s2, 0x20003
s_and_b32 s35, s2, 7
s_lshl_b32 s35, s35, 3
s_lshr_b32 s39, s2, 5
s_add_u32 s35, s35, s39
s_lshr_b32 s36, s35, 5
s_bfe_u32 s37, s35, 0x20003
s_and_b32 s38, s35, 7
s_lshl_b32 s40, s36, 5
s_lshr_b32 s41, s3, 1
s_lshl_b32 s41, s41, 4
s_add_u32 s40, s40, s41
s_lshl_b32 s41, s37, 2
s_add_u32 s40, s40, s41
s_lshl_b32 s40, s40, 5
s_lshl_b32 s41, s38, 2
s_add_u32 s40, s40, s41
v_lshrrev_b32 v5, 3, v1
v_and_b32 v7, 3, v5
v_lshlrev_b32 v7, 5, v7
v_lshrrev_b32 v6, 2, v5
s_and_b32 s41, s3, 1
s_lshl_b32 s41, s41, 1
s_add_u32 s41, s41, s40
v_add3_u32 v6, v6, v7, s41
v_mul_u32_u24 v7, 1152, v6
v_and_b32 v5, 6, v5
v_and_b32 v6, 7, v1
v_xor_b32 v6, v6, v5
v_lshl_add_u32 v7, v6, 4, v7
s_mul_i32 s42, s3, 9216
s_mul_i32 s44, s34, 9
s_mul_i32 s45, s3, 3
s_add_u32 s44, s44, s45""")
    et = Em(); tgen(et, 44, TB, 16)
    NPRE = OPT.get("npre", 0)
    e.L += et.L[:NPRE]
    pro2(e, x=True)
    XM = OPT.get("xm", (0,)*9)
    def xstage(ks):
        if ks % 2 == 0 and ks and XM[ks // 2] != XM[ks // 2 - 1]:
            e.wait(vm=("dma", XM[ks // 2]))
            e("s_barrier")
    for idx in range(9):
        e(f"s_add_u32 m0, s42, {idx*896}\ns_nop 0")
        e.vmop(f"buffer_load_dwordx4 v7, s[12:15], 0 offen offset:{128*idx} {OPT.get('ld_x','')} lds", ("dma", XM[idx]))
    e("""v_lshrrev_b32 v13, 3, v3
v_mul_u32_u24 v13, 9216, v13
v_and_b32 v14, 7, v3
v_lshl_add_u32 v13, v14, 7, v13
v_and_b32 v14, 6, v3
v_xor_b32 v14, v14, v2
v_lshl_add_u32 v14, v14, 4, v13
v_xor_b32 v15, 64, v14""")
    e(f"s_cmp_eq_u32 s3, 3\ns_cbranch_scc1 {Lst}")
    vm_save = list(e.vm)
    e.L += et.L[NPRE:]
    e(f"""v_lshlrev_b32 v8, 12, v3
v_lshl_add_u32 v8, v2, 4, v8
s_lshl_b32 s50, s44, 16
s_lshr_b32 s51, s38, 2
s_lshl_b32 s51, s51, 1
s_add_u32 s51, s51, s36
s_lshl_b32 s51, s51, 10
s_add_u32 s50, s50, s51
s_lshl_b32 s51, s37, 8
s_add_u32 s50, s50, s51
s_and_b32 s51, s38, 3
s_lshl_b32 s51, s51, 6
s_add_u32 s50, s50, s51
s_add_u32 s50, s50, {UT}
v_lshlrev_b32 v9, 4, v2
v_lshlrev_b32 v10, 31, v3
v_or_b32 v10, 1.0, v10""")
    stamp(e)
    e.wait(vm=("dma", 0))
    e("s_barrier")
    stamp(e)
    def rd(ks):
        xstage(ks)
        for t in range(2):
            e.lgop(f"ds_read_b128 {vr(BF + ((ks % NB)*2 + t)*4)}, v{14 + (ks & 1)} offset:{t*18432 + (ks >> 1)*1024}", ("b", ks))
    for ks in range(NB-1): rd(ks)
    for ks in range(18):
        if ks + NB - 1 < 18: rd(ks + NB - 1)
        e.wait(lg=("b", ks))
        for u in range(3):
            for t in range(2):
                d = vr(acc(ks // 9, u, t))
                e(f"{M16} {d}, {vr(BF + ((ks % NB)*2 + t)*4)}, {vr(TB + ((ks % 9)*3 + u)*4)}, {d if ks % 9 else 0}")
    stamp(e)
    e("s_barrier")
    stamp(e)
    e.lgop("ds_read_b128 v[76:79], v9 offset:36864", "r"); e.lgop("ds_read_b128 v[80:83], v9 offset:36928", "r")
    e("s_nop 3")
    for u in range(3):
        for t in range(2):
            for r in range(4): e(f"v_fmac_f32 v{acc(0,u,t)+r}, v{acc(1,u,t)+r}, v10")
        e.wait(lg="all")
        for t in range(2):
            for r in range(4): e(f"v_mul_f32 v{acc(0,u,t)+r}, v{acc(0,u,t)+r}, v{76+4*t+r}")
        o = BF + 4*u
        for t in range(2):
            e(f"v_cvt_pk_bf16_f32 v{o+2*t}, v{acc(0,u,t)}, v{acc(0,u,t)+1}\nv_cvt_pk_bf16_f32 v{o+2*t+1}, v{acc(0,u,t)+2}, v{acc(0,u,t)+3}")
        e.vmop(f"buffer_store_dwordx4 {vr(o)}, v8, s[8:11], s50 offen {OPT.get('sc_ut','')}", "st")
        if u < 2: e("s_add_u32 s50, s50, 65536")
    stamp(e)
    if OPT.get("touch34"):
        ts = OPT.get("tstride", 64)
        e.srd(48, 28, 5308416); e.srd(52, 30, 5308416)
        e(f"v_mul_u32_u24 v11, {ts}, v1\ns_mul_i32 s38, s2, 3\ns_add_u32 s38, s38, s3\ns_mul_i32 s38, s38, 6912\ns_mov_b32 s39, s38")
        dump(e, 1)
        touch(e, 48, 38, 6912, 11, 16, ts); touch(e, 52, 39, 6912, 11, 20, ts)
        e("s_endpgm")
    e(f"s_branch {Lep}")
    e(f"{Lst}:")
    e.vm = vm_save; e.lg = []
    def cpf():
        code_srd(e, 52, "code_begin", "code_end-code_begin")
        e("s_lshr_b32 s44, s2, 3\ns_mul_i32 s44, s44, 3072")
        for i in range(3): e.vmop(f"buffer_load_dwordx4 v[{100+4*i}:{103+4*i}], v4, s[52:55], s44 offen offset:{1024*i}", "c")
    if OPT.get("cpf", 2) == 1: cpf()
    if OPT.get("tlb"):
        st_ = OPT["tlb"]
        e.srd(48, 28, 5308416); e.srd(52, 30, 5308416); e.srd(56, 18, A_)
        e(f"v_lshlrev_b32 v11, {st_}, v1")
        n = -(-(FLG + FLG_SZ) >> st_)
        for i in range(-(-n // 64)):
            e(f"s_mov_b32 s44, {i << (st_ + 6)}")
            e.vmop("buffer_load_dword v44, v11, s[8:11], s44 offen", "t")
        for sr in (48, 52, 56): e.vmop(f"buffer_load_dword v44, v11, s[{sr}:{sr+3}], 0 offen", "t")
    for i in range(4): e(f"v_mov_b32 v{36+i}, 0x3f803f80")
    e("v_lshrrev_b32 v8, 2, v3\nv_and_b32 v9, 3, v3")
    for k in sorted(set(XM)):
        e.wait(vm=("dma", k))
        e("s_barrier")
    if OPT.get("cpf", 2) == 2: cpf()
    NR = 6
    def rds(f): e.lgop(f"ds_read_b128 {vr(64+4*(f%NR))}, v{14 + (f & 1)} offset:{(f // 18)*18432 + ((f % 18) >> 1)*1024}", f)
    for f in range(NR-1): rds(f)
    for f in range(36):
        if f + NR - 1 < 36: rds(f + NR - 1)
        e.wait(lg=f)
        t = f // 18; x = vr(64 + 4*(f % NR))
        e(f"{M16} {vr(16+8*t)}, {x}, v[36:39], {vr(16+8*t) if f % 18 else 0}")
        e(f"{M16} {vr(20+8*t)}, {x}, {x}, {vr(20+8*t) if f % 18 else 0}")
    e("v_cmp_eq_u32 s[40:41], 1, v9\nv_cmp_eq_u32 s[42:43], 2, v9\nv_cmp_eq_u32 s[46:47], 3, v9\nv_cmp_eq_u32 s[48:49], v8, v2\ns_nop 4")
    for b in (16, 20, 24, 28):
        e(f"v_cndmask_b32 v{b}, v{b}, v{b+1}, s[40:41]\nv_cndmask_b32 v{b}, v{b}, v{b+2}, s[42:43]\nv_cndmask_b32 v{b}, v{b}, v{b+3}, s[46:47]")
    e(f"v_mov_b32 v32, {fhex(1/576)}")
    for t in range(2):
        b = 16 + 8*t
        e(f"""v_mul_f32 v{b}, v32, v{b}
v_mul_f32 v{b+1}, v{b}, v{b}
v_fma_f32 v{b+4}, v{b+4}, v32, -v{b+1}
v_max_f32 v{b+4}, 0, v{b+4}
v_add_f32 v{b+4}, {fhex(EPS)}, v{b+4}
v_rsq_f32 v{b+4}, v{b+4}""")
    Lns = e.label("nost")
    e(f"""v_lshlrev_b32 v33, 2, v3
s_lshl_b32 s45, s35, 7
s_add_u32 s45, s45, {MX}
s_mov_b64 exec, s[48:49]
ds_write_b32 v33, v20 offset:36864
ds_write_b32 v33, v28 offset:36928
s_cmp_lg_u32 s34, 0
s_cbranch_scc1 {Lns}
buffer_store_dword v16, v33, s[8:11], s45 offen
buffer_store_dword v24, v33, s[8:11], s45 offen offset:64
{Lns}:
s_waitcnt lgkmcnt(0)
s_barrier
s_branch {Lep}""")
    e(f"{Lside}:")
    e.vm = []; e.lg = []
    Lwt, Lrm, L2, Lgo = [e.label(x) for x in ("wt", "rm", "w2", "go")]
    L3, Lgo2, Lpk, Lw1 = e.label("w3"), e.label("go2"), e.label("pk"), e.label("wv1")
    e(f"""s_sub_u32 s32, s2, 256
s_cmp_ge_u32 s3, 2
s_cbranch_scc1 {Lend}
s_waitcnt lgkmcnt(0)
s_cmp_eq_u32 s3, 0
s_cbranch_scc1 {Lwt}
s_cmp_lt_u32 s32, 108
s_cbranch_scc1 {Lpk}
s_add_u32 s32, s32, 148
s_cmp_lt_u32 s32, 288
s_cbranch_scc1 {Lwt}
s_sub_u32 s32, s32, 288
s_cmp_lt_u32 s32, 72
s_cbranch_scc1 {Lrm}
s_branch {Lend}
{Lpk}:""")
    pro2(e)
    e(f"s_cmp_ge_u32 s32, 54\ns_cbranch_scc1 {L2}")
    e.srd(12, 24, 663552)
    e(f"s_mov_b32 s39, {W1P}\ns_branch {Lgo}\n{L2}:\ns_sub_u32 s32, s32, 54")
    e.srd(12, 26, 663552)
    e(f"s_mov_b32 s39, {W2P}\n{Lgo}:")
    sdiv(e, 3, 34, 35, 32, 40)
    e("s_mov_b32 s33, 1152\ns_lshl_b32 s36, s34, 10\ns_add_u32 s36, s36, s39\ns_mov_b32 s37, 8\ns_mov_b32 s38, 4\ns_mov_b32 s39, 8\ns_lshl_b32 s34, s34, 5")
    pack_job(e, OPT.get("ld_p12", "nt"), OPT.get("sc_p12", "sc1"))
    e(f"s_branch {Lep}")
    if N3:
        e(f"{L3}:")
        e.srd(12, 28, 5308416); sdiv(e, 24, 34, 35, 32, 40)
        e(f"s_mov_b32 s33, 9216\ns_lshl_b32 s36, s34, 10\ns_add_u32 s36, s36, {W3P}\ns_mov_b32 s37, 8\ns_mov_b32 s38, 4\ns_mov_b32 s39, 8\ns_lshl_b32 s34, s34, 5")
        pack_job(e, OPT.get("ld_pk", "nt"), OPT.get("sc_pk", "sc1"))
        e(f"s_branch {Lep}")
    e(f"{Lrm}:")
    e.srd(8, 4, WS_SIZE)
    e.srd(12, 26, 663552)
    e("""v_lshrrev_b32 v6, 3, v1
v_mul_u32_u24 v7, 1152, v6
v_and_b32 v8, 7, v1
v_lshl_add_u32 v7, v8, 4, v7
s_mul_i32 s33, s32, 9216
s_mov_b32 s34, 0x3f803f80
v_mov_b32 v9, 0""")
    for m in range(9): e.vmop(f"buffer_load_dwordx4 {vr(16+4*m)}, v7, s[12:15], s33 offen offset:{128*m}", m)
    Lnz = e.label("nz")
    e(f"s_cmp_ge_u32 s32, 72\ns_cbranch_scc1 {Lnz}\nv_mov_b32 v56, 0\nv_mov_b32 v57, 0\nv_mov_b32 v58, 0\nv_mov_b32 v59, 0\ns_lshl_b32 s38, s32, 10\ns_add_u32 s38, s38, {FLG}")
    e(f"buffer_store_dwordx4 v[56:59], v4, s[8:11], s38 offen\n{Lnz}:")
    e.wait(vm="all")
    for j in range(36): e(f"v_dot2_f32_bf16 v9, v{16+j}, s34, v9")
    e(f"""s_nop 3
v_add_f32_dpp v9, v9, v9 quad_perm:[1,0,3,2] row_mask:0xf bank_mask:0xf
s_nop 1
v_add_f32_dpp v9, v9, v9 quad_perm:[2,3,0,1] row_mask:0xf bank_mask:0xf
s_nop 1
v_add_f32_dpp v9, v9, v9 row_half_mirror row_mask:0xf bank_mask:0xf
v_mul_f32 v9, {fhex(1/576)}, v9
v_cvt_pk_bf16_f32 v10, v9, v9
v_and_b32 v11, 0xffff0000, v10
v_sub_f32 v9, v9, v11
v_cvt_pk_bf16_f32 v9, v9, v9
v_lshlrev_b32 v6, 1, v6
s_lshl_b32 s33, s32, 8
s_add_u32 s33, s33, {W2P + 36*18432}
v_cmp_eq_u32 vcc, 0, v8
s_nop 1
s_and_saveexec_b64 s[36:37], vcc
buffer_store_short v10, v6, s[8:11], s33 offen
buffer_store_short v9, v6, s[8:11], s33 offen offset:16
s_branch {Lep}""")
    e(f"{Lwt}:")
    e.srd(8, 4, WS_SIZE)
    e.srd(12, 20, 1183744); e.srd(16, 22, 1183744)
    e(f"""s_and_b32 s45, s32, 1
s_bfe_u32 s40, s32, 0x40001
s_lshr_b32 s44, s32, 5
s_lshl_b32 s46, s40, 2
v_add_u32 v5, s46, v2
v_mul_u32_u24 v5, 578, v5
v_lshl_add_u32 v6, v3, 2, v5
s_lshl_b32 s46, s44, 6
s_add_u32 s46, s46, 2
s_mul_i32 s41, s45, {8*36992}
s_add_u32 s46, s46, s41""")
    for j in range(16):
        if j: e(f"s_add_u32 s46, s46, {36992*(9 if j == 8 else 1)}")
        e.vmop(f"buffer_load_dword v{64+j}, v6, s[12:15], s46 offen {OPT.get('ld_w','nt')}", "wt")
        e.vmop(f"buffer_load_dword v{80+j}, v6, s[16:19], s46 offen {OPT.get('ld_w','nt')}", "wt")
    e(f"""s_lshl_b32 s36, s44, 18
s_lshr_b32 s41, s40, 2
s_lshl_b32 s41, s41, 11
s_add_u32 s36, s36, s41
s_and_b32 s41, s40, 3
s_lshl_b32 s41, s41, 7
s_add_u32 s36, s36, s41
s_lshl_b32 s41, s45, 10
s_add_u32 s36, s36, s41
s_add_u32 s36, s36, {WT}
s_mov_b32 s40, 0x05040100
s_mov_b32 s41, 0x07060302
s_mul_i32 s42, s3, 12288
v_lshlrev_b32 v5, 8, v3
v_lshl_add_u32 v5, v2, 5, v5
v_add_u32 v5, s42, v5
v_add_u32 v8, s42, v4
v_lshrrev_b32 v6, 3, v1
v_lshlrev_b32 v6, 13, v6
v_and_b32 v7, 7, v1
v_lshl_add_u32 v6, v7, 4, v6""")
    e.wait(vm="all")
    for gl in range(2):
        for h in range(2):
            for tk in range(2):
                o = 16 + ((gl*2 + h)*2 + tk)*4
                for r in range(4):
                    j = 8*tk + 4*gl + r
                    e(f"v_perm_b32 v{o+r}, v{80+j}, v{64+j}, s{40+h}")
                e.lgop(f"ds_write_b128 v5, {vr(o)} offset:{gl*4096 + h*128 + tk*16}", "ww")
    e.wait(lg="all")
    for m in range(8): e.lgop(f"ds_read_b128 {vr(64+4*m)}, v8 offset:{m*1024}", ("wr", m))
    for m in range(8):
        e(f"s_add_u32 s45, s36, {(m & 3)*65536 + (m >> 2)*512}")
        e.wait(lg=("wr", m))
        e.vmop(f"buffer_store_dwordx4 {vr(64+4*m)}, v6, s[8:11], s45 offen {OPT.get('sc_wt','')}", "ws")
    NC = OPT.get("chain", 0)
    if NC:
        e(f"s_cmp_ge_u32 s32, {NC}\ns_cbranch_scc1 {Lep}")
        e.srd(12, 28, 5308416); sdiv(e, 24, 34, 35, 32, 40)
        e(f"s_mov_b32 s33, 9216\ns_lshl_b32 s36, s34, 10\ns_add_u32 s36, s36, {W3P}\ns_mov_b32 s37, 8\ns_mov_b32 s38, 4\ns_mov_b32 s39, 8\ns_lshl_b32 s34, s34, 5")
        pack_job(e, OPT.get("ld_pk", "nt"), OPT.get("sc_pk", "sc1"))
    e(f"{Lep}:")
    epi(e, name, Lend, 1, 200, 200)
    e.add_launch(name, 256 + NS, lds=36992)

def p2x2(e):
    e(f"""s_add_u32 s35, s34, 1
s_sub_u32 s46, 287, s34
s_cmp_eq_u32 s34, 143
s_cselect_b32 s46, 288, s46
s_cselect_b32 s14, 0, {WS_SIZE}
s_cselect_b32 s45, 0, s46
s_lshl_b32 s39, s34, 13
s_lshl_b32 s47, s46, 13
s_lshl_b32 s40, s3, 11
s_add_u32 s40, s40, {WT}
s_add_u32 s39, s39, s40
s_add_u32 s47, s47, s40
s_sub_u32 s47, s47, 8192
s_lshl_b32 s38, s35, 13
s_lshl_b32 s45, s45, 13
s_lshl_b32 s35, s35, 12
s_lshl_b32 s46, s46, 12
s_sub_u32 s36, {576*4096}, s35
s_sub_u32 s37, {576*4096}, s46
v_lshlrev_b32 v6, 5, v1
s_cmp_eq_u32 s3, 1
s_cselect_b32 s48, s36, s35
s_cmp_eq_u32 s3, 2
s_cselect_b32 s48, s46, s48
s_cmp_eq_u32 s3, 3
s_cselect_b32 s48, s37, s48
s_cselect_b32 s14, s14, {WS_SIZE}
s_lshl_b32 s49, s3, 12
s_add_u32 m0, s49, 16384""")
    pro2(e)
    e("s_mov_b32 s12, s8\ns_mov_b32 s13, s9\ns_mov_b32 s15, 0x00020000")
    P, Q, WV, RE, IM, PR, PI = (16, 168), (32, 184), (48, 200), (152, 208), (160, 216), (8, 224), (12, 228)
    for f in range(4): e.vmop(f"buffer_load_dwordx4 v4, s[12:15], s48 offen offset:{f*1024} lds", "d")
    for c in range(2):
        e.vmop(f"buffer_load_dwordx4 {vr(WV[c])}, v6, s[8:11], s{(39,47)[c]} offen", ("w", c))
        e.vmop(f"buffer_load_dwordx4 {vr(WV[c]+4)}, v6, s[8:11], s{(39,47)[c]} offen offset:16", ("w", c))
    C64, S64, N64 = 56, 64, 72
    C32, S32, N32 = 80, 88, 96
    TC1, TS1, TC2, TS2 = 104, 112, 120, 128
    TMP = 136
    e("""s_lshl_b32 s40, s3, 4
v_add_u32 v7, s40, v3
v_cvt_f32_u32 v7, v7
v_lshlrev_b32 v5, 2, v2
v_cvt_f32_u32 v5, v5
v_cvt_f32_u32 v6, v3
s_mov_b32 s41, 0x80008000
s_brev_b32 s42, 1
v_and_b32 v0, 1, v3
v_mul_lo_u32 v0, v0, s41""")
    e(f"v_mul_f32 v8, {fhex(1/64)}, v7\nv_mul_f32 v9, v5, v8")
    for i in range(8): e(f"v_fmamk_f32 v{TMP+i}, v8, {fhex(float(16*(i>>2) + (i&3)))}, v9")
    for i in range(8): e(f"v_fract_f32 v{TMP+i}, v{TMP+i}")
    for i in range(8): e(f"v_sin_f32 v{TMP+8+i}, v{TMP+i}")
    for i in range(8): e(f"v_cos_f32 v{TMP+i}, v{TMP+i}")
    for m in range(4): e(f"v_cvt_pk_bf16_f32 v{S64+m}, v{TMP+8+2*m}, v{TMP+9+2*m}")
    for m in range(4): e(f"v_cvt_pk_bf16_f32 v{C64+m}, v{TMP+2*m}, v{TMP+1+2*m}")
    for m in range(4): e(f"v_xor_b32 v{N64+m}, s41, v{S64+m}")
    for b in (C64, S64, N64):
        for m in range(4): e(f"v_xor_b32 v{b+4+m}, v0, v{b+m}")
    tw1 = [f"v_mul_f32 v8, {fhex(1/2048)}, v7", "v_mul_f32 v9, v5, v8"]
    tw1 += [f"v_fmamk_f32 v{TC1+i}, v8, {fhex(float(16*(i>>2)+(i&3)))}, v9" for i in range(8)]
    tw1 += [f"v_sin_f32 v{TS1+i}, v{TC1+i}" for i in range(8)] + [f"v_cos_f32 v{TC1+i}, v{TC1+i}" for i in range(8)]
    for l in tw1: e(l)
    m32 = [f"v_mul_f32 v8, {fhex(1/32)}, v6", "v_mul_f32 v9, v5, v8"]
    m32 += [f"v_fmamk_f32 v{TC2+i}, v8, {fhex(float(i))}, v9" for i in range(4)]
    m32 += [f"v_fract_f32 v{TC2+i}, v{TC2+i}" for i in range(4)]
    m32 += [f"v_sin_f32 v{TC2+4+i}, v{TC2+i}" for i in range(4)] + [f"v_cos_f32 v{TC2+i}, v{TC2+i}" for i in range(4)]
    m32 += [f"v_cvt_pk_bf16_f32 v{S32+m}, v{TC2+4+2*m}, v{TC2+5+2*m}" for m in range(2)]
    m32 += [f"v_cvt_pk_bf16_f32 v{C32+m}, v{TC2+2*m}, v{TC2+1+2*m}" for m in range(2)]
    m32 += [f"v_xor_b32 v{b+2+m}, v0, v{b+m}" for b in (C32, S32) for m in range(2)]
    m32 += [f"v_xor_b32 v{b+4+m}, s42, v{b+m}" for b in (C32, S32) for m in range(4)]
    m32 += [f"v_xor_b32 v{N32+m}, s41, v{S32+m}" for m in range(8)]
    tw2 = ["v_cvt_f32_u32 v0, s40", "v_add_f32 v0, v0, v5", f"v_mul_f32 v7, {fhex(1/2048)}, v6", f"v_add_f32 v5, {fhex(16/2048)}, v7",
           "v_mul_f32 v6, v0, v7", "v_mul_f32 v0, v0, v5"]
    tw2 += [f"v_fmamk_f32 v{TC2+r}, v7, {fhex(float(r))}, v6" for r in range(4)]
    tw2 += [f"v_fmamk_f32 v{TC2+4+r}, v5, {fhex(float(r))}, v0" for r in range(4)]
    tw2 += [f"v_sin_f32 v{TS2+i}, v{TC2+i}" for i in range(8)] + [f"v_cos_f32 v{TC2+i}, v{TC2+i}" for i in range(8)]
    def steps(lst, fill=(), per=2, tail=0):
        fill = list(fill)
        n = len(lst[0][1])
        for k in range(n):
            for d, ch in lst:
                A, B = ch[k]
                e(f"{M16} {vr(d)}, {vr(A)}, {vr(B)}, {vr(d) if k else 0}")
                for _ in range(per):
                    if fill: e(fill.pop(0))
        nleft = len(fill)
        for l in fill: e(l)
        if nleft < tail: e(f"s_nop {tail - nleft - 1}")
    def cmul(c, cre, sim, sign):
        L = [f"v_mul_f32 v{TMP+i}, v{RE[c]+i}, v{cre+i}" for i in range(8)]
        L += [f"v_mul_f32 v{TMP+8+i}, v{IM[c]+i}, v{cre+i}" for i in range(8)]
        L += [f"v_fma_f32 v{TMP+i}, {'-' if sign > 0 else ''}v{IM[c]+i}, v{sim+i}, v{TMP+i}" for i in range(8)]
        L += [f"v_fma_f32 v{TMP+8+i}, {'' if sign > 0 else '-'}v{RE[c]+i}, v{sim+i}, v{TMP+8+i}" for i in range(8)]
        L += [f"v_cvt_pk_bf16_f32 v{PR[c]+m}, v{TMP+2*m}, v{TMP+2*m+1}" for m in range(4)]
        L += [f"v_cvt_pk_bf16_f32 v{PI[c]+m}, v{TMP+8+2*m}, v{TMP+9+2*m}" for m in range(4)]
        return L
    def MA(c, s1, s2): return ([(RE[c]+4*ts, [(P[c]+8*ts, C64), (Q[c]+8*ts, s1), (P[c]+8*ts+4, C64+4), (Q[c]+8*ts+4, s1+4)]) for ts in range(2)] +
                               [(IM[c]+4*ts, [(Q[c]+8*ts, C64), (P[c]+8*ts, s2), (Q[c]+8*ts+4, C64+4), (P[c]+8*ts+4, s2+4)]) for ts in range(2)])
    def MB(c): return ([(RE[c]+4*tk, [(C32+4*tk, PR[c]), (S32+4*tk, PI[c])]) for tk in range(2)] + [(IM[c]+4*tk, [(C32+4*tk, PI[c]), (N32+4*tk, PR[c])]) for tk in range(2)])
    def MC(c): return ([(RE[c]+4*ts, [(PR[c], C32+4*ts), (PI[c], N32+4*ts)]) for ts in range(2)] + [(IM[c]+4*ts, [(PI[c], C32+4*ts), (PR[c], S32+4*ts)]) for ts in range(2)])
    def wun(c):
        L = []
        for i in range(8): L += [f"v_lshlrev_b32 v{TC1+i}, 16, v{WV[c]+i}", f"v_and_b32 v{TS1+i}, 0xffff0000, v{WV[c]+i}"]
        return L
    stamp(e, lvl=6)
    for l in m32: e(l)
    e.srd(12, 18, 5308416)
    e("v_lshrrev_b32 v232, 3, v1\nv_and_b32 v233, 7, v1\nv_mul_u32_u24 v232, 9216, v232\nv_lshl_add_u32 v232, v233, 4, v232")
    e("s_lshr_b32 s52, s34, 1\ns_mul_i32 s52, s52, 3\ns_and_b32 s53, s34, 1\ns_lshl_b32 s53, s53, 1\ns_add_u32 s55, s52, s53")
    for k in range(2):
        if k: e("s_add_u32 s55, s55, 1")
        dst = 50 + k; src = 16 + k
        sdiv(e, 27, 52, 53, 55, 49); sdiv(e, 3, 54, 59, 53, 49)
        e(f"""s_mul_i32 s{dst}, s52, 663552
s_lshl_b32 s49, s54, 10
s_add_u32 s{dst}, s{dst}, s49
s_mul_i32 s49, s59, {3*73728}
s_add_u32 s{dst}, s{dst}, s49
s_add_u32 s{dst}, s{dst}, {W3P}
s_lshl_b32 s54, s54, 2
s_add_u32 s54, s54, s3
s_mul_i32 s{src}, s54, {8*9216}
s_mul_i32 s52, s52, 1152
s_add_u32 s{src}, s{src}, s52
s_mul_i32 s59, s59, 384
s_add_u32 s{src}, s{src}, s59""")
    e("s_lshl_b32 s52, s3, 10")
    def early_issue():
        Lne = e.label("noearly")
        for k in range(2):
            if k: e(f"s_bitcmp1_b32 s34, 0\ns_cbranch_scc1 {Lne}")
            for it in range(3):
                e(f"s_add_u32 m0, s52, {49152 + k*12288 + it*4096 - it*128}\ns_nop 0")
                e(f"buffer_load_dwordx4 v232, s[12:15], s{16+k} offen offset:{128*it} {OPT.get('ld_pk','nt')} lds")
        e(f"{Lne}:")
    if OPT.get('t0a', 0): tgen(e, 27, 0, 16, (0,), agpr=216)
    stamp(e, lvl=7)
    e.wait(vm="d")
    e("s_barrier")
    for c in range(2):
        for js in range(2):
            for ts in range(2):
                f = ts*2 + js
                e.lgop(f"ds_read_b128 {vr(P[c]+4*f)}, v4 offset:{16384 + c*8192 + f*1024}", ("u", c))
                e.lgop(f"ds_read_b128 {vr(Q[c]+4*f)}, v4 offset:{16384 + c*8192 + 4096 + f*1024}", ("u", c))
    stamp(e, lvl=7)
    e.wait(lg=("u", 0))
    steps(MA(0, S64, N64), tw2, 2, 8)
    stamp(e, lvl=7)
    e.wait(lg=("u", 1))
    stamp(e, lvl=7)
    steps(MA(1, S64, N64), cmul(0, TC1, TS1, -1), 2, 8)
    e("s_nop 0")
    steps(MB(0), cmul(1, TC1, TS1, -1), 2, 8)
    stamp(e, lvl=7)
    e.wait(vm=("w", 1))
    early_issue()
    stamp(e, lvl=7)
    steps(MB(1), wun(0) + cmul(0, TC1, TS1, +1), 2, 8)
    e("s_lshr_b32 s43, s3, 1\ns_lshl_b32 s43, s43, 10")
    steps(MC(0), wun(1) + cmul(1, TC1, TS1, +1), 2, 8)
    e("s_and_b32 s44, s3, 1\ns_lshl_b32 s44, s44, 3\ns_add_u32 s43, s43, s44")
    e("v_add_u32 v5, s43, v4")
    steps(MC(1), cmul(0, TC2, TS2, +1), 2, 8)
    stamp(e, lvl=7)
    for c in range(2):
        for l in (cmul(c, TC2, TS2, +1) if c else []): e(l)
        for ts in range(2):
            e.lgop(f"ds_write_b64 v5, {vr(PR[c]+2*ts,2)} offset:{c*8192 + (ts*2+0)*2048}", "x")
            e.lgop(f"ds_write_b64 v5, {vr(PI[c]+2*ts,2)} offset:{c*8192 + (ts*2+1)*2048}", "x")
    e(f"""s_lshl_b32 s40, s3, 11
v_and_b32 v6, 7, v3
v_lshlrev_b32 v6, 7, v6
v_lshrrev_b32 v7, 3, v3
v_lshl_add_u32 v6, v7, 6, v6
v_lshl_add_u32 v6, v2, 4, v6
v_add_u32 v6, s40, v6
s_add_u32 s38, s38, {VT}
s_add_u32 s45, s45, {VT}""")
    e.wait(lg="all")
    stamp(e, lvl=7)
    e("s_barrier")
    stamp(e, lvl=6); stamp(e, lvl=7)
    for c in range(2):
        for js in range(2):
            for ts in range(2):
                e.lgop(f"ds_read_b128 {vr(P[c]+8*ts+4*js)}, v4 offset:{c*8192 + ((ts*2+0)*2+js)*1024}", ("y", c))
                e.lgop(f"ds_read_b128 {vr(Q[c]+8*ts+4*js)}, v4 offset:{c*8192 + ((ts*2+1)*2+js)*1024}", ("y", c))
    def cv(dst, src): return [f"v_cvt_pk_bf16_f32 v{dst+m}, v{src+2*m}, v{src+2*m+1}" for m in range(4)]
    def merge(X, Y, sr):
        L = [f"v_mov_b32 v{TMP+m}, v{X+m}" for m in range(4)] + ["s_nop 0"]
        L += [f"v_mov_b32_dpp v{X+m}, v{Y+m} row_ror:8 row_mask:0xf bank_mask:0xc" for m in range(4)]
        L += [f"v_mov_b32_dpp v{Y+m}, v{TMP+m} row_ror:8 row_mask:0xf bank_mask:0x3" for m in range(4)]
        L += [f"buffer_store_dwordx4 {vr(X)}, v6, s[8:11], s{sr} offen sc1", f"buffer_store_dwordx4 {vr(Y)}, v6, s[8:11], s{sr} offen offset:1024 sc1"]
        return L
    mA, mB = MA(0, N64, S64), MA(1, N64, S64)
    Lsp, Lfin = e.label("special"), e.label("p2fin")
    e.wait(lg="all")
    steps(mA[:2] + mB[2:])
    e(f"s_cmp_eq_u32 s34, 143\ns_cbranch_scc1 {Lsp}")
    steps(mB[:2] + mA[2:], ["s_nop 0"]*3 + cv(PR[0], RE[0]) + cv(PI[1], IM[1]) + merge(PR[0], PI[1], 38), 2, 8)
    for l in cv(PR[1], RE[1]) + cv(PI[0], IM[0]) + merge(PR[1], PI[0], 45): e(l)
    e(f"s_branch {Lfin}\n{Lsp}:")
    steps(mB[:2] + mA[2:], (), 2, 8)
    for l in cv(PR[0], RE[0]) + cv(PI[0], IM[0]) + cv(PI[1], RE[1]) + [f"v_mov_b32 v{PR[1]+m}, 0" for m in range(4)]: e(l)
    for l in merge(PR[0], PI[0], 38) + merge(PR[1], PI[1], 45): e(l)
    e(f"{Lfin}:")
    stamp(e, lvl=7)
    e.vm = []; e.lg = []

NPF = 32
def k3(e):
    name = "k3_kernel"
    Lend = pro(e, name, 256, x=True, extra=((22, 64), (20, 56), (18, 48)))
    W4K3 = 0
    ACC, BF, NB, HCR, TB, XR = 16, 64, 3, 40, 104, 212
    XV, AC, TT, KC, TMP, PK, RING, BASE = 16, 48, 64, 80, 92, 96, 104, 232
    T0A = OPT.get('t0a', 0)
    DA = 244
    def acc(u, t): return ACC + (u*2+t)*4
    def wfrag(ph, ks, u):
        if ph == "T": return vr(216 + (ks % 9)*4, 4, "a") if (u == 0 and T0A) else vr(TB + ((ks % 9)*3 + u)*4)
        f = ks*3 + u
        if ph == "W1": return vr(4*f, 4, "a")
        if f < 32: return vr(104 + 4*f)
        if f < 42: return vr(216 + 4*(f-32), 4, "a")
        return vr(4*(f-42), 4, "a")
    if OPT.get("burn3"): burn(e, OPT["burn3"])
    mp = OPT.get("map", 3)
    e("s_lshr_b32 s30, s2, 3\ns_and_b32 s31, s2, 7")
    if mp == 2:
        e("s_lshl_b32 s26, s31, 2\ns_lshr_b32 s32, s30, 3\ns_add_u32 s26, s26, s32\ns_and_b32 s24, s30, 3\ns_bfe_u32 s29, s30, 0x10002")
    elif mp == 3:
        e("s_lshr_b32 s26, s31, 1\ns_lshl_b32 s26, s26, 3\ns_lshr_b32 s32, s30, 2\ns_add_u32 s26, s26, s32\ns_and_b32 s24, s30, 3\ns_and_b32 s29, s31, 1")
    elif mp == 4:
        e("s_lshr_b32 s26, s31, 2\ns_lshl_b32 s26, s26, 4\ns_lshr_b32 s32, s30, 1\ns_add_u32 s26, s26, s32\ns_and_b32 s24, s31, 2\ns_and_b32 s32, s30, 1\ns_add_u32 s24, s24, s32\ns_and_b32 s29, s31, 1")
    elif mp == 1:
        e("s_mov_b32 s26, s30\ns_lshr_b32 s24, s31, 1\ns_and_b32 s29, s31, 1")
    e("""s_lshl_b32 s25, s26, 1
s_add_u32 s25, s25, s29
s_mul_i32 s27, s24, 9
s_mul_i32 s32, s3, 3
s_add_u32 s27, s27, s32
s_lshl_b32 s28, s29, 2
s_add_u32 s28, s28, s24""")
    HB = 73728
    def setup6():
        e(f"""s_mul_i32 s40, s26, 73728
s_mul_i32 s32, s3, 18432
s_add_u32 s40, s40, s32
s_add_u32 s40, s40, {X6}
v_lshlrev_b32 v6, 3, v3
v_mul_u32_u24 v7, 384, v2
v_add_u32 v6, v6, v7
s_lshl_b32 s37, s26, 12
s_add_u32 s37, s37, {SQ1}
s_lshr_b32 s33, s3, 1
s_lshl_b32 s33, s33, 10
s_and_b32 s36, s3, 1
s_lshl_b32 s36, s36, 3
s_add_u32 s33, s33, s36
s_add_u32 s33, s33, {HB}
v_add_u32 v8, s33, v4
v_add_u32 v9, 36864, v8
v_add_u32 v12, {HB}, v4
v_add_u32 v13, {HB+36864}, v4
v_add_u32 v14, s32, v4
v_add_u32 v15, 4096, v4
v_add_u32 v5, 8192, v4
v_add_u32 v7, 12288, v4
s_lshl_b32 s34, s26, 2
s_add_u32 s34, s34, s3
s_mul_i32 s34, s34, 18432
s_mul_i32 s35, s28, {A_}
s_add_u32 s34, s34, s35
s_add_u32 s34, s34, {PART}""")
    NT = 2*162
    ORD = [0, 3, 6, 1, 4, 7, 2, 5, 8]
    def wload6(n):
        out = []
        if OPT.get("rot"):
            ph2 = n >= 162
            b, ks = divmod(n % 162, 18)
            rot = OPT["rot"] & (2 if ph2 else 1)
            if ks == 0:
                t = ORD[b] if ph2 else b
                if rot: out.append(("s", f"s_and_b32 s16, s26, 7\ns_add_u32 s16, s16, {t}\ns_cmp_ge_u32 s16, 9\ns_cselect_b32 s17, 9, 0\ns_sub_u32 s16, s16, s17\ns_mul_i32 s16, s16, 18432\ns_add_u32 s16, s16, s{31 if ph2 else 30}"))
                else: out.append(("s", f"s_add_u32 s16, s{31 if ph2 else 30}, {t*18432}"))
            if ks % 4 == 0: out.append(("s", f"s_add_u32 s17, s16, {ks*1024}"))
            out.append(("v", f"buffer_load_dwordx4 {vr(RING+4*(n % NPF))}, v4, s[8:11], s17 offen offset:{(ks&3)*1024} {OPT.get('ld6', 'sc1')}", ("w", n)))
        elif n < 162:
            if OPT.get("v4x") and n >= 32:
                if n % 16 == 0: out.append(("s", f"s_add_u32 s30, s30, {4096 if n == 32 else 16384}"))
                out.append(("v", f"buffer_load_dwordx4 {vr(RING+4*(n % NPF))}, v{(4,15,5,7)[(n >> 2) & 3]}, s[8:11], s30 offen offset:{(n&3)*1024} {OPT.get('ld6', 'sc1')}", ("w", n)))
                return out
            if n % 4 == 0 and n: out.append(("s", "s_add_u32 s30, s30, 4096"))
            out.append(("v", f"buffer_load_dwordx4 {vr(RING+4*(n % NPF))}, v4, s[8:11], s30 offen offset:{(n&3)*1024} {OPT.get('ld6', 'sc1')}", ("w", n)))
        else:
            b, ks = divmod(n - 162, 18)
            if ks % 4 == 0: out.append(("s", f"s_add_u32 s30, s31, {ORD[b]*18432 + ks*1024}"))
            out.append(("v", f"buffer_load_dwordx4 {vr(RING+4*(n % NPF))}, v4, s[8:11], s30 offen offset:{(ks&3)*1024} {OPT.get('ld6', 'sc1')}", ("w", n)))
        return out
    def emit(x):
        if x[0] == "s": e(x[1])
        elif x[0] == "v": e.vmop(x[1], x[2])
        elif x[0] == "l": e.lgop(x[1], x[2])
        elif x[0] == "wv": e.wait(vm=x[1])
        elif x[0] == "wl": e.wait(lg=x[1])
        elif x[0] == "st": stamp(e, lvl=x[1])
    Lpack, Ljoin = e.label("pack"), e.label("join")
    e(f"s_cmp_ge_u32 s30, 18\ns_cbranch_scc1 {Lpack}\ns_lshl_b32 s34, s30, 3\ns_add_u32 s34, s34, s31\ns_mov_b32 s58, s34\ns_mov_b32 s56, 255\ns_mov_b32 s57, 0")
    p2x2(e)
    e(f"""s_branch {Ljoin}
{Lpack}:
s_sub_u32 s56, s30, 18
s_lshl_b32 s56, s56, 3
s_add_u32 s56, s56, s31""")
    e("""s_cmp_lt_u32 s3, 3
s_cselect_b32 s57, 1, 0
s_cmp_ge_u32 s56, 108
s_cselect_b32 s57, 0, s57
v_lshrrev_b32 v236, 3, v1
v_and_b32 v237, 7, v1
v_lshrrev_b32 v238, 2, v3""")
    pro2(e)
    e(f"s_cmp_eq_u32 s57, 0\ns_cbranch_scc1 {Ljoin}{'0' if T0A else ''}\ns_mul_i32 s42, s3, 24576\ns_add_u32 s42, s42, 36864\ns_mov_b32 s14, 5308416\ns_mov_b32 s15, 0x00020000")
    for k in range(2):
        e(f"""s_lshl_b32 s34, s3, 1
s_add_u32 s34, s34, {k}
s_cmp_ge_u32 s34, 3
s_cselect_b32 s35, 1, 0
s_cselect_b32 s36, 3, 0
s_sub_u32 s44, s34, s36
s_lshl_b32 s34, s56, 1
s_add_u32 s34, s34, s35""")
        sdiv(e, 27, 59, 43, 34, 40)
        e(f"""s_cmp_ge_u32 s43, 9
s_cselect_b32 s12, s20, s18
s_cselect_b32 s13, s21, s19
s_mov_b32 s33, 9216
s_cselect_b32 s33, 1152, s33
s_cselect_b32 s37, 4, 8
s_cselect_b32 s38, 16, 4
s_cselect_b32 s39, 136, 8
s_cselect_b32 s36, -9, 9
s_mov_b32 s{50+k}, {W3P}
s_cselect_b32 s{50+k}, {W4P}, s{50+k}
s_cselect_b32 s47, 1, 0
s_and_b32 s13, s13, 0xffff
s_add_u32 s43, s43, s36
s_mul_i32 s40, s59, 663552
s_add_u32 s{50+k}, s{50+k}, s40
s_lshl_b32 s40, s43, 10
s_add_u32 s{50+k}, s{50+k}, s40
s_mul_i32 s40, s44, {3*73728}
s_add_u32 s{50+k}, s{50+k}, s40
s_and_b32 s40, s43, 1
s_mul_i32 s40, s40, 288
s_lshr_b32 s46, s43, 1
s_lshl_b32 s46, s46, 4
s_add_u32 s40, s40, s46
s_mul_i32 s46, s59, 576
s_add_u32 s40, s40, s46
s_mul_i32 s40, s40, 1152
s_mul_i32 s46, s43, {32*9216}
s_mul_i32 s48, s59, 1152
s_add_u32 s46, s46, s48
s_cmp_eq_u32 s47, 1
s_cselect_b32 s40, s40, s46
s_mul_i32 s46, s44, 384
s_add_u32 s40, s40, s46
v_mul_lo_u32 v235, v236, s33
v_lshl_add_u32 v235, v237, 4, v235
s_lshl_b32 s41, s33, 3
s_mul_i32 s39, s39, s33
v_mul_lo_u32 v{240+2*k}, v2, s37
v_add_u32 v{240+2*k}, v{240+2*k}, v238
v_lshlrev_b32 v{240+2*k}, 7, v{240+2*k}
v_and_b32 v{241+2*k}, 3, v3
v_lshl_add_u32 v{240+2*k}, v{241+2*k}, 3, v{240+2*k}
v_add_u32 v{240+2*k}, s42, v{240+2*k}
s_lshl_b32 s43, s38, 7
v_add_u32 v{241+2*k}, s43, v{240+2*k}""")
        for f in range(4):
            for it in range(3):
                e(f"s_add_u32 m0, s42, {k*12288 + it*4096 + f*1024 - it*128}")
                e(f"s_add_u32 s40, s40, s{39 if f == 2 else 41}" if (it == 0 and f) else "s_nop 0")
                e(f"buffer_load_dwordx4 v235, s[12:15], s40 offen offset:{128*it} {OPT.get('ld_pk','nt')} lds")
    if T0A:
        e(f"{Ljoin}0:")
        tgen(e, 27, 0, 16, (0,), agpr=216)
    e(f"{Ljoin}:")
    e.vm = ["pk"]*24; e.lg = []
    def p2_signal():
        Ld = e.label("sigdone")
        e(f"""s_cmp_lg_u32 s56, 255
s_cbranch_scc1 {Ld}
s_waitcnt vmcnt(0)
s_barrier
s_cmp_lg_u32 s3, 3
s_cbranch_scc1 {Ld}
s_lshl_b32 s46, s58, {4 if OPT.get('pad16', 1) else 2}
s_add_u32 s46, s46, {FLG2}
v_mov_b32 v250, 1
v_mul_u32_u24 v251, {2304 if OPT.get('pad16', 1) else 640}, v1
s_mov_b32 exec_hi, 0
s_mov_b32 exec_lo, {hex((1 << OPT.get('nrep', 4)) - 1)}
buffer_store_dword v250, v251, s[8:11], s46 offen sc1
s_mov_b64 exec, -1
{Ld}:""")
        stamp(e, lvl=6)
    def pack_finish():
        Ld = e.label("pkdone")
        e(f"s_cmp_eq_u32 s56, 255\ns_cbranch_scc1 {Ld}\nv_add_u32 v239, 55296, v4")
        e.wait(vm="pk")
        Lb = e.label("pkbar")
        if OPT.get("lbar", 2) == 1: e("s_barrier")
        e(f"s_cmp_eq_u32 s57, 0\ns_cbranch_scc1 {Lb}")
        def rd(i):
            k, it = divmod(i, 3)
            for tt in range(4):
                o = 16*i + 4*tt; off = k*12288 + it*4096 + 32*tt
                e.lgop(f"ds_read_b64_tr_b16 {vr(o,2,'a')}, v{240+2*k} offset:{off}", (i, tt))
                e.lgop(f"ds_read_b64_tr_b16 {vr(o+2,2,'a')}, v{241+2*k} offset:{off}", (i, tt))
        rd(0)
        for i in range(6):
            if i < 5: rd(i + 1)
            for tt in range(4):
                e.wait(lg=(i, tt))
                e.vmop(f"buffer_store_dwordx4 {vr(16*i + 4*tt, 4, 'a')}, v{(4,10,11,239)[tt]}, s[8:11], s{50 + i//3} offen sc1", "pst")
            if i % 3 < 2: e(f"s_add_u32 s{50 + i//3}, s{50 + i//3}, 73728")
        e(f"{Lb}:")
        if OPT.get("lbar", 2) == 2: e("s_barrier")
        e(f"{Ld}:")
    e.srd(12, 6, A_)
    e(f"""v_lshrrev_b32 v6, 3, v1
v_and_b32 v7, 2, v6
v_lshlrev_b32 v6, 13, v6
v_and_b32 v5, 7, v1
v_xor_b32 v7, v7, v5
v_lshl_add_u32 v6, v7, 4, v6
s_and_b32 s34, s3, 1
s_lshl_b32 s34, s34, 6
v_xor_b32 v253, s34, v6
s_lshl_b32 s32, s3, 10
s_lshl_b32 s33, s3, 16
s_lshl_b32 s34, s25, 7
s_add_u32 s33, s33, s34
s_add_u32 s33, s33, {VT}
v_bfe_u32 v5, v3, 2, 1
v_lshlrev_b32 v5, 4, v5
v_lshrrev_b32 v7, 3, v3
v_lshl_add_u32 v5, v7, 2, v5
v_and_b32 v7, 3, v3
v_add_u32 v5, v5, v7
s_lshl_b32 s34, s25, 5
v_add_u32 v12, s34, v5
v_mul_u32_u24 v96, 1152, v12
v_lshl_add_u32 v96, v2, 3, v96
v_add_u32 v97, 9216, v96
v_lshrrev_b32 v5, 2, v5
v_lshlrev_b32 v98, 7, v5
v_lshl_add_u32 v98, v7, 4, v98
s_lshr_b32 s38, s25, 5
s_lshl_b32 s38, s38, 12
s_bfe_u32 s34, s25, 0x20002
s_lshl_b32 s34, s34, 10
s_add_u32 s38, s38, s34
s_bfe_u32 s34, s25, 0x10004
s_lshl_b32 s34, s34, 6
s_add_u32 s38, s38, s34
s_and_b32 s34, s25, 3
s_lshl_b32 s34, s34, 2
s_add_u32 s38, s38, s34
s_add_u32 s38, s38, {MX}
s_lshl_b32 s37, s27, 5""")
    SMAP = OPT.get("smap", (0, 0, 1, 1, 1, 2, 2, 2, 2))
    NSTG = max(SMAP) + 1
    def stg(idx): return SMAP[idx]
    def vdma():
        for idx in range(9):
            e(f"s_add_u32 m0, s32, {idx*4096}")
            e(f"s_add_u32 s33, s33, {4*65536}" if idx else "s_nop 0")
            e.vmop("buffer_load_dwordx4 v253, s[8:11], s33 offen sc1 lds", ("dma", stg(idx)))
    Lw3 = e.label("w3"); Lp6 = e.label("p6")
    e(f"""s_mul_i32 s30, s28, 36
s_mul_i32 s31, s3, 9
s_add_u32 s30, s30, s31
s_mul_i32 s30, s30, 18432
s_add_u32 s31, s30, {W4P}
s_add_u32 s30, s30, {W3P}
v_add_u32 v10, 18432, v4
v_add_u32 v11, 36864, v4
s_lshr_b32 s46, s3, 1
s_mul_i32 s46, s46, 18432
s_and_b32 s47, s3, 1
s_lshl_b32 s47, s47, 10
s_add_u32 s59, s46, s47
s_mul_i32 s53, s25, 36864
s_add_u32 s53, s53, s59""")
    def shift_addrs():
        e("""v_bfe_u32 v90, v3, 2, 1
v_lshlrev_b32 v90, 4, v90
v_lshrrev_b32 v91, 3, v3
v_lshl_add_u32 v90, v91, 2, v90
v_and_b32 v91, 3, v3
s_lshl_b32 s48, s25, 5
s_lshr_b32 s49, s3, 1
s_lshl_b32 s49, s49, 3
s_add_u32 s48, s48, s49
v_add3_u32 v245, v90, v91, s48
v_mov_b32 v95, 2048
v_lshlrev_b32 v91, 8, v2""")
        for k, d in enumerate((-1, 1, -2, 2)):
            e(f"""v_add_u32 v90, {d}, v245
v_cmp_lt_u32 vcc, v90, v95
v_bfe_u32 v92, v90, 5, 6
v_mul_u32_u24 v92, 36864, v92
v_bfe_u32 v93, v90, 3, 1
v_mul_u32_u24 v93, 18432, v93
v_bfe_u32 v94, v90, 2, 1
v_lshl_add_u32 v92, v94, 7, v92
v_bfe_u32 v94, v90, 4, 1
v_lshl_add_u32 v92, v94, 6, v92
v_and_b32 v94, 3, v90
v_lshl_add_u32 v92, v94, 4, v92
v_add3_u32 v92, v92, v93, v91
v_bfrev_b32 v93, 2
v_cndmask_b32 v{240+k}, v93, v92, vcc""")
        e(f"""v_cmp_gt_u32 vcc, 2, v2
s_bitcmp1_b32 s3, 0
s_cselect_b64 s[48:49], -1, 0
v_cndmask_b32 v92, v241, v240, vcc
v_cndmask_b32 v93, v243, v242, vcc
v_cndmask_b32 v244, v92, v241, s[48:49]
v_cndmask_b32 v245, v241, v242, s[48:49]
v_cndmask_b32 v246, v242, v93, s[48:49]
s_and_b32 s54, s3, 1
s_lshl_b32 s54, s54, 10
s_add_u32 s54, s54, {H1S}""")
    def dma_act(ph):
        if ph == 4: e(f"s_add_u32 s46, s53, {HC}")
        sr = 46 if ph == 4 else 54
        for i in range(9):
            if i % 2 == 0:
                e(f"s_add_u32 m0, s59, {i*2048}")
                e(f"s_add_u32 s{sr}, s{sr}, 4096" if i else "s_nop 0")
            a = 4 if ph == 4 else (240, 240, 244, 241, 245, 242, 246, 243, 243)[i]
            e.vmop(f"buffer_load_dwordx4 v{a}, s[8:11], s{sr} offen offset:{(i&1)*2048} sc1 lds", ("dma", stg(i)))
    def w3_stages():
        for k in range(NSTG):
            e.wait(vm=("dma", k))
            e("s_barrier")
    p2_signal()
    e(f"s_cmp_eq_u32 s3, 3\ns_cbranch_scc1 {Lw3}")
    vm_save = list(e.vm)
    def xloads():
        for u in range(3):
            for t in range(2):
                e.vmop(f"buffer_load_dwordx2 {vr(XR+(u*2+t)*2,2)}, v{96+t}, s[12:15], s37 offen offset:{32*u}", "x")
        e.vmop("buffer_load_dword v14, v98, s[8:11], s38 offen", "x")
        e.vmop("buffer_load_dword v15, v98, s[8:11], s38 offen offset:256", "x")
    ws_ = {"n": 0}
    def wnext(cnt, lim=108):
        for _ in range(cnt):
            n = ws_["n"]
            if n >= lim: return
            ph = "W1" if n < 54 else "W2"; f = n % 54; ks, u = divmod(f, 3)
            if f == 0: e(f"s_add_u32 s52, s36, {W1P if n == 0 else W2P}")
            elif u == 0 and ks % 4 == 0: e("s_add_u32 s52, s52, 4096")
            e.vmop(f"buffer_load_dwordx4 {wfrag(ph,ks,u)}, v{(4,10,11)[u]}, s[8:11], s52 offen offset:{(ks&3)*1024}", (ph, ks, u))
            ws_["n"] += 1
    e("s_mul_i32 s36, s27, 18432")
    XP = OPT.get("xp", 13)
    def thook(u, ks):
        if u*9 + ks == XP: xloads()
        if u*9 + ks == OPT.get("qb", 20): e("s_barrier")
    tgen(e, 27, TB, 16, (1, 2) if T0A else (0, 1, 2), hook=thook, init=True)
    e(f"""v_lshrrev_b32 v5, 1, v2
v_lshlrev_b32 v8, 8, v5
v_lshl_add_u32 v8, v3, 4, v8
v_and_b32 v5, 1, v2
v_mul_u32_u24 v9, 18432, v5
v_add_u32 v8, v8, v9
v_lshrrev_b32 v6, 2, v3
v_lshl_add_u32 v6, v2, 3, v6
v_lshlrev_b32 v6, 7, v6
v_and_b32 v7, 3, v3
v_lshl_add_u32 v6, v7, 3, v6
v_lshl_add_u32 v6, v5, 6, v6
v_lshrrev_b32 v7, 3, v3
v_lshl_add_u32 v6, v7, 5, v6
v_xor_b32 v7, 32, v6
v_xor_b32 v5, 64, v6
v_xor_b32 v9, 96, v6
s_mul_i32 s39, s25, 36864
s_lshl_b32 s40, s27, 9
s_add_u32 s39, s39, s40
s_lshl_b32 s42, s25, 11
s_lshl_b32 s40, s3, 2
s_add_u32 s40, s40, s24
s_lshl_b32 s40, s40, 7
s_add_u32 s41, s42, s40
s_mov_b32 s43, {fhex(2.0/(2048*576))}
v_lshlrev_b32 v13, 3, v3
v_mul_u32_u24 v12, 384, v2
v_add_u32 v12, v12, v13
s_lshl_b32 s55, s24, 2
s_add_u32 s55, s55, s3
s_lshl_b32 s55, s55, 2
s_lshl_b32 s40, s25, 7
s_add_u32 s55, s55, s40
v_mov_b32 v250, 1
v_mov_b32 v251, 0""")
    stamp(e, lvl=6)
    pack_finish()
    wnext(OPT.get("wr", 12), 54)
    stamp(e, lvl=6)
    e("s_barrier")
    stamp(e, lvl=6)
    vdma()
    e.wait(vm=("dma", 0))
    e("s_barrier")
    stamp(e); stamp(e, lvl=6)
    def gemm(ph, tr, hook, fill=(), f0=0, f1=18, cinit=False):
        fill = list(fill); nf = len(fill); fi = 0
        def rd(ks, pos):
            for t in range(2):
                b = BF + ((pos % NB)*2 + t)*4
                if tr:
                    ar = (6, 7, 5, 9)[2*(ks // 9) + t]
                    e.lgop(f"ds_read_b64_tr_b16 {vr(b,2)}, v{ar} offset:{(ks % 9)*4096}", ("b", ks))
                    e.lgop(f"ds_read_b64_tr_b16 {vr(b+2,2)}, v{ar} offset:{(ks % 9)*4096+512}", ("b", ks))
                else:
                    e.lgop(f"ds_read_b128 {vr(b)}, v4 offset:{(t*18+ks)*1024}", ("b", ks))
        order = [k // 2 + 9*(k & 1) for k in range(18)] if ph == "T" else list(range(18))
        first_pos = {}
        for pos in range(18):
            idx = (order[pos] % 9) if False else pos // 2
            first_pos.setdefault(stg(idx), pos)
        def rdp(pos):
            for k, p0 in first_pos.items():
                if p0 == pos and k > 0:
                    e.wait(vm=("dma", k))
                    e("s_barrier")
            rd(order[pos], pos)
        for pos in range(NB-1): rdp(pos)
        for pos in range(18):
            ks = order[pos]
            if pos + NB - 1 < 18: rdp(pos + NB - 1)
            e.wait(vm=(ph, ks, 2), lg=("b", ks))
            for u in range(3):
                for t in range(2):
                    d = vr(acc(u, t) + (24 if (ph == "T" and ks >= 9) else 0))
                    first = (ks == 0 and not cinit) or (ph == "T" and ks == 9)
                    e(f"{M16} {d}, {wfrag(ph,ks,u)}, {vr(BF + ((pos % NB)*2 + t)*4)}, {0 if first else d}")
                    g = (pos - f0)*6 + u*2 + t
                    if g >= 0:
                        while fi < min(nf, -(-nf*(g+1) // ((f1 - f0)*6))): emit(fill[fi]); fi += 1
            hook(pos)
        assert fi == nf
    def wsig(phase):
        if OPT.get("wgflag", 0): return
        e(f"s_add_u32 s46, s55, {FLG + phase*8192}\ns_mov_b64 exec, 1")
        e.vmop("buffer_store_dword v250, v251, s[8:11], s46 offen sc1", "f")
        e("s_mov_b64 exec, -1")
    def sq_store(region):
        red_g(e, (90, 91), (92, 93))
        e(f"s_add_u32 s46, s41, {region}\ns_mov_b64 exec, 0xffff")
        e.vmop(f"buffer_store_dwordx2 v[90:91], v13, s[8:11], s46 offen sc1", "st")
        e("s_mov_b64 exec, -1")
    def st16(o, sreg, off):
        e(f"s_nop 0\nv_permlane16_swap_b32 v{o}, v{o+2}\nv_permlane16_swap_b32 v{o+1}, v{o+3}")
        e.vmop(f"buffer_store_dwordx4 {vr(o)}, v8, s[8:11], s{sreg} offen offset:{off} sc1", "st")
    GL, AL = OPT.get("gl", 30), OPT.get("al", 18)
    lim_ = [54]
    GLs = [OPT.get("gl3", 24)]
    def hookw(ks): wnext(GLs[0]*(ks+1)//18 - GLs[0]*ks//18, lim_[0])
    def hook3(ks):
        if XP == 27 + ks: xloads()
        hookw(ks)
    XM = 232
    XF = [224 + i for i in range(20)] + [100, 101, 102, 103]
    xfill = [("wv", "x")]
    for u in range(3):
        for t in range(2):
            x = XR + (u*2+t)*2; f = XF[(u*2+t)*4:(u*2+t)*4+4]
            xfill += [("s", f"v_lshlrev_b32 v{f[0]}, 16, v{x}"), ("s", f"v_and_b32 v{f[1]}, 0xffff0000, v{x}"),
                      ("s", f"v_lshlrev_b32 v{f[2]}, 16, v{x+1}"), ("s", f"v_and_b32 v{f[3]}, 0xffff0000, v{x+1}")]
            xfill += [("s", f"v_sub_f32 v{f[r]}, v{f[r]}, v{14+t}") for r in range(4)]
    xfill += [("s", f"s_add_u32 s44, s39, {HC}"), ("s", "v_mov_b32 v90, 0"), ("s", "v_mov_b32 v91, 0")]
    gemm("T", True, hook3, xfill, 9, 18)
    stamp(e)
    EARLY = OPT.get("early", 0)
    e("s_barrier" if EARLY else "s_nop 0")
    e("s_nop 4")
    for u in range(3):
        o = BF + 4*u
        for t in range(2):
            a = acc(u, t); h = HCR + (u*2+t)*4; f = XF[(u*2+t)*4:(u*2+t)*4+4]
            for r in range(4): e(f"v_{'sub' if r & 1 else 'add'}_f32 v{a+r}, v{a+r}, v{h+r}")
            for r in range(4): e(f"v_fma_f32 v{h+r}, v{a+r}, s43, v{f[r]}")
            e(f"v_cvt_pk_bf16_f32 v{o+2*t}, v{h}, v{h+1}\nv_cvt_pk_bf16_f32 v{o+2*t+1}, v{h+2}, v{h+3}")
            for r in range(4): e(f"v_fmac_f32 v{90+t}, v{h+r}, v{h+r}")
        st16(o, 44, 512*u)
    sq_store(SQH)
    e(f"s_add_u32 s44, s39, {H1S}\ns_add_u32 s47, s42, {SQH}")
    e.wait(vm="st")
    wsig(0)
    LA = OPT.get("la", 4)
    stamp(e, lvl=-1)
    lim_[0] = 54 + 42
    wnext(LA, lim_[0])
    e("s_barrier")
    wnext(AL - LA, lim_[0])
    assert ws_["n"] >= 54
    shift_addrs()
    stamp(e, lvl=1)
    e("s_barrier")
    stamp(e, lvl=1)
    dma_act(4)
    for c in range(3): e.vmop(f"buffer_load_dwordx2 {vr(96+2*c,2)}, v12, s[8:11], s47 offen offset:{128*c} sc1", "q")
    stamp(e, lvl=1)
    e.wait(vm=("dma", 0))
    stamp(e, lvl=1)
    e("s_barrier")
    stamp(e, lvl=-1)
    e3 = Em()
    e3("v_add_f32 v97, v97, v99\nv_add_f32 v96, v96, v98\nv_add_f32 v96, v96, v100\nv_add_f32 v100, v97, v101")
    red_g(e3, (96, 100), (92, 93))
    for t in range(2): e3(f"v_mul_f32 v{96+4*t}, {fhex(1/576)}, v{96+4*t}")
    for t in range(2): e3(f"v_add_f32 v{88+t}, {fhex(EPS)}, v{96+4*t}")
    for t in range(2): e3(f"v_rsq_f32 v{88+t}, v{88+t}")
    e3("s_nop 0")
    for t in range(2): e3(f"v_mul_f32 v{98+4*t}, v{88+t}, v{88+t}")
    for t in range(2): e3(f"v_mul_f32 v{98+4*t}, v{98+4*t}, v{96+4*t}")
    for t in range(2): e3(f"v_add_f32 v{98+4*t}, {fhex(EPS)}, v{98+4*t}")
    for t in range(2): e3(f"v_rsq_f32 v{98+4*t}, v{98+4*t}")
    e3("s_nop 0")
    for t in range(2): e3(f"v_mul_f32 v{96+4*t}, v{88+t}, v{98+4*t}")
    for t in range(2): gelu_consts(e3, 96+4*t, 97+4*t, 98+4*t, 99+4*t)
    GLs[0] = OPT.get('gl4', 36)
    def hook4(ks):
        if ks == 4: lim_[0] = 108
        hookw(ks)
    gemm("W1", False, hook4, [("wv", "q")] + [("s", l.strip()) for l in e3.L], 2, 17)
    stamp(e)
    e("s_barrier" if EARLY else "s_nop 0")
    e("s_nop 4")
    for u in range(3):
        o = BF + 4*u
        for t in range(2):
            a = acc(u, t); s = 96 + 4*t
            for l in gelu4(a, 92, s+1, s+2, s+3): e(l)
            e(f"v_cvt_pk_bf16_f32 v{o+2*t}, v92, v93\nv_cvt_pk_bf16_f32 v{o+2*t+1}, v94, v95")
        e("s_nop 0")
        st16(o, 44, 512*u)
    e(f"s_add_u32 s44, s39, {X6}\nv_lshlrev_b32 v98, 2, v3\nv_mov_b32 v90, 0\nv_mov_b32 v91, 0")
    e.wait(vm="st")
    wsig(1)
    stamp(e, lvl=-1)
    wnext(LA)
    e("s_barrier")
    wnext(108)
    for u in range(3):
        for t in range(2):
            a = acc(u, t); h = HCR + (u*2+t)*4
            for r in range(4): e(f"v_mul_f32 v{a+r}, v{h+r}, v{88+t}")
            for r in range(4): e(f"v_add_f32 v{h+r}, v{h+r}, v{14+t}")
    stamp(e, lvl=1)
    e("s_barrier")
    stamp(e, lvl=1)
    dma_act(5)
    stamp(e, lvl=1)
    e.wait(vm=("dma", 0))
    stamp(e, lvl=1)
    e("s_barrier")
    stamp(e, lvl=-1)
    N5 = OPT.get("n5", 27)
    st5 = {"n": 0}
    def hook5(ks):
        while st5["n"] < min(N5, 3*ks + 3, (3*(ks+1))//2):
            for x in wload6(st5["n"]): emit(x)
            st5["n"] += 1
    gemm("W2", False, hook5, cinit=True)
    assert st5["n"] == N5
    stamp(e)
    e("s_barrier")
    e.lgop("ds_read_b32 v96, v98 offset:36864", "m"); e.lgop("ds_read_b32 v97, v98 offset:36928", "m")
    e("s_nop 3")
    for u in range(3):
        for t in range(2):
            a = acc(u, t); h = HCR + (u*2+t)*4
            for r in range(4): e(f"v_add_f32 v{h+r}, v{h+r}, v{a+r}")
    e.wait(lg="all")
    for u in range(3):
        x = BF + 4*u
        for t in range(2):
            a = acc(u, t)
            for r in range(4): e(f"v_sub_f32 v{a+r}, v{a+r}, v{96+t}")
            e(f"v_cvt_pk_bf16_f32 v{x+2*t}, v{a}, v{a+1}\nv_cvt_pk_bf16_f32 v{x+2*t+1}, v{a+2}, v{a+3}")
            for r in range(4): e(f"v_fmac_f32 v{90+t}, v{a+r}, v{a+r}")
        st16(x, 44, 512*u)
    sq_store(SQ1)
    for u in range(3):
        for t in range(2):
            h = HCR + (u*2+t)*4; o = BASE + 4*u + 2*t
            e(f"v_cvt_pk_bf16_f32 v{o}, v{h}, v{h+1}\nv_cvt_pk_bf16_f32 v{o+1}, v{h+2}, v{h+3}")
    e.wait(vm="st")
    wsig(2)
    if not OPT.get("l5"): e("s_barrier")
    vm_p6 = list(e.vm)
    stamp(e)
    nst_main = NST
    setup6()
    if OPT.get("l5"): e("s_barrier")
    e(f"s_barrier\ns_branch {Lp6}")
    def poll(phase, areg, nl=0):
        Lp = e.label("poll"); Ld = e.label("pd")
        if OPT.get("wgflag", 0):
            e(f"s_lshl_b32 s46, s25, 7\ns_lshl_b32 s47, s24, 4\ns_add_u32 s46, s46, s47\ns_add_u32 s46, s46, {FLG + phase*8192}\ns_mov_b64 exec, 1\nbuffer_store_dword v250, v251, s[8:11], s46 offen sc1\ns_mov_b64 exec, -1")
        ld = lambda r: f"buffer_load_dword v{r}, v{areg}, s[8:11], s46 offen sc1"
        if OPT.get("pipe", 0):
            e(f"""s_mov_b32 s46, {FLG + phase*8192}
s_mov_b32 s47, 0x20000
{ld(252)}
s_sleep {OPT.get('psl', 3)}
{Lp}:
{ld(253)}
s_waitcnt vmcnt(1)
v_cmp_ne_u32 vcc, 1, v252
s_cbranch_vccz {Ld}
{ld(252)}
s_waitcnt vmcnt(1)
v_cmp_ne_u32 vcc, 1, v253
s_cbranch_vccz {Ld}
s_sub_u32 s47, s47, 1
s_cbranch_scc0 {Lp}
{Ld}:""")
        else:
            e(f"""s_mov_b32 s46, {FLG + phase*8192}
s_mov_b32 s47, 0x40000
{("s_sleep %d" % OPT["ps0"]) if OPT.get("ps0") else "s_nop 0"}
{Lp}:
{ld(252)}
s_waitcnt vmcnt(0)
v_cmp_ne_u32 vcc, 1, v252
s_cbranch_vccz {Ld}
s_sub_u32 s47, s47, 1
s_cbranch_scc0 {Lp}
{Ld}:""")
        e.vm = ["p"]
    e(f"{Lw3}:")
    e.vm = []; e.lg = []
    Lef = e.label("efd")
    e(f"""s_cmp_lg_u32 s56, 255
s_cbranch_scc1 {Lef}
v_lshlrev_b32 v16, 3, v2
v_lshrrev_b32 v17, 2, v3
v_add_u32 v16, v16, v17
v_lshlrev_b32 v16, 7, v16
v_and_b32 v17, 3, v3
v_lshl_add_u32 v16, v17, 3, v16
v_add_u32 v17, 55296, v4
v_add_u32 v18, 16384, v16""")
    for i in range(6):
        if i == 3: e(f"s_bitcmp1_b32 s58, 0\ns_cbranch_scc1 {Lef}")
        for tt in range(4):
            o = 16*i + 4*tt; off = 49152 + i*4096 + 32*tt
            e.lgop(f"ds_read_b64_tr_b16 {vr(o,2,'a')}, v16 offset:{off}" if off + 512 < 65536 else f"ds_read_b64_tr_b16 {vr(o,2,'a')}, v18 offset:{off - 16384}", (i, tt))
            e.lgop(f"ds_read_b64_tr_b16 {vr(o+2,2,'a')}, v16 offset:{off + 512}" if off + 512 < 65536 else f"ds_read_b64_tr_b16 {vr(o+2,2,'a')}, v18 offset:{off + 512 - 16384}", (i, tt))
        for tt in range(4):
            e.wait(lg=(i, tt))
            e.vmop(f"buffer_store_dwordx4 {vr(16*i + 4*tt, 4, 'a')}, v{(4,10,11,17)[tt]}, s[8:11], s{50 + i//3} offen sc1", "pst")
        if i % 3 < 2: e(f"s_add_u32 s{50 + i//3}, s{50 + i//3}, 73728")
    e(f"{Lef}:")
    PKL = 40960
    if W4K3:
        e.srd(16, 20, 5308416)
        e("s_cmp_lt_u32 s2, 216\ns_cselect_b32 s18, 5308416, 0")
        e("v_lshrrev_b32 v16, 3, v1\nv_mul_u32_u24 v16, 1152, v16\nv_and_b32 v17, 7, v1\nv_lshl_add_u32 v16, v17, 4, v16")
        for k in range(2):
            e(f"s_lshl_b32 s40, s2, 1\ns_add_u32 s40, s40, {k}")
            sdiv(e, 3, 41, 42, 40, 46); sdiv(e, 18, 43, 44, 41, 46)
            e(f"""s_mul_i32 s{36+k}, s43, 663552
s_lshl_b32 s45, s44, 10
s_add_u32 s{36+k}, s{36+k}, s45
s_mul_i32 s45, s42, {3*73728}
s_add_u32 s{36+k}, s{36+k}, s45
s_add_u32 s{36+k}, s{36+k}, {W4P}
s_mul_i32 s40, s43, 576
s_and_b32 s45, s44, 1
s_mul_i32 s45, s45, 288
s_add_u32 s40, s40, s45
s_lshr_b32 s45, s44, 1
s_lshl_b32 s45, s45, 4
s_add_u32 s40, s40, s45
s_mul_i32 s40, s40, 1152
s_mul_i32 s45, s42, 384
s_add_u32 s40, s40, s45""")
            for f in range(4):
                for it in range(3):
                    e(f"s_mov_b32 m0, {PKL + k*12288 + it*4096 + f*1024 - it*128}")
                    e(f"s_add_u32 s40, s40, {1152*(136 if f == 2 else 8)}" if (it == 0 and f) else "s_nop 0")
                    e.vmop(f"buffer_load_dwordx4 v16, s[16:19], s40 offen offset:{128*it} {OPT.get('ld_pk','nt')} lds", ("pk", k))
    e(f"""v_mov_b32 v250, 1
v_mov_b32 v251, 0
v_and_b32 v19, 3, v1
v_min_u32 v19, {0 if OPT.get('wgflag', 0) else 2}, v19
v_lshlrev_b32 v19, 2, v19
v_bfe_u32 v20, v1, 2, 2
v_lshl_add_u32 v19, v20, 4, v19
s_lshl_b32 s46, s25, 7
v_add_u32 v247, s46, v19
v_bfe_u32 v21, v1, 4, 1
v_and_b32 v22, 1, v20
v_lshlrev_b32 v22, 1, v22
v_add_u32 v22, -1, v22
v_mul_lo_u32 v22, v22, v21
v_add_u32 v22, s25, v22
v_and_b32 v22, 63, v22
v_lshl_add_u32 v248, v22, 7, v19
s_lshl_b32 s46, s26, 8
v_lshl_add_u32 v249, v21, 7, v19
v_add_u32 v249, s46, v249""")
    if W4K3:
        e(f"""s_mul_i32 s46, s28, 108
s_add_u32 s46, s46, {3*8192}
v_subrev_u32 v19, 32, v1
v_min_u32 v19, 26, v19
v_lshlrev_b32 v19, 2, v19
v_add_u32 v19, s46, v19
v_cmp_lt_u32 vcc, 31, v1
s_nop 1
v_cndmask_b32 v249, v249, v19, vcc""")
    e(f"""s_mul_i32 s46, s28, 27
s_lshr_b32 s46, s46, 1
v_min_u32 v18, 14, v1
v_add_u32 v18, s46, v18
v_min_u32 v18, 107, v18
s_mul_i32 s46, s28, 18
s_add_u32 s46, s46, 108
v_subrev_u32 v19, 32, v1
v_min_u32 v19, 17, v19
v_cmp_lt_u32 vcc, 31, v1
v_add_u32 v19, s46, v19
s_nop 0
v_cndmask_b32 v18, v18, v19, vcc
v_lshlrev_b32 v18, 2, v18""")
    Lq, Lqd = e.label("gp"), e.label("gpd")
    POLL2 = """buffer_load_dwordx4 v[20:23], v19, s[8:11], s46 offen sc1
s_waitcnt vmcnt(0)
v_and_b32 v20, v20, v21
v_and_b32 v22, v22, v23
v_and_b32 v20, v20, v22
"""
    if OPT.get('pad16', 1):
        e("v_min_u32 v17, 15, v1\nv_lshlrev_b32 v17, 4, v17")
        POLL2 = """buffer_load_dword v20, v4, s[8:11], s46 offen sc1
buffer_load_dword v21, v4, s[8:11], s46 offen offset:1024 sc1
buffer_load_dword v22, v17, s[8:11], s46 offen offset:2048 sc1
s_waitcnt vmcnt(0)
v_and_b32 v20, v20, v21
v_and_b32 v20, v20, v22
"""
    e(f"""v_min_u32 v19, 35, v1
v_lshlrev_b32 v19, 4, v19
s_lshr_b32 s46, s2, {OPT.get('rsh', 3)}
s_and_b32 s46, s46, {OPT.get('nrep', 4) - 1}
s_mul_i32 s46, s46, {2304 if OPT.get('pad16', 1) else 640}
s_add_u32 s46, s46, {FLG2}
s_mov_b32 s47, 0x40000
{"s_barrier" if OPT.get("qb", 20) < 27 else "s_nop 0"}
s_cmp_eq_u32 s56, 255
s_cbranch_scc1 {Lq}s
s_barrier
{Lq}s:
{('s_sleep %d' % OPT.get('gs1', 0)) if OPT.get('gs1', 0) else 's_nop 0'}
{Lq}:
{POLL2}v_cmp_ne_u32 vcc, 1, v20
s_cbranch_vccz {Lqd}
s_sleep {OPT.get('gsl', 8)}
s_sub_u32 s47, s47, 1
s_cbranch_scc0 {Lq}
{Lqd}:
s_barrier""")
    e.vm = []
    vdma()
    w3_stages()
    shift_addrs()
    for ks in range(18):
        if ks % 4 == 0: e(f"s_mov_b32 s40, {W2P + 36*18432 + ks*1024}")
        e.vmop(f"buffer_load_dwordx4 {vr(4*ks,4,'a')}, v4, s[8:11], s40 offen offset:{(ks&3)*1024}", "mw")
    e("s_barrier")
    e.wait(vm="all")
    Lnf = e.label("nopf")
    e(f"s_add_u32 s46, s58, 108\ns_cmp_eq_u32 s56, 255\ns_cselect_b32 s46, s46, s56\ns_cselect_b32 s47, 0, s56\ns_cmp_ge_u32 s47, 108\ns_cbranch_scc1 {Lnf}\ns_lshl_b32 s46, s46, 2\ns_add_u32 s46, s46, {FLG + 6*8192}\ns_mov_b64 exec, 1\nbuffer_store_dword v250, v251, s[8:11], s46 offen sc1\ns_mov_b64 exec, -1\n{Lnf}:")
    poll(0, 247)
    if W4K3:
        e(f"s_lshl_b32 s46, s2, 2\ns_add_u32 s46, s46, {FLG + 5*8192}\ns_mov_b64 exec, 1\nbuffer_store_dword v250, v251, s[8:11], s46 offen sc1\ns_mov_b64 exec, -1")
        e.vm.append("f")
    e("s_barrier")
    dma_act(4); w3_stages()
    poll(6, 18)
    e("s_barrier")
    poll(1, 248)
    e("s_barrier")
    dma_act(5); w3_stages()
    NR = 3
    def rdm(ks):
        for t in range(2): e.lgop(f"ds_read_b128 {vr(40+((ks%NR)*2+t)*4)}, v4 offset:{(t*18+ks)*1024}", ks)
    for ks in range(NR-1): rdm(ks)
    for ks in range(18):
        if ks + NR - 1 < 18: rdm(ks + NR - 1)
        e.wait(lg=ks)
        for t in range(2):
            e(f"{M16} {vr(32+4*t)}, {vr(4*ks,4,'a')}, {vr(40+((ks%NR)*2+t)*4)}, {vr(32+4*t) if ks else 0}")
    e("v_lshlrev_b32 v23, 2, v3\ns_nop 7\nv_add_f32 v32, v32, v33\nv_add_f32 v36, v36, v37\ns_mov_b64 exec, 0xffff\nds_write_b32 v23, v32 offset:36864\nds_write_b32 v23, v36 offset:36928\ns_mov_b64 exec, -1")
    for n in range(N5):
        for x in wload6(n): emit(x)
    e("s_waitcnt lgkmcnt(0)\ns_barrier")
    setup6()
    e.wait(vm="all")
    if not EARLY: e("s_barrier")
    poll(2, 249)
    e("s_barrier")
    e(f"{Lp6}:")
    globals()["NST"] = nst_main
    e.vm = vm_p6; e.lg = []
    stamp(e)
    def X(t4, ks):
        i = ks*4 + t4
        return vr(4*i, 4, "a") if i < 64 else vr(XV + 4*(i-64))
    XS = OPT.get("xs", (0, 4, 10))
    stamp(e, lvl=4)
    def xdma(i):
        L = []
        if i % 4 == 0: L.append(("s", f"s_add_u32 m0, s32, {i*1024}\n" + ("s_add_u32 s40, s40, 4096" if i else "s_nop 0")))
        L.append(("v", f"buffer_load_dwordx4 v4, s[8:11], s40 offen offset:{(i&3)*1024} sc1 lds", ("xd", sum(1 for b in XS if b <= i) - 1)))
        return L
    X0 = OPT.get("x0", 18)
    for i in range(X0):
        for x in xdma(i): emit(x)
    sqld = [("v", f"buffer_load_dwordx2 {vr(TT+6*tp+2*c,2)}, v6, s[8:11], s37 offen offset:{2048*tp + 128*c} sc1", "q") for tp in range(2) for c in range(3)]
    late = [xdma(i) for i in range(X0, 18)] + [[x] for x in sqld]
    def bread(ks, hb):
        out = []
        for t4 in range(4):
            off = (t4*18 + ks)*1024
            base = (4, 11) if not hb else (12, 13)
            breg = base[0] if off < 36864 else base[1]
            out.append(("l", f"ds_read_b128 {X(t4,ks)}, v{breg} offset:{off % 36864}", ("b", hb, ks)))
        return out
    def const_fill():
        e2 = Em()
        R = [TT+12+t for t in range(4)]
        for t4 in range(4):
            b = TT + 6*(t4 >> 1) + (t4 & 1)
            e2(f"v_add_f32 v{R[t4]}, v{b}, v{b+2}\nv_add_f32 v{R[t4]}, v{R[t4]}, v{b+4}")
        red_g(e2, R, [TMP+t for t in range(4)])
        for r in R: e2(f"v_mul_f32 v{r}, {fhex(1/576)}, v{r}")
        for r in R: e2(f"v_add_f32 v{r}, {fhex(EPS)}, v{r}")
        for r in R: e2(f"v_rsq_f32 v{r}, v{r}")
        e2("s_nop 0")
        for t4 in range(4): gelu_consts(e2, R[t4], KC+t4, KC+4+t4, KC+8+t4)
        return [("wv", "q")] + [("s", l.strip()) for l in e2.L]
    def gelu_fill(ft):
        L = []
        for t4 in range(4):
            L += [("s", l) for l in gelu4(TT+4*t4, TMP, KC+t4, KC+4+t4, KC+8+t4)]
            L += [("s", f"v_cvt_pk_bf16_f32 v{PK+2*t4}, v{TMP}, v{TMP+1}"), ("s", f"v_cvt_pk_bf16_f32 v{PK+2*t4+1}, v{TMP+2}, v{TMP+3}")]
            L += [("l", f"ds_write_b64 v{8 + (t4>>1)}, {vr(PK+2*t4,2)} offset:{ft*2048 + (t4&1)*18432}", ("h", ft))]
        return L
    def out_fill(b):
        dt = ORD[b]
        L = [("s", f"s_add_u32 s35, s34, {dt*2048}")]
        for tp in range(2):
            for h in range(2):
                a = TT + 4*(2*tp+h)
                L += [("s", f"v_cvt_pk_bf16_f32 v{PK+4*tp+2*h}, v{a}, v{a+1}"), ("s", f"v_cvt_pk_bf16_f32 v{PK+4*tp+2*h+1}, v{a+2}, v{a+3}")]
            L += [("v", f"buffer_store_dwordx4 {vr(PK+4*tp)}, v4, s[8:11], s35 offen offset:{tp*1024} {OPT.get('sc_part','sc1')}", "st")]
            L += [("l", f"ds_write_b128 v14, {vr(PK+4*tp)} offset:{(dt*2+tp)*1024}", "o")]
        return L
    def block(blk, fill, G0=4, G1=66, pre=None, post=None, ramp0=0):
        nf = len(fill); fi = 0
        for ks in range(18):
            n = blk*18 + ks
            lgw = None
            if (blk, ks) in OPT.get("pts", ()): stamp(e, lvl=3)
            if pre:
                for x in pre(ks): emit(x)
                lgw = [("b", False, ks), ("b", True, ks)]
            WG_ = OPT.get("wgrp", 2)
            e.wait(vm=[("w", n+j) for j in range(WG_)] if ks % WG_ == 0 else None, lg=lgw)
            for t4 in range(4):
                d = vr(TT+4*t4) if ks == 17 else vr(AC+4*t4)
                c = vr(AC+4*t4) if ks else "0"
                e(f"{M16} {d}, {vr(RING+4*(n % NPF))}, {X(t4,ks)}, {c}")
                gap = ks*4 + t4
                if ks >= ramp0 and t4 in (1, 3) and st5["n"] < NT and st5["n"] < n + NPF + (t4 == 3):
                    for x in wload6(st5["n"]): emit(x)
                    st5["n"] += 1
                if t4 == 3 and post:
                    for x in post(ks): emit(x)
                if gap >= G0:
                    tgt = min(nf, -(-nf*(gap - G0 + 1) // (G1 - G0)))
                    while fi < tgt: emit(fill[fi]); fi += 1
        assert fi == nf
    AH = 2
    def pre0(ks):
        L = []
        tgt = [ks + AH] if ks else list(range(AH + 1))
        for k in tgt:
            if k < 18:
                if k in XS: L += [("wv", ("xd", XS.index(k))), ("s", "s_barrier"), ("st", 4)]
                L += bread(k, False)
        return L
    stamp(e, lvl=4)
    def post0(ks):
        L = []
        for _ in range(3):
            if late: L += late.pop(0)
        return L
    block(0, const_fill(), 36, 66, pre=pre0, post=post0, ramp0=OPT.get("ramp0", 0))
    assert not late
    stamp(e, lvl=4)
    stamp(e)
    if not OPT.get('pts'): stamp(e, lvl=3)
    for ft in range(1, 8):
        block(ft, gelu_fill(ft-1), OPT.get('g0', 4), OPT.get('g1', 66))
        if ft in (1, 3, 5, 7) and not OPT.get('pts'): stamp(e, lvl=3)
        if ft in (1, 2): stamp(e, lvl=4)
    e.wait(lg="all")
    e("s_barrier")
    block(8, gelu_fill(7), post=lambda ks: bread(ks, True) if ks < 14 else [])
    stamp(e)
    def pre9(ks):
        L = []
        if ks == 12: L += [("wl", ("h", 8)), ("s", "s_barrier")] + bread(14, True) + bread(15, True)
        if ks == 13: L += bread(16, True) + bread(17, True)
        return L
    if not OPT.get('pts'): stamp(e, lvl=3)
    block(9, gelu_fill(8), 3, 46, pre=pre9)
    if not OPT.get('pts'): stamp(e, lvl=3)
    e2 = Em()
    e2.srd(12, 22, A_)
    e2(f"""s_lshl_b32 s38, s26, 2
s_add_u32 s38, s38, s24
s_mul_i32 s38, s38, 9
s_mul_i32 s39, s3, 3
s_add_u32 s38, s38, s39
s_lshl_b32 s38, s38, 1
s_add_u32 s38, s38, s29
s_lshl_b32 s38, s38, 10
s_add_u32 s38, s38, {PART}
s_mul_i32 s40, s25, {32*1152}
s_lshl_b32 s36, s27, 5
s_add_u32 s40, s40, s36
v_bfe_u32 v5, v3, 2, 1
v_lshlrev_b32 v5, 4, v5
v_lshrrev_b32 v7, 3, v3
v_lshl_add_u32 v5, v7, 2, v5
v_and_b32 v7, 3, v3
v_add_u32 v5, v5, v7
v_mul_u32_u24 v6, 1152, v5
v_lshl_add_u32 v6, v2, 3, v6
v_add_u32 v7, 9216, v6
v_add_u32 v11, 4096, v4
s_mul_i32 s41, s24, 18432
s_mul_i32 s42, s3, 6144
s_add_u32 s41, s41, s42
s_lshl_b32 s42, s29, 10
s_add_u32 s41, s41, s42
v_add_u32 v9, s41, v4
v_mov_b32 v250, 1
v_mov_b32 v251, 0
s_lshl_b32 s44, s26, 9
s_lshl_b32 s45, s24, 5
s_add_u32 s45, s45, s44
v_and_b32 v247, 7, v1
v_lshlrev_b32 v247, 2, v247
v_add_u32 v247, s45, v247
s_lshl_b32 s45, s3, 5
s_add_u32 s44, s44, s45
s_lshl_b32 s45, s28, 2
s_add_u32 s44, s44, s45
s_add_u32 s44, s44, {FLG + 3*8192}
s_mov_b32 s45, {FLG + 3*8192}""")
    e2(f"s_mov_b32 s48, s8\ns_mov_b32 s49, s9\ns_mov_b32 s51, 0x00020000")
    for i in range(7):
        e2(f"s_add_u32 s42, s28, {i+1}\ns_and_b32 s42, s42, 7\ns_mul_i32 s42, s42, {A_}\ns_add_u32 s{52+i}, s42, s38")
    setup7 = [("s", l.strip()) for l in e2.L] + [("s", f"s_cmp_eq_u32 s3, 3\ns_cselect_b32 s50, 0, {WS_SIZE}")]
    def flag_store(off):
        return [("s", "s_mov_b64 exec, 1"), ("v", f"buffer_store_dword v250, v251, s[8:11], s44 offen offset:{off} sc1", "f"), ("s", "s_mov_b64 exec, -1")]
    def poll7(off, first_tag=None):
        Lp = e.label("poll"); Ld = e.label("pd")
        if first_tag:
            e.wait(vm=first_tag)
            e(f"v_cmp_ne_u32 vcc, 1, v252\ns_cbranch_vccz {Ld}")
        e(f"""s_mov_b32 s47, 0x40000
{Lp}:
buffer_load_dword v252, v247, s[8:11], s45 offen offset:{off} sc1
s_waitcnt vmcnt(0)
v_cmp_ne_u32 vcc, 1, v252
s_cbranch_vccz {Ld}
s_sub_u32 s47, s47, 1
s_cbranch_scc0 {Lp}
{Ld}:""")
        if not first_tag: e.vm = []
    FK, PKS, G2 = OPT.get("fk", 1), OPT.get("pks", 14), OPT.get("g2", 28)
    def slot(i): return RING + 4*((292 + i) % NPF)
    def rload(i):
        return [("v", f"buffer_load_dwordx4 {vr(slot(i))}, v4, s[48:51], s{52 + i % 7} offen offset:{2048*(i//7)} sc1", ("r", i))]
    def chk(off):
        Lp = e.label("poll"); Ld = e.label("pd")
        return [("wv", "pa"), ("s", f"""v_cmp_ne_u32 vcc, 1, v252
s_cbranch_vccz {Ld}
s_mov_b32 s47, 0x40000
{Lp}:
buffer_load_dword v252, v247, s[8:11], s45 offen offset:{off} sc1
s_waitcnt vmcnt(0)
v_cmp_ne_u32 vcc, 1, v252
s_cbranch_vccz {Ld}
s_sub_u32 s47, s47, 1
s_cbranch_scc0 {Lp}
{Ld}:""")]
    def pa(off): return [("v", f"buffer_load_dword v252, v247, s[8:11], s45 offen offset:{off} sc1", "pa")]
    S = dict(sigA=13*18+1, paA=15*18+10, chkA=16*18, sigB=16*18+1, paB=16*18+14, chkB=17*18, stepB=2)
    S.update(OPT.get("sched", {}))
    ev_pre = {}
    def add(pos, L): ev_pre.setdefault(pos, []).extend(L)
    add(S["sigA"], [("wv", ("stf", 3))] + flag_store(0))
    add(S["paA"], pa(0)); add(S["chkA"], None or [("chk", 0)])
    add(S["sigB"], [("wv", ("stf", 6))] + flag_store(128))
    add(S["paB"], pa(128)); add(S["chkB"], [("chk", 128)])
    ev_post = {}
    for i in range(7): ev_post.setdefault(max(S["chkA"], 292) + i, []).extend(rload(i))
    for i in range(7): ev_post.setdefault(min(S["chkB"] + S["stepB"]*i, 323), []).extend(rload(7 + i))
    for dt in range(1, 9):
        fill = out_fill(dt-1)
        if dt == 1: fill = fill + setup7
        if dt in (3, 6): fill = [(x[0], x[1], ("stf", dt)) if x[0] == "v" else x for x in fill]
        def pre(ks, b=9+dt):
            L = []
            for x in ev_pre.get(b*18 + ks, []): L += chk(x[1]) if x[0] == "chk" else [x]
            return L
        post = lambda ks, b=9+dt: ev_post.get(b*18 + ks, [])
        block(9+dt, fill, 4, 66 if dt == 1 else G2, pre=pre, post=post)
        if dt in (1, 2, 4, 6, 8) and not OPT.get('pts'): stamp(e, lvl=3)
    stamp(e)
    e("s_nop 7")
    for x in out_fill(8): emit(x)
    def accum(x, a): e(f"v_lshlrev_b32 v8, 16, v{x}\nv_and_b32 v5, 0xffff0000, v{x}\nv_add_f32 v{a}, v{a}, v8\nv_add_f32 v{a+1}, v{a+1}, v5")
    for k in range(3):
        for j in range(4):
            x = BASE + 4*k + j; a = 16 + 8*k + 2*j
            e(f"v_lshlrev_b32 v{a}, 16, v{x}\nv_and_b32 v{a+1}, 0xffff0000, v{x}")
    e.wait(vm="st", lg="all")
    for x in flag_store(256): emit(x)
    Lep = e.label("ep")
    e(f"s_barrier\ns_cmp_eq_u32 s3, 3\ns_cbranch_scc1 {Lep}")
    for k in range(3): e.lgop(f"ds_read_b128 {vr(48+4*k)}, v9 offset:{2048*k}", "p")
    for i in range(14):
        for j in range(4): accum(slot(i) + j, 16 + 8*(i // 7) + 2*j)
    e.wait(lg="all")
    for k in range(3):
        for j in range(4): accum(48 + 4*k + j, 16 + 8*k + 2*j)
    def fin(k):
        for j in range(4): e(f"v_cvt_pk_bf16_f32 v{48+4*k+j}, v{16+8*k+2*j}, v{17+8*k+2*j}")
        e(f"buffer_store_dwordx2 {vr(48+4*k,2)}, v6, s[12:15], s40 offen offset:{32*k} {OPT.get('sc_out','')}\nbuffer_store_dwordx2 {vr(50+4*k,2)}, v7, s[12:15], s40 offen offset:{32*k} {OPT.get('sc_out','')}")
    stamp(e, lvl=2)
    poll7(256)
    stamp(e)
    for sl in range(7):
        e.vmop(f"buffer_load_dwordx4 {vr(64+4*sl)}, v11, s[8:11], s{52+sl} offen sc1", sl)
    fin(0); fin(1)
    e.vm += ["o"]*4
    for sl in range(7):
        e.wait(vm=sl)
        for j in range(4): accum(64 + 4*sl + j, 32 + 2*j)
    fin(2)
    e(f"{Lep}:")
    epi(e, name, Lend, 3, 512, 256)
    e.add_launch(name, 256, lds=147456)

def build(stamp=False, only=None, **opt):
    global STAMP, OPT
    STAMP = stamp; OPT = opt
    e = Em()
    e.L.append(".p2align 8\ncode_begin:\ns_nop 0")
    for k in (only or ["k1", "k3"]): globals()[k](e)
    e.L.append("code_end:\ns_nop 0")
    return finish(e)

if __name__ == "__main__":
    import sys, hazard
    out = "sequential_preLN__spectral_gfnet__mixer_s_mlp__prompt.s"
    txt = build(False)
    open(out, "w").write(txt); open("cur.s", "w").write(txt)
    errs = hazard.check(txt.split("\n")) + hazard.check_async(txt.split("\n"))
    print("\n".join(errs[:40])); print(len(errs), "hazards;", len(txt), "bytes")
    open("stamp.s", "w").write(build(True))
```

```python
from common import *
import common
common.castab = lambda: ''
STAMP = False
STAMP_OFF = 200 << 20
OPT = {}
FLG = WS_END
FLG_SZ = 72*1024
FLG2 = FLG + 49152 + 1024
NST = 0
M16 = "v_mfma_f32_16x16x32_bf16"

def stamp(e, first=False, lvl=0):
    global NST
    if not STAMP: return
    if (lvl != OPT.get("lvl", 0) and not (lvl == -1 and OPT.get("lvl", 0) < 2)) and not first: return
    assert NST < 15
    e(f"{'s_memtime' if (lvl == 3) else 's_memrealtime'} s[{60+2*NST}:{61+2*NST}]")
    if not first: e("s_waitcnt lgkmcnt(0)"); e.lg = []
    NST += 1

def pro(e, name, ngrid, x=False, T=False, extra=()):
    global NST
    e.begin(name)
    Lend = e.label("end")
    e(f"s_cmp_ge_u32 s2, {ngrid}\ns_cbranch_scc1 {Lend}")
    NST = 0
    stamp(e, True)
    e("s_load_dwordx2 s[4:5], s[0:1], 80")
    if x: e("s_load_dwordx2 s[6:7], s[0:1], 0")
    for (sreg, off) in extra: e(f"s_load_dwordx2 s[{sreg}:{sreg+1}], s[0:1], {off}")
    if T:
        e("s_getpc_b64 s[16:17]\ns_add_u32 s16, s16, castab@rel32@lo+4\ns_addc_u32 s17, s17, castab@rel32@hi+12")
        e("s_and_b32 s17, s17, 0xffff\ns_mov_b32 s18, 663552\ns_mov_b32 s19, 0x00020000")
    e("""v_lshrrev_b32 v5, 6, v0
v_and_b32 v1, 63, v0
v_readfirstlane_b32 s3, v5
v_lshrrev_b32 v2, 4, v1
v_and_b32 v3, 15, v1
v_lshlrev_b32 v4, 4, v1""")
    return Lend
def burn(e, n):
    L = e.label("burn")
    e(f"s_mov_b32 s58, {n}\n{L}:")
    for i in range(32): e(f"v_fma_f32 v{40+i%8}, v{40+i%8}, v{40+i%8}, v{40+i%8}")
    e(f"s_sub_u32 s58, s58, 1\ns_cmp_lg_u32 s58, 0\ns_cbranch_scc1 {L}")

def pro2(e, x=False):
    e("s_waitcnt lgkmcnt(0)")
    e.srd(8, 4, WS_SIZE)
    if x: e.srd(12, 6, A_)

def dump(e, slot):
    if STAMP:
        e(f"""s_waitcnt vmcnt(0) lgkmcnt(0)
s_mov_b64 exec, 1
s_memrealtime s[90:91]
s_lshl_b32 s92, s2, 2
s_add_u32 s92, s92, s3
s_lshl_b32 s92, s92, 7
s_add_u32 s92, s92, {STAMP_OFF + slot*(1<<20)}
s_waitcnt lgkmcnt(0)
v_mov_b32 v100, 0""")
        for k in range(8):
            for j in range(4): e(f"v_mov_b32 v{96+j}, s{60+4*k+j}")
            e(f"buffer_store_dwordx4 v[96:99], v100, s[8:11], s92 offen offset:{16*k}\ns_nop 1")
        e("s_mov_b64 exec, -1")

def epi(e, name, Lend, slot, vgpr, accum):
    dump(e, slot)
    e(f"{Lend}:")
    e.end(name, vgpr, accum, 96)

def red_g(e, regs, tmps):
    for sw in ("v_permlane32_swap_b32", "v_permlane16_swap_b32"):
        for v, t in zip(regs, tmps): e(f"v_mov_b32 v{t}, v{v}")
        e("s_nop 1" if len(regs) < 3 else "s_nop 0")
        for v, t in zip(regs, tmps): e(f"{sw} v{v}, v{t}")
        if len(regs) < 2: e("s_nop 0")
        for v, t in zip(regs, tmps): e(f"v_add_f32 v{v}, v{v}, v{t}")

def sdiv(e, d, q, r, x, tmp):
    m = (1 << 32) // d + 1
    e(f"s_mul_hi_u32 s{q}, s{x}, {m}\ns_mul_i32 s{tmp}, s{q}, {d}\ns_sub_u32 s{r}, s{x}, s{tmp}")

C0 = -2.0*math.sqrt(2.0/math.pi)*math.log2(math.e)
C1 = C0*0.044715
def gelu_consts(e, r, K0, K1, IR):
    e(f"v_rcp_f32 v{IR}, v{r}\nv_mul_f32 v{K0}, {fhex(C0)}, v{r}\nv_mul_f32 v{K1}, v{r}, v{r}\nv_mul_f32 v{K1}, v{K1}, v{r}\nv_mul_f32 v{K1}, {fhex(C1)}, v{K1}")
def gelu4(a, tmp, K0, K1, IR):
    L = []
    L += [f"v_mul_f32 v{tmp+r}, v{a+r}, v{a+r}" for r in range(4)]
    L += [f"v_fma_f32 v{tmp+r}, v{tmp+r}, v{K1}, v{K0}" for r in range(4)]
    L += [f"v_mul_f32 v{tmp+r}, v{tmp+r}, v{a+r}" for r in range(4)]
    L += [f"v_exp_f32 v{tmp+r}, v{tmp+r}" for r in range(4)]
    L += [f"v_fma_f32 v{tmp+r}, v{tmp+r}, v{IR}, v{IR}" for r in range(4)]
    L += [f"v_rcp_f32 v{tmp+r}, v{tmp+r}" for r in range(4)]
    L += [f"v_mul_f32 v{tmp+r}, v{tmp+r}, v{a+r}" for r in range(4)]
    return L


def tgen(e, j0s, TB, ST, us=(0, 1, 2), hook=None, agpr=None, init=None):
    S0, S1, FA, C1r, C32r, P0, K8, Q = ST, ST+8, ST+16, ST+17, ST+18, ST+19, ST+20, ST+21
    if (0 in us) or init: e(f"s_lshl_b32 s17, s{j0s}, 4\nv_add_u32 v{FA}, s17, v3\nv_cvt_f32_u32 v{FA}, v{FA}\nv_lshlrev_b32 v{Q+1}, 3, v2\nv_cvt_f32_u32 v{Q+1}, v{Q+1}\nv_mov_b32 v{K8}, 0x3e000000")
    for u in us:
        if u: e(f"v_add_f32 v{FA}, 0x41800000, v{FA}")
        e(f"""v_mul_f32 v{C1r}, {fhex(1/576)}, v{FA}
v_mul_f32 v{C32r}, {fhex(1/18)}, v{FA}
v_mul_f32 v{P0}, v{FA}, v{Q+1}
v_floor_f32 v{C32r}, v{C32r}
v_cos_f32 v{C1r}, v{C1r}
v_fmamk_f32 v{C32r}, v{C32r}, {fhex(-18.0)}, v{FA}
v_mul_f32 v{C32r}, {fhex(1/18)}, v{C32r}""")
        sd = [(S0, 0), (S0+1, 1), (S1, 32), (S1+1, 33)]
        for r, k in sd: e(f"v_fmamk_f32 v{r}, v{FA}, {fhex(float(k))}, v{P0}")
        e(f"v_cos_f32 v{C32r}, v{C32r}")
        for r, k in sd: e(f"v_mul_f32 v{r+2}, {fhex(1/576)}, v{r}")
        e(f"v_add_f32 v{C1r}, v{C1r}, v{C1r}")
        for r, k in sd: e(f"v_floor_f32 v{r+2}, v{r+2}")
        e(f"v_add_f32 v{C32r}, v{C32r}, v{C32r}")
        for r, k in sd: e(f"v_fmamk_f32 v{r}, v{r+2}, {fhex(-576.0)}, v{r}")
        for r, k in sd: e(f"v_fmamk_f32 v{r}, v{r}, {fhex(1/576)}, v{K8}")
        for r, k in sd: e(f"v_sin_f32 v{r}, v{r}")
        e("s_nop 0")
        for i in range(2, 8):
            for S in (S0, S1): e(f"v_fma_f32 v{S+i}, v{C1r}, v{S+i-1}, -v{S+i-2}")
        for ks in range(9):
            S = S0 if ks % 2 == 0 else S1; O = S1 if ks % 2 == 0 else S0
            if ks >= 2:
                for i in range(8): e(f"v_fma_f32 v{S+i}, v{C32r}, v{O+i}, -v{S+i}")
            if agpr is None:
                for m in range(4): e(f"v_cvt_pk_bf16_f32 v{TB+(ks*3+u)*4+m}, v{S+2*m}, v{S+2*m+1}")
            else:
                for m in range(4): e(f"v_cvt_pk_bf16_f32 v{ST+24+m}, v{S+2*m}, v{S+2*m+1}")
                for m in range(4): e(f"v_accvgpr_write_b32 a{agpr+4*ks+m}, v{ST+24+m}")
            if hook: hook(u, ks)

def pack_job(e, ldflag, stflag):
    e(f"s_mul_i32 s40, s35, {3*73728}\ns_add_u32 s36, s36, s40")
    e("s_mul_i32 s40, s34, s33\ns_mul_i32 s41, s35, 384\ns_add_u32 s40, s40, s41")
    e("""v_lshrrev_b32 v6, 3, v1
v_mul_lo_u32 v6, v6, s33
v_and_b32 v7, 7, v1
v_lshl_add_u32 v6, v7, 4, v6
s_lshl_b32 s41, s33, 3
s_mul_i32 s39, s39, s33
s_mul_i32 s42, s3, 12288""")
    for f in range(4):
        for it in range(3):
            e(f"s_add_u32 m0, s42, {it*4096 + f*1024 - it*128}")
            e(f"s_add_u32 s40, s40, s{39 if f == 2 else 41}" if (it == 0 and f) else "s_nop 0")
            e.vmop(f"buffer_load_dwordx4 v6, s[12:15], s40 offen offset:{128*it} {ldflag} lds", ("d", 0))
    e("""v_mul_lo_u32 v7, v2, s37
v_lshrrev_b32 v8, 2, v3
v_add_u32 v7, v7, v8
v_lshlrev_b32 v7, 7, v7
v_and_b32 v8, 3, v3
v_lshl_add_u32 v7, v8, 3, v7
v_add_u32 v7, s42, v7
s_lshl_b32 s43, s38, 7
v_add_u32 v8, s43, v7
v_add_u32 v9, 18432, v4
v_add_u32 v10, 36864, v4
v_add_u32 v11, 55296, v4""")
    nst_save = NST; globals()["NST"] = 1
    stamp(e, lvl=-1)
    for it in range(3):
        e.wait(vm=("d", it))
        if it == 0: stamp(e, lvl=-1)
        for tt in range(4):
            o = 16 + 16*it + 4*tt
            e.lgop(f"ds_read_b64_tr_b16 {vr(o,2)}, v7 offset:{it*4096 + 32*tt}", (it, tt))
            e.lgop(f"ds_read_b64_tr_b16 {vr(o+2,2)}, v8 offset:{it*4096 + 32*tt}", (it, tt))
        for tt in range(4):
            e.wait(lg=(it, tt))
            e.vmop(f"buffer_store_dwordx4 {vr(16 + 16*it + 4*tt)}, v{(4,9,10,11)[tt]}, s[8:11], s36 offen {stflag}", "st")
        if it < 2: e("s_add_u32 s36, s36, 73728")
    globals()["NST"] = nst_save
    e.vm = []; e.lg = []

def code_srd(e, d, label, nbytes):
    e(f"s_getpc_b64 s[{d}:{d+1}]\ns_add_u32 s{d}, s{d}, {label}@rel32@lo+4\ns_addc_u32 s{d+1}, s{d+1}, {label}@rel32@hi+12")
    e(f"s_and_b32 s{d+1}, s{d+1}, 0xffff\ns_mov_b32 s{d+2}, {nbytes}\ns_mov_b32 s{d+3}, 0x00020000")

def touch(e, srd, sreg, nbytes, vaddr, vd, stride=64):
    n = -(-nbytes // stride); i = 0
    while n > 0:
        if n < 64: e(f"s_mov_b32 exec_lo, {hex((1 << min(n,32)) - 1)}\ns_mov_b32 exec_hi, {hex((1 << max(n-32,0)) - 1)}")
        e(f"buffer_load_dword v{vd}, v{vaddr}, s[{srd}:{srd+3}], s{sreg} offen")
        n -= 64; i += 1
        if n > 0: e(f"s_add_u32 s{sreg}, s{sreg}, {64*stride}")
    e("s_mov_b64 exec, -1")

def k1(e):
    name = "k1_kernel"
    N3 = 0
    NS = 256
    Lend = pro(e, name, 256 + NS, x=True, extra=((20, 8), (22, 16), (24, 32), (26, 40), (28, 48), (30, 56), (18, 64)))
    def cpf0():
        code_srd(e, 52, "code_begin", "k3_kernel-code_begin")
        e("s_lshr_b32 s44, s2, 3\ns_lshl_b32 s44, s44, 2\ns_add_u32 s44, s44, s3\ns_and_b32 s44, s44, 15\ns_lshl_b32 s44, s44, 10")
        if OPT.get("cpf0", 1) == 3: e("s_cmp_lt_u32 s2, 64\ns_cselect_b32 s54, s54, 0")
        e.vmop("buffer_load_dwordx4 v[196:199], v4, s[52:55], s44 offen", "c")
    if OPT.get("cpf0", 1) in (1, 3): cpf0()
    if OPT.get("burn1"): burn(e, OPT["burn1"])
    Lside = e.label("side"); Lst = e.label("stats"); Lep = e.label("ep")
    ACC, BF, NB, TB = 16, 64, 3, 88
    def acc(h, u, t): return ACC + h*24 + (u*2+t)*4
    e(f"s_cmp_ge_u32 s2, 256\ns_cbranch_scc1 {Lside}")
    if OPT.get("cpf0", 1) == 2: cpf0()
    e("""s_bfe_u32 s34, s2, 0x20003
s_and_b32 s35, s2, 7
s_lshl_b32 s35, s35, 3
s_lshr_b32 s39, s2, 5
s_add_u32 s35, s35, s39
s_lshr_b32 s36, s35, 5
s_bfe_u32 s37, s35, 0x20003
s_and_b32 s38, s35, 7
s_lshl_b32 s40, s36, 5
s_lshr_b32 s41, s3, 1
s_lshl_b32 s41, s41, 4
s_add_u32 s40, s40, s41
s_lshl_b32 s41, s37, 2
s_add_u32 s40, s40, s41
s_lshl_b32 s40, s40, 5
s_lshl_b32 s41, s38, 2
s_add_u32 s40, s40, s41
v_lshrrev_b32 v5, 3, v1
v_and_b32 v7, 3, v5
v_lshlrev_b32 v7, 5, v7
v_lshrrev_b32 v6, 2, v5
s_and_b32 s41, s3, 1
s_lshl_b32 s41, s41, 1
s_add_u32 s41, s41, s40
v_add3_u32 v6, v6, v7, s41
v_mul_u32_u24 v7, 1152, v6
v_and_b32 v5, 6, v5
v_and_b32 v6, 7, v1
v_xor_b32 v6, v6, v5
v_lshl_add_u32 v7, v6, 4, v7
s_mul_i32 s42, s3, 9216
s_mul_i32 s44, s34, 9
s_mul_i32 s45, s3, 3
s_add_u32 s44, s44, s45""")
    et = Em(); tgen(et, 44, TB, 16)
    NPRE = OPT.get("npre", 0)
    e.L += et.L[:NPRE]
    pro2(e, x=True)
    XM = OPT.get("xm", (0,)*9)
    def xstage(ks):
        if ks % 2 == 0 and ks and XM[ks // 2] != XM[ks // 2 - 1]:
            e.wait(vm=("dma", XM[ks // 2]))
            e("s_barrier")
    for idx in range(9):
        e(f"s_add_u32 m0, s42, {idx*896}\ns_nop 0")
        e.vmop(f"buffer_load_dwordx4 v7, s[12:15], 0 offen offset:{128*idx} {OPT.get('ld_x','')} lds", ("dma", XM[idx]))
    e("""v_lshrrev_b32 v13, 3, v3
v_mul_u32_u24 v13, 9216, v13
v_and_b32 v14, 7, v3
v_lshl_add_u32 v13, v14, 7, v13
v_and_b32 v14, 6, v3
v_xor_b32 v14, v14, v2
v_lshl_add_u32 v14, v14, 4, v13
v_xor_b32 v15, 64, v14""")
    e(f"s_cmp_eq_u32 s3, 3\ns_cbranch_scc1 {Lst}")
    vm_save = list(e.vm)
    e.L += et.L[NPRE:]
    e(f"""v_lshlrev_b32 v8, 12, v3
v_lshl_add_u32 v8, v2, 4, v8
s_lshl_b32 s50, s44, 16
s_lshr_b32 s51, s38, 2
s_lshl_b32 s51, s51, 1
s_add_u32 s51, s51, s36
s_lshl_b32 s51, s51, 10
s_add_u32 s50, s50, s51
s_lshl_b32 s51, s37, 8
s_add_u32 s50, s50, s51
s_and_b32 s51, s38, 3
s_lshl_b32 s51, s51, 6
s_add_u32 s50, s50, s51
s_add_u32 s50, s50, {UT}
v_lshlrev_b32 v9, 4, v2
v_lshlrev_b32 v10, 31, v3
v_or_b32 v10, 1.0, v10""")
    stamp(e)
    e.wait(vm=("dma", 0))
    e("s_barrier")
    stamp(e)
    def rd(ks):
        xstage(ks)
        for t in range(2):
            e.lgop(f"ds_read_b128 {vr(BF + ((ks % NB)*2 + t)*4)}, v{14 + (ks & 1)} offset:{t*18432 + (ks >> 1)*1024}", ("b", ks))
    for ks in range(NB-1): rd(ks)
    for ks in range(18):
        if ks + NB - 1 < 18: rd(ks + NB - 1)
        e.wait(lg=("b", ks))
        for u in range(3):
            for t in range(2):
                d = vr(acc(ks // 9, u, t))
                e(f"{M16} {d}, {vr(BF + ((ks % NB)*2 + t)*4)}, {vr(TB + ((ks % 9)*3 + u)*4)}, {d if ks % 9 else 0}")
    stamp(e)
    e("s_barrier")
    stamp(e)
    e.lgop("ds_read_b128 v[76:79], v9 offset:36864", "r"); e.lgop("ds_read_b128 v[80:83], v9 offset:36928", "r")
    e("s_nop 3")
    for u in range(3):
        for t in range(2):
            for r in range(4): e(f"v_fmac_f32 v{acc(0,u,t)+r}, v{acc(1,u,t)+r}, v10")
        e.wait(lg="all")
        for t in range(2):
            for r in range(4): e(f"v_mul_f32 v{acc(0,u,t)+r}, v{acc(0,u,t)+r}, v{76+4*t+r}")
        o = BF + 4*u
        for t in range(2):
            e(f"v_cvt_pk_bf16_f32 v{o+2*t}, v{acc(0,u,t)}, v{acc(0,u,t)+1}\nv_cvt_pk_bf16_f32 v{o+2*t+1}, v{acc(0,u,t)+2}, v{acc(0,u,t)+3}")
        e.vmop(f"buffer_store_dwordx4 {vr(o)}, v8, s[8:11], s50 offen {OPT.get('sc_ut','')}", "st")
        if u < 2: e("s_add_u32 s50, s50, 65536")
    stamp(e)
    if OPT.get("touch34"):
        ts = OPT.get("tstride", 64)
        e.srd(48, 28, 5308416); e.srd(52, 30, 5308416)
        e(f"v_mul_u32_u24 v11, {ts}, v1\ns_mul_i32 s38, s2, 3\ns_add_u32 s38, s38, s3\ns_mul_i32 s38, s38, 6912\ns_mov_b32 s39, s38")
        dump(e, 1)
        touch(e, 48, 38, 6912, 11, 16, ts); touch(e, 52, 39, 6912, 11, 20, ts)
        e("s_endpgm")
    e(f"s_branch {Lep}")
    e(f"{Lst}:")
    e.vm = vm_save; e.lg = []
    def cpf():
        code_srd(e, 52, "code_begin", "code_end-code_begin")
        e("s_lshr_b32 s44, s2, 3\ns_mul_i32 s44, s44, 3072")
        for i in range(3): e.vmop(f"buffer_load_dwordx4 v[{100+4*i}:{103+4*i}], v4, s[52:55], s44 offen offset:{1024*i}", "c")
    if OPT.get("cpf", 2) == 1: cpf()
    if OPT.get("tlb"):
        st_ = OPT["tlb"]
        e.srd(48, 28, 5308416); e.srd(52, 30, 5308416); e.srd(56, 18, A_)
        e(f"v_lshlrev_b32 v11, {st_}, v1")
        n = -(-(FLG + FLG_SZ) >> st_)
        for i in range(-(-n // 64)):
            e(f"s_mov_b32 s44, {i << (st_ + 6)}")
            e.vmop("buffer_load_dword v44, v11, s[8:11], s44 offen", "t")
        for sr in (48, 52, 56): e.vmop(f"buffer_load_dword v44, v11, s[{sr}:{sr+3}], 0 offen", "t")
    for i in range(4): e(f"v_mov_b32 v{36+i}, 0x3f803f80")
    e("v_lshrrev_b32 v8, 2, v3\nv_and_b32 v9, 3, v3")
    for k in sorted(set(XM)):
        e.wait(vm=("dma", k))
        e("s_barrier")
    if OPT.get("cpf", 2) == 2: cpf()
    NR = 6
    def rds(f): e.lgop(f"ds_read_b128 {vr(64+4*(f%NR))}, v{14 + (f & 1)} offset:{(f // 18)*18432 + ((f % 18) >> 1)*1024}", f)
    for f in range(NR-1): rds(f)
    for f in range(36):
        if f + NR - 1 < 36: rds(f + NR - 1)
        e.wait(lg=f)
        t = f // 18; x = vr(64 + 4*(f % NR))
        e(f"{M16} {vr(16+8*t)}, {x}, v[36:39], {vr(16+8*t) if f % 18 else 0}")
        e(f"{M16} {vr(20+8*t)}, {x}, {x}, {vr(20+8*t) if f % 18 else 0}")
    e("v_cmp_eq_u32 s[40:41], 1, v9\nv_cmp_eq_u32 s[42:43], 2, v9\nv_cmp_eq_u32 s[46:47], 3, v9\nv_cmp_eq_u32 s[48:49], v8, v2\ns_nop 4")
    for b in (16, 20, 24, 28):
        e(f"v_cndmask_b32 v{b}, v{b}, v{b+1}, s[40:41]\nv_cndmask_b32 v{b}, v{b}, v{b+2}, s[42:43]\nv_cndmask_b32 v{b}, v{b}, v{b+3}, s[46:47]")
    e(f"v_mov_b32 v32, {fhex(1/576)}")
    for t in range(2):
        b = 16 + 8*t
        e(f"""v_mul_f32 v{b}, v32, v{b}
v_mul_f32 v{b+1}, v{b}, v{b}
v_fma_f32 v{b+4}, v{b+4}, v32, -v{b+1}
v_max_f32 v{b+4}, 0, v{b+4}
v_add_f32 v{b+4}, {fhex(EPS)}, v{b+4}
v_rsq_f32 v{b+4}, v{b+4}""")
    Lns = e.label("nost")
    e(f"""v_lshlrev_b32 v33, 2, v3
s_lshl_b32 s45, s35, 7
s_add_u32 s45, s45, {MX}
s_mov_b64 exec, s[48:49]
ds_write_b32 v33, v20 offset:36864
ds_write_b32 v33, v28 offset:36928
s_cmp_lg_u32 s34, 0
s_cbranch_scc1 {Lns}
buffer_store_dword v16, v33, s[8:11], s45 offen
buffer_store_dword v24, v33, s[8:11], s45 offen offset:64
{Lns}:
s_waitcnt lgkmcnt(0)
s_barrier
s_branch {Lep}""")
    e(f"{Lside}:")
    e.vm = []; e.lg = []
    Lwt, Lrm, L2, Lgo = [e.label(x) for x in ("wt", "rm", "w2", "go")]
    L3, Lgo2, Lpk, Lw1 = e.label("w3"), e.label("go2"), e.label("pk"), e.label("wv1")
    e(f"""s_sub_u32 s32, s2, 256
s_cmp_ge_u32 s3, 2
s_cbranch_scc1 {Lend}
s_waitcnt lgkmcnt(0)
s_cmp_eq_u32 s3, 0
s_cbranch_scc1 {Lwt}
s_cmp_lt_u32 s32, 108
s_cbranch_scc1 {Lpk}
s_add_u32 s32, s32, 148
s_cmp_lt_u32 s32, 288
s_cbranch_scc1 {Lwt}
s_sub_u32 s32, s32, 288
s_cmp_lt_u32 s32, 72
s_cbranch_scc1 {Lrm}
s_branch {Lend}
{Lpk}:""")
    pro2(e)
    e(f"s_cmp_ge_u32 s32, 54\ns_cbranch_scc1 {L2}")
    e.srd(12, 24, 663552)
    e(f"s_mov_b32 s39, {W1P}\ns_branch {Lgo}\n{L2}:\ns_sub_u32 s32, s32, 54")
    e.srd(12, 26, 663552)
    e(f"s_mov_b32 s39, {W2P}\n{Lgo}:")
    sdiv(e, 3, 34, 35, 32, 40)
    e("s_mov_b32 s33, 1152\ns_lshl_b32 s36, s34, 10\ns_add_u32 s36, s36, s39\ns_mov_b32 s37, 8\ns_mov_b32 s38, 4\ns_mov_b32 s39, 8\ns_lshl_b32 s34, s34, 5")
    pack_job(e, OPT.get("ld_p12", "nt"), OPT.get("sc_p12", "sc1"))
    e(f"s_branch {Lep}")
    if N3:
        e(f"{L3}:")
        e.srd(12, 28, 5308416); sdiv(e, 24, 34, 35, 32, 40)
        e(f"s_mov_b32 s33, 9216\ns_lshl_b32 s36, s34, 10\ns_add_u32 s36, s36, {W3P}\ns_mov_b32 s37, 8\ns_mov_b32 s38, 4\ns_mov_b32 s39, 8\ns_lshl_b32 s34, s34, 5")
        pack_job(e, OPT.get("ld_pk", "nt"), OPT.get("sc_pk", "sc1"))
        e(f"s_branch {Lep}")
    e(f"{Lrm}:")
    e.srd(8, 4, WS_SIZE)
    e.srd(12, 26, 663552)
    e("""v_lshrrev_b32 v6, 3, v1
v_mul_u32_u24 v7, 1152, v6
v_and_b32 v8, 7, v1
v_lshl_add_u32 v7, v8, 4, v7
s_mul_i32 s33, s32, 9216
s_mov_b32 s34, 0x3f803f80
v_mov_b32 v9, 0""")
    for m in range(9): e.vmop(f"buffer_load_dwordx4 {vr(16+4*m)}, v7, s[12:15], s33 offen offset:{128*m}", m)
    Lnz = e.label("nz")
    e(f"s_cmp_ge_u32 s32, 72\ns_cbranch_scc1 {Lnz}\nv_mov_b32 v56, 0\nv_mov_b32 v57, 0\nv_mov_b32 v58, 0\nv_mov_b32 v59, 0\ns_lshl_b32 s38, s32, 10\ns_add_u32 s38, s38, {FLG}")
    e(f"buffer_store_dwordx4 v[56:59], v4, s[8:11], s38 offen\n{Lnz}:")
    e.wait(vm="all")
    for j in range(36): e(f"v_dot2_f32_bf16 v9, v{16+j}, s34, v9")
    e(f"""s_nop 3
v_add_f32_dpp v9, v9, v9 quad_perm:[1,0,3,2] row_mask:0xf bank_mask:0xf
s_nop 1
v_add_f32_dpp v9, v9, v9 quad_perm:[2,3,0,1] row_mask:0xf bank_mask:0xf
s_nop 1
v_add_f32_dpp v9, v9, v9 row_half_mirror row_mask:0xf bank_mask:0xf
v_mul_f32 v9, {fhex(1/576)}, v9
v_cvt_pk_bf16_f32 v10, v9, v9
v_and_b32 v11, 0xffff0000, v10
v_sub_f32 v9, v9, v11
v_cvt_pk_bf16_f32 v9, v9, v9
v_lshlrev_b32 v6, 1, v6
s_lshl_b32 s33, s32, 8
s_add_u32 s33, s33, {W2P + 36*18432}
v_cmp_eq_u32 vcc, 0, v8
s_nop 1
s_and_saveexec_b64 s[36:37], vcc
buffer_store_short v10, v6, s[8:11], s33 offen
buffer_store_short v9, v6, s[8:11], s33 offen offset:16
s_branch {Lep}""")
    e(f"{Lwt}:")
    e.srd(8, 4, WS_SIZE)
    e.srd(12, 20, 1183744); e.srd(16, 22, 1183744)
    e(f"""s_and_b32 s45, s32, 1
s_bfe_u32 s40, s32, 0x40001
s_lshr_b32 s44, s32, 5
s_lshl_b32 s46, s40, 2
v_add_u32 v5, s46, v2
v_mul_u32_u24 v5, 578, v5
v_lshl_add_u32 v6, v3, 2, v5
s_lshl_b32 s46, s44, 6
s_add_u32 s46, s46, 2
s_mul_i32 s41, s45, {8*36992}
s_add_u32 s46, s46, s41""")
    for j in range(16):
        if j: e(f"s_add_u32 s46, s46, {36992*(9 if j == 8 else 1)}")
        e.vmop(f"buffer_load_dword v{64+j}, v6, s[12:15], s46 offen {OPT.get('ld_w','nt')}", "wt")
        e.vmop(f"buffer_load_dword v{80+j}, v6, s[16:19], s46 offen {OPT.get('ld_w','nt')}", "wt")
    e(f"""s_lshl_b32 s36, s44, 18
s_lshr_b32 s41, s40, 2
s_lshl_b32 s41, s41, 11
s_add_u32 s36, s36, s41
s_and_b32 s41, s40, 3
s_lshl_b32 s41, s41, 7
s_add_u32 s36, s36, s41
s_lshl_b32 s41, s45, 10
s_add_u32 s36, s36, s41
s_add_u32 s36, s36, {WT}
s_mov_b32 s40, 0x05040100
s_mov_b32 s41, 0x07060302
s_mul_i32 s42, s3, 12288
v_lshlrev_b32 v5, 8, v3
v_lshl_add_u32 v5, v2, 5, v5
v_add_u32 v5, s42, v5
v_add_u32 v8, s42, v4
v_lshrrev_b32 v6, 3, v1
v_lshlrev_b32 v6, 13, v6
v_and_b32 v7, 7, v1
v_lshl_add_u32 v6, v7, 4, v6""")
    e.wait(vm="all")
    for gl in range(2):
        for h in range(2):
            for tk in range(2):
                o = 16 + ((gl*2 + h)*2 + tk)*4
                for r in range(4):
                    j = 8*tk + 4*gl + r
                    e(f"v_perm_b32 v{o+r}, v{80+j}, v{64+j}, s{40+h}")
                e.lgop(f"ds_write_b128 v5, {vr(o)} offset:{gl*4096 + h*128 + tk*16}", "ww")
    e.wait(lg="all")
    for m in range(8): e.lgop(f"ds_read_b128 {vr(64+4*m)}, v8 offset:{m*1024}", ("wr", m))
    for m in range(8):
        e(f"s_add_u32 s45, s36, {(m & 3)*65536 + (m >> 2)*512}")
        e.wait(lg=("wr", m))
        e.vmop(f"buffer_store_dwordx4 {vr(64+4*m)}, v6, s[8:11], s45 offen {OPT.get('sc_wt','')}", "ws")
    NC = OPT.get("chain", 0)
    if NC:
        e(f"s_cmp_ge_u32 s32, {NC}\ns_cbranch_scc1 {Lep}")
        e.srd(12, 28, 5308416); sdiv(e, 24, 34, 35, 32, 40)
        e(f"s_mov_b32 s33, 9216\ns_lshl_b32 s36, s34, 10\ns_add_u32 s36, s36, {W3P}\ns_mov_b32 s37, 8\ns_mov_b32 s38, 4\ns_mov_b32 s39, 8\ns_lshl_b32 s34, s34, 5")
        pack_job(e, OPT.get("ld_pk", "nt"), OPT.get("sc_pk", "sc1"))
    e(f"{Lep}:")
    epi(e, name, Lend, 1, 200, 200)
    e.add_launch(name, 256 + NS, lds=36992)

def p2x2(e):
    e(f"""s_add_u32 s35, s34, 1
s_sub_u32 s46, 287, s34
s_cmp_eq_u32 s34, 143
s_cselect_b32 s46, 288, s46
s_cselect_b32 s14, 0, {WS_SIZE}
s_cselect_b32 s45, 0, s46
s_lshl_b32 s39, s34, 13
s_lshl_b32 s47, s46, 13
s_lshl_b32 s40, s3, 11
s_add_u32 s40, s40, {WT}
s_add_u32 s39, s39, s40
s_add_u32 s47, s47, s40
s_sub_u32 s47, s47, 8192
s_lshl_b32 s38, s35, 13
s_lshl_b32 s45, s45, 13
s_lshl_b32 s35, s35, 12
s_lshl_b32 s46, s46, 12
s_sub_u32 s36, {576*4096}, s35
s_sub_u32 s37, {576*4096}, s46
v_lshlrev_b32 v6, 5, v1
s_cmp_eq_u32 s3, 1
s_cselect_b32 s48, s36, s35
s_cmp_eq_u32 s3, 2
s_cselect_b32 s48, s46, s48
s_cmp_eq_u32 s3, 3
s_cselect_b32 s48, s37, s48
s_cselect_b32 s14, s14, {WS_SIZE}
s_lshl_b32 s49, s3, 12
s_add_u32 m0, s49, 16384""")
    pro2(e)
    e("s_mov_b32 s12, s8\ns_mov_b32 s13, s9\ns_mov_b32 s15, 0x00020000")
    P, Q, WV, RE, IM, PR, PI = (16, 168), (32, 184), (48, 200), (152, 208), (160, 216), (8, 224), (12, 228)
    for f in range(4): e.vmop(f"buffer_load_dwordx4 v4, s[12:15], s48 offen offset:{f*1024} lds", "d")
    for c in range(2):
        e.vmop(f"buffer_load_dwordx4 {vr(WV[c])}, v6, s[8:11], s{(39,47)[c]} offen", ("w", c))
        e.vmop(f"buffer_load_dwordx4 {vr(WV[c]+4)}, v6, s[8:11], s{(39,47)[c]} offen offset:16", ("w", c))
    C64, S64, N64 = 56, 64, 72
    C32, S32, N32 = 80, 88, 96
    TC1, TS1, TC2, TS2 = 104, 112, 120, 128
    TMP = 136
    e("""s_lshl_b32 s40, s3, 4
v_add_u32 v7, s40, v3
v_cvt_f32_u32 v7, v7
v_lshlrev_b32 v5, 2, v2
v_cvt_f32_u32 v5, v5
v_cvt_f32_u32 v6, v3
s_mov_b32 s41, 0x80008000
s_brev_b32 s42, 1
v_and_b32 v0, 1, v3
v_mul_lo_u32 v0, v0, s41""")
    e(f"v_mul_f32 v8, {fhex(1/64)}, v7\nv_mul_f32 v9, v5, v8")
    for i in range(8): e(f"v_fmamk_f32 v{TMP+i}, v8, {fhex(float(16*(i>>2) + (i&3)))}, v9")
    for i in range(8): e(f"v_fract_f32 v{TMP+i}, v{TMP+i}")
    for i in range(8): e(f"v_sin_f32 v{TMP+8+i}, v{TMP+i}")
    for i in range(8): e(f"v_cos_f32 v{TMP+i}, v{TMP+i}")
    for m in range(4): e(f"v_cvt_pk_bf16_f32 v{S64+m}, v{TMP+8+2*m}, v{TMP+9+2*m}")
    for m in range(4): e(f"v_cvt_pk_bf16_f32 v{C64+m}, v{TMP+2*m}, v{TMP+1+2*m}")
    for m in range(4): e(f"v_xor_b32 v{N64+m}, s41, v{S64+m}")
    for b in (C64, S64, N64):
        for m in range(4): e(f"v_xor_b32 v{b+4+m}, v0, v{b+m}")
    tw1 = [f"v_mul_f32 v8, {fhex(1/2048)}, v7", "v_mul_f32 v9, v5, v8"]
    tw1 += [f"v_fmamk_f32 v{TC1+i}, v8, {fhex(float(16*(i>>2)+(i&3)))}, v9" for i in range(8)]
    tw1 += [f"v_sin_f32 v{TS1+i}, v{TC1+i}" for i in range(8)] + [f"v_cos_f32 v{TC1+i}, v{TC1+i}" for i in range(8)]
    for l in tw1: e(l)
    m32 = [f"v_mul_f32 v8, {fhex(1/32)}, v6", "v_mul_f32 v9, v5, v8"]
    m32 += [f"v_fmamk_f32 v{TC2+i}, v8, {fhex(float(i))}, v9" for i in range(4)]
    m32 += [f"v_fract_f32 v{TC2+i}, v{TC2+i}" for i in range(4)]
    m32 += [f"v_sin_f32 v{TC2+4+i}, v{TC2+i}" for i in range(4)] + [f"v_cos_f32 v{TC2+i}, v{TC2+i}" for i in range(4)]
    m32 += [f"v_cvt_pk_bf16_f32 v{S32+m}, v{TC2+4+2*m}, v{TC2+5+2*m}" for m in range(2)]
    m32 += [f"v_cvt_pk_bf16_f32 v{C32+m}, v{TC2+2*m}, v{TC2+1+2*m}" for m in range(2)]
    m32 += [f"v_xor_b32 v{b+2+m}, v0, v{b+m}" for b in (C32, S32) for m in range(2)]
    m32 += [f"v_xor_b32 v{b+4+m}, s42, v{b+m}" for b in (C32, S32) for m in range(4)]
    m32 += [f"v_xor_b32 v{N32+m}, s41, v{S32+m}" for m in range(8)]
    tw2 = ["v_cvt_f32_u32 v0, s40", "v_add_f32 v0, v0, v5", f"v_mul_f32 v7, {fhex(1/2048)}, v6", f"v_add_f32 v5, {fhex(16/2048)}, v7",
           "v_mul_f32 v6, v0, v7", "v_mul_f32 v0, v0, v5"]
    tw2 += [f"v_fmamk_f32 v{TC2+r}, v7, {fhex(float(r))}, v6" for r in range(4)]
    tw2 += [f"v_fmamk_f32 v{TC2+4+r}, v5, {fhex(float(r))}, v0" for r in range(4)]
    tw2 += [f"v_sin_f32 v{TS2+i}, v{TC2+i}" for i in range(8)] + [f"v_cos_f32 v{TC2+i}, v{TC2+i}" for i in range(8)]
    def steps(lst, fill=(), per=2, tail=0):
        fill = list(fill)
        n = len(lst[0][1])
        for k in range(n):
            for d, ch in lst:
                A, B = ch[k]
                e(f"{M16} {vr(d)}, {vr(A)}, {vr(B)}, {vr(d) if k else 0}")
                for _ in range(per):
                    if fill: e(fill.pop(0))
        nleft = len(fill)
        for l in fill: e(l)
        if nleft < tail: e(f"s_nop {tail - nleft - 1}")
    def cmul(c, cre, sim, sign):
        L = [f"v_mul_f32 v{TMP+i}, v{RE[c]+i}, v{cre+i}" for i in range(8)]
        L += [f"v_mul_f32 v{TMP+8+i}, v{IM[c]+i}, v{cre+i}" for i in range(8)]
        L += [f"v_fma_f32 v{TMP+i}, {'-' if sign > 0 else ''}v{IM[c]+i}, v{sim+i}, v{TMP+i}" for i in range(8)]
        L += [f"v_fma_f32 v{TMP+8+i}, {'' if sign > 0 else '-'}v{RE[c]+i}, v{sim+i}, v{TMP+8+i}" for i in range(8)]
        L += [f"v_cvt_pk_bf16_f32 v{PR[c]+m}, v{TMP+2*m}, v{TMP+2*m+1}" for m in range(4)]
        L += [f"v_cvt_pk_bf16_f32 v{PI[c]+m}, v{TMP+8+2*m}, v{TMP+9+2*m}" for m in range(4)]
        return L
    def MA(c, s1, s2): return ([(RE[c]+4*ts, [(P[c]+8*ts, C64), (Q[c]+8*ts, s1), (P[c]+8*ts+4, C64+4), (Q[c]+8*ts+4, s1+4)]) for ts in range(2)] +
                               [(IM[c]+4*ts, [(Q[c]+8*ts, C64), (P[c]+8*ts, s2), (Q[c]+8*ts+4, C64+4), (P[c]+8*ts+4, s2+4)]) for ts in range(2)])
    def MB(c): return ([(RE[c]+4*tk, [(C32+4*tk, PR[c]), (S32+4*tk, PI[c])]) for tk in range(2)] + [(IM[c]+4*tk, [(C32+4*tk, PI[c]), (N32+4*tk, PR[c])]) for tk in range(2)])
    def MC(c): return ([(RE[c]+4*ts, [(PR[c], C32+4*ts), (PI[c], N32+4*ts)]) for ts in range(2)] + [(IM[c]+4*ts, [(PI[c], C32+4*ts), (PR[c], S32+4*ts)]) for ts in range(2)])
    def wun(c):
        L = []
        for i in range(8): L += [f"v_lshlrev_b32 v{TC1+i}, 16, v{WV[c]+i}", f"v_and_b32 v{TS1+i}, 0xffff0000, v{WV[c]+i}"]
        return L
    stamp(e, lvl=6)
    for l in m32: e(l)
    e.srd(12, 18, 5308416)
    e("v_lshrrev_b32 v232, 3, v1\nv_and_b32 v233, 7, v1\nv_mul_u32_u24 v232, 9216, v232\nv_lshl_add_u32 v232, v233, 4, v232")
    e("s_lshr_b32 s52, s34, 1\ns_mul_i32 s52, s52, 3\ns_and_b32 s53, s34, 1\ns_lshl_b32 s53, s53, 1\ns_add_u32 s55, s52, s53")
    for k in range(2):
        if k: e("s_add_u32 s55, s55, 1")
        dst = 50 + k; src = 16 + k
        sdiv(e, 27, 52, 53, 55, 49); sdiv(e, 3, 54, 59, 53, 49)
        e(f"""s_mul_i32 s{dst}, s52, 663552
s_lshl_b32 s49, s54, 10
s_add_u32 s{dst}, s{dst}, s49
s_mul_i32 s49, s59, {3*73728}
s_add_u32 s{dst}, s{dst}, s49
s_add_u32 s{dst}, s{dst}, {W3P}
s_lshl_b32 s54, s54, 2
s_add_u32 s54, s54, s3
s_mul_i32 s{src}, s54, {8*9216}
s_mul_i32 s52, s52, 1152
s_add_u32 s{src}, s{src}, s52
s_mul_i32 s59, s59, 384
s_add_u32 s{src}, s{src}, s59""")
    e("s_lshl_b32 s52, s3, 10")
    def early_issue():
        Lne = e.label("noearly")
        for k in range(2):
            if k: e(f"s_bitcmp1_b32 s34, 0\ns_cbranch_scc1 {Lne}")
            for it in range(3):
                e(f"s_add_u32 m0, s52, {49152 + k*12288 + it*4096 - it*128}\ns_nop 0")
                e(f"buffer_load_dwordx4 v232, s[12:15], s{16+k} offen offset:{128*it} {OPT.get('ld_pk','nt')} lds")
        e(f"{Lne}:")
    if OPT.get('t0a', 0): tgen(e, 27, 0, 16, (0,), agpr=216)
    stamp(e, lvl=7)
    e.wait(vm="d")
    e("s_barrier")
    for c in range(2):
        for js in range(2):
            for ts in range(2):
                f = ts*2 + js
                e.lgop(f"ds_read_b128 {vr(P[c]+4*f)}, v4 offset:{16384 + c*8192 + f*1024}", ("u", c))
                e.lgop(f"ds_read_b128 {vr(Q[c]+4*f)}, v4 offset:{16384 + c*8192 + 4096 + f*1024}", ("u", c))
    stamp(e, lvl=7)
    e.wait(lg=("u", 0))
    steps(MA(0, S64, N64), tw2, 2, 8)
    stamp(e, lvl=7)
    e.wait(lg=("u", 1))
    stamp(e, lvl=7)
    steps(MA(1, S64, N64), cmul(0, TC1, TS1, -1), 2, 8)
    e("s_nop 0")
    steps(MB(0), cmul(1, TC1, TS1, -1), 2, 8)
    stamp(e, lvl=7)
    e.wait(vm=("w", 1))
    early_issue()
    stamp(e, lvl=7)
    steps(MB(1), wun(0) + cmul(0, TC1, TS1, +1), 2, 8)
    e("s_lshr_b32 s43, s3, 1\ns_lshl_b32 s43, s43, 10")
    steps(MC(0), wun(1) + cmul(1, TC1, TS1, +1), 2, 8)
    e("s_and_b32 s44, s3, 1\ns_lshl_b32 s44, s44, 3\ns_add_u32 s43, s43, s44")
    e("v_add_u32 v5, s43, v4")
    steps(MC(1), cmul(0, TC2, TS2, +1), 2, 8)
    stamp(e, lvl=7)
    for c in range(2):
        for l in (cmul(c, TC2, TS2, +1) if c else []): e(l)
        for ts in range(2):
            e.lgop(f"ds_write_b64 v5, {vr(PR[c]+2*ts,2)} offset:{c*8192 + (ts*2+0)*2048}", "x")
            e.lgop(f"ds_write_b64 v5, {vr(PI[c]+2*ts,2)} offset:{c*8192 + (ts*2+1)*2048}", "x")
    e(f"""s_lshl_b32 s40, s3, 11
v_and_b32 v6, 7, v3
v_lshlrev_b32 v6, 7, v6
v_lshrrev_b32 v7, 3, v3
v_lshl_add_u32 v6, v7, 6, v6
v_lshl_add_u32 v6, v2, 4, v6
v_add_u32 v6, s40, v6
s_add_u32 s38, s38, {VT}
s_add_u32 s45, s45, {VT}""")
    e.wait(lg="all")
    stamp(e, lvl=7)
    e("s_barrier")
    stamp(e, lvl=6); stamp(e, lvl=7)
    for c in range(2):
        for js in range(2):
            for ts in range(2):
                e.lgop(f"ds_read_b128 {vr(P[c]+8*ts+4*js)}, v4 offset:{c*8192 + ((ts*2+0)*2+js)*1024}", ("y", c))
                e.lgop(f"ds_read_b128 {vr(Q[c]+8*ts+4*js)}, v4 offset:{c*8192 + ((ts*2+1)*2+js)*1024}", ("y", c))
    def cv(dst, src): return [f"v_cvt_pk_bf16_f32 v{dst+m}, v{src+2*m}, v{src+2*m+1}" for m in range(4)]
    def merge(X, Y, sr):
        L = [f"v_mov_b32 v{TMP+m}, v{X+m}" for m in range(4)] + ["s_nop 0"]
        L += [f"v_mov_b32_dpp v{X+m}, v{Y+m} row_ror:8 row_mask:0xf bank_mask:0xc" for m in range(4)]
        L += [f"v_mov_b32_dpp v{Y+m}, v{TMP+m} row_ror:8 row_mask:0xf bank_mask:0x3" for m in range(4)]
        L += [f"buffer_store_dwordx4 {vr(X)}, v6, s[8:11], s{sr} offen sc1", f"buffer_store_dwordx4 {vr(Y)}, v6, s[8:11], s{sr} offen offset:1024 sc1"]
        return L
    mA, mB = MA(0, N64, S64), MA(1, N64, S64)
    Lsp, Lfin = e.label("special"), e.label("p2fin")
    e.wait(lg="all")
    steps(mA[:2] + mB[2:])
    e(f"s_cmp_eq_u32 s34, 143\ns_cbranch_scc1 {Lsp}")
    steps(mB[:2] + mA[2:], ["s_nop 0"]*3 + cv(PR[0], RE[0]) + cv(PI[1], IM[1]) + merge(PR[0], PI[1], 38), 2, 8)
    for l in cv(PR[1], RE[1]) + cv(PI[0], IM[0]) + merge(PR[1], PI[0], 45): e(l)
    e(f"s_branch {Lfin}\n{Lsp}:")
    steps(mB[:2] + mA[2:], (), 2, 8)
    for l in cv(PR[0], RE[0]) + cv(PI[0], IM[0]) + cv(PI[1], RE[1]) + [f"v_mov_b32 v{PR[1]+m}, 0" for m in range(4)]: e(l)
    for l in merge(PR[0], PI[0], 38) + merge(PR[1], PI[1], 45): e(l)
    e(f"{Lfin}:")
    stamp(e, lvl=7)
    e.vm = []; e.lg = []

NPF = 32
def k3(e):
    name = "k3_kernel"
    Lend = pro(e, name, 256, x=True, extra=((22, 64), (20, 56), (18, 48)))
    W4K3 = 0
    ACC, BF, NB, HCR, TB, XR = 16, 64, 3, 40, 104, 212
    XV, AC, TT, KC, TMP, PK, RING, BASE = 16, 48, 64, 80, 92, 96, 104, 232
    T0A = OPT.get('t0a', 0)
    DA = 244
    def acc(u, t): return ACC + (u*2+t)*4
    def wfrag(ph, ks, u):
        if ph == "T": return vr(216 + (ks % 9)*4, 4, "a") if (u == 0 and T0A) else vr(TB + ((ks % 9)*3 + u)*4)
        f = ks*3 + u
        if ph == "W1": return vr(4*f, 4, "a")
        if f < 32: return vr(104 + 4*f)
        if f < 42: return vr(216 + 4*(f-32), 4, "a")
        return vr(4*(f-42), 4, "a")
    if OPT.get("burn3"): burn(e, OPT["burn3"])
    mp = OPT.get("map", 3)
    e("s_lshr_b32 s30, s2, 3\ns_and_b32 s31, s2, 7")
    if mp == 2:
        e("s_lshl_b32 s26, s31, 2\ns_lshr_b32 s32, s30, 3\ns_add_u32 s26, s26, s32\ns_and_b32 s24, s30, 3\ns_bfe_u32 s29, s30, 0x10002")
    elif mp == 3:
        e("s_lshr_b32 s26, s31, 1\ns_lshl_b32 s26, s26, 3\ns_lshr_b32 s32, s30, 2\ns_add_u32 s26, s26, s32\ns_and_b32 s24, s30, 3\ns_and_b32 s29, s31, 1")
    elif mp == 4:
        e("s_lshr_b32 s26, s31, 2\ns_lshl_b32 s26, s26, 4\ns_lshr_b32 s32, s30, 1\ns_add_u32 s26, s26, s32\ns_and_b32 s24, s31, 2\ns_and_b32 s32, s30, 1\ns_add_u32 s24, s24, s32\ns_and_b32 s29, s31, 1")
    elif mp == 1:
        e("s_mov_b32 s26, s30\ns_lshr_b32 s24, s31, 1\ns_and_b32 s29, s31, 1")
    e("""s_lshl_b32 s25, s26, 1
s_add_u32 s25, s25, s29
s_mul_i32 s27, s24, 9
s_mul_i32 s32, s3, 3
s_add_u32 s27, s27, s32
s_lshl_b32 s28, s29, 2
s_add_u32 s28, s28, s24""")
    HB = 73728
    def setup6():
        e(f"""s_mul_i32 s40, s26, 73728
s_mul_i32 s32, s3, 18432
s_add_u32 s40, s40, s32
s_add_u32 s40, s40, {X6}
v_lshlrev_b32 v6, 3, v3
v_mul_u32_u24 v7, 384, v2
v_add_u32 v6, v6, v7
s_lshl_b32 s37, s26, 12
s_add_u32 s37, s37, {SQ1}
s_lshr_b32 s33, s3, 1
s_lshl_b32 s33, s33, 10
s_and_b32 s36, s3, 1
s_lshl_b32 s36, s36, 3
s_add_u32 s33, s33, s36
s_add_u32 s33, s33, {HB}
v_add_u32 v8, s33, v4
v_add_u32 v9, 36864, v8
v_add_u32 v12, {HB}, v4
v_add_u32 v13, {HB+36864}, v4
v_add_u32 v14, s32, v4
v_add_u32 v15, 4096, v4
v_add_u32 v5, 8192, v4
v_add_u32 v7, 12288, v4
s_lshl_b32 s34, s26, 2
s_add_u32 s34, s34, s3
s_mul_i32 s34, s34, 18432
s_mul_i32 s35, s28, {A_}
s_add_u32 s34, s34, s35
s_add_u32 s34, s34, {PART}""")
    NT = 2*162
    ORD = [0, 3, 6, 1, 4, 7, 2, 5, 8]
    def wload6(n):
        out = []
        if OPT.get("rot"):
            ph2 = n >= 162
            b, ks = divmod(n % 162, 18)
            rot = OPT["rot"] & (2 if ph2 else 1)
            if ks == 0:
                t = ORD[b] if ph2 else b
                if rot: out.append(("s", f"s_and_b32 s16, s26, 7\ns_add_u32 s16, s16, {t}\ns_cmp_ge_u32 s16, 9\ns_cselect_b32 s17, 9, 0\ns_sub_u32 s16, s16, s17\ns_mul_i32 s16, s16, 18432\ns_add_u32 s16, s16, s{31 if ph2 else 30}"))
                else: out.append(("s", f"s_add_u32 s16, s{31 if ph2 else 30}, {t*18432}"))
            if ks % 4 == 0: out.append(("s", f"s_add_u32 s17, s16, {ks*1024}"))
            out.append(("v", f"buffer_load_dwordx4 {vr(RING+4*(n % NPF))}, v4, s[8:11], s17 offen offset:{(ks&3)*1024} {OPT.get('ld6', 'sc1')}", ("w", n)))
        elif n < 162:
            if OPT.get("v4x") and n >= 32:
                if n % 16 == 0: out.append(("s", f"s_add_u32 s30, s30, {4096 if n == 32 else 16384}"))
                out.append(("v", f"buffer_load_dwordx4 {vr(RING+4*(n % NPF))}, v{(4,15,5,7)[(n >> 2) & 3]}, s[8:11], s30 offen offset:{(n&3)*1024} {OPT.get('ld6', 'sc1')}", ("w", n)))
                return out
            if n % 4 == 0 and n: out.append(("s", "s_add_u32 s30, s30, 4096"))
            out.append(("v", f"buffer_load_dwordx4 {vr(RING+4*(n % NPF))}, v4, s[8:11], s30 offen offset:{(n&3)*1024} {OPT.get('ld6', 'sc1')}", ("w", n)))
        else:
            b, ks = divmod(n - 162, 18)
            if ks % 4 == 0: out.append(("s", f"s_add_u32 s30, s31, {ORD[b]*18432 + ks*1024}"))
            out.append(("v", f"buffer_load_dwordx4 {vr(RING+4*(n % NPF))}, v4, s[8:11], s30 offen offset:{(ks&3)*1024} {OPT.get('ld6', 'sc1')}", ("w", n)))
        return out
    def emit(x):
        if x[0] == "s": e(x[1])
        elif x[0] == "v": e.vmop(x[1], x[2])
        elif x[0] == "l": e.lgop(x[1], x[2])
        elif x[0] == "wv": e.wait(vm=x[1])
        elif x[0] == "wl": e.wait(lg=x[1])
        elif x[0] == "st": stamp(e, lvl=x[1])
    Lpack, Ljoin = e.label("pack"), e.label("join")
    e(f"s_cmp_ge_u32 s30, 18\ns_cbranch_scc1 {Lpack}\ns_lshl_b32 s34, s30, 3\ns_add_u32 s34, s34, s31\ns_mov_b32 s58, s34\ns_mov_b32 s56, 255\ns_mov_b32 s57, 0")
    p2x2(e)
    e(f"""s_branch {Ljoin}
{Lpack}:
s_sub_u32 s56, s30, 18
s_lshl_b32 s56, s56, 3
s_add_u32 s56, s56, s31""")
    e("""s_cmp_lt_u32 s3, 3
s_cselect_b32 s57, 1, 0
s_cmp_ge_u32 s56, 108
s_cselect_b32 s57, 0, s57
v_lshrrev_b32 v236, 3, v1
v_and_b32 v237, 7, v1
v_lshrrev_b32 v238, 2, v3""")
    pro2(e)
    e(f"s_cmp_eq_u32 s57, 0\ns_cbranch_scc1 {Ljoin}{'0' if T0A else ''}\ns_mul_i32 s42, s3, 24576\ns_add_u32 s42, s42, 36864\ns_mov_b32 s14, 5308416\ns_mov_b32 s15, 0x00020000")
    for k in range(2):
        e(f"""s_lshl_b32 s34, s3, 1
s_add_u32 s34, s34, {k}
s_cmp_ge_u32 s34, 3
s_cselect_b32 s35, 1, 0
s_cselect_b32 s36, 3, 0
s_sub_u32 s44, s34, s36
s_lshl_b32 s34, s56, 1
s_add_u32 s34, s34, s35""")
        sdiv(e, 27, 59, 43, 34, 40)
        e(f"""s_cmp_ge_u32 s43, 9
s_cselect_b32 s12, s20, s18
s_cselect_b32 s13, s21, s19
s_mov_b32 s33, 9216
s_cselect_b32 s33, 1152, s33
s_cselect_b32 s37, 4, 8
s_cselect_b32 s38, 16, 4
s_cselect_b32 s39, 136, 8
s_cselect_b32 s36, -9, 9
s_mov_b32 s{50+k}, {W3P}
s_cselect_b32 s{50+k}, {W4P}, s{50+k}
s_cselect_b32 s47, 1, 0
s_and_b32 s13, s13, 0xffff
s_add_u32 s43, s43, s36
s_mul_i32 s40, s59, 663552
s_add_u32 s{50+k}, s{50+k}, s40
s_lshl_b32 s40, s43, 10
s_add_u32 s{50+k}, s{50+k}, s40
s_mul_i32 s40, s44, {3*73728}
s_add_u32 s{50+k}, s{50+k}, s40
s_and_b32 s40, s43, 1
s_mul_i32 s40, s40, 288
s_lshr_b32 s46, s43, 1
s_lshl_b32 s46, s46, 4
s_add_u32 s40, s40, s46
s_mul_i32 s46, s59, 576
s_add_u32 s40, s40, s46
s_mul_i32 s40, s40, 1152
s_mul_i32 s46, s43, {32*9216}
s_mul_i32 s48, s59, 1152
s_add_u32 s46, s46, s48
s_cmp_eq_u32 s47, 1
s_cselect_b32 s40, s40, s46
s_mul_i32 s46, s44, 384
s_add_u32 s40, s40, s46
v_mul_lo_u32 v235, v236, s33
v_lshl_add_u32 v235, v237, 4, v235
s_lshl_b32 s41, s33, 3
s_mul_i32 s39, s39, s33
v_mul_lo_u32 v{240+2*k}, v2, s37
v_add_u32 v{240+2*k}, v{240+2*k}, v238
v_lshlrev_b32 v{240+2*k}, 7, v{240+2*k}
v_and_b32 v{241+2*k}, 3, v3
v_lshl_add_u32 v{240+2*k}, v{241+2*k}, 3, v{240+2*k}
v_add_u32 v{240+2*k}, s42, v{240+2*k}
s_lshl_b32 s43, s38, 7
v_add_u32 v{241+2*k}, s43, v{240+2*k}""")
        for f in range(4):
            for it in range(3):
                e(f"s_add_u32 m0, s42, {k*12288 + it*4096 + f*1024 - it*128}")
                e(f"s_add_u32 s40, s40, s{39 if f == 2 else 41}" if (it == 0 and f) else "s_nop 0")
                e(f"buffer_load_dwordx4 v235, s[12:15], s40 offen offset:{128*it} {OPT.get('ld_pk','nt')} lds")
    if T0A:
        e(f"{Ljoin}0:")
        tgen(e, 27, 0, 16, (0,), agpr=216)
    e(f"{Ljoin}:")
    e.vm = ["pk"]*24; e.lg = []
    def p2_signal():
        Ld = e.label("sigdone")
        e(f"""s_cmp_lg_u32 s56, 255
s_cbranch_scc1 {Ld}
s_waitcnt vmcnt(0)
s_barrier
s_cmp_lg_u32 s3, 3
s_cbranch_scc1 {Ld}
s_lshl_b32 s46, s58, {4 if OPT.get('pad16', 1) else 2}
s_add_u32 s46, s46, {FLG2}
v_mov_b32 v250, 1
v_mul_u32_u24 v251, {2304 if OPT.get('pad16', 1) else 640}, v1
s_mov_b32 exec_hi, 0
s_mov_b32 exec_lo, {hex((1 << OPT.get('nrep', 4)) - 1)}
buffer_store_dword v250, v251, s[8:11], s46 offen sc1
s_mov_b64 exec, -1
{Ld}:""")
        stamp(e, lvl=6)
    def pack_finish():
        Ld = e.label("pkdone")
        e(f"s_cmp_eq_u32 s56, 255\ns_cbranch_scc1 {Ld}\nv_add_u32 v239, 55296, v4")
        e.wait(vm="pk")
        Lb = e.label("pkbar")
        if OPT.get("lbar", 2) == 1: e("s_barrier")
        e(f"s_cmp_eq_u32 s57, 0\ns_cbranch_scc1 {Lb}")
        def rd(i):
            k, it = divmod(i, 3)
            for tt in range(4):
                o = 16*i + 4*tt; off = k*12288 + it*4096 + 32*tt
                e.lgop(f"ds_read_b64_tr_b16 {vr(o,2,'a')}, v{240+2*k} offset:{off}", (i, tt))
                e.lgop(f"ds_read_b64_tr_b16 {vr(o+2,2,'a')}, v{241+2*k} offset:{off}", (i, tt))
        rd(0)
        for i in range(6):
            if i < 5: rd(i + 1)
            for tt in range(4):
                e.wait(lg=(i, tt))
                e.vmop(f"buffer_store_dwordx4 {vr(16*i + 4*tt, 4, 'a')}, v{(4,10,11,239)[tt]}, s[8:11], s{50 + i//3} offen sc1", "pst")
            if i % 3 < 2: e(f"s_add_u32 s{50 + i//3}, s{50 + i//3}, 73728")
        e(f"{Lb}:")
        if OPT.get("lbar", 2) == 2: e("s_barrier")
        e(f"{Ld}:")
    e.srd(12, 6, A_)
    e(f"""v_lshrrev_b32 v6, 3, v1
v_and_b32 v7, 2, v6
v_lshlrev_b32 v6, 13, v6
v_and_b32 v5, 7, v1
v_xor_b32 v7, v7, v5
v_lshl_add_u32 v6, v7, 4, v6
s_and_b32 s34, s3, 1
s_lshl_b32 s34, s34, 6
v_xor_b32 v253, s34, v6
s_lshl_b32 s32, s3, 10
s_lshl_b32 s33, s3, 16
s_lshl_b32 s34, s25, 7
s_add_u32 s33, s33, s34
s_add_u32 s33, s33, {VT}
v_bfe_u32 v5, v3, 2, 1
v_lshlrev_b32 v5, 4, v5
v_lshrrev_b32 v7, 3, v3
v_lshl_add_u32 v5, v7, 2, v5
v_and_b32 v7, 3, v3
v_add_u32 v5, v5, v7
s_lshl_b32 s34, s25, 5
v_add_u32 v12, s34, v5
v_mul_u32_u24 v96, 1152, v12
v_lshl_add_u32 v96, v2, 3, v96
v_add_u32 v97, 9216, v96
v_lshrrev_b32 v5, 2, v5
v_lshlrev_b32 v98, 7, v5
v_lshl_add_u32 v98, v7, 4, v98
s_lshr_b32 s38, s25, 5
s_lshl_b32 s38, s38, 12
s_bfe_u32 s34, s25, 0x20002
s_lshl_b32 s34, s34, 10
s_add_u32 s38, s38, s34
s_bfe_u32 s34, s25, 0x10004
s_lshl_b32 s34, s34, 6
s_add_u32 s38, s38, s34
s_and_b32 s34, s25, 3
s_lshl_b32 s34, s34, 2
s_add_u32 s38, s38, s34
s_add_u32 s38, s38, {MX}
s_lshl_b32 s37, s27, 5""")
    SMAP = OPT.get("smap", (0, 0, 1, 1, 1, 2, 2, 2, 2))
    NSTG = max(SMAP) + 1
    def stg(idx): return SMAP[idx]
    def vdma():
        for idx in range(9):
            e(f"s_add_u32 m0, s32, {idx*4096}")
            e(f"s_add_u32 s33, s33, {4*65536}" if idx else "s_nop 0")
            e.vmop("buffer_load_dwordx4 v253, s[8:11], s33 offen sc1 lds", ("dma", stg(idx)))
    Lw3 = e.label("w3"); Lp6 = e.label("p6")
    e(f"""s_mul_i32 s30, s28, 36
s_mul_i32 s31, s3, 9
s_add_u32 s30, s30, s31
s_mul_i32 s30, s30, 18432
s_add_u32 s31, s30, {W4P}
s_add_u32 s30, s30, {W3P}
v_add_u32 v10, 18432, v4
v_add_u32 v11, 36864, v4
s_lshr_b32 s46, s3, 1
s_mul_i32 s46, s46, 18432
s_and_b32 s47, s3, 1
s_lshl_b32 s47, s47, 10
s_add_u32 s59, s46, s47
s_mul_i32 s53, s25, 36864
s_add_u32 s53, s53, s59""")
    def shift_addrs():
        e("""v_bfe_u32 v90, v3, 2, 1
v_lshlrev_b32 v90, 4, v90
v_lshrrev_b32 v91, 3, v3
v_lshl_add_u32 v90, v91, 2, v90
v_and_b32 v91, 3, v3
s_lshl_b32 s48, s25, 5
s_lshr_b32 s49, s3, 1
s_lshl_b32 s49, s49, 3
s_add_u32 s48, s48, s49
v_add3_u32 v245, v90, v91, s48
v_mov_b32 v95, 2048
v_lshlrev_b32 v91, 8, v2""")
        for k, d in enumerate((-1, 1, -2, 2)):
            e(f"""v_add_u32 v90, {d}, v245
v_cmp_lt_u32 vcc, v90, v95
v_bfe_u32 v92, v90, 5, 6
v_mul_u32_u24 v92, 36864, v92
v_bfe_u32 v93, v90, 3, 1
v_mul_u32_u24 v93, 18432, v93
v_bfe_u32 v94, v90, 2, 1
v_lshl_add_u32 v92, v94, 7, v92
v_bfe_u32 v94, v90, 4, 1
v_lshl_add_u32 v92, v94, 6, v92
v_and_b32 v94, 3, v90
v_lshl_add_u32 v92, v94, 4, v92
v_add3_u32 v92, v92, v93, v91
v_bfrev_b32 v93, 2
v_cndmask_b32 v{240+k}, v93, v92, vcc""")
        e(f"""v_cmp_gt_u32 vcc, 2, v2
s_bitcmp1_b32 s3, 0
s_cselect_b64 s[48:49], -1, 0
v_cndmask_b32 v92, v241, v240, vcc
v_cndmask_b32 v93, v243, v242, vcc
v_cndmask_b32 v244, v92, v241, s[48:49]
v_cndmask_b32 v245, v241, v242, s[48:49]
v_cndmask_b32 v246, v242, v93, s[48:49]
s_and_b32 s54, s3, 1
s_lshl_b32 s54, s54, 10
s_add_u32 s54, s54, {H1S}""")
    def dma_act(ph):
        if ph == 4: e(f"s_add_u32 s46, s53, {HC}")
        sr = 46 if ph == 4 else 54
        for i in range(9):
            if i % 2 == 0:
                e(f"s_add_u32 m0, s59, {i*2048}")
                e(f"s_add_u32 s{sr}, s{sr}, 4096" if i else "s_nop 0")
            a = 4 if ph == 4 else (240, 240, 244, 241, 245, 242, 246, 243, 243)[i]
            e.vmop(f"buffer_load_dwordx4 v{a}, s[8:11], s{sr} offen offset:{(i&1)*2048} sc1 lds", ("dma", stg(i)))
    def w3_stages():
        for k in range(NSTG):
            e.wait(vm=("dma", k))
            e("s_barrier")
    p2_signal()
    e(f"s_cmp_eq_u32 s3, 3\ns_cbranch_scc1 {Lw3}")
    vm_save = list(e.vm)
    def xloads():
        for u in range(3):
            for t in range(2):
                e.vmop(f"buffer_load_dwordx2 {vr(XR+(u*2+t)*2,2)}, v{96+t}, s[12:15], s37 offen offset:{32*u}", "x")
        e.vmop("buffer_load_dword v14, v98, s[8:11], s38 offen", "x")
        e.vmop("buffer_load_dword v15, v98, s[8:11], s38 offen offset:256", "x")
    ws_ = {"n": 0}
    def wnext(cnt, lim=108):
        for _ in range(cnt):
            n = ws_["n"]
            if n >= lim: return
            ph = "W1" if n < 54 else "W2"; f = n % 54; ks, u = divmod(f, 3)
            if f == 0: e(f"s_add_u32 s52, s36, {W1P if n == 0 else W2P}")
            elif u == 0 and ks % 4 == 0: e("s_add_u32 s52, s52, 4096")
            e.vmop(f"buffer_load_dwordx4 {wfrag(ph,ks,u)}, v{(4,10,11)[u]}, s[8:11], s52 offen offset:{(ks&3)*1024}", (ph, ks, u))
            ws_["n"] += 1
    e("s_mul_i32 s36, s27, 18432")
    WRP = OPT.get("wrp", 0)
    if WRP:
        Lx = e.label("wrp")
        e(f"s_cmp_lg_u32 s56, 255\ns_cbranch_scc1 {Lx}")
        sv = list(e.vm); wnext(OPT.get("wr", 12), 54); ws_["n"] = 0; e.vm = sv
        e(f"{Lx}:")
    XP = OPT.get("xp", 13)
    def thook(u, ks):
        if u*9 + ks == XP: xloads()
        if u*9 + ks == OPT.get("qb", 20): e("s_barrier")
    tgen(e, 27, TB, 16, (1, 2) if T0A else (0, 1, 2), hook=thook, init=True)
    e(f"""v_lshrrev_b32 v5, 1, v2
v_lshlrev_b32 v8, 8, v5
v_lshl_add_u32 v8, v3, 4, v8
v_and_b32 v5, 1, v2
v_mul_u32_u24 v9, 18432, v5
v_add_u32 v8, v8, v9
v_lshrrev_b32 v6, 2, v3
v_lshl_add_u32 v6, v2, 3, v6
v_lshlrev_b32 v6, 7, v6
v_and_b32 v7, 3, v3
v_lshl_add_u32 v6, v7, 3, v6
v_lshl_add_u32 v6, v5, 6, v6
v_lshrrev_b32 v7, 3, v3
v_lshl_add_u32 v6, v7, 5, v6
v_xor_b32 v7, 32, v6
v_xor_b32 v5, 64, v6
v_xor_b32 v9, 96, v6
s_mul_i32 s39, s25, 36864
s_lshl_b32 s40, s27, 9
s_add_u32 s39, s39, s40
s_lshl_b32 s42, s25, 11
s_lshl_b32 s40, s3, 2
s_add_u32 s40, s40, s24
s_lshl_b32 s40, s40, 7
s_add_u32 s41, s42, s40
s_mov_b32 s43, {fhex(2.0/(2048*576))}
v_lshlrev_b32 v13, 3, v3
v_mul_u32_u24 v12, 384, v2
v_add_u32 v12, v12, v13
s_lshl_b32 s55, s24, 2
s_add_u32 s55, s55, s3
s_lshl_b32 s55, s55, 2
s_lshl_b32 s40, s25, 7
s_add_u32 s55, s55, s40
v_mov_b32 v250, 1
v_mov_b32 v251, 0""")
    stamp(e, lvl=6)
    pack_finish()
    if WRP:
        Lx = e.label("wrl")
        e(f"s_cmp_eq_u32 s56, 255\ns_cbranch_scc1 {Lx}")
    wnext(OPT.get("wr", 12), 54)
    if WRP: e(f"{Lx}:")
    stamp(e, lvl=6)
    e("s_barrier")
    stamp(e, lvl=6)
    vdma()
    e.wait(vm=("dma", 0))
    e("s_barrier")
    stamp(e); stamp(e, lvl=6)
    def gemm(ph, tr, hook, fill=(), f0=0, f1=18, cinit=False):
        fill = list(fill); nf = len(fill); fi = 0
        def rd(ks, pos):
            for t in range(2):
                b = BF + ((pos % NB)*2 + t)*4
                if tr:
                    ar = (6, 7, 5, 9)[2*(ks // 9) + t]
                    e.lgop(f"ds_read_b64_tr_b16 {vr(b,2)}, v{ar} offset:{(ks % 9)*4096}", ("b", ks))
                    e.lgop(f"ds_read_b64_tr_b16 {vr(b+2,2)}, v{ar} offset:{(ks % 9)*4096+512}", ("b", ks))
                else:
                    e.lgop(f"ds_read_b128 {vr(b)}, v4 offset:{(t*18+ks)*1024}", ("b", ks))
        order = [k // 2 + 9*(k & 1) for k in range(18)] if ph == "T" else list(range(18))
        first_pos = {}
        for pos in range(18):
            idx = (order[pos] % 9) if False else pos // 2
            first_pos.setdefault(stg(idx), pos)
        def rdp(pos):
            for k, p0 in first_pos.items():
                if p0 == pos and k > 0:
                    e.wait(vm=("dma", k))
                    e("s_barrier")
            rd(order[pos], pos)
        for pos in range(NB-1): rdp(pos)
        for pos in range(18):
            ks = order[pos]
            if pos + NB - 1 < 18: rdp(pos + NB - 1)
            e.wait(vm=(ph, ks, 2), lg=("b", ks))
            for u in range(3):
                for t in range(2):
                    d = vr(acc(u, t) + (24 if (ph == "T" and ks >= 9) else 0))
                    first = (ks == 0 and not cinit) or (ph == "T" and ks == 9)
                    e(f"{M16} {d}, {wfrag(ph,ks,u)}, {vr(BF + ((pos % NB)*2 + t)*4)}, {0 if first else d}")
                    g = (pos - f0)*6 + u*2 + t
                    if g >= 0:
                        while fi < min(nf, -(-nf*(g+1) // ((f1 - f0)*6))): emit(fill[fi]); fi += 1
            hook(pos)
        assert fi == nf
    def wsig(phase):
        if OPT.get("wgflag", 0): return
        e(f"s_add_u32 s46, s55, {FLG + phase*8192}\ns_mov_b64 exec, 1")
        e.vmop("buffer_store_dword v250, v251, s[8:11], s46 offen sc1", "f")
        e("s_mov_b64 exec, -1")
    def sq_store(region):
        red_g(e, (90, 91), (92, 93))
        e(f"s_add_u32 s46, s41, {region}\ns_mov_b64 exec, 0xffff")
        e.vmop(f"buffer_store_dwordx2 v[90:91], v13, s[8:11], s46 offen sc1", "st")
        e("s_mov_b64 exec, -1")
    def st16(o, sreg, off):
        e(f"s_nop 0\nv_permlane16_swap_b32 v{o}, v{o+2}\nv_permlane16_swap_b32 v{o+1}, v{o+3}")
        e.vmop(f"buffer_store_dwordx4 {vr(o)}, v8, s[8:11], s{sreg} offen offset:{off} sc1", "st")
    GL, AL = OPT.get("gl", 30), OPT.get("al", 18)
    lim_ = [54]
    GLs = [OPT.get("gl3", 24)]
    def hookw(ks): wnext(GLs[0]*(ks+1)//18 - GLs[0]*ks//18, lim_[0])
    def hook3(ks):
        if XP == 27 + ks: xloads()
        hookw(ks)
    XM = 232
    XF = [224 + i for i in range(20)] + [100, 101, 102, 103]
    xfill = [("wv", "x")]
    for u in range(3):
        for t in range(2):
            x = XR + (u*2+t)*2; f = XF[(u*2+t)*4:(u*2+t)*4+4]
            xfill += [("s", f"v_lshlrev_b32 v{f[0]}, 16, v{x}"), ("s", f"v_and_b32 v{f[1]}, 0xffff0000, v{x}"),
                      ("s", f"v_lshlrev_b32 v{f[2]}, 16, v{x+1}"), ("s", f"v_and_b32 v{f[3]}, 0xffff0000, v{x+1}")]
            xfill += [("s", f"v_sub_f32 v{f[r]}, v{f[r]}, v{14+t}") for r in range(4)]
    xfill += [("s", f"s_add_u32 s44, s39, {HC}"), ("s", "v_mov_b32 v90, 0"), ("s", "v_mov_b32 v91, 0")]
    gemm("T", True, hook3, xfill, 9, 18)
    stamp(e)
    EARLY = OPT.get("early", 0)
    e("s_barrier" if EARLY else "s_nop 0")
    e("s_nop 4")
    for u in range(3):
        o = BF + 4*u
        for t in range(2):
            a = acc(u, t); h = HCR + (u*2+t)*4; f = XF[(u*2+t)*4:(u*2+t)*4+4]
            for r in range(4): e(f"v_{'sub' if r & 1 else 'add'}_f32 v{a+r}, v{a+r}, v{h+r}")
            for r in range(4): e(f"v_fma_f32 v{h+r}, v{a+r}, s43, v{f[r]}")
            e(f"v_cvt_pk_bf16_f32 v{o+2*t}, v{h}, v{h+1}\nv_cvt_pk_bf16_f32 v{o+2*t+1}, v{h+2}, v{h+3}")
            for r in range(4): e(f"v_fmac_f32 v{90+t}, v{h+r}, v{h+r}")
        st16(o, 44, 512*u)
    sq_store(SQH)
    e(f"s_add_u32 s44, s39, {H1S}\ns_add_u32 s47, s42, {SQH}")
    e.wait(vm="st")
    wsig(0)
    LA = OPT.get("la", 4)
    stamp(e, lvl=-1)
    lim_[0] = 54 + 42
    wnext(LA, lim_[0])
    e("s_barrier")
    wnext(AL - LA, lim_[0])
    assert ws_["n"] >= 54
    shift_addrs()
    stamp(e, lvl=1)
    e("s_barrier")
    stamp(e, lvl=1)
    dma_act(4)
    for c in range(3): e.vmop(f"buffer_load_dwordx2 {vr(96+2*c,2)}, v12, s[8:11], s47 offen offset:{128*c} sc1", "q")
    stamp(e, lvl=1)
    e.wait(vm=("dma", 0))
    stamp(e, lvl=1)
    e("s_barrier")
    stamp(e, lvl=-1)
    e3 = Em()
    e3("v_add_f32 v97, v97, v99\nv_add_f32 v96, v96, v98\nv_add_f32 v96, v96, v100\nv_add_f32 v100, v97, v101")
    red_g(e3, (96, 100), (92, 93))
    for t in range(2): e3(f"v_mul_f32 v{96+4*t}, {fhex(1/576)}, v{96+4*t}")
    for t in range(2): e3(f"v_add_f32 v{88+t}, {fhex(EPS)}, v{96+4*t}")
    for t in range(2): e3(f"v_rsq_f32 v{88+t}, v{88+t}")
    e3("s_nop 0")
    for t in range(2): e3(f"v_mul_f32 v{98+4*t}, v{88+t}, v{88+t}")
    for t in range(2): e3(f"v_mul_f32 v{98+4*t}, v{98+4*t}, v{96+4*t}")
    for t in range(2): e3(f"v_add_f32 v{98+4*t}, {fhex(EPS)}, v{98+4*t}")
    for t in range(2): e3(f"v_rsq_f32 v{98+4*t}, v{98+4*t}")
    e3("s_nop 0")
    for t in range(2): e3(f"v_mul_f32 v{96+4*t}, v{88+t}, v{98+4*t}")
    for t in range(2): gelu_consts(e3, 96+4*t, 97+4*t, 98+4*t, 99+4*t)
    GLs[0] = OPT.get('gl4', 36)
    def hook4(ks):
        if ks == 4: lim_[0] = 108
        hookw(ks)
    gemm("W1", False, hook4, [("wv", "q")] + [("s", l.strip()) for l in e3.L], 2, 17)
    stamp(e)
    e("s_barrier" if EARLY else "s_nop 0")
    e("s_nop 4")
    for u in range(3):
        o = BF + 4*u
        for t in range(2):
            a = acc(u, t); s = 96 + 4*t
            for l in gelu4(a, 92, s+1, s+2, s+3): e(l)
            e(f"v_cvt_pk_bf16_f32 v{o+2*t}, v92, v93\nv_cvt_pk_bf16_f32 v{o+2*t+1}, v94, v95")
        e("s_nop 0")
        st16(o, 44, 512*u)
    e(f"s_add_u32 s44, s39, {X6}\nv_lshlrev_b32 v98, 2, v3\nv_mov_b32 v90, 0\nv_mov_b32 v91, 0")
    e.wait(vm="st")
    wsig(1)
    stamp(e, lvl=-1)
    wnext(LA)
    e("s_barrier")
    wnext(108)
    for u in range(3):
        for t in range(2):
            a = acc(u, t); h = HCR + (u*2+t)*4
            for r in range(4): e(f"v_mul_f32 v{a+r}, v{h+r}, v{88+t}")
            for r in range(4): e(f"v_add_f32 v{h+r}, v{h+r}, v{14+t}")
    stamp(e, lvl=1)
    e("s_barrier")
    stamp(e, lvl=1)
    dma_act(5)
    stamp(e, lvl=1)
    e.wait(vm=("dma", 0))
    stamp(e, lvl=1)
    e("s_barrier")
    stamp(e, lvl=-1)
    N5 = OPT.get("n5", 27)
    st5 = {"n": 0}
    def hook5(ks):
        while st5["n"] < min(N5, 3*ks + 3, (3*(ks+1))//2):
            for x in wload6(st5["n"]): emit(x)
            st5["n"] += 1
    gemm("W2", False, hook5, cinit=True)
    assert st5["n"] == N5
    stamp(e)
    e("s_barrier")
    e.lgop("ds_read_b32 v96, v98 offset:36864", "m"); e.lgop("ds_read_b32 v97, v98 offset:36928", "m")
    e("s_nop 3")
    for u in range(3):
        for t in range(2):
            a = acc(u, t); h = HCR + (u*2+t)*4
            for r in range(4): e(f"v_add_f32 v{h+r}, v{h+r}, v{a+r}")
    e.wait(lg="all")
    for u in range(3):
        x = BF + 4*u
        for t in range(2):
            a = acc(u, t)
            for r in range(4): e(f"v_sub_f32 v{a+r}, v{a+r}, v{96+t}")
            e(f"v_cvt_pk_bf16_f32 v{x+2*t}, v{a}, v{a+1}\nv_cvt_pk_bf16_f32 v{x+2*t+1}, v{a+2}, v{a+3}")
            for r in range(4): e(f"v_fmac_f32 v{90+t}, v{a+r}, v{a+r}")
        st16(x, 44, 512*u)
    sq_store(SQ1)
    for u in range(3):
        for t in range(2):
            h = HCR + (u*2+t)*4; o = BASE + 4*u + 2*t
            e(f"v_cvt_pk_bf16_f32 v{o}, v{h}, v{h+1}\nv_cvt_pk_bf16_f32 v{o+1}, v{h+2}, v{h+3}")
    e.wait(vm="st")
    wsig(2)
    if not OPT.get("l5"): e("s_barrier")
    vm_p6 = list(e.vm)
    stamp(e)
    nst_main = NST
    setup6()
    if OPT.get("l5"): e("s_barrier")
    e(f"s_barrier\ns_branch {Lp6}")
    def poll(phase, areg, nl=0):
        Lp = e.label("poll"); Ld = e.label("pd")
        if OPT.get("wgflag", 0):
            e(f"s_lshl_b32 s46, s25, 7\ns_lshl_b32 s47, s24, 4\ns_add_u32 s46, s46, s47\ns_add_u32 s46, s46, {FLG + phase*8192}\ns_mov_b64 exec, 1\nbuffer_store_dword v250, v251, s[8:11], s46 offen sc1\ns_mov_b64 exec, -1")
        ld = lambda r: f"buffer_load_dword v{r}, v{areg}, s[8:11], s46 offen sc1"
        if OPT.get("pipe", 0):
            e(f"""s_mov_b32 s46, {FLG + phase*8192}
s_mov_b32 s47, 0x20000
{ld(252)}
s_sleep {OPT.get('psl', 3)}
{Lp}:
{ld(253)}
s_waitcnt vmcnt(1)
v_cmp_ne_u32 vcc, 1, v252
s_cbranch_vccz {Ld}
{ld(252)}
s_waitcnt vmcnt(1)
v_cmp_ne_u32 vcc, 1, v253
s_cbranch_vccz {Ld}
s_sub_u32 s47, s47, 1
s_cbranch_scc0 {Lp}
{Ld}:""")
        else:
            e(f"""s_mov_b32 s46, {FLG + phase*8192}
s_mov_b32 s47, 0x40000
{("s_sleep %d" % OPT["ps0"]) if OPT.get("ps0") else "s_nop 0"}
{Lp}:
{ld(252)}
s_waitcnt vmcnt(0)
v_cmp_ne_u32 vcc, 1, v252
s_cbranch_vccz {Ld}
s_sub_u32 s47, s47, 1
s_cbranch_scc0 {Lp}
{Ld}:""")
        e.vm = ["p"]
    e(f"{Lw3}:")
    e.vm = []; e.lg = []
    Lef = e.label("efd")
    e(f"""s_cmp_lg_u32 s56, 255
s_cbranch_scc1 {Lef}
v_lshlrev_b32 v16, 3, v2
v_lshrrev_b32 v17, 2, v3
v_add_u32 v16, v16, v17
v_lshlrev_b32 v16, 7, v16
v_and_b32 v17, 3, v3
v_lshl_add_u32 v16, v17, 3, v16
v_add_u32 v17, 55296, v4
v_add_u32 v18, 16384, v16""")
    for i in range(6):
        if i == 3: e(f"s_bitcmp1_b32 s58, 0\ns_cbranch_scc1 {Lef}")
        for tt in range(4):
            o = 16*i + 4*tt; off = 49152 + i*4096 + 32*tt
            e.lgop(f"ds_read_b64_tr_b16 {vr(o,2,'a')}, v16 offset:{off}" if off + 512 < 65536 else f"ds_read_b64_tr_b16 {vr(o,2,'a')}, v18 offset:{off - 16384}", (i, tt))
            e.lgop(f"ds_read_b64_tr_b16 {vr(o+2,2,'a')}, v16 offset:{off + 512}" if off + 512 < 65536 else f"ds_read_b64_tr_b16 {vr(o+2,2,'a')}, v18 offset:{off + 512 - 16384}", (i, tt))
        for tt in range(4):
            e.wait(lg=(i, tt))
            e.vmop(f"buffer_store_dwordx4 {vr(16*i + 4*tt, 4, 'a')}, v{(4,10,11,17)[tt]}, s[8:11], s{50 + i//3} offen sc1", "pst")
        if i % 3 < 2: e(f"s_add_u32 s{50 + i//3}, s{50 + i//3}, 73728")
    e(f"{Lef}:")
    PKL = 40960
    if W4K3:
        e.srd(16, 20, 5308416)
        e("s_cmp_lt_u32 s2, 216\ns_cselect_b32 s18, 5308416, 0")
        e("v_lshrrev_b32 v16, 3, v1\nv_mul_u32_u24 v16, 1152, v16\nv_and_b32 v17, 7, v1\nv_lshl_add_u32 v16, v17, 4, v16")
        for k in range(2):
            e(f"s_lshl_b32 s40, s2, 1\ns_add_u32 s40, s40, {k}")
            sdiv(e, 3, 41, 42, 40, 46); sdiv(e, 18, 43, 44, 41, 46)
            e(f"""s_mul_i32 s{36+k}, s43, 663552
s_lshl_b32 s45, s44, 10
s_add_u32 s{36+k}, s{36+k}, s45
s_mul_i32 s45, s42, {3*73728}
s_add_u32 s{36+k}, s{36+k}, s45
s_add_u32 s{36+k}, s{36+k}, {W4P}
s_mul_i32 s40, s43, 576
s_and_b32 s45, s44, 1
s_mul_i32 s45, s45, 288
s_add_u32 s40, s40, s45
s_lshr_b32 s45, s44, 1
s_lshl_b32 s45, s45, 4
s_add_u32 s40, s40, s45
s_mul_i32 s40, s40, 1152
s_mul_i32 s45, s42, 384
s_add_u32 s40, s40, s45""")
            for f in range(4):
                for it in range(3):
                    e(f"s_mov_b32 m0, {PKL + k*12288 + it*4096 + f*1024 - it*128}")
                    e(f"s_add_u32 s40, s40, {1152*(136 if f == 2 else 8)}" if (it == 0 and f) else "s_nop 0")
                    e.vmop(f"buffer_load_dwordx4 v16, s[16:19], s40 offen offset:{128*it} {OPT.get('ld_pk','nt')} lds", ("pk", k))
    e(f"""v_mov_b32 v250, 1
v_mov_b32 v251, 0
v_and_b32 v19, 3, v1
v_min_u32 v19, {0 if OPT.get('wgflag', 0) else 2}, v19
v_lshlrev_b32 v19, 2, v19
v_bfe_u32 v20, v1, 2, 2
v_lshl_add_u32 v19, v20, 4, v19
s_lshl_b32 s46, s25, 7
v_add_u32 v247, s46, v19
v_bfe_u32 v21, v1, 4, 1
v_and_b32 v22, 1, v20
v_lshlrev_b32 v22, 1, v22
v_add_u32 v22, -1, v22
v_mul_lo_u32 v22, v22, v21
v_add_u32 v22, s25, v22
v_and_b32 v22, 63, v22
v_lshl_add_u32 v248, v22, 7, v19
s_lshl_b32 s46, s26, 8
v_lshl_add_u32 v249, v21, 7, v19
v_add_u32 v249, s46, v249""")
    if W4K3:
        e(f"""s_mul_i32 s46, s28, 108
s_add_u32 s46, s46, {3*8192}
v_subrev_u32 v19, 32, v1
v_min_u32 v19, 26, v19
v_lshlrev_b32 v19, 2, v19
v_add_u32 v19, s46, v19
v_cmp_lt_u32 vcc, 31, v1
s_nop 1
v_cndmask_b32 v249, v249, v19, vcc""")
    e(f"""s_mul_i32 s46, s28, 27
s_lshr_b32 s46, s46, 1
v_min_u32 v18, 14, v1
v_add_u32 v18, s46, v18
v_min_u32 v18, 107, v18
s_mul_i32 s46, s28, 18
s_add_u32 s46, s46, 108
v_subrev_u32 v19, 32, v1
v_min_u32 v19, 17, v19
v_cmp_lt_u32 vcc, 31, v1
v_add_u32 v19, s46, v19
s_nop 0
v_cndmask_b32 v18, v18, v19, vcc
v_lshlrev_b32 v18, 2, v18""")
    Lq, Lqd = e.label("gp"), e.label("gpd")
    POLL2 = """buffer_load_dwordx4 v[20:23], v19, s[8:11], s46 offen sc1
s_waitcnt vmcnt(0)
v_and_b32 v20, v20, v21
v_and_b32 v22, v22, v23
v_and_b32 v20, v20, v22
"""
    if OPT.get('pad16', 1):
        e("v_min_u32 v17, 15, v1\nv_lshlrev_b32 v17, 4, v17")
        POLL2 = """buffer_load_dword v20, v4, s[8:11], s46 offen sc1
buffer_load_dword v21, v4, s[8:11], s46 offen offset:1024 sc1
buffer_load_dword v22, v17, s[8:11], s46 offen offset:2048 sc1
s_waitcnt vmcnt(0)
v_and_b32 v20, v20, v21
v_and_b32 v20, v20, v22
"""
    e(f"""v_min_u32 v19, 35, v1
v_lshlrev_b32 v19, 4, v19
s_lshr_b32 s46, s2, {OPT.get('rsh', 3)}
s_and_b32 s46, s46, {OPT.get('nrep', 4) - 1}
s_mul_i32 s46, s46, {2304 if OPT.get('pad16', 1) else 640}
s_add_u32 s46, s46, {FLG2}
s_mov_b32 s47, 0x40000
{"s_barrier" if OPT.get("qb", 20) < 27 else "s_nop 0"}
s_cmp_eq_u32 s56, 255
s_cbranch_scc1 {Lq}s
s_barrier
{Lq}s:
{('s_sleep %d' % OPT.get('gs1', 0)) if OPT.get('gs1', 0) else 's_nop 0'}
{Lq}:
{POLL2}v_cmp_ne_u32 vcc, 1, v20
s_cbranch_vccz {Lqd}
s_sleep {OPT.get('gsl', 8)}
s_sub_u32 s47, s47, 1
s_cbranch_scc0 {Lq}
{Lqd}:
s_barrier""")
    e.vm = []
    vdma()
    w3_stages()
    shift_addrs()
    for ks in range(18):
        if ks % 4 == 0: e(f"s_mov_b32 s40, {W2P + 36*18432 + ks*1024}")
        e.vmop(f"buffer_load_dwordx4 {vr(4*ks,4,'a')}, v4, s[8:11], s40 offen offset:{(ks&3)*1024}", "mw")
    e("s_barrier")
    e.wait(vm="all")
    Lnf = e.label("nopf")
    e(f"s_add_u32 s46, s58, 108\ns_cmp_eq_u32 s56, 255\ns_cselect_b32 s46, s46, s56\ns_cselect_b32 s47, 0, s56\ns_cmp_ge_u32 s47, 108\ns_cbranch_scc1 {Lnf}\ns_lshl_b32 s46, s46, 2\ns_add_u32 s46, s46, {FLG + 6*8192}\ns_mov_b64 exec, 1\nbuffer_store_dword v250, v251, s[8:11], s46 offen sc1\ns_mov_b64 exec, -1\n{Lnf}:")
    poll(0, 247)
    if W4K3:
        e(f"s_lshl_b32 s46, s2, 2\ns_add_u32 s46, s46, {FLG + 5*8192}\ns_mov_b64 exec, 1\nbuffer_store_dword v250, v251, s[8:11], s46 offen sc1\ns_mov_b64 exec, -1")
        e.vm.append("f")
    e("s_barrier")
    dma_act(4); w3_stages()
    poll(6, 18)
    e("s_barrier")
    poll(1, 248)
    e("s_barrier")
    dma_act(5); w3_stages()
    NR = 3
    def rdm(ks):
        for t in range(2): e.lgop(f"ds_read_b128 {vr(40+((ks%NR)*2+t)*4)}, v4 offset:{(t*18+ks)*1024}", ks)
    for ks in range(NR-1): rdm(ks)
    for ks in range(18):
        if ks + NR - 1 < 18: rdm(ks + NR - 1)
        e.wait(lg=ks)
        for t in range(2):
            e(f"{M16} {vr(32+4*t)}, {vr(4*ks,4,'a')}, {vr(40+((ks%NR)*2+t)*4)}, {vr(32+4*t) if ks else 0}")
    e("v_lshlrev_b32 v23, 2, v3\ns_nop 7\nv_add_f32 v32, v32, v33\nv_add_f32 v36, v36, v37\ns_mov_b64 exec, 0xffff\nds_write_b32 v23, v32 offset:36864\nds_write_b32 v23, v36 offset:36928\ns_mov_b64 exec, -1")
    for n in range(N5):
        for x in wload6(n): emit(x)
    e("s_waitcnt lgkmcnt(0)\ns_barrier")
    setup6()
    e.wait(vm="all")
    if not EARLY: e("s_barrier")
    poll(2, 249)
    e("s_barrier")
    e(f"{Lp6}:")
    globals()["NST"] = nst_main
    e.vm = vm_p6; e.lg = []
    stamp(e)
    def X(t4, ks):
        i = ks*4 + t4
        return vr(4*i, 4, "a") if i < 64 else vr(XV + 4*(i-64))
    XS = OPT.get("xs", (0, 4, 10))
    stamp(e, lvl=4)
    def xdma(i):
        L = []
        if i % 4 == 0: L.append(("s", f"s_add_u32 m0, s32, {i*1024}\n" + ("s_add_u32 s40, s40, 4096" if i else "s_nop 0")))
        L.append(("v", f"buffer_load_dwordx4 v4, s[8:11], s40 offen offset:{(i&3)*1024} sc1 lds", ("xd", sum(1 for b in XS if b <= i) - 1)))
        return L
    X0 = OPT.get("x0", 18)
    for i in range(X0):
        for x in xdma(i): emit(x)
    sqld = [("v", f"buffer_load_dwordx2 {vr(TT+6*tp+2*c,2)}, v6, s[8:11], s37 offen offset:{2048*tp + 128*c} sc1", "q") for tp in range(2) for c in range(3)]
    late = [xdma(i) for i in range(X0, 18)] + [[x] for x in sqld]
    def bread(ks, hb):
        out = []
        for t4 in range(4):
            off = (t4*18 + ks)*1024
            base = (4, 11) if not hb else (12, 13)
            breg = base[0] if off < 36864 else base[1]
            out.append(("l", f"ds_read_b128 {X(t4,ks)}, v{breg} offset:{off % 36864}", ("b", hb, ks)))
        return out
    def const_fill():
        e2 = Em()
        R = [TT+12+t for t in range(4)]
        for t4 in range(4):
            b = TT + 6*(t4 >> 1) + (t4 & 1)
            e2(f"v_add_f32 v{R[t4]}, v{b}, v{b+2}\nv_add_f32 v{R[t4]}, v{R[t4]}, v{b+4}")
        red_g(e2, R, [TMP+t for t in range(4)])
        for r in R: e2(f"v_mul_f32 v{r}, {fhex(1/576)}, v{r}")
        for r in R: e2(f"v_add_f32 v{r}, {fhex(EPS)}, v{r}")
        for r in R: e2(f"v_rsq_f32 v{r}, v{r}")
        e2("s_nop 0")
        for t4 in range(4): gelu_consts(e2, R[t4], KC+t4, KC+4+t4, KC+8+t4)
        return [("wv", "q")] + [("s", l.strip()) for l in e2.L]
    def gelu_fill(ft):
        L = []
        for t4 in range(4):
            L += [("s", l) for l in gelu4(TT+4*t4, TMP, KC+t4, KC+4+t4, KC+8+t4)]
            L += [("s", f"v_cvt_pk_bf16_f32 v{PK+2*t4}, v{TMP}, v{TMP+1}"), ("s", f"v_cvt_pk_bf16_f32 v{PK+2*t4+1}, v{TMP+2}, v{TMP+3}")]
            L += [("l", f"ds_write_b64 v{8 + (t4>>1)}, {vr(PK+2*t4,2)} offset:{ft*2048 + (t4&1)*18432}", ("h", ft))]
        return L
    def out_fill(b):
        dt = ORD[b]
        L = [("s", f"s_add_u32 s35, s34, {dt*2048}")]
        for tp in range(2):
            for h in range(2):
                a = TT + 4*(2*tp+h)
                L += [("s", f"v_cvt_pk_bf16_f32 v{PK+4*tp+2*h}, v{a}, v{a+1}"), ("s", f"v_cvt_pk_bf16_f32 v{PK+4*tp+2*h+1}, v{a+2}, v{a+3}")]
            L += [("v", f"buffer_store_dwordx4 {vr(PK+4*tp)}, v4, s[8:11], s35 offen offset:{tp*1024} {OPT.get('sc_part','sc1')}", "st")]
            L += [("l", f"ds_write_b128 v14, {vr(PK+4*tp)} offset:{(dt*2+tp)*1024}", "o")]
        return L
    def block(blk, fill, G0=4, G1=66, pre=None, post=None, ramp0=0):
        nf = len(fill); fi = 0
        for ks in range(18):
            n = blk*18 + ks
            lgw = None
            if (blk, ks) in OPT.get("pts", ()): stamp(e, lvl=3)
            if pre:
                for x in pre(ks): emit(x)
                lgw = [("b", False, ks), ("b", True, ks)]
            WG_ = OPT.get("wgrp", 2)
            e.wait(vm=[("w", n+j) for j in range(WG_)] if ks % WG_ == 0 else None, lg=lgw)
            for t4 in range(4):
                d = vr(TT+4*t4) if ks == 17 else vr(AC+4*t4)
                c = vr(AC+4*t4) if ks else "0"
                e(f"{M16} {d}, {vr(RING+4*(n % NPF))}, {X(t4,ks)}, {c}")
                gap = ks*4 + t4
                if ks >= ramp0 and t4 in (1, 3) and st5["n"] < NT and st5["n"] < n + NPF + (t4 == 3):
                    for x in wload6(st5["n"]): emit(x)
                    st5["n"] += 1
                if t4 == 3 and post:
                    for x in post(ks): emit(x)
                if gap >= G0:
                    tgt = min(nf, -(-nf*(gap - G0 + 1) // (G1 - G0)))
                    while fi < tgt: emit(fill[fi]); fi += 1
        assert fi == nf
    AH = 2
    def pre0(ks):
        L = []
        tgt = [ks + AH] if ks else list(range(AH + 1))
        for k in tgt:
            if k < 18:
                if k in XS: L += [("wv", ("xd", XS.index(k))), ("s", "s_barrier"), ("st", 4)]
                L += bread(k, False)
        return L
    stamp(e, lvl=4)
    def post0(ks):
        L = []
        for _ in range(3):
            if late: L += late.pop(0)
        return L
    block(0, const_fill(), 36, 66, pre=pre0, post=post0, ramp0=OPT.get("ramp0", 0))
    assert not late
    stamp(e, lvl=4)
    stamp(e)
    if not OPT.get('pts'): stamp(e, lvl=3)
    for ft in range(1, 8):
        block(ft, gelu_fill(ft-1), OPT.get('g0', 4), OPT.get('g1', 66))
        if ft in (1, 3, 5, 7) and not OPT.get('pts'): stamp(e, lvl=3)
        if ft in (1, 2): stamp(e, lvl=4)
    e.wait(lg="all")
    e("s_barrier")
    block(8, gelu_fill(7), post=lambda ks: bread(ks, True) if ks < 14 else [])
    stamp(e)
    def pre9(ks):
        L = []
        if ks == 12: L += [("wl", ("h", 8)), ("s", "s_barrier")] + bread(14, True) + bread(15, True)
        if ks == 13: L += bread(16, True) + bread(17, True)
        return L
    if not OPT.get('pts'): stamp(e, lvl=3)
    block(9, gelu_fill(8), 3, 46, pre=pre9)
    if not OPT.get('pts'): stamp(e, lvl=3)
    e2 = Em()
    e2.srd(12, 22, A_)
    e2(f"""s_lshl_b32 s38, s26, 2
s_add_u32 s38, s38, s24
s_mul_i32 s38, s38, 9
s_mul_i32 s39, s3, 3
s_add_u32 s38, s38, s39
s_lshl_b32 s38, s38, 1
s_add_u32 s38, s38, s29
s_lshl_b32 s38, s38, 10
s_add_u32 s38, s38, {PART}
s_mul_i32 s40, s25, {32*1152}
s_lshl_b32 s36, s27, 5
s_add_u32 s40, s40, s36
v_bfe_u32 v5, v3, 2, 1
v_lshlrev_b32 v5, 4, v5
v_lshrrev_b32 v7, 3, v3
v_lshl_add_u32 v5, v7, 2, v5
v_and_b32 v7, 3, v3
v_add_u32 v5, v5, v7
v_mul_u32_u24 v6, 1152, v5
v_lshl_add_u32 v6, v2, 3, v6
v_add_u32 v7, 9216, v6
v_add_u32 v11, 4096, v4
s_mul_i32 s41, s24, 18432
s_mul_i32 s42, s3, 6144
s_add_u32 s41, s41, s42
s_lshl_b32 s42, s29, 10
s_add_u32 s41, s41, s42
v_add_u32 v9, s41, v4
v_mov_b32 v250, 1
v_mov_b32 v251, 0
s_lshl_b32 s44, s26, 9
s_lshl_b32 s45, s24, 5
s_add_u32 s45, s45, s44
v_and_b32 v247, 7, v1
v_lshlrev_b32 v247, 2, v247
v_add_u32 v247, s45, v247
s_lshl_b32 s45, s3, 5
s_add_u32 s44, s44, s45
s_lshl_b32 s45, s28, 2
s_add_u32 s44, s44, s45
s_add_u32 s44, s44, {FLG + 3*8192}
s_mov_b32 s45, {FLG + 3*8192}""")
    e2(f"s_mov_b32 s48, s8\ns_mov_b32 s49, s9\ns_mov_b32 s51, 0x00020000")
    for i in range(7):
        e2(f"s_add_u32 s42, s28, {i+1}\ns_and_b32 s42, s42, 7\ns_mul_i32 s42, s42, {A_}\ns_add_u32 s{52+i}, s42, s38")
    setup7 = [("s", l.strip()) for l in e2.L] + [("s", f"s_cmp_eq_u32 s3, 3\ns_cselect_b32 s50, 0, {WS_SIZE}")]
    def flag_store(off):
        return [("s", "s_mov_b64 exec, 1"), ("v", f"buffer_store_dword v250, v251, s[8:11], s44 offen offset:{off} sc1", "f"), ("s", "s_mov_b64 exec, -1")]
    def poll7(off, first_tag=None):
        Lp = e.label("poll"); Ld = e.label("pd")
        if first_tag:
            e.wait(vm=first_tag)
            e(f"v_cmp_ne_u32 vcc, 1, v252\ns_cbranch_vccz {Ld}")
        e(f"""s_mov_b32 s47, 0x40000
{Lp}:
buffer_load_dword v252, v247, s[8:11], s45 offen offset:{off} sc1
s_waitcnt vmcnt(0)
v_cmp_ne_u32 vcc, 1, v252
s_cbranch_vccz {Ld}
s_sub_u32 s47, s47, 1
s_cbranch_scc0 {Lp}
{Ld}:""")
        if not first_tag: e.vm = []
    FK, PKS, G2 = OPT.get("fk", 1), OPT.get("pks", 14), OPT.get("g2", 28)
    def slot(i): return RING + 4*((292 + i) % NPF)
    def rload(i):
        return [("v", f"buffer_load_dwordx4 {vr(slot(i))}, v4, s[48:51], s{52 + i % 7} offen offset:{2048*(i//7)} sc1", ("r", i))]
    def chk(off):
        Lp = e.label("poll"); Ld = e.label("pd")
        return [("wv", "pa"), ("s", f"""v_cmp_ne_u32 vcc, 1, v252
s_cbranch_vccz {Ld}
s_mov_b32 s47, 0x40000
{Lp}:
buffer_load_dword v252, v247, s[8:11], s45 offen offset:{off} sc1
s_waitcnt vmcnt(0)
v_cmp_ne_u32 vcc, 1, v252
s_cbranch_vccz {Ld}
s_sub_u32 s47, s47, 1
s_cbranch_scc0 {Lp}
{Ld}:""")]
    def pa(off): return [("v", f"buffer_load_dword v252, v247, s[8:11], s45 offen offset:{off} sc1", "pa")]
    S = dict(sigA=13*18+1, paA=15*18+10, chkA=16*18, sigB=16*18+1, paB=16*18+14, chkB=17*18, stepB=2)
    S.update(OPT.get("sched", {}))
    ev_pre = {}
    def add(pos, L): ev_pre.setdefault(pos, []).extend(L)
    add(S["sigA"], [("wv", ("stf", 3))] + flag_store(0))
    add(S["paA"], pa(0)); add(S["chkA"], None or [("chk", 0)])
    add(S["sigB"], [("wv", ("stf", 6))] + flag_store(128))
    add(S["paB"], pa(128)); add(S["chkB"], [("chk", 128)])
    ev_post = {}
    for i in range(7): ev_post.setdefault(max(S["chkA"], 292) + i, []).extend(rload(i))
    for i in range(7): ev_post.setdefault(min(S["chkB"] + S["stepB"]*i, 323), []).extend(rload(7 + i))
    for dt in range(1, 9):
        fill = out_fill(dt-1)
        if dt == 1: fill = fill + setup7
        if dt in (3, 6): fill = [(x[0], x[1], ("stf", dt)) if x[0] == "v" else x for x in fill]
        def pre(ks, b=9+dt):
            L = []
            for x in ev_pre.get(b*18 + ks, []): L += chk(x[1]) if x[0] == "chk" else [x]
            return L
        post = lambda ks, b=9+dt: ev_post.get(b*18 + ks, [])
        block(9+dt, fill, 4, 66 if dt == 1 else G2, pre=pre, post=post)
        if dt in (1, 2, 4, 6, 8) and not OPT.get('pts'): stamp(e, lvl=3)
    stamp(e)
    e("s_nop 7")
    for x in out_fill(8): emit(x)
    def accum(x, a): e(f"v_lshlrev_b32 v8, 16, v{x}\nv_and_b32 v5, 0xffff0000, v{x}\nv_add_f32 v{a}, v{a}, v8\nv_add_f32 v{a+1}, v{a+1}, v5")
    for k in range(3):
        for j in range(4):
            x = BASE + 4*k + j; a = 16 + 8*k + 2*j
            e(f"v_lshlrev_b32 v{a}, 16, v{x}\nv_and_b32 v{a+1}, 0xffff0000, v{x}")
    e.wait(vm="st", lg="all")
    for x in flag_store(256): emit(x)
    Lep = e.label("ep")
    e(f"s_barrier\ns_cmp_eq_u32 s3, 3\ns_cbranch_scc1 {Lep}")
    for k in range(3): e.lgop(f"ds_read_b128 {vr(48+4*k)}, v9 offset:{2048*k}", "p")
    for i in range(14):
        for j in range(4): accum(slot(i) + j, 16 + 8*(i // 7) + 2*j)
    e.wait(lg="all")
    for k in range(3):
        for j in range(4): accum(48 + 4*k + j, 16 + 8*k + 2*j)
    def fin(k):
        for j in range(4): e(f"v_cvt_pk_bf16_f32 v{48+4*k+j}, v{16+8*k+2*j}, v{17+8*k+2*j}")
        e(f"buffer_store_dwordx2 {vr(48+4*k,2)}, v6, s[12:15], s40 offen offset:{32*k} {OPT.get('sc_out','')}\nbuffer_store_dwordx2 {vr(50+4*k,2)}, v7, s[12:15], s40 offen offset:{32*k} {OPT.get('sc_out','')}")
    stamp(e, lvl=2)
    poll7(256)
    stamp(e)
    for sl in range(7):
        e.vmop(f"buffer_load_dwordx4 {vr(64+4*sl)}, v11, s[8:11], s{52+sl} offen sc1", sl)
    fin(0); fin(1)
    e.vm += ["o"]*4
    for sl in range(7):
        e.wait(vm=sl)
        for j in range(4): accum(64 + 4*sl + j, 32 + 2*j)
    fin(2)
    e(f"{Lep}:")
    epi(e, name, Lend, 3, 512, 256)
    e.add_launch(name, 256, lds=147456)

def build(stamp=False, only=None, **opt):
    global STAMP, OPT
    STAMP = stamp; OPT = opt
    e = Em()
    e.L.append(".p2align 8\ncode_begin:\ns_nop 0")
    for k in (only or ["k1", "k3"]): globals()[k](e)
    e.L.append("code_end:\ns_nop 0")
    return finish(e)

if __name__ == "__main__":
    import sys, hazard
    out = "sequential_preLN__spectral_gfnet__mixer_s_mlp__prompt.s"
    txt = build(False)
    open(out, "w").write(txt); open("cur.s", "w").write(txt)
    errs = hazard.check(txt.split("\n")) + hazard.check_async(txt.split("\n"))
    print("\n".join(errs[:40])); print(len(errs), "hazards;", len(txt), "bytes")
    open("stamp.s", "w").write(build(True))
```

```python
from common import *
import common
common.castab = lambda: ''
STAMP = False
STAMP_OFF = 200 << 20
OPT = {}
FLG = WS_END
FLG_SZ = 72*1024
FLG2 = FLG + 49152 + 1024
NST = 0
M16 = "v_mfma_f32_16x16x32_bf16"

def stamp(e, first=False, lvl=0):
    global NST
    if not STAMP: return
    if (lvl != OPT.get("lvl", 0) and not (lvl == -1 and OPT.get("lvl", 0) < 2)) and not first: return
    assert NST < 15
    e(f"{'s_memtime' if (lvl == 3) else 's_memrealtime'} s[{60+2*NST}:{61+2*NST}]")
    if not first: e("s_waitcnt lgkmcnt(0)"); e.lg = []
    NST += 1

def pro(e, name, ngrid, x=False, T=False, extra=()):
    global NST
    e.begin(name)
    Lend = e.label("end")
    e(f"s_cmp_ge_u32 s2, {ngrid}\ns_cbranch_scc1 {Lend}")
    NST = 0
    stamp(e, True)
    e("s_load_dwordx2 s[4:5], s[0:1], 80")
    if x: e("s_load_dwordx2 s[6:7], s[0:1], 0")
    for (sreg, off) in extra: e(f"s_load_dwordx2 s[{sreg}:{sreg+1}], s[0:1], {off}")
    if T:
        e("s_getpc_b64 s[16:17]\ns_add_u32 s16, s16, castab@rel32@lo+4\ns_addc_u32 s17, s17, castab@rel32@hi+12")
        e("s_and_b32 s17, s17, 0xffff\ns_mov_b32 s18, 663552\ns_mov_b32 s19, 0x00020000")
    e("""v_lshrrev_b32 v5, 6, v0
v_and_b32 v1, 63, v0
v_readfirstlane_b32 s3, v5
v_lshrrev_b32 v2, 4, v1
v_and_b32 v3, 15, v1
v_lshlrev_b32 v4, 4, v1""")
    return Lend
def burn(e, n):
    L = e.label("burn")
    e(f"s_mov_b32 s58, {n}\n{L}:")
    for i in range(32): e(f"v_fma_f32 v{40+i%8}, v{40+i%8}, v{40+i%8}, v{40+i%8}")
    e(f"s_sub_u32 s58, s58, 1\ns_cmp_lg_u32 s58, 0\ns_cbranch_scc1 {L}")

def pro2(e, x=False):
    e("s_waitcnt lgkmcnt(0)")
    e.srd(8, 4, WS_SIZE)
    if x: e.srd(12, 6, A_)

def dump(e, slot):
    if STAMP:
        e(f"""s_waitcnt vmcnt(0) lgkmcnt(0)
s_mov_b64 exec, 1
s_memrealtime s[90:91]
s_lshl_b32 s92, s2, 2
s_add_u32 s92, s92, s3
s_lshl_b32 s92, s92, 7
s_add_u32 s92, s92, {STAMP_OFF + slot*(1<<20)}
s_waitcnt lgkmcnt(0)
v_mov_b32 v100, 0""")
        for k in range(8):
            for j in range(4): e(f"v_mov_b32 v{96+j}, s{60+4*k+j}")
            e(f"buffer_store_dwordx4 v[96:99], v100, s[8:11], s92 offen offset:{16*k}\ns_nop 1")
        e("s_mov_b64 exec, -1")

def epi(e, name, Lend, slot, vgpr, accum):
    dump(e, slot)
    e(f"{Lend}:")
    e.end(name, vgpr, accum, 96)

def red_g(e, regs, tmps):
    for sw in ("v_permlane32_swap_b32", "v_permlane16_swap_b32"):
        for v, t in zip(regs, tmps): e(f"v_mov_b32 v{t}, v{v}")
        e("s_nop 1" if len(regs) < 3 else "s_nop 0")
        for v, t in zip(regs, tmps): e(f"{sw} v{v}, v{t}")
        if len(regs) < 2: e("s_nop 0")
        for v, t in zip(regs, tmps): e(f"v_add_f32 v{v}, v{v}, v{t}")

def sdiv(e, d, q, r, x, tmp):
    m = (1 << 32) // d + 1
    e(f"s_mul_hi_u32 s{q}, s{x}, {m}\ns_mul_i32 s{tmp}, s{q}, {d}\ns_sub_u32 s{r}, s{x}, s{tmp}")

C0 = -2.0*math.sqrt(2.0/math.pi)*math.log2(math.e)
C1 = C0*0.044715
def gelu_consts(e, r, K0, K1, IR):
    e(f"v_rcp_f32 v{IR}, v{r}\nv_mul_f32 v{K0}, {fhex(C0)}, v{r}\nv_mul_f32 v{K1}, v{r}, v{r}\nv_mul_f32 v{K1}, v{K1}, v{r}\nv_mul_f32 v{K1}, {fhex(C1)}, v{K1}")
def gelu4(a, tmp, K0, K1, IR):
    L = []
    L += [f"v_mul_f32 v{tmp+r}, v{a+r}, v{a+r}" for r in range(4)]
    L += [f"v_fma_f32 v{tmp+r}, v{tmp+r}, v{K1}, v{K0}" for r in range(4)]
    L += [f"v_mul_f32 v{tmp+r}, v{tmp+r}, v{a+r}" for r in range(4)]
    L += [f"v_exp_f32 v{tmp+r}, v{tmp+r}" for r in range(4)]
    L += [f"v_fma_f32 v{tmp+r}, v{tmp+r}, v{IR}, v{IR}" for r in range(4)]
    L += [f"v_rcp_f32 v{tmp+r}, v{tmp+r}" for r in range(4)]
    L += [f"v_mul_f32 v{tmp+r}, v{tmp+r}, v{a+r}" for r in range(4)]
    return L


def tgen(e, j0s, TB, ST, us=(0, 1, 2), hook=None, agpr=None, init=None):
    S0, S1, FA, C1r, C32r, P0, K8, Q = ST, ST+8, ST+16, ST+17, ST+18, ST+19, ST+20, ST+21
    if (0 in us) or init: e(f"s_lshl_b32 s17, s{j0s}, 4\nv_add_u32 v{FA}, s17, v3\nv_cvt_f32_u32 v{FA}, v{FA}\nv_lshlrev_b32 v{Q+1}, 3, v2\nv_cvt_f32_u32 v{Q+1}, v{Q+1}\nv_mov_b32 v{K8}, 0x3e000000")
    for u in us:
        if u: e(f"v_add_f32 v{FA}, 0x41800000, v{FA}")
        e(f"""v_mul_f32 v{C1r}, {fhex(1/576)}, v{FA}
v_mul_f32 v{C32r}, {fhex(1/18)}, v{FA}
v_mul_f32 v{P0}, v{FA}, v{Q+1}
v_floor_f32 v{C32r}, v{C32r}
v_cos_f32 v{C1r}, v{C1r}
v_fmamk_f32 v{C32r}, v{C32r}, {fhex(-18.0)}, v{FA}
v_mul_f32 v{C32r}, {fhex(1/18)}, v{C32r}""")
        sd = [(S0, 0), (S0+1, 1), (S1, 32), (S1+1, 33)]
        for r, k in sd: e(f"v_fmamk_f32 v{r}, v{FA}, {fhex(float(k))}, v{P0}")
        e(f"v_cos_f32 v{C32r}, v{C32r}")
        for r, k in sd: e(f"v_mul_f32 v{r+2}, {fhex(1/576)}, v{r}")
        e(f"v_add_f32 v{C1r}, v{C1r}, v{C1r}")
        for r, k in sd: e(f"v_floor_f32 v{r+2}, v{r+2}")
        e(f"v_add_f32 v{C32r}, v{C32r}, v{C32r}")
        for r, k in sd: e(f"v_fmamk_f32 v{r}, v{r+2}, {fhex(-576.0)}, v{r}")
        for r, k in sd: e(f"v_fmamk_f32 v{r}, v{r}, {fhex(1/576)}, v{K8}")
        for r, k in sd: e(f"v_sin_f32 v{r}, v{r}")
        e("s_nop 0")
        for i in range(2, 8):
            for S in (S0, S1): e(f"v_fma_f32 v{S+i}, v{C1r}, v{S+i-1}, -v{S+i-2}")
        for ks in range(9):
            S = S0 if ks % 2 == 0 else S1; O = S1 if ks % 2 == 0 else S0
            if ks >= 2:
                for i in range(8): e(f"v_fma_f32 v{S+i}, v{C32r}, v{O+i}, -v{S+i}")
            if agpr is None:
                for m in range(4): e(f"v_cvt_pk_bf16_f32 v{TB+(ks*3+u)*4+m}, v{S+2*m}, v{S+2*m+1}")
            else:
                for m in range(4): e(f"v_cvt_pk_bf16_f32 v{ST+24+m}, v{S+2*m}, v{S+2*m+1}")
                for m in range(4): e(f"v_accvgpr_write_b32 a{agpr+4*ks+m}, v{ST+24+m}")
            if hook: hook(u, ks)

def pack_job(e, ldflag, stflag):
    e(f"s_mul_i32 s40, s35, {3*73728}\ns_add_u32 s36, s36, s40")
    e("s_mul_i32 s40, s34, s33\ns_mul_i32 s41, s35, 384\ns_add_u32 s40, s40, s41")
    e("""v_lshrrev_b32 v6, 3, v1
v_mul_lo_u32 v6, v6, s33
v_and_b32 v7, 7, v1
v_lshl_add_u32 v6, v7, 4, v6
s_lshl_b32 s41, s33, 3
s_mul_i32 s39, s39, s33
s_mul_i32 s42, s3, 12288""")
    for f in range(4):
        for it in range(3):
            e(f"s_add_u32 m0, s42, {it*4096 + f*1024 - it*128}")
            e(f"s_add_u32 s40, s40, s{39 if f == 2 else 41}" if (it == 0 and f) else "s_nop 0")
            e.vmop(f"buffer_load_dwordx4 v6, s[12:15], s40 offen offset:{128*it} {ldflag} lds", ("d", 0))
    e("""v_mul_lo_u32 v7, v2, s37
v_lshrrev_b32 v8, 2, v3
v_add_u32 v7, v7, v8
v_lshlrev_b32 v7, 7, v7
v_and_b32 v8, 3, v3
v_lshl_add_u32 v7, v8, 3, v7
v_add_u32 v7, s42, v7
s_lshl_b32 s43, s38, 7
v_add_u32 v8, s43, v7
v_add_u32 v9, 18432, v4
v_add_u32 v10, 36864, v4
v_add_u32 v11, 55296, v4""")
    nst_save = NST; globals()["NST"] = 1
    stamp(e, lvl=-1)
    for it in range(3):
        e.wait(vm=("d", it))
        if it == 0: stamp(e, lvl=-1)
        for tt in range(4):
            o = 16 + 16*it + 4*tt
            e.lgop(f"ds_read_b64_tr_b16 {vr(o,2)}, v7 offset:{it*4096 + 32*tt}", (it, tt))
            e.lgop(f"ds_read_b64_tr_b16 {vr(o+2,2)}, v8 offset:{it*4096 + 32*tt}", (it, tt))
        for tt in range(4):
            e.wait(lg=(it, tt))
            e.vmop(f"buffer_store_dwordx4 {vr(16 + 16*it + 4*tt)}, v{(4,9,10,11)[tt]}, s[8:11], s36 offen {stflag}", "st")
        if it < 2: e("s_add_u32 s36, s36, 73728")
    globals()["NST"] = nst_save
    e.vm = []; e.lg = []

def code_srd(e, d, label, nbytes):
    e(f"s_getpc_b64 s[{d}:{d+1}]\ns_add_u32 s{d}, s{d}, {label}@rel32@lo+4\ns_addc_u32 s{d+1}, s{d+1}, {label}@rel32@hi+12")
    e(f"s_and_b32 s{d+1}, s{d+1}, 0xffff\ns_mov_b32 s{d+2}, {nbytes}\ns_mov_b32 s{d+3}, 0x00020000")

def touch(e, srd, sreg, nbytes, vaddr, vd, stride=64):
    n = -(-nbytes // stride); i = 0
    while n > 0:
        if n < 64: e(f"s_mov_b32 exec_lo, {hex((1 << min(n,32)) - 1)}\ns_mov_b32 exec_hi, {hex((1 << max(n-32,0)) - 1)}")
        e(f"buffer_load_dword v{vd}, v{vaddr}, s[{srd}:{srd+3}], s{sreg} offen")
        n -= 64; i += 1
        if n > 0: e(f"s_add_u32 s{sreg}, s{sreg}, {64*stride}")
    e("s_mov_b64 exec, -1")

def k1(e):
    name = "k1_kernel"
    N3 = 0
    NS = 256
    Lend = pro(e, name, 256 + NS, x=True, extra=((20, 8), (22, 16), (24, 32), (26, 40), (28, 48), (30, 56), (18, 64)))
    def cpf0():
        code_srd(e, 52, "code_begin", "k3_kernel-code_begin")
        e("s_lshr_b32 s44, s2, 3\ns_lshl_b32 s44, s44, 2\ns_add_u32 s44, s44, s3\ns_and_b32 s44, s44, 15\ns_lshl_b32 s44, s44, 10")
        if OPT.get("cpf0", 1) == 3: e("s_cmp_lt_u32 s2, 64\ns_cselect_b32 s54, s54, 0")
        e.vmop("buffer_load_dwordx4 v[196:199], v4, s[52:55], s44 offen", "c")
    if OPT.get("cpf0", 1) in (1, 3): cpf0()
    if OPT.get("burn1"): burn(e, OPT["burn1"])
    Lside = e.label("side"); Lst = e.label("stats"); Lep = e.label("ep")
    ACC, BF, NB, TB = 16, 64, 3, 88
    def acc(h, u, t): return ACC + h*24 + (u*2+t)*4
    e(f"s_cmp_ge_u32 s2, 256\ns_cbranch_scc1 {Lside}")
    if OPT.get("cpf0", 1) == 2: cpf0()
    e("""s_bfe_u32 s34, s2, 0x20003
s_and_b32 s35, s2, 7
s_lshl_b32 s35, s35, 3
s_lshr_b32 s39, s2, 5
s_add_u32 s35, s35, s39
s_lshr_b32 s36, s35, 5
s_bfe_u32 s37, s35, 0x20003
s_and_b32 s38, s35, 7
s_lshl_b32 s40, s36, 5
s_lshr_b32 s41, s3, 1
s_lshl_b32 s41, s41, 4
s_add_u32 s40, s40, s41
s_lshl_b32 s41, s37, 2
s_add_u32 s40, s40, s41
s_lshl_b32 s40, s40, 5
s_lshl_b32 s41, s38, 2
s_add_u32 s40, s40, s41
v_lshrrev_b32 v5, 3, v1
v_and_b32 v7, 3, v5
v_lshlrev_b32 v7, 5, v7
v_lshrrev_b32 v6, 2, v5
s_and_b32 s41, s3, 1
s_lshl_b32 s41, s41, 1
s_add_u32 s41, s41, s40
v_add3_u32 v6, v6, v7, s41
v_mul_u32_u24 v7, 1152, v6
v_and_b32 v5, 6, v5
v_and_b32 v6, 7, v1
v_xor_b32 v6, v6, v5
v_lshl_add_u32 v7, v6, 4, v7
s_mul_i32 s42, s3, 9216
s_mul_i32 s44, s34, 9
s_mul_i32 s45, s3, 3
s_add_u32 s44, s44, s45""")
    et = Em(); tgen(et, 44, TB, 16)
    NPRE = OPT.get("npre", 0)
    e.L += et.L[:NPRE]
    pro2(e, x=True)
    XM = OPT.get("xm", (0,)*9)
    def xstage(ks):
        if ks % 2 == 0 and ks and XM[ks // 2] != XM[ks // 2 - 1]:
            e.wait(vm=("dma", XM[ks // 2]))
            e("s_barrier")
    for idx in range(9):
        e(f"s_add_u32 m0, s42, {idx*896}\ns_nop 0")
        e.vmop(f"buffer_load_dwordx4 v7, s[12:15], 0 offen offset:{128*idx} {OPT.get('ld_x','')} lds", ("dma", XM[idx]))
    e("""v_lshrrev_b32 v13, 3, v3
v_mul_u32_u24 v13, 9216, v13
v_and_b32 v14, 7, v3
v_lshl_add_u32 v13, v14, 7, v13
v_and_b32 v14, 6, v3
v_xor_b32 v14, v14, v2
v_lshl_add_u32 v14, v14, 4, v13
v_xor_b32 v15, 64, v14""")
    e(f"s_cmp_eq_u32 s3, 3\ns_cbranch_scc1 {Lst}")
    vm_save = list(e.vm)
    e.L += et.L[NPRE:]
    e(f"""v_lshlrev_b32 v8, 12, v3
v_lshl_add_u32 v8, v2, 4, v8
s_lshl_b32 s50, s44, 16
s_lshr_b32 s51, s38, 2
s_lshl_b32 s51, s51, 1
s_add_u32 s51, s51, s36
s_lshl_b32 s51, s51, 10
s_add_u32 s50, s50, s51
s_lshl_b32 s51, s37, 8
s_add_u32 s50, s50, s51
s_and_b32 s51, s38, 3
s_lshl_b32 s51, s51, 6
s_add_u32 s50, s50, s51
s_add_u32 s50, s50, {UT}
v_lshlrev_b32 v9, 4, v2
v_lshlrev_b32 v10, 31, v3
v_or_b32 v10, 1.0, v10""")
    stamp(e)
    e.wait(vm=("dma", 0))
    e("s_barrier")
    stamp(e)
    def rd(ks):
        xstage(ks)
        for t in range(2):
            e.lgop(f"ds_read_b128 {vr(BF + ((ks % NB)*2 + t)*4)}, v{14 + (ks & 1)} offset:{t*18432 + (ks >> 1)*1024}", ("b", ks))
    for ks in range(NB-1): rd(ks)
    for ks in range(18):
        if ks + NB - 1 < 18: rd(ks + NB - 1)
        e.wait(lg=("b", ks))
        for u in range(3):
            for t in range(2):
                d = vr(acc(ks // 9, u, t))
                e(f"{M16} {d}, {vr(BF + ((ks % NB)*2 + t)*4)}, {vr(TB + ((ks % 9)*3 + u)*4)}, {d if ks % 9 else 0}")
    stamp(e)
    e("s_barrier")
    stamp(e)
    e.lgop("ds_read_b128 v[76:79], v9 offset:36864", "r"); e.lgop("ds_read_b128 v[80:83], v9 offset:36928", "r")
    e("s_nop 3")
    for u in range(3):
        for t in range(2):
            for r in range(4): e(f"v_fmac_f32 v{acc(0,u,t)+r}, v{acc(1,u,t)+r}, v10")
        e.wait(lg="all")
        for t in range(2):
            for r in range(4): e(f"v_mul_f32 v{acc(0,u,t)+r}, v{acc(0,u,t)+r}, v{76+4*t+r}")
        o = BF + 4*u
        for t in range(2):
            e(f"v_cvt_pk_bf16_f32 v{o+2*t}, v{acc(0,u,t)}, v{acc(0,u,t)+1}\nv_cvt_pk_bf16_f32 v{o+2*t+1}, v{acc(0,u,t)+2}, v{acc(0,u,t)+3}")
        e.vmop(f"buffer_store_dwordx4 {vr(o)}, v8, s[8:11], s50 offen {OPT.get('sc_ut','')}", "st")
        if u < 2: e("s_add_u32 s50, s50, 65536")
    stamp(e)
    if OPT.get("touch34"):
        ts = OPT.get("tstride", 64)
        e.srd(48, 28, 5308416); e.srd(52, 30, 5308416)
        e(f"v_mul_u32_u24 v11, {ts}, v1\ns_mul_i32 s38, s2, 3\ns_add_u32 s38, s38, s3\ns_mul_i32 s38, s38, 6912\ns_mov_b32 s39, s38")
        dump(e, 1)
        touch(e, 48, 38, 6912, 11, 16, ts); touch(e, 52, 39, 6912, 11, 20, ts)
        e("s_endpgm")
    e(f"s_branch {Lep}")
    e(f"{Lst}:")
    e.vm = vm_save; e.lg = []
    def cpf():
        code_srd(e, 52, "code_begin", "code_end-code_begin")
        e("s_lshr_b32 s44, s2, 3\ns_mul_i32 s44, s44, 3072")
        for i in range(3): e.vmop(f"buffer_load_dwordx4 v[{100+4*i}:{103+4*i}], v4, s[52:55], s44 offen offset:{1024*i}", "c")
    if OPT.get("cpf", 2) == 1: cpf()
    if OPT.get("tlb"):
        st_ = OPT["tlb"]
        e.srd(48, 28, 5308416); e.srd(52, 30, 5308416); e.srd(56, 18, A_)
        e(f"v_lshlrev_b32 v11, {st_}, v1")
        n = -(-(FLG + FLG_SZ) >> st_)
        for i in range(-(-n // 64)):
            e(f"s_mov_b32 s44, {i << (st_ + 6)}")
            e.vmop("buffer_load_dword v44, v11, s[8:11], s44 offen", "t")
        for sr in (48, 52, 56): e.vmop(f"buffer_load_dword v44, v11, s[{sr}:{sr+3}], 0 offen", "t")
    for i in range(4): e(f"v_mov_b32 v{36+i}, 0x3f803f80")
    e("v_lshrrev_b32 v8, 2, v3\nv_and_b32 v9, 3, v3")
    for k in sorted(set(XM)):
        e.wait(vm=("dma", k))
        e("s_barrier")
    if OPT.get("cpf", 2) == 2: cpf()
    NR = 6
    def rds(f): e.lgop(f"ds_read_b128 {vr(64+4*(f%NR))}, v{14 + (f & 1)} offset:{(f // 18)*18432 + ((f % 18) >> 1)*1024}", f)
    for f in range(NR-1): rds(f)
    for f in range(36):
        if f + NR - 1 < 36: rds(f + NR - 1)
        e.wait(lg=f)
        t = f // 18; x = vr(64 + 4*(f % NR))
        e(f"{M16} {vr(16+8*t)}, {x}, v[36:39], {vr(16+8*t) if f % 18 else 0}")
        e(f"{M16} {vr(20+8*t)}, {x}, {x}, {vr(20+8*t) if f % 18 else 0}")
    e("v_cmp_eq_u32 s[40:41], 1, v9\nv_cmp_eq_u32 s[42:43], 2, v9\nv_cmp_eq_u32 s[46:47], 3, v9\nv_cmp_eq_u32 s[48:49], v8, v2\ns_nop 4")
    for b in (16, 20, 24, 28):
        e(f"v_cndmask_b32 v{b}, v{b}, v{b+1}, s[40:41]\nv_cndmask_b32 v{b}, v{b}, v{b+2}, s[42:43]\nv_cndmask_b32 v{b}, v{b}, v{b+3}, s[46:47]")
    e(f"v_mov_b32 v32, {fhex(1/576)}")
    for t in range(2):
        b = 16 + 8*t
        e(f"""v_mul_f32 v{b}, v32, v{b}
v_mul_f32 v{b+1}, v{b}, v{b}
v_fma_f32 v{b+4}, v{b+4}, v32, -v{b+1}
v_max_f32 v{b+4}, 0, v{b+4}
v_add_f32 v{b+4}, {fhex(EPS)}, v{b+4}
v_rsq_f32 v{b+4}, v{b+4}""")
    Lns = e.label("nost")
    e(f"""v_lshlrev_b32 v33, 2, v3
s_lshl_b32 s45, s35, 7
s_add_u32 s45, s45, {MX}
s_mov_b64 exec, s[48:49]
ds_write_b32 v33, v20 offset:36864
ds_write_b32 v33, v28 offset:36928
s_cmp_lg_u32 s34, 0
s_cbranch_scc1 {Lns}
buffer_store_dword v16, v33, s[8:11], s45 offen
buffer_store_dword v24, v33, s[8:11], s45 offen offset:64
{Lns}:
s_waitcnt lgkmcnt(0)
s_barrier
s_branch {Lep}""")
    e(f"{Lside}:")
    e.vm = []; e.lg = []
    Lwt, Lrm, L2, Lgo = [e.label(x) for x in ("wt", "rm", "w2", "go")]
    L3, Lgo2, Lpk, Lw1 = e.label("w3"), e.label("go2"), e.label("pk"), e.label("wv1")
    e(f"""s_sub_u32 s32, s2, 256
s_cmp_eq_u32 s3, 3
s_cbranch_scc1 {Lend}
s_waitcnt lgkmcnt(0)
s_cmp_eq_u32 s3, 1
s_cbranch_scc1 {Lw1}
s_lshl_b32 s32, s32, 1
s_lshr_b32 s33, s3, 1
s_add_u32 s32, s32, s33
s_branch {Lwt}
{Lw1}:
s_cmp_lt_u32 s32, 108
s_cbranch_scc1 {Lpk}
s_sub_u32 s32, s32, 108
s_cmp_lt_u32 s32, 72
s_cbranch_scc1 {Lrm}
s_add_u32 s32, s32, {512 - 72}
s_cmp_lt_u32 s32, 576
s_cbranch_scc1 {Lwt}
s_branch {Lend}
{Lpk}:""")
    pro2(e)
    e(f"s_cmp_ge_u32 s32, 54\ns_cbranch_scc1 {L2}")
    e.srd(12, 24, 663552)
    e(f"s_mov_b32 s39, {W1P}\ns_branch {Lgo}\n{L2}:\ns_sub_u32 s32, s32, 54")
    e.srd(12, 26, 663552)
    e(f"s_mov_b32 s39, {W2P}\n{Lgo}:")
    sdiv(e, 3, 34, 35, 32, 40)
    e("s_mov_b32 s33, 1152\ns_lshl_b32 s36, s34, 10\ns_add_u32 s36, s36, s39\ns_mov_b32 s37, 8\ns_mov_b32 s38, 4\ns_mov_b32 s39, 8\ns_lshl_b32 s34, s34, 5")
    pack_job(e, OPT.get("ld_p12", "nt"), OPT.get("sc_p12", "sc1"))
    e(f"s_branch {Lep}")
    if N3:
        e(f"{L3}:")
        e.srd(12, 28, 5308416); sdiv(e, 24, 34, 35, 32, 40)
        e(f"s_mov_b32 s33, 9216\ns_lshl_b32 s36, s34, 10\ns_add_u32 s36, s36, {W3P}\ns_mov_b32 s37, 8\ns_mov_b32 s38, 4\ns_mov_b32 s39, 8\ns_lshl_b32 s34, s34, 5")
        pack_job(e, OPT.get("ld_pk", "nt"), OPT.get("sc_pk", "sc1"))
        e(f"s_branch {Lep}")
    e(f"{Lrm}:")
    e.srd(8, 4, WS_SIZE)
    e.srd(12, 26, 663552)
    e("""v_lshrrev_b32 v6, 3, v1
v_mul_u32_u24 v7, 1152, v6
v_and_b32 v8, 7, v1
v_lshl_add_u32 v7, v8, 4, v7
s_mul_i32 s33, s32, 9216
s_mov_b32 s34, 0x3f803f80
v_mov_b32 v9, 0""")
    for m in range(9): e.vmop(f"buffer_load_dwordx4 {vr(16+4*m)}, v7, s[12:15], s33 offen offset:{128*m}", m)
    Lnz = e.label("nz")
    e(f"s_cmp_ge_u32 s32, 72\ns_cbranch_scc1 {Lnz}\nv_mov_b32 v56, 0\nv_mov_b32 v57, 0\nv_mov_b32 v58, 0\nv_mov_b32 v59, 0\ns_lshl_b32 s38, s32, 10\ns_add_u32 s38, s38, {FLG}")
    e(f"buffer_store_dwordx4 v[56:59], v4, s[8:11], s38 offen\n{Lnz}:")
    e.wait(vm="all")
    for j in range(36): e(f"v_dot2_f32_bf16 v9, v{16+j}, s34, v9")
    e(f"""s_nop 3
v_add_f32_dpp v9, v9, v9 quad_perm:[1,0,3,2] row_mask:0xf bank_mask:0xf
s_nop 1
v_add_f32_dpp v9, v9, v9 quad_perm:[2,3,0,1] row_mask:0xf bank_mask:0xf
s_nop 1
v_add_f32_dpp v9, v9, v9 row_half_mirror row_mask:0xf bank_mask:0xf
v_mul_f32 v9, {fhex(1/576)}, v9
v_cvt_pk_bf16_f32 v10, v9, v9
v_and_b32 v11, 0xffff0000, v10
v_sub_f32 v9, v9, v11
v_cvt_pk_bf16_f32 v9, v9, v9
v_lshlrev_b32 v6, 1, v6
s_lshl_b32 s33, s32, 8
s_add_u32 s33, s33, {W2P + 36*18432}
v_cmp_eq_u32 vcc, 0, v8
s_nop 1
s_and_saveexec_b64 s[36:37], vcc
buffer_store_short v10, v6, s[8:11], s33 offen
buffer_store_short v9, v6, s[8:11], s33 offen offset:16
s_branch {Lep}""")
    e(f"{Lwt}:")
    e.srd(8, 4, WS_SIZE)
    e.srd(12, 20, 1183744); e.srd(16, 22, 1183744)
    e(f"""s_and_b32 s45, s32, 3
s_bfe_u32 s40, s32, 0x40002
s_lshr_b32 s44, s32, 6
s_lshl_b32 s46, s40, 2
v_add_u32 v5, s46, v2
v_mul_u32_u24 v5, 578, v5
v_lshl_add_u32 v6, v3, 2, v5
s_lshl_b32 s46, s44, 6
s_add_u32 s46, s46, 2
s_mul_i32 s41, s45, {4*36992}
s_add_u32 s46, s46, s41""")
    for j in range(8):
        if j: e(f"s_add_u32 s46, s46, {36992*(13 if j == 4 else 1)}")
        e.vmop(f"buffer_load_dword v{64+j}, v6, s[12:15], s46 offen {OPT.get('ld_w','nt')}", "wt")
        e.vmop(f"buffer_load_dword v{80+j}, v6, s[16:19], s46 offen {OPT.get('ld_w','nt')}", "wt")
    e(f"""s_lshl_b32 s36, s44, 18
s_lshr_b32 s41, s40, 2
s_lshl_b32 s41, s41, 11
s_add_u32 s36, s36, s41
s_and_b32 s41, s40, 3
s_lshl_b32 s41, s41, 7
s_add_u32 s36, s36, s41
s_lshl_b32 s41, s45, 9
s_add_u32 s36, s36, s41
s_add_u32 s36, s36, {WT}
s_mov_b32 s40, 0x05040100
s_mov_b32 s41, 0x07060302
s_mul_i32 s42, s3, 12288
v_lshlrev_b32 v5, 8, v3
v_lshl_add_u32 v5, v2, 5, v5
v_add_u32 v5, s42, v5
v_add_u32 v8, s42, v4
v_lshrrev_b32 v6, 3, v1
v_lshlrev_b32 v6, 13, v6
v_and_b32 v7, 7, v1
v_lshl_add_u32 v6, v7, 4, v6""")
    e.wait(vm="all")
    for h in range(2):
        for tk in range(2):
            o = 16 + (h*2 + tk)*4
            for r in range(4):
                j = 4*tk + r
                e(f"v_perm_b32 v{o+r}, v{80+j}, v{64+j}, s{40+h}")
            e.lgop(f"ds_write_b128 v5, {vr(o)} offset:{h*128 + tk*16}", "ww")
    e.wait(lg="all")
    for m in range(4): e.lgop(f"ds_read_b128 {vr(64+4*m)}, v8 offset:{m*1024}", ("wr", m))
    for m in range(4):
        e(f"s_add_u32 s45, s36, {m*65536}")
        e.wait(lg=("wr", m))
        e.vmop(f"buffer_store_dwordx4 {vr(64+4*m)}, v6, s[8:11], s45 offen {OPT.get('sc_wt','')}", "ws")
    NC = OPT.get("chain", 0)
    if NC:
        e(f"s_cmp_ge_u32 s32, {NC}\ns_cbranch_scc1 {Lep}")
        e.srd(12, 28, 5308416); sdiv(e, 24, 34, 35, 32, 40)
        e(f"s_mov_b32 s33, 9216\ns_lshl_b32 s36, s34, 10\ns_add_u32 s36, s36, {W3P}\ns_mov_b32 s37, 8\ns_mov_b32 s38, 4\ns_mov_b32 s39, 8\ns_lshl_b32 s34, s34, 5")
        pack_job(e, OPT.get("ld_pk", "nt"), OPT.get("sc_pk", "sc1"))
    e(f"{Lep}:")
    epi(e, name, Lend, 1, 200, 200)
    e.add_launch(name, 256 + NS, lds=36992)

def p2x2(e):
    e(f"""s_add_u32 s35, s34, 1
s_sub_u32 s46, 287, s34
s_cmp_eq_u32 s34, 143
s_cselect_b32 s46, 288, s46
s_cselect_b32 s14, 0, {WS_SIZE}
s_cselect_b32 s45, 0, s46
s_lshl_b32 s39, s34, 13
s_lshl_b32 s47, s46, 13
s_lshl_b32 s40, s3, 11
s_add_u32 s40, s40, {WT}
s_add_u32 s39, s39, s40
s_add_u32 s47, s47, s40
s_sub_u32 s47, s47, 8192
s_lshl_b32 s38, s35, 13
s_lshl_b32 s45, s45, 13
s_lshl_b32 s35, s35, 12
s_lshl_b32 s46, s46, 12
s_sub_u32 s36, {576*4096}, s35
s_sub_u32 s37, {576*4096}, s46
v_lshlrev_b32 v6, 5, v1
s_cmp_eq_u32 s3, 1
s_cselect_b32 s48, s36, s35
s_cmp_eq_u32 s3, 2
s_cselect_b32 s48, s46, s48
s_cmp_eq_u32 s3, 3
s_cselect_b32 s48, s37, s48
s_cselect_b32 s14, s14, {WS_SIZE}
s_lshl_b32 s49, s3, 12
s_add_u32 m0, s49, 16384""")
    pro2(e)
    e("s_mov_b32 s12, s8\ns_mov_b32 s13, s9\ns_mov_b32 s15, 0x00020000")
    P, Q, WV, RE, IM, PR, PI = (16, 168), (32, 184), (48, 200), (152, 208), (160, 216), (8, 224), (12, 228)
    for f in range(4): e.vmop(f"buffer_load_dwordx4 v4, s[12:15], s48 offen offset:{f*1024} lds", "d")
    for c in range(2):
        e.vmop(f"buffer_load_dwordx4 {vr(WV[c])}, v6, s[8:11], s{(39,47)[c]} offen", ("w", c))
        e.vmop(f"buffer_load_dwordx4 {vr(WV[c]+4)}, v6, s[8:11], s{(39,47)[c]} offen offset:16", ("w", c))
    C64, S64, N64 = 56, 64, 72
    C32, S32, N32 = 80, 88, 96
    TC1, TS1, TC2, TS2 = 104, 112, 120, 128
    TMP = 136
    e("""s_lshl_b32 s40, s3, 4
v_add_u32 v7, s40, v3
v_cvt_f32_u32 v7, v7
v_lshlrev_b32 v5, 2, v2
v_cvt_f32_u32 v5, v5
v_cvt_f32_u32 v6, v3
s_mov_b32 s41, 0x80008000
s_brev_b32 s42, 1
v_and_b32 v0, 1, v3
v_mul_lo_u32 v0, v0, s41""")
    e(f"v_mul_f32 v8, {fhex(1/64)}, v7\nv_mul_f32 v9, v5, v8")
    for i in range(8): e(f"v_fmamk_f32 v{TMP+i}, v8, {fhex(float(16*(i>>2) + (i&3)))}, v9")
    for i in range(8): e(f"v_fract_f32 v{TMP+i}, v{TMP+i}")
    for i in range(8): e(f"v_sin_f32 v{TMP+8+i}, v{TMP+i}")
    for i in range(8): e(f"v_cos_f32 v{TMP+i}, v{TMP+i}")
    for m in range(4): e(f"v_cvt_pk_bf16_f32 v{S64+m}, v{TMP+8+2*m}, v{TMP+9+2*m}")
    for m in range(4): e(f"v_cvt_pk_bf16_f32 v{C64+m}, v{TMP+2*m}, v{TMP+1+2*m}")
    for m in range(4): e(f"v_xor_b32 v{N64+m}, s41, v{S64+m}")
    for b in (C64, S64, N64):
        for m in range(4): e(f"v_xor_b32 v{b+4+m}, v0, v{b+m}")
    tw1 = [f"v_mul_f32 v8, {fhex(1/2048)}, v7", "v_mul_f32 v9, v5, v8"]
    tw1 += [f"v_fmamk_f32 v{TC1+i}, v8, {fhex(float(16*(i>>2)+(i&3)))}, v9" for i in range(8)]
    tw1 += [f"v_sin_f32 v{TS1+i}, v{TC1+i}" for i in range(8)] + [f"v_cos_f32 v{TC1+i}, v{TC1+i}" for i in range(8)]
    for l in tw1: e(l)
    m32 = [f"v_mul_f32 v8, {fhex(1/32)}, v6", "v_mul_f32 v9, v5, v8"]
    m32 += [f"v_fmamk_f32 v{TC2+i}, v8, {fhex(float(i))}, v9" for i in range(4)]
    m32 += [f"v_fract_f32 v{TC2+i}, v{TC2+i}" for i in range(4)]
    m32 += [f"v_sin_f32 v{TC2+4+i}, v{TC2+i}" for i in range(4)] + [f"v_cos_f32 v{TC2+i}, v{TC2+i}" for i in range(4)]
    m32 += [f"v_cvt_pk_bf16_f32 v{S32+m}, v{TC2+4+2*m}, v{TC2+5+2*m}" for m in range(2)]
    m32 += [f"v_cvt_pk_bf16_f32 v{C32+m}, v{TC2+2*m}, v{TC2+1+2*m}" for m in range(2)]
    m32 += [f"v_xor_b32 v{b+2+m}, v0, v{b+m}" for b in (C32, S32) for m in range(2)]
    m32 += [f"v_xor_b32 v{b+4+m}, s42, v{b+m}" for b in (C32, S32) for m in range(4)]
    m32 += [f"v_xor_b32 v{N32+m}, s41, v{S32+m}" for m in range(8)]
    tw2 = ["v_cvt_f32_u32 v0, s40", "v_add_f32 v0, v0, v5", f"v_mul_f32 v7, {fhex(1/2048)}, v6", f"v_add_f32 v5, {fhex(16/2048)}, v7",
           "v_mul_f32 v6, v0, v7", "v_mul_f32 v0, v0, v5"]
    tw2 += [f"v_fmamk_f32 v{TC2+r}, v7, {fhex(float(r))}, v6" for r in range(4)]
    tw2 += [f"v_fmamk_f32 v{TC2+4+r}, v5, {fhex(float(r))}, v0" for r in range(4)]
    tw2 += [f"v_sin_f32 v{TS2+i}, v{TC2+i}" for i in range(8)] + [f"v_cos_f32 v{TC2+i}, v{TC2+i}" for i in range(8)]
    def steps(lst, fill=(), per=2, tail=0):
        fill = list(fill)
        n = len(lst[0][1])
        for k in range(n):
            for d, ch in lst:
                A, B = ch[k]
                e(f"{M16} {vr(d)}, {vr(A)}, {vr(B)}, {vr(d) if k else 0}")
                for _ in range(per):
                    if fill: e(fill.pop(0))
        nleft = len(fill)
        for l in fill: e(l)
        if nleft < tail: e(f"s_nop {tail - nleft - 1}")
    def cmul(c, cre, sim, sign):
        L = [f"v_mul_f32 v{TMP+i}, v{RE[c]+i}, v{cre+i}" for i in range(8)]
        L += [f"v_mul_f32 v{TMP+8+i}, v{IM[c]+i}, v{cre+i}" for i in range(8)]
        L += [f"v_fma_f32 v{TMP+i}, {'-' if sign > 0 else ''}v{IM[c]+i}, v{sim+i}, v{TMP+i}" for i in range(8)]
        L += [f"v_fma_f32 v{TMP+8+i}, {'' if sign > 0 else '-'}v{RE[c]+i}, v{sim+i}, v{TMP+8+i}" for i in range(8)]
        L += [f"v_cvt_pk_bf16_f32 v{PR[c]+m}, v{TMP+2*m}, v{TMP+2*m+1}" for m in range(4)]
        L += [f"v_cvt_pk_bf16_f32 v{PI[c]+m}, v{TMP+8+2*m}, v{TMP+9+2*m}" for m in range(4)]
        return L
    def MA(c, s1, s2): return ([(RE[c]+4*ts, [(P[c]+8*ts, C64), (Q[c]+8*ts, s1), (P[c]+8*ts+4, C64+4), (Q[c]+8*ts+4, s1+4)]) for ts in range(2)] +
                               [(IM[c]+4*ts, [(Q[c]+8*ts, C64), (P[c]+8*ts, s2), (Q[c]+8*ts+4, C64+4), (P[c]+8*ts+4, s2+4)]) for ts in range(2)])
    def MB(c): return ([(RE[c]+4*tk, [(C32+4*tk, PR[c]), (S32+4*tk, PI[c])]) for tk in range(2)] + [(IM[c]+4*tk, [(C32+4*tk, PI[c]), (N32+4*tk, PR[c])]) for tk in range(2)])
    def MC(c): return ([(RE[c]+4*ts, [(PR[c], C32+4*ts), (PI[c], N32+4*ts)]) for ts in range(2)] + [(IM[c]+4*ts, [(PI[c], C32+4*ts), (PR[c], S32+4*ts)]) for ts in range(2)])
    def wun(c):
        L = []
        for i in range(8): L += [f"v_lshlrev_b32 v{TC1+i}, 16, v{WV[c]+i}", f"v_and_b32 v{TS1+i}, 0xffff0000, v{WV[c]+i}"]
        return L
    stamp(e, lvl=6)
    for l in m32: e(l)
    e.srd(12, 18, 5308416)
    e("v_lshrrev_b32 v232, 3, v1\nv_and_b32 v233, 7, v1\nv_mul_u32_u24 v232, 9216, v232\nv_lshl_add_u32 v232, v233, 4, v232")
    e("s_lshr_b32 s52, s34, 1\ns_mul_i32 s52, s52, 3\ns_and_b32 s53, s34, 1\ns_lshl_b32 s53, s53, 1\ns_add_u32 s55, s52, s53")
    for k in range(2):
        if k: e("s_add_u32 s55, s55, 1")
        dst = 50 + k; src = 16 + k
        sdiv(e, 27, 52, 53, 55, 49); sdiv(e, 3, 54, 59, 53, 49)
        e(f"""s_mul_i32 s{dst}, s52, 663552
s_lshl_b32 s49, s54, 10
s_add_u32 s{dst}, s{dst}, s49
s_mul_i32 s49, s59, {3*73728}
s_add_u32 s{dst}, s{dst}, s49
s_add_u32 s{dst}, s{dst}, {W3P}
s_lshl_b32 s54, s54, 2
s_add_u32 s54, s54, s3
s_mul_i32 s{src}, s54, {8*9216}
s_mul_i32 s52, s52, 1152
s_add_u32 s{src}, s{src}, s52
s_mul_i32 s59, s59, 384
s_add_u32 s{src}, s{src}, s59""")
    e("s_lshl_b32 s52, s3, 10")
    def early_issue():
        Lne = e.label("noearly")
        for k in range(2):
            if k: e(f"s_bitcmp1_b32 s34, 0\ns_cbranch_scc1 {Lne}")
            for it in range(3):
                e(f"s_add_u32 m0, s52, {49152 + k*12288 + it*4096 - it*128}\ns_nop 0")
                e(f"buffer_load_dwordx4 v232, s[12:15], s{16+k} offen offset:{128*it} {OPT.get('ld_pk','nt')} lds")
        e(f"{Lne}:")
    if OPT.get('t0a', 0): tgen(e, 27, 0, 16, (0,), agpr=216)
    stamp(e, lvl=7)
    e.wait(vm="d")
    e("s_barrier")
    for c in range(2):
        for js in range(2):
            for ts in range(2):
                f = ts*2 + js
                e.lgop(f"ds_read_b128 {vr(P[c]+4*f)}, v4 offset:{16384 + c*8192 + f*1024}", ("u", c))
                e.lgop(f"ds_read_b128 {vr(Q[c]+4*f)}, v4 offset:{16384 + c*8192 + 4096 + f*1024}", ("u", c))
    stamp(e, lvl=7)
    e.wait(lg=("u", 0))
    steps(MA(0, S64, N64), tw2, 2, 8)
    stamp(e, lvl=7)
    e.wait(lg=("u", 1))
    stamp(e, lvl=7)
    steps(MA(1, S64, N64), cmul(0, TC1, TS1, -1), 2, 8)
    e("s_nop 0")
    steps(MB(0), cmul(1, TC1, TS1, -1), 2, 8)
    stamp(e, lvl=7)
    e.wait(vm=("w", 1))
    early_issue()
    stamp(e, lvl=7)
    steps(MB(1), wun(0) + cmul(0, TC1, TS1, +1), 2, 8)
    e("s_lshr_b32 s43, s3, 1\ns_lshl_b32 s43, s43, 10")
    steps(MC(0), wun(1) + cmul(1, TC1, TS1, +1), 2, 8)
    e("s_and_b32 s44, s3, 1\ns_lshl_b32 s44, s44, 3\ns_add_u32 s43, s43, s44")
    e("v_add_u32 v5, s43, v4")
    steps(MC(1), cmul(0, TC2, TS2, +1), 2, 8)
    stamp(e, lvl=7)
    for c in range(2):
        for l in (cmul(c, TC2, TS2, +1) if c else []): e(l)
        for ts in range(2):
            e.lgop(f"ds_write_b64 v5, {vr(PR[c]+2*ts,2)} offset:{c*8192 + (ts*2+0)*2048}", "x")
            e.lgop(f"ds_write_b64 v5, {vr(PI[c]+2*ts,2)} offset:{c*8192 + (ts*2+1)*2048}", "x")
    e(f"""s_lshl_b32 s40, s3, 11
v_and_b32 v6, 7, v3
v_lshlrev_b32 v6, 7, v6
v_lshrrev_b32 v7, 3, v3
v_lshl_add_u32 v6, v7, 6, v6
v_lshl_add_u32 v6, v2, 4, v6
v_add_u32 v6, s40, v6
s_add_u32 s38, s38, {VT}
s_add_u32 s45, s45, {VT}""")
    e.wait(lg="all")
    stamp(e, lvl=7)
    e("s_barrier")
    stamp(e, lvl=6); stamp(e, lvl=7)
    for c in range(2):
        for js in range(2):
            for ts in range(2):
                e.lgop(f"ds_read_b128 {vr(P[c]+8*ts+4*js)}, v4 offset:{c*8192 + ((ts*2+0)*2+js)*1024}", ("y", c))
                e.lgop(f"ds_read_b128 {vr(Q[c]+8*ts+4*js)}, v4 offset:{c*8192 + ((ts*2+1)*2+js)*1024}", ("y", c))
    def cv(dst, src): return [f"v_cvt_pk_bf16_f32 v{dst+m}, v{src+2*m}, v{src+2*m+1}" for m in range(4)]
    def merge(X, Y, sr):
        L = [f"v_mov_b32 v{TMP+m}, v{X+m}" for m in range(4)] + ["s_nop 0"]
        L += [f"v_mov_b32_dpp v{X+m}, v{Y+m} row_ror:8 row_mask:0xf bank_mask:0xc" for m in range(4)]
        L += [f"v_mov_b32_dpp v{Y+m}, v{TMP+m} row_ror:8 row_mask:0xf bank_mask:0x3" for m in range(4)]
        L += [f"buffer_store_dwordx4 {vr(X)}, v6, s[8:11], s{sr} offen sc1", f"buffer_store_dwordx4 {vr(Y)}, v6, s[8:11], s{sr} offen offset:1024 sc1"]
        return L
    mA, mB = MA(0, N64, S64), MA(1, N64, S64)
    Lsp, Lfin = e.label("special"), e.label("p2fin")
    e.wait(lg="all")
    steps(mA[:2] + mB[2:])
    e(f"s_cmp_eq_u32 s34, 143\ns_cbranch_scc1 {Lsp}")
    steps(mB[:2] + mA[2:], ["s_nop 0"]*3 + cv(PR[0], RE[0]) + cv(PI[1], IM[1]) + merge(PR[0], PI[1], 38), 2, 8)
    for l in cv(PR[1], RE[1]) + cv(PI[0], IM[0]) + merge(PR[1], PI[0], 45): e(l)
    e(f"s_branch {Lfin}\n{Lsp}:")
    steps(mB[:2] + mA[2:], (), 2, 8)
    for l in cv(PR[0], RE[0]) + cv(PI[0], IM[0]) + cv(PI[1], RE[1]) + [f"v_mov_b32 v{PR[1]+m}, 0" for m in range(4)]: e(l)
    for l in merge(PR[0], PI[0], 38) + merge(PR[1], PI[1], 45): e(l)
    e(f"{Lfin}:")
    stamp(e, lvl=7)
    e.vm = []; e.lg = []

NPF = 32
def k3(e):
    name = "k3_kernel"
    if OPT.get("padk3"): e.L.append(f".fill {OPT['padk3']//4}, 4, 0xbf800000")
    Lend = pro(e, name, 256, x=True, extra=((22, 64), (20, 56), (18, 48)))
    W4K3 = 0
    ACC, BF, NB, HCR, TB, XR = 16, 64, 3, 40, 104, 212
    XV, AC, TT, KC, TMP, PK, RING, BASE = 16, 48, 64, 80, 92, 96, 104, 232
    T0A = OPT.get('t0a', 0)
    DA = 244
    def acc(u, t): return ACC + (u*2+t)*4
    def wfrag(ph, ks, u):
        if ph == "T": return vr(216 + (ks % 9)*4, 4, "a") if (u == 0 and T0A) else vr(TB + ((ks % 9)*3 + u)*4)
        f = ks*3 + u
        if ph == "W1": return vr(4*f, 4, "a")
        if f < 32: return vr(104 + 4*f)
        if f < 42: return vr(216 + 4*(f-32), 4, "a")
        return vr(4*(f-42), 4, "a")
    if OPT.get("burn3"): burn(e, OPT["burn3"])
    mp = OPT.get("map", 3)
    e("s_lshr_b32 s30, s2, 3\ns_and_b32 s31, s2, 7")
    if mp == 2:
        e("s_lshl_b32 s26, s31, 2\ns_lshr_b32 s32, s30, 3\ns_add_u32 s26, s26, s32\ns_and_b32 s24, s30, 3\ns_bfe_u32 s29, s30, 0x10002")
    elif mp == 3:
        e("s_lshr_b32 s26, s31, 1\ns_lshl_b32 s26, s26, 3\ns_lshr_b32 s32, s30, 2\ns_add_u32 s26, s26, s32\ns_and_b32 s24, s30, 3\ns_and_b32 s29, s31, 1")
    elif mp == 4:
        e("s_lshr_b32 s26, s31, 2\ns_lshl_b32 s26, s26, 4\ns_lshr_b32 s32, s30, 1\ns_add_u32 s26, s26, s32\ns_and_b32 s24, s31, 2\ns_and_b32 s32, s30, 1\ns_add_u32 s24, s24, s32\ns_and_b32 s29, s31, 1")
    elif mp == 1:
        e("s_mov_b32 s26, s30\ns_lshr_b32 s24, s31, 1\ns_and_b32 s29, s31, 1")
    e("""s_lshl_b32 s25, s26, 1
s_add_u32 s25, s25, s29
s_mul_i32 s27, s24, 9
s_mul_i32 s32, s3, 3
s_add_u32 s27, s27, s32
s_lshl_b32 s28, s29, 2
s_add_u32 s28, s28, s24""")
    HB = 73728
    def setup6():
        e(f"""s_mul_i32 s40, s26, 73728
s_mul_i32 s32, s3, 18432
s_add_u32 s40, s40, s32
s_add_u32 s40, s40, {X6}
v_lshlrev_b32 v6, 3, v3
v_mul_u32_u24 v7, 384, v2
v_add_u32 v6, v6, v7
s_lshl_b32 s37, s26, 12
s_add_u32 s37, s37, {SQ1}
s_lshr_b32 s33, s3, 1
s_lshl_b32 s33, s33, 10
s_and_b32 s36, s3, 1
s_lshl_b32 s36, s36, 3
s_add_u32 s33, s33, s36
s_add_u32 s33, s33, {HB}
v_add_u32 v8, s33, v4
v_add_u32 v9, 36864, v8
v_add_u32 v12, {HB}, v4
v_add_u32 v13, {HB+36864}, v4
v_add_u32 v14, s32, v4
v_add_u32 v15, 4096, v4
v_add_u32 v5, 8192, v4
v_add_u32 v7, 12288, v4
s_lshl_b32 s34, s26, 2
s_add_u32 s34, s34, s3
s_mul_i32 s34, s34, 18432
s_mul_i32 s35, s28, {A_}
s_add_u32 s34, s34, s35
s_add_u32 s34, s34, {PART}""")
    NT = 2*162
    ORD = [0, 3, 6, 1, 4, 7, 2, 5, 8]
    def wload6(n):
        out = []
        if OPT.get("rot"):
            ph2 = n >= 162
            b, ks = divmod(n % 162, 18)
            rot = OPT["rot"] & (2 if ph2 else 1)
            if ks == 0:
                t = ORD[b] if ph2 else b
                if rot: out.append(("s", f"s_and_b32 s16, s26, 7\ns_add_u32 s16, s16, {t}\ns_cmp_ge_u32 s16, 9\ns_cselect_b32 s17, 9, 0\ns_sub_u32 s16, s16, s17\ns_mul_i32 s16, s16, 18432\ns_add_u32 s16, s16, s{31 if ph2 else 30}"))
                else: out.append(("s", f"s_add_u32 s16, s{31 if ph2 else 30}, {t*18432}"))
            if ks % 4 == 0: out.append(("s", f"s_add_u32 s17, s16, {ks*1024}"))
            out.append(("v", f"buffer_load_dwordx4 {vr(RING+4*(n % NPF))}, v4, s[8:11], s17 offen offset:{(ks&3)*1024} {OPT.get('ld6', 'sc1')}", ("w", n)))
        elif n < 162:
            if OPT.get("v4x") and n >= 32:
                if n % 16 == 0: out.append(("s", f"s_add_u32 s30, s30, {4096 if n == 32 else 16384}"))
                out.append(("v", f"buffer_load_dwordx4 {vr(RING+4*(n % NPF))}, v{(4,15,5,7)[(n >> 2) & 3]}, s[8:11], s30 offen offset:{(n&3)*1024} {OPT.get('ld6', 'sc1')}", ("w", n)))
                return out
            if n % 4 == 0 and n: out.append(("s", "s_add_u32 s30, s30, 4096"))
            out.append(("v", f"buffer_load_dwordx4 {vr(RING+4*(n % NPF))}, v4, s[8:11], s30 offen offset:{(n&3)*1024} {OPT.get('ld6', 'sc1')}", ("w", n)))
        else:
            b, ks = divmod(n - 162, 18)
            if ks % 4 == 0: out.append(("s", f"s_add_u32 s30, s31, {ORD[b]*18432 + ks*1024}"))
            out.append(("v", f"buffer_load_dwordx4 {vr(RING+4*(n % NPF))}, v4, s[8:11], s30 offen offset:{(ks&3)*1024} {OPT.get('ld6', 'sc1')}", ("w", n)))
        return out
    def emit(x):
        if x[0] == "s": e(x[1])
        elif x[0] == "v": e.vmop(x[1], x[2])
        elif x[0] == "l": e.lgop(x[1], x[2])
        elif x[0] == "wv": e.wait(vm=x[1])
        elif x[0] == "wl": e.wait(lg=x[1])
        elif x[0] == "st": stamp(e, lvl=x[1])
    Lpack, Ljoin = e.label("pack"), e.label("join")
    e(f"s_cmp_ge_u32 s30, 18\ns_cbranch_scc1 {Lpack}\ns_lshl_b32 s34, s30, 3\ns_add_u32 s34, s34, s31\ns_mov_b32 s58, s34\ns_mov_b32 s56, 255\ns_mov_b32 s57, 0")
    p2x2(e)
    e(f"""s_branch {Ljoin}
{Lpack}:
s_sub_u32 s56, s30, 18
s_lshl_b32 s56, s56, 3
s_add_u32 s56, s56, s31""")
    e("""s_cmp_lt_u32 s3, 3
s_cselect_b32 s57, 1, 0
s_cmp_ge_u32 s56, 108
s_cselect_b32 s57, 0, s57
v_lshrrev_b32 v236, 3, v1
v_and_b32 v237, 7, v1
v_lshrrev_b32 v238, 2, v3""")
    pro2(e)
    e(f"s_cmp_eq_u32 s57, 0\ns_cbranch_scc1 {Ljoin}{'0' if T0A else ''}\ns_mul_i32 s42, s3, 24576\ns_add_u32 s42, s42, 36864\ns_mov_b32 s14, 5308416\ns_mov_b32 s15, 0x00020000")
    for k in range(2):
        e(f"""s_lshl_b32 s34, s3, 1
s_add_u32 s34, s34, {k}
s_cmp_ge_u32 s34, 3
s_cselect_b32 s35, 1, 0
s_cselect_b32 s36, 3, 0
s_sub_u32 s44, s34, s36
s_lshl_b32 s34, s56, 1
s_add_u32 s34, s34, s35""")
        sdiv(e, 27, 59, 43, 34, 40)
        e(f"""s_cmp_ge_u32 s43, 9
s_cselect_b32 s12, s20, s18
s_cselect_b32 s13, s21, s19
s_mov_b32 s33, 9216
s_cselect_b32 s33, 1152, s33
s_cselect_b32 s37, 4, 8
s_cselect_b32 s38, 16, 4
s_cselect_b32 s39, 136, 8
s_cselect_b32 s36, -9, 9
s_mov_b32 s{50+k}, {W3P}
s_cselect_b32 s{50+k}, {W4P}, s{50+k}
s_cselect_b32 s47, 1, 0
s_and_b32 s13, s13, 0xffff
s_add_u32 s43, s43, s36
s_mul_i32 s40, s59, 663552
s_add_u32 s{50+k}, s{50+k}, s40
s_lshl_b32 s40, s43, 10
s_add_u32 s{50+k}, s{50+k}, s40
s_mul_i32 s40, s44, {3*73728}
s_add_u32 s{50+k}, s{50+k}, s40
s_and_b32 s40, s43, 1
s_mul_i32 s40, s40, 288
s_lshr_b32 s46, s43, 1
s_lshl_b32 s46, s46, 4
s_add_u32 s40, s40, s46
s_mul_i32 s46, s59, 576
s_add_u32 s40, s40, s46
s_mul_i32 s40, s40, 1152
s_mul_i32 s46, s43, {32*9216}
s_mul_i32 s48, s59, 1152
s_add_u32 s46, s46, s48
s_cmp_eq_u32 s47, 1
s_cselect_b32 s40, s40, s46
s_mul_i32 s46, s44, 384
s_add_u32 s40, s40, s46
v_mul_lo_u32 v235, v236, s33
v_lshl_add_u32 v235, v237, 4, v235
s_lshl_b32 s41, s33, 3
s_mul_i32 s39, s39, s33
v_mul_lo_u32 v{240+2*k}, v2, s37
v_add_u32 v{240+2*k}, v{240+2*k}, v238
v_lshlrev_b32 v{240+2*k}, 7, v{240+2*k}
v_and_b32 v{241+2*k}, 3, v3
v_lshl_add_u32 v{240+2*k}, v{241+2*k}, 3, v{240+2*k}
v_add_u32 v{240+2*k}, s42, v{240+2*k}
s_lshl_b32 s43, s38, 7
v_add_u32 v{241+2*k}, s43, v{240+2*k}""")
        for f in range(4):
            for it in range(3):
                e(f"s_add_u32 m0, s42, {k*12288 + it*4096 + f*1024 - it*128}")
                e(f"s_add_u32 s40, s40, s{39 if f == 2 else 41}" if (it == 0 and f) else "s_nop 0")
                e(f"buffer_load_dwordx4 v235, s[12:15], s40 offen offset:{128*it} {OPT.get('ld_pk','nt')} lds")
    if T0A:
        e(f"{Ljoin}0:")
        tgen(e, 27, 0, 16, (0,), agpr=216)
    e(f"{Ljoin}:")
    e.vm = ["pk"]*24; e.lg = []
    def p2_signal():
        Ld = e.label("sigdone")
        e(f"""s_cmp_lg_u32 s56, 255
s_cbranch_scc1 {Ld}
s_waitcnt vmcnt(0)
s_barrier
s_cmp_lg_u32 s3, 3
s_cbranch_scc1 {Ld}
s_lshl_b32 s46, s58, {4 if OPT.get('pad16', 1) else 2}
s_add_u32 s46, s46, {FLG2}
v_mov_b32 v250, 1
v_mul_u32_u24 v251, {2304 if OPT.get('pad16', 1) else 640}, v1
s_mov_b32 exec_hi, 0
s_mov_b32 exec_lo, {hex((1 << OPT.get('nrep', 4)) - 1)}
buffer_store_dword v250, v251, s[8:11], s46 offen sc1
s_mov_b64 exec, -1
{Ld}:""")
        stamp(e, lvl=6)
    def pack_finish():
        Ld = e.label("pkdone")
        e(f"s_cmp_eq_u32 s56, 255\ns_cbranch_scc1 {Ld}\nv_add_u32 v239, 55296, v4")
        e.wait(vm="pk")
        Lb = e.label("pkbar")
        if OPT.get("lbar", 2) == 1: e("s_barrier")
        e(f"s_cmp_eq_u32 s57, 0\ns_cbranch_scc1 {Lb}")
        def rd(i):
            k, it = divmod(i, 3)
            for tt in range(4):
                o = 16*i + 4*tt; off = k*12288 + it*4096 + 32*tt
                e.lgop(f"ds_read_b64_tr_b16 {vr(o,2,'a')}, v{240+2*k} offset:{off}", (i, tt))
                e.lgop(f"ds_read_b64_tr_b16 {vr(o+2,2,'a')}, v{241+2*k} offset:{off}", (i, tt))
        rd(0)
        for i in range(6):
            if i < 5: rd(i + 1)
            for tt in range(4):
                e.wait(lg=(i, tt))
                e.vmop(f"buffer_store_dwordx4 {vr(16*i + 4*tt, 4, 'a')}, v{(4,10,11,239)[tt]}, s[8:11], s{50 + i//3} offen sc1", "pst")
            if i % 3 < 2: e(f"s_add_u32 s{50 + i//3}, s{50 + i//3}, 73728")
        e(f"{Lb}:")
        if OPT.get("lbar", 2) == 2: e("s_barrier")
        e(f"{Ld}:")
    e.srd(12, 6, A_)
    e(f"""v_lshrrev_b32 v6, 3, v1
v_and_b32 v7, 2, v6
v_lshlrev_b32 v6, 13, v6
v_and_b32 v5, 7, v1
v_xor_b32 v7, v7, v5
v_lshl_add_u32 v6, v7, 4, v6
s_and_b32 s34, s3, 1
s_lshl_b32 s34, s34, 6
v_xor_b32 v253, s34, v6
s_lshl_b32 s32, s3, 10
s_lshl_b32 s33, s3, 16
s_lshl_b32 s34, s25, 7
s_add_u32 s33, s33, s34
s_add_u32 s33, s33, {VT}
v_bfe_u32 v5, v3, 2, 1
v_lshlrev_b32 v5, 4, v5
v_lshrrev_b32 v7, 3, v3
v_lshl_add_u32 v5, v7, 2, v5
v_and_b32 v7, 3, v3
v_add_u32 v5, v5, v7
s_lshl_b32 s34, s25, 5
v_add_u32 v12, s34, v5
v_mul_u32_u24 v96, 1152, v12
v_lshl_add_u32 v96, v2, 3, v96
v_add_u32 v97, 9216, v96
v_lshrrev_b32 v5, 2, v5
v_lshlrev_b32 v98, 7, v5
v_lshl_add_u32 v98, v7, 4, v98
s_lshr_b32 s38, s25, 5
s_lshl_b32 s38, s38, 12
s_bfe_u32 s34, s25, 0x20002
s_lshl_b32 s34, s34, 10
s_add_u32 s38, s38, s34
s_bfe_u32 s34, s25, 0x10004
s_lshl_b32 s34, s34, 6
s_add_u32 s38, s38, s34
s_and_b32 s34, s25, 3
s_lshl_b32 s34, s34, 2
s_add_u32 s38, s38, s34
s_add_u32 s38, s38, {MX}
s_lshl_b32 s37, s27, 5""")
    SMAP = OPT.get("smap", (0, 0, 1, 1, 1, 2, 2, 2, 2))
    NSTG = max(SMAP) + 1
    def stg(idx): return SMAP[idx]
    def vdma():
        for idx in range(9):
            e(f"s_add_u32 m0, s32, {idx*4096}")
            e(f"s_add_u32 s33, s33, {4*65536}" if idx else "s_nop 0")
            e.vmop("buffer_load_dwordx4 v253, s[8:11], s33 offen sc1 lds", ("dma", stg(idx)))
    Lw3 = e.label("w3"); Lp6 = e.label("p6")
    e(f"""s_mul_i32 s30, s28, 36
s_mul_i32 s31, s3, 9
s_add_u32 s30, s30, s31
s_mul_i32 s30, s30, 18432
s_add_u32 s31, s30, {W4P}
s_add_u32 s30, s30, {W3P}
v_add_u32 v10, 18432, v4
v_add_u32 v11, 36864, v4
s_lshr_b32 s46, s3, 1
s_mul_i32 s46, s46, 18432
s_and_b32 s47, s3, 1
s_lshl_b32 s47, s47, 10
s_add_u32 s59, s46, s47
s_mul_i32 s53, s25, 36864
s_add_u32 s53, s53, s59""")
    def shift_addrs():
        e("""v_bfe_u32 v90, v3, 2, 1
v_lshlrev_b32 v90, 4, v90
v_lshrrev_b32 v91, 3, v3
v_lshl_add_u32 v90, v91, 2, v90
v_and_b32 v91, 3, v3
s_lshl_b32 s48, s25, 5
s_lshr_b32 s49, s3, 1
s_lshl_b32 s49, s49, 3
s_add_u32 s48, s48, s49
v_add3_u32 v245, v90, v91, s48
v_mov_b32 v95, 2048
v_lshlrev_b32 v91, 8, v2""")
        for k, d in enumerate((-1, 1, -2, 2)):
            e(f"""v_add_u32 v90, {d}, v245
v_cmp_lt_u32 vcc, v90, v95
v_bfe_u32 v92, v90, 5, 6
v_mul_u32_u24 v92, 36864, v92
v_bfe_u32 v93, v90, 3, 1
v_mul_u32_u24 v93, 18432, v93
v_bfe_u32 v94, v90, 2, 1
v_lshl_add_u32 v92, v94, 7, v92
v_bfe_u32 v94, v90, 4, 1
v_lshl_add_u32 v92, v94, 6, v92
v_and_b32 v94, 3, v90
v_lshl_add_u32 v92, v94, 4, v92
v_add3_u32 v92, v92, v93, v91
v_bfrev_b32 v93, 2
v_cndmask_b32 v{240+k}, v93, v92, vcc""")
        e(f"""v_cmp_gt_u32 vcc, 2, v2
s_bitcmp1_b32 s3, 0
s_cselect_b64 s[48:49], -1, 0
v_cndmask_b32 v92, v241, v240, vcc
v_cndmask_b32 v93, v243, v242, vcc
v_cndmask_b32 v244, v92, v241, s[48:49]
v_cndmask_b32 v245, v241, v242, s[48:49]
v_cndmask_b32 v246, v242, v93, s[48:49]
s_and_b32 s54, s3, 1
s_lshl_b32 s54, s54, 10
s_add_u32 s54, s54, {H1S}""")
    def dma_act(ph):
        if ph == 4: e(f"s_add_u32 s46, s53, {HC}")
        sr = 46 if ph == 4 else 54
        for i in range(9):
            if i % 2 == 0:
                e(f"s_add_u32 m0, s59, {i*2048}")
                e(f"s_add_u32 s{sr}, s{sr}, 4096" if i else "s_nop 0")
            a = 4 if ph == 4 else (240, 240, 244, 241, 245, 242, 246, 243, 243)[i]
            e.vmop(f"buffer_load_dwordx4 v{a}, s[8:11], s{sr} offen offset:{(i&1)*2048} sc1 lds", ("dma", stg(i)))
    def w3_stages():
        for k in range(NSTG):
            e.wait(vm=("dma", k))
            e("s_barrier")
    p2_signal()
    e(f"s_cmp_eq_u32 s3, 3\ns_cbranch_scc1 {Lw3}")
    vm_save = list(e.vm)
    def xloads():
        for u in range(3):
            for t in range(2):
                e.vmop(f"buffer_load_dwordx2 {vr(XR+(u*2+t)*2,2)}, v{96+t}, s[12:15], s37 offen offset:{32*u}", "x")
        e.vmop("buffer_load_dword v14, v98, s[8:11], s38 offen", "x")
        e.vmop("buffer_load_dword v15, v98, s[8:11], s38 offen offset:256", "x")
    ws_ = {"n": 0}
    def wnext(cnt, lim=108):
        for _ in range(cnt):
            n = ws_["n"]
            if n >= lim: return
            ph = "W1" if n < 54 else "W2"; f = n % 54; ks, u = divmod(f, 3)
            if f == 0: e(f"s_add_u32 s52, s36, {W1P if n == 0 else W2P}")
            elif u == 0 and ks % 4 == 0: e("s_add_u32 s52, s52, 4096")
            e.vmop(f"buffer_load_dwordx4 {wfrag(ph,ks,u)}, v{(4,10,11)[u]}, s[8:11], s52 offen offset:{(ks&3)*1024}", (ph, ks, u))
            ws_["n"] += 1
    e("s_mul_i32 s36, s27, 18432")
    WRP = OPT.get("wrp", 0)
    if WRP:
        Lx = e.label("wrp")
        e(f"s_cmp_lg_u32 s56, 255\ns_cbranch_scc1 {Lx}")
        sv = list(e.vm); wnext(OPT.get("wr", 12), 54); ws_["n"] = 0; e.vm = sv
        e(f"{Lx}:")
    XP = OPT.get("xp", 13)
    def thook(u, ks):
        if u*9 + ks == XP: xloads()
        if u*9 + ks == OPT.get("qb", 20): e("s_barrier")
    tgen(e, 27, TB, 16, (1, 2) if T0A else (0, 1, 2), hook=thook, init=True)
    e(f"""v_lshrrev_b32 v5, 1, v2
v_lshlrev_b32 v8, 8, v5
v_lshl_add_u32 v8, v3, 4, v8
v_and_b32 v5, 1, v2
v_mul_u32_u24 v9, 18432, v5
v_add_u32 v8, v8, v9
v_lshrrev_b32 v6, 2, v3
v_lshl_add_u32 v6, v2, 3, v6
v_lshlrev_b32 v6, 7, v6
v_and_b32 v7, 3, v3
v_lshl_add_u32 v6, v7, 3, v6
v_lshl_add_u32 v6, v5, 6, v6
v_lshrrev_b32 v7, 3, v3
v_lshl_add_u32 v6, v7, 5, v6
v_xor_b32 v7, 32, v6
v_xor_b32 v5, 64, v6
v_xor_b32 v9, 96, v6
s_mul_i32 s39, s25, 36864
s_lshl_b32 s40, s27, 9
s_add_u32 s39, s39, s40
s_lshl_b32 s42, s25, 11
s_lshl_b32 s40, s3, 2
s_add_u32 s40, s40, s24
s_lshl_b32 s40, s40, 7
s_add_u32 s41, s42, s40
s_mov_b32 s43, {fhex(2.0/(2048*576))}
v_lshlrev_b32 v13, 3, v3
v_mul_u32_u24 v12, 384, v2
v_add_u32 v12, v12, v13
s_lshl_b32 s55, s24, 2
s_add_u32 s55, s55, s3
s_lshl_b32 s55, s55, 2
s_lshl_b32 s40, s25, 7
s_add_u32 s55, s55, s40
v_mov_b32 v250, 1
v_mov_b32 v251, 0""")
    stamp(e, lvl=6)
    pack_finish()
    if WRP:
        Lx = e.label("wrl")
        e(f"s_cmp_eq_u32 s56, 255\ns_cbranch_scc1 {Lx}")
    wnext(OPT.get("wr", 12), 54)
    if WRP: e(f"{Lx}:")
    stamp(e, lvl=6)
    e("s_barrier")
    stamp(e, lvl=6)
    vdma()
    e.wait(vm=("dma", 0))
    e("s_barrier")
    stamp(e); stamp(e, lvl=6)
    def gemm(ph, tr, hook, fill=(), f0=0, f1=18, cinit=False):
        fill = list(fill); nf = len(fill); fi = 0
        def rd(ks, pos):
            for t in range(2):
                b = BF + ((pos % NB)*2 + t)*4
                if tr:
                    ar = (6, 7, 5, 9)[2*(ks // 9) + t]
                    e.lgop(f"ds_read_b64_tr_b16 {vr(b,2)}, v{ar} offset:{(ks % 9)*4096}", ("b", ks))
                    e.lgop(f"ds_read_b64_tr_b16 {vr(b+2,2)}, v{ar} offset:{(ks % 9)*4096+512}", ("b", ks))
                else:
                    e.lgop(f"ds_read_b128 {vr(b)}, v4 offset:{(t*18+ks)*1024}", ("b", ks))
        order = [k // 2 + 9*(k & 1) for k in range(18)] if ph == "T" else list(range(18))
        first_pos = {}
        for pos in range(18):
            idx = (order[pos] % 9) if False else pos // 2
            first_pos.setdefault(stg(idx), pos)
        def rdp(pos):
            for k, p0 in first_pos.items():
                if p0 == pos and k > 0:
                    e.wait(vm=("dma", k))
                    e("s_barrier")
            rd(order[pos], pos)
        for pos in range(NB-1): rdp(pos)
        for pos in range(18):
            ks = order[pos]
            if pos + NB - 1 < 18: rdp(pos + NB - 1)
            e.wait(vm=(ph, ks, 2), lg=("b", ks))
            for u in range(3):
                for t in range(2):
                    d = vr(acc(u, t) + (24 if (ph == "T" and ks >= 9) else 0))
                    first = (ks == 0 and not cinit) or (ph == "T" and ks == 9)
                    e(f"{M16} {d}, {wfrag(ph,ks,u)}, {vr(BF + ((pos % NB)*2 + t)*4)}, {0 if first else d}")
                    g = (pos - f0)*6 + u*2 + t
                    if g >= 0:
                        while fi < min(nf, -(-nf*(g+1) // ((f1 - f0)*6))): emit(fill[fi]); fi += 1
            hook(pos)
        assert fi == nf
    def wsig(phase):
        if OPT.get("wgflag", 0): return
        e(f"s_add_u32 s46, s55, {FLG + phase*8192}\ns_mov_b64 exec, 1")
        e.vmop("buffer_store_dword v250, v251, s[8:11], s46 offen sc1", "f")
        e("s_mov_b64 exec, -1")
    def sq_store(region):
        red_g(e, (90, 91), (92, 93))
        e(f"s_add_u32 s46, s41, {region}\ns_mov_b64 exec, 0xffff")
        e.vmop(f"buffer_store_dwordx2 v[90:91], v13, s[8:11], s46 offen sc1", "st")
        e("s_mov_b64 exec, -1")
    def st16(o, sreg, off):
        e(f"s_nop 0\nv_permlane16_swap_b32 v{o}, v{o+2}\nv_permlane16_swap_b32 v{o+1}, v{o+3}")
        e.vmop(f"buffer_store_dwordx4 {vr(o)}, v8, s[8:11], s{sreg} offen offset:{off} sc1", "st")
    GL, AL = OPT.get("gl", 30), OPT.get("al", 18)
    lim_ = [54]
    GLs = [OPT.get("gl3", 24)]
    def hookw(ks): wnext(GLs[0]*(ks+1)//18 - GLs[0]*ks//18, lim_[0])
    def hook3(ks):
        if XP == 27 + ks: xloads()
        hookw(ks)
    XM = 232
    XF = [224 + i for i in range(20)] + [100, 101, 102, 103]
    xfill = [("wv", "x")]
    for u in range(3):
        for t in range(2):
            x = XR + (u*2+t)*2; f = XF[(u*2+t)*4:(u*2+t)*4+4]
            xfill += [("s", f"v_lshlrev_b32 v{f[0]}, 16, v{x}"), ("s", f"v_and_b32 v{f[1]}, 0xffff0000, v{x}"),
                      ("s", f"v_lshlrev_b32 v{f[2]}, 16, v{x+1}"), ("s", f"v_and_b32 v{f[3]}, 0xffff0000, v{x+1}")]
            xfill += [("s", f"v_sub_f32 v{f[r]}, v{f[r]}, v{14+t}") for r in range(4)]
    xfill += [("s", f"s_add_u32 s44, s39, {HC}"), ("s", "v_mov_b32 v90, 0"), ("s", "v_mov_b32 v91, 0")]
    gemm("T", True, hook3, xfill, 9, 18)
    stamp(e)
    EARLY = OPT.get("early", 0)
    e("s_barrier" if EARLY else "s_nop 0")
    e("s_nop 4")
    for u in range(3):
        o = BF + 4*u
        for t in range(2):
            a = acc(u, t); h = HCR + (u*2+t)*4; f = XF[(u*2+t)*4:(u*2+t)*4+4]
            for r in range(4): e(f"v_{'sub' if r & 1 else 'add'}_f32 v{a+r}, v{a+r}, v{h+r}")
            for r in range(4): e(f"v_fma_f32 v{h+r}, v{a+r}, s43, v{f[r]}")
            e(f"v_cvt_pk_bf16_f32 v{o+2*t}, v{h}, v{h+1}\nv_cvt_pk_bf16_f32 v{o+2*t+1}, v{h+2}, v{h+3}")
            for r in range(4): e(f"v_fmac_f32 v{90+t}, v{h+r}, v{h+r}")
        st16(o, 44, 512*u)
    sq_store(SQH)
    e(f"s_add_u32 s44, s39, {H1S}\ns_add_u32 s47, s42, {SQH}")
    e.wait(vm="st")
    wsig(0)
    LA = OPT.get("la", 4)
    stamp(e, lvl=-1)
    lim_[0] = 54 + 42
    wnext(LA, lim_[0])
    e("s_barrier")
    wnext(AL - LA, lim_[0])
    assert ws_["n"] >= 54
    shift_addrs()
    stamp(e, lvl=1)
    e("s_barrier")
    stamp(e, lvl=1)
    dma_act(4)
    for c in range(3): e.vmop(f"buffer_load_dwordx2 {vr(96+2*c,2)}, v12, s[8:11], s47 offen offset:{128*c} sc1", "q")
    stamp(e, lvl=1)
    e.wait(vm=("dma", 0))
    stamp(e, lvl=1)
    e("s_barrier")
    stamp(e, lvl=-1)
    e3 = Em()
    e3("v_add_f32 v97, v97, v99\nv_add_f32 v96, v96, v98\nv_add_f32 v96, v96, v100\nv_add_f32 v100, v97, v101")
    red_g(e3, (96, 100), (92, 93))
    for t in range(2): e3(f"v_mul_f32 v{96+4*t}, {fhex(1/576)}, v{96+4*t}")
    for t in range(2): e3(f"v_add_f32 v{88+t}, {fhex(EPS)}, v{96+4*t}")
    for t in range(2): e3(f"v_rsq_f32 v{88+t}, v{88+t}")
    e3("s_nop 0")
    for t in range(2): e3(f"v_mul_f32 v{98+4*t}, v{88+t}, v{88+t}")
    for t in range(2): e3(f"v_mul_f32 v{98+4*t}, v{98+4*t}, v{96+4*t}")
    for t in range(2): e3(f"v_add_f32 v{98+4*t}, {fhex(EPS)}, v{98+4*t}")
    for t in range(2): e3(f"v_rsq_f32 v{98+4*t}, v{98+4*t}")
    e3("s_nop 0")
    for t in range(2): e3(f"v_mul_f32 v{96+4*t}, v{88+t}, v{98+4*t}")
    for t in range(2): gelu_consts(e3, 96+4*t, 97+4*t, 98+4*t, 99+4*t)
    GLs[0] = OPT.get('gl4', 36)
    def hook4(ks):
        if ks == 4: lim_[0] = 108
        hookw(ks)
    gemm("W1", False, hook4, [("wv", "q")] + [("s", l.strip()) for l in e3.L], 2, 17)
    stamp(e)
    e("s_barrier" if EARLY else "s_nop 0")
    e("s_nop 4")
    for u in range(3):
        o = BF + 4*u
        for t in range(2):
            a = acc(u, t); s = 96 + 4*t
            for l in gelu4(a, 92, s+1, s+2, s+3): e(l)
            e(f"v_cvt_pk_bf16_f32 v{o+2*t}, v92, v93\nv_cvt_pk_bf16_f32 v{o+2*t+1}, v94, v95")
        e("s_nop 0")
        st16(o, 44, 512*u)
    e(f"s_add_u32 s44, s39, {X6}\nv_lshlrev_b32 v98, 2, v3\nv_mov_b32 v90, 0\nv_mov_b32 v91, 0")
    e.wait(vm="st")
    wsig(1)
    stamp(e, lvl=-1)
    wnext(LA)
    e("s_barrier")
    wnext(108)
    for u in range(3):
        for t in range(2):
            a = acc(u, t); h = HCR + (u*2+t)*4
            for r in range(4): e(f"v_mul_f32 v{a+r}, v{h+r}, v{88+t}")
            for r in range(4): e(f"v_add_f32 v{h+r}, v{h+r}, v{14+t}")
    stamp(e, lvl=1)
    e("s_barrier")
    stamp(e, lvl=1)
    dma_act(5)
    stamp(e, lvl=1)
    e.wait(vm=("dma", 0))
    stamp(e, lvl=1)
    e("s_barrier")
    stamp(e, lvl=-1)
    N5 = OPT.get("n5", 27)
    st5 = {"n": 0}
    def hook5(ks):
        while st5["n"] < min(N5, 3*ks + 3, (3*(ks+1))//2):
            for x in wload6(st5["n"]): emit(x)
            st5["n"] += 1
    gemm("W2", False, hook5, cinit=True)
    assert st5["n"] == N5
    stamp(e)
    e("s_barrier")
    e.lgop("ds_read_b32 v96, v98 offset:36864", "m"); e.lgop("ds_read_b32 v97, v98 offset:36928", "m")
    e("s_nop 3")
    for u in range(3):
        for t in range(2):
            a = acc(u, t); h = HCR + (u*2+t)*4
            for r in range(4): e(f"v_add_f32 v{h+r}, v{h+r}, v{a+r}")
    e.wait(lg="all")
    for u in range(3):
        x = BF + 4*u
        for t in range(2):
            a = acc(u, t)
            for r in range(4): e(f"v_sub_f32 v{a+r}, v{a+r}, v{96+t}")
            e(f"v_cvt_pk_bf16_f32 v{x+2*t}, v{a}, v{a+1}\nv_cvt_pk_bf16_f32 v{x+2*t+1}, v{a+2}, v{a+3}")
            for r in range(4): e(f"v_fmac_f32 v{90+t}, v{a+r}, v{a+r}")
        st16(x, 44, 512*u)
    sq_store(SQ1)
    for u in range(3):
        for t in range(2):
            h = HCR + (u*2+t)*4; o = BASE + 4*u + 2*t
            e(f"v_cvt_pk_bf16_f32 v{o}, v{h}, v{h+1}\nv_cvt_pk_bf16_f32 v{o+1}, v{h+2}, v{h+3}")
    e.wait(vm="st")
    wsig(2)
    if not OPT.get("l5"): e("s_barrier")
    vm_p6 = list(e.vm)
    stamp(e)
    nst_main = NST
    setup6()
    if OPT.get("l5"): e("s_barrier")
    e(f"s_barrier\ns_branch {Lp6}")
    def poll(phase, areg, nl=0):
        Lp = e.label("poll"); Ld = e.label("pd")
        if OPT.get("wgflag", 0):
            e(f"s_lshl_b32 s46, s25, 7\ns_lshl_b32 s47, s24, 4\ns_add_u32 s46, s46, s47\ns_add_u32 s46, s46, {FLG + phase*8192}\ns_mov_b64 exec, 1\nbuffer_store_dword v250, v251, s[8:11], s46 offen sc1\ns_mov_b64 exec, -1")
        ld = lambda r: f"buffer_load_dword v{r}, v{areg}, s[8:11], s46 offen sc1"
        if OPT.get("pipe", 0):
            e(f"""s_mov_b32 s46, {FLG + phase*8192}
s_mov_b32 s47, 0x20000
{ld(252)}
s_sleep {OPT.get('psl', 3)}
{Lp}:
{ld(253)}
s_waitcnt vmcnt(1)
v_cmp_ne_u32 vcc, 1, v252
s_cbranch_vccz {Ld}
{ld(252)}
s_waitcnt vmcnt(1)
v_cmp_ne_u32 vcc, 1, v253
s_cbranch_vccz {Ld}
s_sub_u32 s47, s47, 1
s_cbranch_scc0 {Lp}
{Ld}:""")
        else:
            e(f"""s_mov_b32 s46, {FLG + phase*8192}
s_mov_b32 s47, 0x40000
{("s_sleep %d" % OPT["ps0"]) if OPT.get("ps0") else "s_nop 0"}
{Lp}:
{ld(252)}
s_waitcnt vmcnt(0)
v_cmp_ne_u32 vcc, 1, v252
s_cbranch_vccz {Ld}
s_sub_u32 s47, s47, 1
s_cbranch_scc0 {Lp}
{Ld}:""")
        e.vm = ["p"]
    e(f"{Lw3}:")
    e.vm = []; e.lg = []
    Lef = e.label("efd")
    e(f"""s_cmp_lg_u32 s56, 255
s_cbranch_scc1 {Lef}
v_lshlrev_b32 v16, 3, v2
v_lshrrev_b32 v17, 2, v3
v_add_u32 v16, v16, v17
v_lshlrev_b32 v16, 7, v16
v_and_b32 v17, 3, v3
v_lshl_add_u32 v16, v17, 3, v16
v_add_u32 v17, 55296, v4
v_add_u32 v18, 16384, v16""")
    for i in range(6):
        if i == 3: e(f"s_bitcmp1_b32 s58, 0\ns_cbranch_scc1 {Lef}")
        for tt in range(4):
            o = 16*i + 4*tt; off = 49152 + i*4096 + 32*tt
            e.lgop(f"ds_read_b64_tr_b16 {vr(o,2,'a')}, v16 offset:{off}" if off + 512 < 65536 else f"ds_read_b64_tr_b16 {vr(o,2,'a')}, v18 offset:{off - 16384}", (i, tt))
            e.lgop(f"ds_read_b64_tr_b16 {vr(o+2,2,'a')}, v16 offset:{off + 512}" if off + 512 < 65536 else f"ds_read_b64_tr_b16 {vr(o+2,2,'a')}, v18 offset:{off + 512 - 16384}", (i, tt))
        for tt in range(4):
            e.wait(lg=(i, tt))
            e.vmop(f"buffer_store_dwordx4 {vr(16*i + 4*tt, 4, 'a')}, v{(4,10,11,17)[tt]}, s[8:11], s{50 + i//3} offen sc1", "pst")
        if i % 3 < 2: e(f"s_add_u32 s{50 + i//3}, s{50 + i//3}, 73728")
    e(f"{Lef}:")
    PKL = 40960
    if W4K3:
        e.srd(16, 20, 5308416)
        e("s_cmp_lt_u32 s2, 216\ns_cselect_b32 s18, 5308416, 0")
        e("v_lshrrev_b32 v16, 3, v1\nv_mul_u32_u24 v16, 1152, v16\nv_and_b32 v17, 7, v1\nv_lshl_add_u32 v16, v17, 4, v16")
        for k in range(2):
            e(f"s_lshl_b32 s40, s2, 1\ns_add_u32 s40, s40, {k}")
            sdiv(e, 3, 41, 42, 40, 46); sdiv(e, 18, 43, 44, 41, 46)
            e(f"""s_mul_i32 s{36+k}, s43, 663552
s_lshl_b32 s45, s44, 10
s_add_u32 s{36+k}, s{36+k}, s45
s_mul_i32 s45, s42, {3*73728}
s_add_u32 s{36+k}, s{36+k}, s45
s_add_u32 s{36+k}, s{36+k}, {W4P}
s_mul_i32 s40, s43, 576
s_and_b32 s45, s44, 1
s_mul_i32 s45, s45, 288
s_add_u32 s40, s40, s45
s_lshr_b32 s45, s44, 1
s_lshl_b32 s45, s45, 4
s_add_u32 s40, s40, s45
s_mul_i32 s40, s40, 1152
s_mul_i32 s45, s42, 384
s_add_u32 s40, s40, s45""")
            for f in range(4):
                for it in range(3):
                    e(f"s_mov_b32 m0, {PKL + k*12288 + it*4096 + f*1024 - it*128}")
                    e(f"s_add_u32 s40, s40, {1152*(136 if f == 2 else 8)}" if (it == 0 and f) else "s_nop 0")
                    e.vmop(f"buffer_load_dwordx4 v16, s[16:19], s40 offen offset:{128*it} {OPT.get('ld_pk','nt')} lds", ("pk", k))
    e(f"""v_mov_b32 v250, 1
v_mov_b32 v251, 0
v_and_b32 v19, 3, v1
v_min_u32 v19, {0 if OPT.get('wgflag', 0) else 2}, v19
v_lshlrev_b32 v19, 2, v19
v_bfe_u32 v20, v1, 2, 2
v_lshl_add_u32 v19, v20, 4, v19
s_lshl_b32 s46, s25, 7
v_add_u32 v247, s46, v19
v_bfe_u32 v21, v1, 4, 1
v_and_b32 v22, 1, v20
v_lshlrev_b32 v22, 1, v22
v_add_u32 v22, -1, v22
v_mul_lo_u32 v22, v22, v21
v_add_u32 v22, s25, v22
v_and_b32 v22, 63, v22
v_lshl_add_u32 v248, v22, 7, v19
s_lshl_b32 s46, s26, 8
v_lshl_add_u32 v249, v21, 7, v19
v_add_u32 v249, s46, v249""")
    if W4K3:
        e(f"""s_mul_i32 s46, s28, 108
s_add_u32 s46, s46, {3*8192}
v_subrev_u32 v19, 32, v1
v_min_u32 v19, 26, v19
v_lshlrev_b32 v19, 2, v19
v_add_u32 v19, s46, v19
v_cmp_lt_u32 vcc, 31, v1
s_nop 1
v_cndmask_b32 v249, v249, v19, vcc""")
    e(f"""s_mul_i32 s46, s28, 27
s_lshr_b32 s46, s46, 1
v_min_u32 v18, 14, v1
v_add_u32 v18, s46, v18
v_min_u32 v18, 107, v18
s_mul_i32 s46, s28, 18
s_add_u32 s46, s46, 108
v_subrev_u32 v19, 32, v1
v_min_u32 v19, 17, v19
v_cmp_lt_u32 vcc, 31, v1
v_add_u32 v19, s46, v19
s_nop 0
v_cndmask_b32 v18, v18, v19, vcc
v_lshlrev_b32 v18, 2, v18""")
    Lq, Lqd = e.label("gp"), e.label("gpd")
    POLL2 = """buffer_load_dwordx4 v[20:23], v19, s[8:11], s46 offen sc1
s_waitcnt vmcnt(0)
v_and_b32 v20, v20, v21
v_and_b32 v22, v22, v23
v_and_b32 v20, v20, v22
"""
    if OPT.get('pad16', 1):
        e("v_min_u32 v17, 15, v1\nv_lshlrev_b32 v17, 4, v17")
        POLL2 = """buffer_load_dword v20, v4, s[8:11], s46 offen sc1
buffer_load_dword v21, v4, s[8:11], s46 offen offset:1024 sc1
buffer_load_dword v22, v17, s[8:11], s46 offen offset:2048 sc1
s_waitcnt vmcnt(0)
v_and_b32 v20, v20, v21
v_and_b32 v20, v20, v22
"""
    e(f"""v_min_u32 v19, 35, v1
v_lshlrev_b32 v19, 4, v19
s_lshr_b32 s46, s2, {OPT.get('rsh', 3)}
s_and_b32 s46, s46, {OPT.get('nrep', 4) - 1}
s_mul_i32 s46, s46, {2304 if OPT.get('pad16', 1) else 640}
s_add_u32 s46, s46, {FLG2}
s_mov_b32 s47, 0x40000
{"s_barrier" if OPT.get("qb", 20) < 27 else "s_nop 0"}
s_cmp_eq_u32 s56, 255
s_cbranch_scc1 {Lq}s
s_barrier
{Lq}s:
{('s_sleep %d' % OPT.get('gs1', 0)) if OPT.get('gs1', 0) else 's_nop 0'}
{Lq}:
{POLL2}v_cmp_ne_u32 vcc, 1, v20
s_cbranch_vccz {Lqd}
s_sleep {OPT.get('gsl', 8)}
s_sub_u32 s47, s47, 1
s_cbranch_scc0 {Lq}
{Lqd}:
s_barrier""")
    e.vm = []
    vdma()
    w3_stages()
    shift_addrs()
    for ks in range(18):
        if ks % 4 == 0: e(f"s_mov_b32 s40, {W2P + 36*18432 + ks*1024}")
        e.vmop(f"buffer_load_dwordx4 {vr(4*ks,4,'a')}, v4, s[8:11], s40 offen offset:{(ks&3)*1024}", "mw")
    e("s_barrier")
    e.wait(vm="all")
    Lnf = e.label("nopf")
    e(f"s_add_u32 s46, s58, 108\ns_cmp_eq_u32 s56, 255\ns_cselect_b32 s46, s46, s56\ns_cselect_b32 s47, 0, s56\ns_cmp_ge_u32 s47, 108\ns_cbranch_scc1 {Lnf}\ns_lshl_b32 s46, s46, 2\ns_add_u32 s46, s46, {FLG + 6*8192}\ns_mov_b64 exec, 1\nbuffer_store_dword v250, v251, s[8:11], s46 offen sc1\ns_mov_b64 exec, -1\n{Lnf}:")
    poll(0, 247)
    if W4K3:
        e(f"s_lshl_b32 s46, s2, 2\ns_add_u32 s46, s46, {FLG + 5*8192}\ns_mov_b64 exec, 1\nbuffer_store_dword v250, v251, s[8:11], s46 offen sc1\ns_mov_b64 exec, -1")
        e.vm.append("f")
    e("s_barrier")
    dma_act(4); w3_stages()
    poll(6, 18)
    e("s_barrier")
    poll(1, 248)
    e("s_barrier")
    dma_act(5); w3_stages()
    NR = 3
    def rdm(ks):
        for t in range(2): e.lgop(f"ds_read_b128 {vr(40+((ks%NR)*2+t)*4)}, v4 offset:{(t*18+ks)*1024}", ks)
    for ks in range(NR-1): rdm(ks)
    for ks in range(18):
        if ks + NR - 1 < 18: rdm(ks + NR - 1)
        e.wait(lg=ks)
        for t in range(2):
            e(f"{M16} {vr(32+4*t)}, {vr(4*ks,4,'a')}, {vr(40+((ks%NR)*2+t)*4)}, {vr(32+4*t) if ks else 0}")
    e("v_lshlrev_b32 v23, 2, v3\ns_nop 7\nv_add_f32 v32, v32, v33\nv_add_f32 v36, v36, v37\ns_mov_b64 exec, 0xffff\nds_write_b32 v23, v32 offset:36864\nds_write_b32 v23, v36 offset:36928\ns_mov_b64 exec, -1")
    for n in range(N5):
        for x in wload6(n): emit(x)
    e("s_waitcnt lgkmcnt(0)\ns_barrier")
    setup6()
    e.wait(vm="all")
    if not EARLY: e("s_barrier")
    poll(2, 249)
    e("s_barrier")
    e(f"{Lp6}:")
    globals()["NST"] = nst_main
    e.vm = vm_p6; e.lg = []
    stamp(e)
    def X(t4, ks):
        i = ks*4 + t4
        return vr(4*i, 4, "a") if i < 64 else vr(XV + 4*(i-64))
    XS = OPT.get("xs", (0, 4, 10))
    stamp(e, lvl=4)
    def xdma(i):
        L = []
        if i % 4 == 0: L.append(("s", f"s_add_u32 m0, s32, {i*1024}\n" + ("s_add_u32 s40, s40, 4096" if i else "s_nop 0")))
        L.append(("v", f"buffer_load_dwordx4 v4, s[8:11], s40 offen offset:{(i&3)*1024} sc1 lds", ("xd", sum(1 for b in XS if b <= i) - 1)))
        return L
    X0 = OPT.get("x0", 18)
    for i in range(X0):
        for x in xdma(i): emit(x)
    sqld = [("v", f"buffer_load_dwordx2 {vr(TT+6*tp+2*c,2)}, v6, s[8:11], s37 offen offset:{2048*tp + 128*c} sc1", "q") for tp in range(2) for c in range(3)]
    late = [xdma(i) for i in range(X0, 18)] + [[x] for x in sqld]
    def bread(ks, hb):
        out = []
        for t4 in range(4):
            off = (t4*18 + ks)*1024
            base = (4, 11) if not hb else (12, 13)
            breg = base[0] if off < 36864 else base[1]
            out.append(("l", f"ds_read_b128 {X(t4,ks)}, v{breg} offset:{off % 36864}", ("b", hb, ks)))
        return out
    def const_fill():
        e2 = Em()
        R = [TT+12+t for t in range(4)]
        for t4 in range(4):
            b = TT + 6*(t4 >> 1) + (t4 & 1)
            e2(f"v_add_f32 v{R[t4]}, v{b}, v{b+2}\nv_add_f32 v{R[t4]}, v{R[t4]}, v{b+4}")
        red_g(e2, R, [TMP+t for t in range(4)])
        for r in R: e2(f"v_mul_f32 v{r}, {fhex(1/576)}, v{r}")
        for r in R: e2(f"v_add_f32 v{r}, {fhex(EPS)}, v{r}")
        for r in R: e2(f"v_rsq_f32 v{r}, v{r}")
        e2("s_nop 0")
        for t4 in range(4): gelu_consts(e2, R[t4], KC+t4, KC+4+t4, KC+8+t4)
        return [("wv", "q")] + [("s", l.strip()) for l in e2.L]
    def gelu_fill(ft):
        L = []
        for t4 in range(4):
            L += [("s", l) for l in gelu4(TT+4*t4, TMP, KC+t4, KC+4+t4, KC+8+t4)]
            L += [("s", f"v_cvt_pk_bf16_f32 v{PK+2*t4}, v{TMP}, v{TMP+1}"), ("s", f"v_cvt_pk_bf16_f32 v{PK+2*t4+1}, v{TMP+2}, v{TMP+3}")]
            L += [("l", f"ds_write_b64 v{8 + (t4>>1)}, {vr(PK+2*t4,2)} offset:{ft*2048 + (t4&1)*18432}", ("h", ft))]
        return L
    def out_fill(b):
        dt = ORD[b]
        L = [("s", f"s_add_u32 s35, s34, {dt*2048}")]
        for tp in range(2):
            for h in range(2):
                a = TT + 4*(2*tp+h)
                L += [("s", f"v_cvt_pk_bf16_f32 v{PK+4*tp+2*h}, v{a}, v{a+1}"), ("s", f"v_cvt_pk_bf16_f32 v{PK+4*tp+2*h+1}, v{a+2}, v{a+3}")]
            L += [("v", f"buffer_store_dwordx4 {vr(PK+4*tp)}, v4, s[8:11], s35 offen offset:{tp*1024} {OPT.get('sc_part','sc1')}", "st")]
            L += [("l", f"ds_write_b128 v14, {vr(PK+4*tp)} offset:{(dt*2+tp)*1024}", "o")]
        return L
    def block(blk, fill, G0=4, G1=66, pre=None, post=None, ramp0=0):
        nf = len(fill); fi = 0
        if OPT.get("alg"): e.L.append(f".p2align {OPT['alg']}")
        if OPT.get("alg4"): e("s_nop 0")
        for ks in range(18):
            n = blk*18 + ks
            lgw = None
            if (blk, ks) in OPT.get("pts", ()): stamp(e, lvl=3)
            if pre:
                for x in pre(ks): emit(x)
                lgw = [("b", False, ks), ("b", True, ks)]
            WG_ = OPT.get("wgrp", 2)
            e.wait(vm=[("w", n+j) for j in range(WG_)] if ks % WG_ == 0 else None, lg=lgw)
            for t4 in range(4):
                d = vr(TT+4*t4) if ks == 17 else vr(AC+4*t4)
                c = vr(AC+4*t4) if ks else "0"
                e(f"{M16} {d}, {vr(RING+4*(n % NPF))}, {X(t4,ks)}, {c}")
                gap = ks*4 + t4
                if ks >= ramp0 and t4 in (1, 3) and st5["n"] < NT and st5["n"] < n + NPF + (t4 == 3):
                    for x in wload6(st5["n"]): emit(x)
                    st5["n"] += 1
                if t4 == 3 and post:
                    for x in post(ks): emit(x)
                if gap >= G0:
                    tgt = min(nf, -(-nf*(gap - G0 + 1) // (G1 - G0)))
                    while fi < tgt: emit(fill[fi]); fi += 1
        assert fi == nf
    AH = 2
    def pre0(ks):
        L = []
        tgt = [ks + AH] if ks else list(range(AH + 1))
        for k in tgt:
            if k < 18:
                if k in XS: L += [("wv", ("xd", XS.index(k))), ("s", "s_barrier"), ("st", 4)]
                L += bread(k, False)
        return L
    stamp(e, lvl=4)
    def post0(ks):
        L = []
        for _ in range(3):
            if late: L += late.pop(0)
        return L
    block(0, const_fill(), 36, 66, pre=pre0, post=post0, ramp0=OPT.get("ramp0", 0))
    assert not late
    stamp(e, lvl=4)
    stamp(e)
    if not OPT.get('pts'): stamp(e, lvl=3)
    for ft in range(1, 8):
        block(ft, gelu_fill(ft-1), OPT.get('g0', 4), OPT.get('g1', 66))
        if ft in (1, 3, 5, 7) and not OPT.get('pts'): stamp(e, lvl=3)
        if ft in (1, 2): stamp(e, lvl=4)
    e.wait(lg="all")
    e("s_barrier")
    HB8 = OPT.get("hb8", 14)
    block(8, gelu_fill(7), post=lambda ks: bread(ks - (14 - HB8) - OPT.get("hbd", 0), True) if 0 <= ks - (14 - HB8) - OPT.get("hbd", 0) < HB8 else [])
    stamp(e)
    def pre9(ks):
        L = []
        if HB8 <= ks + 3 < 14: L += bread(ks + 3, True)
        if ks == 12: L += [("wl", ("h", 8)), ("s", "s_barrier")] + bread(14, True) + bread(15, True)
        if ks == 13: L += bread(16, True) + bread(17, True)
        return L
    if not OPT.get('pts'): stamp(e, lvl=3)
    block(9, gelu_fill(8), 3, OPT.get('g9', 46), pre=pre9)
    if not OPT.get('pts'): stamp(e, lvl=3)
    e2 = Em()
    e2.srd(12, 22, A_)
    e2(f"""s_lshl_b32 s38, s26, 2
s_add_u32 s38, s38, s24
s_mul_i32 s38, s38, 9
s_mul_i32 s39, s3, 3
s_add_u32 s38, s38, s39
s_lshl_b32 s38, s38, 1
s_add_u32 s38, s38, s29
s_lshl_b32 s38, s38, 10
s_add_u32 s38, s38, {PART}
s_mul_i32 s40, s25, {32*1152}
s_lshl_b32 s36, s27, 5
s_add_u32 s40, s40, s36
v_bfe_u32 v5, v3, 2, 1
v_lshlrev_b32 v5, 4, v5
v_lshrrev_b32 v7, 3, v3
v_lshl_add_u32 v5, v7, 2, v5
v_and_b32 v7, 3, v3
v_add_u32 v5, v5, v7
v_mul_u32_u24 v6, 1152, v5
v_lshl_add_u32 v6, v2, 3, v6
v_add_u32 v7, 9216, v6
v_add_u32 v11, 4096, v4
s_mul_i32 s41, s24, 18432
s_mul_i32 s42, s3, 6144
s_add_u32 s41, s41, s42
s_lshl_b32 s42, s29, 10
s_add_u32 s41, s41, s42
v_add_u32 v9, s41, v4
v_mov_b32 v250, 1
v_mov_b32 v251, 0
s_lshl_b32 s44, s26, 9
s_lshl_b32 s45, s24, 5
s_add_u32 s45, s45, s44
v_and_b32 v247, 7, v1
v_lshlrev_b32 v247, 2, v247
v_add_u32 v247, s45, v247
s_lshl_b32 s45, s3, 5
s_add_u32 s44, s44, s45
s_lshl_b32 s45, s28, 2
s_add_u32 s44, s44, s45
s_add_u32 s44, s44, {FLG + 3*8192}
s_mov_b32 s45, {FLG + 3*8192}""")
    e2(f"s_mov_b32 s48, s8\ns_mov_b32 s49, s9\ns_mov_b32 s51, 0x00020000")
    for i in range(7):
        e2(f"s_add_u32 s42, s28, {i+1}\ns_and_b32 s42, s42, 7\ns_mul_i32 s42, s42, {A_}\ns_add_u32 s{52+i}, s42, s38")
    setup7 = [("s", l.strip()) for l in e2.L] + [("s", f"s_cmp_eq_u32 s3, 3\ns_cselect_b32 s50, 0, {WS_SIZE}")]
    def flag_store(off):
        return [("s", "s_mov_b64 exec, 1"), ("v", f"buffer_store_dword v250, v251, s[8:11], s44 offen offset:{off} sc1", "f"), ("s", "s_mov_b64 exec, -1")]
    def poll7(off, first_tag=None):
        Lp = e.label("poll"); Ld = e.label("pd")
        if first_tag:
            e.wait(vm=first_tag)
            e(f"v_cmp_ne_u32 vcc, 1, v252\ns_cbranch_vccz {Ld}")
        e(f"""s_mov_b32 s47, 0x40000
{Lp}:
buffer_load_dword v252, v247, s[8:11], s45 offen offset:{off} sc1
s_waitcnt vmcnt(0)
v_cmp_ne_u32 vcc, 1, v252
s_cbranch_vccz {Ld}
s_sub_u32 s47, s47, 1
s_cbranch_scc0 {Lp}
{Ld}:""")
        if not first_tag: e.vm = []
    FK, PKS, G2 = OPT.get("fk", 1), OPT.get("pks", 14), OPT.get("g2", 28)
    def slot(i): return RING + 4*((292 + i) % NPF)
    def rload(i):
        return [("v", f"buffer_load_dwordx4 {vr(slot(i))}, v4, s[48:51], s{52 + i % 7} offen offset:{2048*(i//7)} sc1", ("r", i))]
    def chk(off):
        Lp = e.label("poll"); Ld = e.label("pd")
        return [("wv", "pa"), ("s", f"""v_cmp_ne_u32 vcc, 1, v252
s_cbranch_vccz {Ld}
s_mov_b32 s47, 0x40000
{Lp}:
buffer_load_dword v252, v247, s[8:11], s45 offen offset:{off} sc1
s_waitcnt vmcnt(0)
v_cmp_ne_u32 vcc, 1, v252
s_cbranch_vccz {Ld}
s_sub_u32 s47, s47, 1
s_cbranch_scc0 {Lp}
{Ld}:""")]
    def pa(off): return [("v", f"buffer_load_dword v252, v247, s[8:11], s45 offen offset:{off} sc1", "pa")]
    S = dict(sigA=13*18+1, paA=15*18+10, chkA=16*18, sigB=16*18+1, paB=16*18+14, chkB=17*18, stepB=2)
    S.update(OPT.get("sched", {}))
    ev_pre = {}
    def add(pos, L): ev_pre.setdefault(pos, []).extend(L)
    add(S["sigA"], [("wv", ("stf", 3))] + flag_store(0))
    add(S["paA"], pa(0)); add(S["chkA"], None or [("chk", 0)])
    add(S["sigB"], [("wv", ("stf", 6))] + flag_store(128))
    add(S["paB"], pa(128)); add(S["chkB"], [("chk", 128)])
    ev_post = {}
    for i in range(7): ev_post.setdefault(max(S["chkA"], 292) + i, []).extend(rload(i))
    for i in range(7): ev_post.setdefault(min(S["chkB"] + S["stepB"]*i, 323), []).extend(rload(7 + i))
    for dt in range(1, 9):
        fill = out_fill(dt-1)
        if dt == 1: fill = fill + setup7
        if dt in (3, 6): fill = [(x[0], x[1], ("stf", dt)) if x[0] == "v" else x for x in fill]
        def pre(ks, b=9+dt):
            L = []
            for x in ev_pre.get(b*18 + ks, []): L += chk(x[1]) if x[0] == "chk" else [x]
            return L
        post = lambda ks, b=9+dt: ev_post.get(b*18 + ks, [])
        block(9+dt, fill, 4, 66 if dt == 1 else G2, pre=pre, post=post)
        if dt in (1, 2, 4, 6, 8) and not OPT.get('pts'): stamp(e, lvl=3)
    stamp(e)
    e("s_nop 7")
    for x in out_fill(8): emit(x)
    def accum(x, a): e(f"v_lshlrev_b32 v8, 16, v{x}\nv_and_b32 v5, 0xffff0000, v{x}\nv_add_f32 v{a}, v{a}, v8\nv_add_f32 v{a+1}, v{a+1}, v5")
    for k in range(3):
        for j in range(4):
            x = BASE + 4*k + j; a = 16 + 8*k + 2*j
            e(f"v_lshlrev_b32 v{a}, 16, v{x}\nv_and_b32 v{a+1}, 0xffff0000, v{x}")
    e.wait(vm="st", lg="all")
    for x in flag_store(256): emit(x)
    Lep = e.label("ep")
    e(f"s_barrier\ns_cmp_eq_u32 s3, 3\ns_cbranch_scc1 {Lep}")
    for k in range(3): e.lgop(f"ds_read_b128 {vr(48+4*k)}, v9 offset:{2048*k}", "p")
    for i in range(14):
        for j in range(4): accum(slot(i) + j, 16 + 8*(i // 7) + 2*j)
    e.wait(lg="all")
    for k in range(3):
        for j in range(4): accum(48 + 4*k + j, 16 + 8*k + 2*j)
    def fin(k):
        for j in range(4): e(f"v_cvt_pk_bf16_f32 v{48+4*k+j}, v{16+8*k+2*j}, v{17+8*k+2*j}")
        e(f"buffer_store_dwordx2 {vr(48+4*k,2)}, v6, s[12:15], s40 offen offset:{32*k} {OPT.get('sc_out','')}\nbuffer_store_dwordx2 {vr(50+4*k,2)}, v7, s[12:15], s40 offen offset:{32*k} {OPT.get('sc_out','')}")
    stamp(e, lvl=2)
    poll7(256)
    stamp(e)
    for sl in range(7):
        e.vmop(f"buffer_load_dwordx4 {vr(64+4*sl)}, v11, s[8:11], s{52+sl} offen sc1", sl)
    fin(0); fin(1)
    e.vm += ["o"]*4
    for sl in range(7):
        e.wait(vm=sl)
        for j in range(4): accum(64 + 4*sl + j, 32 + 2*j)
    fin(2)
    e(f"{Lep}:")
    epi(e, name, Lend, 3, 512, 256)
    e.add_launch(name, 256, lds=147456)

def build(stamp=False, only=None, **opt):
    global STAMP, OPT
    STAMP = stamp; OPT = opt
    e = Em()
    e.L.append(".p2align 8\ncode_begin:\ns_nop 0")
    for k in (only or ["k1", "k3"]): globals()[k](e)
    e.L.append("code_end:\ns_nop 0")
    return finish(e)

if __name__ == "__main__":
    import sys, hazard
    out = "sequential_preLN__spectral_gfnet__mixer_s_mlp__prompt.s"
    txt = build(False)
    open(out, "w").write(txt); open("cur.s", "w").write(txt)
    errs = hazard.check(txt.split("\n")) + hazard.check_async(txt.split("\n"))
    print("\n".join(errs[:40])); print(len(errs), "hazards;", len(txt), "bytes")
    open("stamp.s", "w").write(build(True))
```
